```python
import torch

def _softmax(x, axis=-1):
    return torch.softmax(x, dim=axis)
def _gelu(x):
    return torch.nn.functional.gelu(x, approximate="tanh")
def _silu(x):
    return torch.nn.functional.silu(x)
def _sigmoid(x):
    return torch.sigmoid(x)
def _layernorm(x, axis=-1, eps=1e-5):
    m = x.mean(dim=axis, keepdim=True)
    v = x.var(dim=axis, keepdim=True, unbiased=False)
    return (x - m) / torch.sqrt(v + eps)
def _scatter_add(tgt, idx, src, axis=0):
    return tgt.clone().index_add_(axis, idx, src)
def _segment_sum(src, seg, n):
    out = torch.zeros((n,) + src.shape[1:], dtype=src.dtype)
    return out.index_add_(0, seg, src)
def _pad(x, pw):
    flat = tuple(v for pair in reversed(pw) for v in pair)
    return torch.nn.functional.pad(x, flat)

kernel_name = 'standalone__softmax_full_mha__prompt'

def setup_inputs():

    _w = (lambda a: (lambda t: t.to(torch.bfloat16) if t.is_floating_point() else t)(torch.as_tensor(a)))
    B, S, D = 1, 2048, 640
    return {
        "x": _w((lambda *s: torch.randn(*s, dtype=torch.bfloat16) * 0.2)(B, S, D)),
        "wqkv": _w((lambda *s: torch.randn(*s, dtype=torch.bfloat16) * 0.2)(D, 3 * D)),
        "wo": _w((lambda *s: torch.randn(*s, dtype=torch.bfloat16) * 0.05)(D, D)),
    }

def reference(x, wqkv, wo):
    B, S, D = x.shape
    H = 32; Dh = D // H
    qkv = (lambda x, *d: x.permute(*d))((x @ wqkv).reshape(B, S, 3, H, Dh), 2, 0, 3, 1, 4)
    q, k, v = qkv[0], qkv[1], qkv[2]
    scale = Dh ** -0.5
    scores = torch.einsum("bhqd,bhkd->bhqk", q, k) * scale
    p = _softmax(scores, axis=-1)
    o = torch.einsum("bhqk,bhkd->bhqd", p, v)
    return (lambda x, *d: x.permute(*d))(o, 0, 2, 1, 3).reshape(B, S, D) @ wo
```

```python
class Asm:
    def __init__(self):
        self.lines = []
    def __call__(self, s=""):
        for l in s.split("\n"):
            l = l.strip()
            if not l:
                continue
            if l.endswith(":") or l.startswith("."):
                self.lines.append(l)
            else:
                self.lines.append("    " + l)
    def c(self, s):
        self.lines.append("    ; " + s)
    def text(self):
        return "\n".join(self.lines) + "\n"

def vr(a, n=1):
    return f"v{a}" if n == 1 else f"v[{a}:{a+n-1}]"
def sr(a, n=1):
    return f"s{a}" if n == 1 else f"s[{a}:{a+n-1}]"

def kernel_begin(a, name):
    a(f".globl {name}")
    a(".p2align 8")
    a(f".type {name},@function")
    a(f"{name}:")

def descriptor(name, vgpr, sgpr=102, agpr=0):
    acc = (vgpr + 3) // 4 * 4
    nfv = vgpr if agpr == 0 else acc + agpr
    return f""".p2align 6
.amdhsa_kernel {name}
  .amdhsa_next_free_vgpr {nfv}
  .amdhsa_next_free_sgpr {sgpr}
  .amdhsa_accum_offset {acc}
  .amdhsa_group_segment_fixed_size 0
  .amdhsa_kernarg_size 48
  .amdhsa_user_sgpr_count 2
  .amdhsa_user_sgpr_kernarg_segment_ptr 1
  .amdhsa_system_sgpr_workgroup_id_x 1
.end_amdhsa_kernel
"""

def srd(a, d, base, nbytes, add=0):
    if add:
        a(f"s_add_u32 s{d}, s{base}, {add}")
        a(f"s_addc_u32 s{d+1}, s{base+1}, 0")
    else:
        a(f"s_mov_b32 s{d}, s{base}")
        a(f"s_mov_b32 s{d+1}, s{base+1}")
    a(f"s_mov_b32 s{d+2}, {nbytes}")
    a(f"s_mov_b32 s{d+3}, 0x00020000")

STAMP_OFF = 16 << 20
def stamp(a, cfg, i, real=False, grp=None):
    if not cfg.get("stamp"): return
    if 8 <= i <= 12 and cfg.get("grp") != grp: return
    op = "s_memrealtime" if (real or cfg["stamp"] == 2) else "s_memtime"
    a(f"{op} s[{64+2*i}:{65+2*i}]")
def stamp_flush(a, cfg, region, wave_sgpr, waves, wsptr=4, tmp=240):
    if not cfg.get("stamp"): return
    a("s_waitcnt lgkmcnt(0)")
    a("s_mov_b64 exec, -1")
    srd(a, 96, wsptr, 1 << 20, add=STAMP_OFF + region * (1 << 20))
    a(f"s_mul_i32 s100, s2, {waves}")
    a(f"s_add_u32 s100, s100, s{wave_sgpr}")
    a("s_lshl_b32 s100, s100, 6")
    a("s_waitcnt vmcnt(0)")
    for i in range(16):
        a(f"v_mov_b32 v{16+i}, s{64+2*i}")
    a("v_mov_b32 v15, 0")
    a("s_mov_b64 exec, 1")
    for i in range(4):
        a(f"buffer_store_dwordx4 v[{16+4*i}:{19+4*i}], v15, s[96:99], s100 offen offset:{16*i}")
```

```python
from asmlib import *
HS = 81920
QKV_BYTES = 96 * HS
O_OFF = QKV_BYTES
O_BYTES = 128 * 20480

SA, SB = 16, 48
O0, O1 = 80, 96
QM0, QM1, QT = 112, 116, 120
IDX, VOK, VOV, VOT = 122, 123, 124, 125
KM = 128
KT = 144
VV = 152
NV = 184

def attn_main(a, cfg):
    U = 8
    a.c("---- attention prologue ----")
    a(f"""
    v_and_b32 v2, 31, v1
    v_lshrrev_b32 v3, 5, v1
    v_lshlrev_b32 v4, 4, v2
    v_lshl_add_u32 v{VOK}, v3, 10, v4
    v_mul_u32_u24 v5, 320, v3
    v_add_u32 v{VOV}, v5, v4
    v_lshlrev_b32 v{VOT}, 4, v1
    v_add_u32 v{VOT}, 4096, v{VOT}
    s_mul_i32 s27, s17, {HS}
    s_lshr_b32 s28, s18, 1
    s_mul_i32 s28, s28, 5120
    s_add_u32 s28, s28, s27
    s_and_b32 s29, s18, 1
    s_lshl_b32 s30, s29, 3
    s_add_u32 s30, s30, s28
    s_lshl_b32 s29, s29, 11
    s_add_u32 s28, s28, s29
    s_lshl_b32 s29, s19, 9
    s_xor_b32 s31, s29, 512
    s_add_u32 s31, s31, s28
    s_add_u32 s28, s28, s29
    v_xor_b32 v6, s29, v{VOT}
    s_mul_i32 s29, s19, {8*5120}
    s_add_u32 s27, s27, s29
    s_add_u32 s20, s27, {32*HS}
    s_add_u32 s21, s27, {64*HS}
    s_add_u32 s22, s21, 2560
    s_mov_b32 s24, 0x000fffff
    s_mov_b32 s25, 0x000fffff
    """)
    for i in range(32):
        a(f"v_mov_b32 v{VV+i}, 0x3f803f80")
    a(f"""
    buffer_load_dwordx2 {vr(QT,2)}, v6, s[8:11], s30 offen
    buffer_load_dwordx4 {vr(KT,4)}, v{VOT}, s[8:11], s20 offen
    buffer_load_dwordx4 {vr(QM0,4)}, v{VOK}, s[8:11], s28 offen
    buffer_load_dwordx4 {vr(KM,4)}, v{VOK}, s[8:11], s20 offen
    buffer_load_dwordx4 {vr(QM1,4)}, v{VOK}, s[8:11], s31 offen
    buffer_load_dwordx4 {vr(KM+4,4)}, v{VOK}, s[8:11], s20 offen offset:512
    s_mov_b64 exec, s[24:25]
    buffer_load_dwordx4 {vr(VV,4)}, v{VOV}, s[8:11], s21 offen
    buffer_load_dwordx4 {vr(VV+4,4)}, v{VOV}, s[8:11], s21 offen offset:640
    s_mov_b64 exec, -1
    s_add_u32 s23, s20, 5120
    buffer_load_dwordx4 {vr(KM+8,4)}, v{VOK}, s[8:11], s20 offen offset:2048
    s_mov_b64 exec, s[24:25]
    buffer_load_dwordx4 {vr(VV+8,4)}, v{VOV}, s[8:11], s21 offen offset:1280
    buffer_load_dwordx4 {vr(VV+12,4)}, v{VOV}, s[8:11], s21 offen offset:1920
    s_mov_b64 exec, -1
    buffer_load_dwordx4 {vr(KM+12,4)}, v{VOK}, s[8:11], s20 offen offset:2560
    s_mov_b64 exec, s[24:25]
    buffer_load_dwordx4 {vr(VV+16,4)}, v{VOV}, s[8:11], s22 offen
    buffer_load_dwordx4 {vr(VV+20,4)}, v{VOV}, s[8:11], s22 offen offset:640
    s_mov_b64 exec, -1
    buffer_load_dwordx4 {vr(KT+4,4)}, v{VOT}, s[8:11], s23 offen
    s_add_u32 s20, s20, 5120
    s_add_u32 s23, s23, 5120
    """)
    for i in range(32):
        a(f"v_mov_b32 v{O0+i}, 0")
    for i in range(8):
        a(f"v_mov_b32 v{SB+24+i}, 0")
    a(f"v_mov_b32 v{IDX}, 0xdddddddd")
    a(f"s_mov_b32 s26, {32//U}")
    a(f"""
    s_waitcnt vmcnt(13)
    v_mfma_f32_32x32x4_2b_bf16 {vr(SA,32)}, {vr(KT,2)}, {vr(QT,2)}, 0 cbsz:1 abid:0
    s_nop 15
    s_nop 1
    s_waitcnt vmcnt(10)
    v_mfma_f32_32x32x16_bf16 {vr(SA,16)}, {vr(KM,4)}, {vr(QM0,4)}, {vr(SA,16)}
    v_mfma_f32_32x32x16_bf16 {vr(SA+16,16)}, {vr(KM,4)}, {vr(QM1,4)}, {vr(SA+16,16)}
    buffer_load_dwordx4 {vr(KM,4)}, v{VOK}, s[8:11], s20 offen
    s_nop 9
    """)
    if cfg.get("prio"):
        a(f"""
        s_cmp_eq_u32 s19, 0
        s_cbranch_scc1 L_attn_noprio
        s_setprio 1
        L_attn_noprio:
        """)
    stamp(a, cfg, 2)
    a(".p2align 6") if cfg.get("align") else None
    a("L_attn_loop:")
    for t in range(U):
        cur, nxt = (SA, SB) if t % 2 == 0 else (SB, SA)
        vb = VV + 8 * (t % 4)
        vprev = VV + 8 * ((t + 3) % 4)
        kmn = KM + 4 * ((t + 1) % 4)
        tn = (t + 1) % 8
        ktn = KT + 4 * (tn // 4) + 2 * ((tn % 4) >> 1)
        abid = tn & 1
        e = iter(range(32))
        def E(n):
            for _ in range(n):
                i = next(e)
                a(f"v_exp_f32 v{cur+i}, v{cur+i}")
        a.c(f"step {t}")
        E(2)
        a(f"v_smfmac_f32_32x32x32_bf16 {vr(O1,16)}, {vr(vprev+4,4)}, {vr(nxt+24,8)}, v{IDX}")
        a("s_waitcnt vmcnt(7)")
        tv = (t + 3) % 4
        if tv == 0:
            a("s_add_u32 s21, s21, 5120")
        if tv == 2:
            a("s_add_u32 s22, s22, 5120")
        sv = 21 if tv < 2 else 22
        vo = 1280 * (tv & 1)
        a("s_mov_b64 exec, s[24:25]")
        a(f"buffer_load_dwordx4 {vr(vprev,4)}, v{VOV}, s[8:11], s{sv} offen offset:{vo}")
        a(f"buffer_load_dwordx4 {vr(vprev+4,4)}, v{VOV}, s[8:11], s{sv} offen offset:{vo+640}")
        a("s_mov_b64 exec, -1")
        E(3)
        a(f"v_mfma_f32_32x32x4_2b_bf16 {vr(nxt,32)}, {vr(ktn,2)}, {vr(QT,2)}, 0 cbsz:1 abid:{abid}")
        if t % 4 == 3:
            kb = KT + 4 * (((t + 1) // 4 + 1) % 2)
            a(f"buffer_load_dwordx4 {vr(kb,4)}, v{VOT}, s[8:11], s23 offen")
            a("s_add_u32 s23, s23, 5120")
        E(8)
        a(f"v_smfmac_f32_32x32x32_bf16 {vr(O0,16)}, {vr(vb,4)}, {vr(cur,8)}, v{IDX}")
        E(5)
        a(f"v_smfmac_f32_32x32x32_bf16 {vr(O0,16)}, {vr(vb+4,4)}, {vr(cur+8,8)}, v{IDX}")
        E(3)
        a(f"v_mfma_f32_32x32x16_bf16 {vr(nxt,16)}, {vr(kmn,4)}, {vr(QM0,4)}, {vr(nxt,16)}")
        E(5)
        a(f"v_smfmac_f32_32x32x32_bf16 {vr(O1,16)}, {vr(vb,4)}, {vr(cur+16,8)}, v{IDX}")
        E(3)
        a(f"v_mfma_f32_32x32x16_bf16 {vr(nxt+16,16)}, {vr(kmn,4)}, {vr(QM1,4)}, {vr(nxt+16,16)}")
        tk = (t + 5) % 4
        if tk == 0:
            a("s_add_u32 s20, s20, 5120")
        ko = (tk >> 1) * 2048 + (tk & 1) * 512
        a(f"buffer_load_dwordx4 {vr(kmn,4)}, v{VOK}, s[8:11], s20 offen offset:{ko}")
        if t == U - 1:
            a("s_sub_u32 s26, s26, 1")
            a("s_cmp_lg_u32 s26, 0")
        E(3)
    a("s_cbranch_scc1 L_attn_loop")
    stamp(a, cfg, 3)
    a.c("---- attention epilogue ----")
    a(f"""
    v_lshlrev_b32 v2, 4, v1
    s_mul_i32 s27, s16, 3328
    s_xor_b32 s28, s16, 4
    s_mul_i32 s28, s28, 3328
    v_smfmac_f32_32x32x32_bf16 {vr(O1,16)}, {vr(VV+28,4)}, {vr(SB+24,8)}, v{IDX}
    v_add_u32 v3, s27, v2
    v_add_u32 v4, s28, v2
    v_lshlrev_b32 v5, 2, v1
    v_add_u32 v6, s27, v5
    v_add_u32 v7, s28, v5
    ds_write_b128 v3, {vr(O0,4)}
    ds_write_b128 v3, {vr(O0+4,4)} offset:1024
    ds_write_b128 v3, {vr(O0+8,4)} offset:2048
    ds_write_b32 v6, v{O0+12} offset:3072
    s_waitcnt lgkmcnt(0)
    s_barrier
    ds_read_b32 v{O0+12}, v7 offset:3072
    ds_read_b128 {vr(O0,4)}, v4
    ds_read_b128 {vr(O0+4,4)}, v4 offset:1024
    ds_read_b128 {vr(O0+8,4)}, v4 offset:2048
    s_waitcnt lgkmcnt(3)
    v_add_f32 v{O1+12}, v{O1+12}, v{O0+12}
    s_waitcnt lgkmcnt(0)
    """)
    for i in range(12):
        a(f"v_add_f32 v{O1+i}, v{O1+i}, v{O0+i}")
    a.c("safety check of the shift-free softmax: row sum in [2^-60, 2^60] and finite accumulators")
    a(f"v_add_f32 v8, abs(v{O1}), abs(v{O1+1})")
    for i in range(2, 12):
        a(f"v_add_f32 v8, v8, abs(v{O1+i})")
    a(f"""
    s_mov_b32 s27, 0x21800000
    s_mov_b32 s28, 0x5d800000
    s_mov_b32 s29, 0x7f800000
    v_cmp_le_f32 s[32:33], s27, v{O1+12}
    v_cmp_ge_f32 s[34:35], s28, v{O1+12}
    v_cmp_gt_f32 s[36:37], s29, v8
    s_nop 3
    s_and_b64 s[32:33], s[32:33], s[34:35]
    s_and_b64 s[32:33], s[32:33], s[36:37]
    s_cmp_eq_u64 s[32:33], -1
    s_cbranch_scc0 L_attn_slow
    L_attn_fin:
    v_rcp_f32 v8, v{O1+12}
    s_nop 0
    """)
    for i in range(12):
        a(f"v_mul_f32 v{O1+i}, v{O1+i}, v8")
    for i in range(6):
        a(f"v_cvt_pk_bf16_f32 v{O0+i}, v{O1+2*i}, v{O1+2*i+1}")

def attn_slow(a):
    a("L_attn_slow:")
    a(f"""
    s_waitcnt vmcnt(0)
    v_and_b32 v2, 31, v1
    v_lshlrev_b32 v9, 4, v2
    v_add_u32 v9, 4096, v9
    v_mov_b32 v10, 0xff800000
    s_mov_b32 s38, 0
    """)
    for i in range(16):
        a(f"v_mov_b32 v{O1+i}, 0")
    a(f"""
    L_slow_pass:
    s_mov_b32 s39, 0
    L_slow_tile:
    s_lshr_b32 s27, s39, 2
    s_mul_i32 s27, s27, 5120
    s_mul_i32 s28, s17, {HS}
    s_add_u32 s27, s27, s28
    s_and_b32 s28, s39, 1
    s_lshl_b32 s28, s28, 9
    s_bfe_u32 s29, s39, 0x10001
    s_add_u32 s28, s28, s27
    s_add_u32 s28, s28, {32*HS}
    s_lshl_b32 s30, s29, 3
    s_add_u32 s30, s30, s28
    s_lshl_b32 s29, s29, 11
    s_add_u32 s29, s29, s28
    s_and_b32 s28, s39, 3
    s_mul_i32 s28, s28, 1280
    s_add_u32 s28, s28, s27
    s_add_u32 s28, s28, {64*HS}
    buffer_load_dwordx2 {vr(KT,2)}, v9, s[8:11], s30 offen
    buffer_load_dwordx4 {vr(KM,4)}, v{VOK}, s[8:11], s29 offen
    s_mov_b64 exec, s[24:25]
    buffer_load_dwordx4 {vr(VV,4)}, v{VOV}, s[8:11], s28 offen
    buffer_load_dwordx4 {vr(VV+4,4)}, v{VOV}, s[8:11], s28 offen offset:640
    s_mov_b64 exec, -1
    s_waitcnt vmcnt(0)
    v_mfma_f32_32x32x4_2b_bf16 {vr(SA,32)}, {vr(KT,2)}, {vr(QT,2)}, 0
    s_nop 15
    s_nop 3
    v_mfma_f32_32x32x16_bf16 {vr(SA+16,16)}, {vr(KM,4)}, {vr(QM1,4)}, {vr(SA+16,16)}
    s_nop 15
    s_cmp_eq_u32 s38, 0
    s_cbranch_scc0 L_slow_pv
    """)
    for i in range(8):
        a(f"v_max3_f32 v10, v10, v{SA+16+2*i}, v{SA+17+2*i}")
    a("s_branch L_slow_next")
    a("L_slow_pv:")
    for i in range(16):
        a(f"v_sub_f32 v{SA+16+i}, v{SA+16+i}, v10")
    for i in range(16):
        a(f"v_exp_f32 v{SA+16+i}, v{SA+16+i}")
    a(f"""
    s_nop 3
    v_smfmac_f32_32x32x32_bf16 {vr(O1,16)}, {vr(VV,4)}, {vr(SA+16,8)}, v{IDX}
    v_smfmac_f32_32x32x32_bf16 {vr(O1,16)}, {vr(VV+4,4)}, {vr(SA+24,8)}, v{IDX}
    s_nop 15
    L_slow_next:
    s_add_u32 s39, s39, 1
    s_cmp_lt_u32 s39, 64
    s_cbranch_scc1 L_slow_tile
    s_cmp_eq_u32 s38, 0
    s_cbranch_scc0 L_attn_fin
    v_mov_b32 v11, v10
    s_nop 1
    v_permlane32_swap_b32 v10, v11
    s_nop 1
    v_max_f32 v10, v10, v11
    s_mov_b32 s38, 1
    s_branch L_slow_pass
    """)

def gen_attn(a, cfg):
    kernel_begin(a, "attn_kernel")
    a("""
    s_cmp_ge_u32 s2, 256
    s_cbranch_scc1 L_attn_end
    """)
    stamp(a, cfg, 0, real=True); stamp(a, cfg, 1)
    a("""
    s_load_dwordx2 s[4:5], s[0:1], 40
    v_lshrrev_b32 v2, 6, v0
    v_and_b32 v1, 63, v0
    v_readfirstlane_b32 s16, v2
    s_and_b32 s17, s2, 7
    s_lshl_b32 s17, s17, 2
    """)
    hpw = cfg.get("hpw", 1)
    if hpw == 1:
        a("""
        s_bfe_u32 s3, s2, 0x20003
        s_add_u32 s17, s17, s3
        s_lshr_b32 s18, s2, 5
        s_lshl_b32 s18, s18, 2
        s_and_b32 s3, s16, 3
        s_add_u32 s18, s18, s3
        """)
    elif hpw == 4:
        a("""
        s_and_b32 s3, s16, 3
        s_add_u32 s17, s17, s3
        s_lshr_b32 s18, s2, 3
        """)
    a("s_lshr_b32 s19, s16, 2")
    a("s_waitcnt lgkmcnt(0)")
    srd(a, 8, 4, QKV_BYTES)
    srd(a, 12, 4, O_BYTES, add=O_OFF)
    attn_main(a, cfg)
    a(f"""
    s_lshl_b32 s27, s18, 1
    s_xor_b32 s28, s19, 1
    s_add_u32 s27, s27, s28
    s_mul_i32 s27, s27, 40960
    s_lshl_b32 s28, s17, 9
    s_add_u32 s28, s28, s27
    s_lshr_b32 s29, s17, 2
    s_lshl_b32 s29, s29, 9
    s_and_b32 s30, s17, 1
    s_lshl_b32 s30, s30, 8
    s_add_u32 s29, s29, s30
    s_and_b32 s30, s17, 2
    s_lshl_b32 s30, s30, 2
    s_add_u32 s29, s29, s30
    s_add_u32 s29, s29, s27
    s_add_u32 s29, s29, 16384
    v_bfe_u32 v2, v1, 4, 1
    v_mul_u32_u24 v2, 20480, v2
    v_and_b32 v3, 15, v1
    v_lshl_add_u32 v2, v3, 4, v2
    v_lshrrev_b32 v3, 5, v1
    v_lshl_add_u32 v2, v3, 8, v2
    buffer_store_dwordx4 {vr(O0,4)}, v2, s[12:15], s28 offen
    s_mov_b32 exec_hi, 0
    buffer_store_dwordx2 {vr(O0+4,2)}, v2, s[12:15], s29 offen
    """)
    stamp(a, cfg, 4)
    if cfg.get("stamp"): a("s_waitcnt vmcnt(0)")
    stamp(a, cfg, 5); stamp(a, cfg, 6, real=True)
    stamp_flush(a, cfg, 1, 16, 8)
    a("""
    L_attn_end:
    s_endpgm
    """)
    attn_slow(a)
    return descriptor("attn_kernel", NV)
```

```python
from asmlib import *
HS = 81920
O_OFF = 96 * HS
O_BYTES = 128 * 20480
LDS_OUT = 102400 + 4 * 5120
def gen_out(a, cfg):
    kernel_begin(a, "out_kernel")
    a("""
    s_cmp_ge_u32 s2, 256
    s_cbranch_scc1 L_out_end
    """)
    stamp(a, cfg, 0, real=True); stamp(a, cfg, 1)
    OF = 16
    WF = 56
    AC = 96
    a(f"""
    s_load_dwordx4 s[4:7], s[0:1], 16
    s_load_dwordx2 s[40:41], s[0:1], 40
    v_lshrrev_b32 v2, 6, v0
    v_and_b32 v1, 63, v0
    v_readfirstlane_b32 s16, v2
    s_and_b32 s17, s2, 7
    s_lshl_b32 s17, s17, 2
    s_bfe_u32 s3, s2, 0x20003
    s_add_u32 s17, s17, s3
    s_lshr_b32 s18, s2, 5
    s_and_b32 s19, s16, 3
    s_lshr_b32 s20, s16, 2
    """)
    for i in range(5):
        a(f"""
        v_add_u32 v2, {64*i}, v1
        v_mul_u32_u24 v3, 6554, v2
        v_lshrrev_b32 v3, 16, v3
        v_mul_u32_u24 v4, {1280-160}, v3
        v_lshl_add_u32 v{8+i}, v2, 4, v4
        """)
    a(f"""
    v_lshlrev_b32 v13, 4, v1
    s_lshl_b32 s21, s17, 2
    s_add_u32 s21, s21, s19
    s_mul_i32 s22, s21, 20480
    s_lshl_b32 s3, s20, 11
    s_add_u32 s23, s22, s3
    s_add_u32 s23, s23, 16384
    s_lshl_b32 s3, s20, 13
    s_add_u32 s22, s22, s3
    s_add_u32 s24, s22, 4096
    s_mul_i32 s25, s16, {32*1280}
    s_mul_i32 s3, s18, 160
    s_add_u32 s25, s25, s3
    s_mul_i32 s26, s16, 5120
    s_waitcnt lgkmcnt(0)
    """)
    srd(a, 8, 4, 640*1280)
    srd(a, 12, 40, O_BYTES, add=O_OFF)
    def period(p):
        for i in range(5):
            a(f"s_add_u32 m0, s26, {p*8*5120 + 1024*i}")
            a("s_nop 0")
            a(f"buffer_load_dwordx4 v{8+i}, s[8:11], s25 offen lds")
        a(f"s_add_u32 s25, s25, {8*32*1280}")
    period(0); period(1)
    a("""
    s_cmp_lt_u32 s16, 4
    s_cbranch_scc0 L_out_skip
    """)
    period(2)
    a("L_out_skip:")
    for ks in range(10):
        if ks < 4: a(f"buffer_load_dwordx4 {vr(OF+4*ks,4)}, v13, s[12:15], s22 offen offset:{1024*ks}")
        elif ks < 8: a(f"buffer_load_dwordx4 {vr(OF+4*ks,4)}, v13, s[12:15], s24 offen offset:{1024*(ks-4)}")
        else: a(f"buffer_load_dwordx4 {vr(OF+4*ks,4)}, v13, s[12:15], s23 offen offset:{1024*(ks-8)}")
    a(f"""
    v_lshrrev_b32 v2, 5, v1
    v_bfe_u32 v3, v1, 4, 1
    v_bfe_u32 v4, v1, 2, 2
    v_and_b32 v5, 3, v1
    v_mul_u32_u24 v5, 40, v5
    s_mul_i32 s3, s20, 51200
    v_add_u32 v5, s3, v5
    v_mul_u32_u24 v6, 20, v2
    v_lshl_add_u32 v6, v3, 2, v6
    v_add_u32 v6, v6, v4
    v_mul_u32_u24 v6, 160, v6
    v_add_u32 v14, v6, v5
    v_mul_u32_u24 v6, 80, v2
    v_mul_u32_u24 v7, 20, v3
    v_add3_u32 v6, v6, v7, v4
    v_add_u32 v6, 16, v6
    v_mul_u32_u24 v6, 160, v6
    v_add_u32 v15, v6, v5
    """)
    a(f"""
    v_and_b32 v2, 15, v1
    v_lshrrev_b32 v3, 4, v1
    v_mul_u32_u24 v2, 1280, v2
    v_mul_u32_u24 v3, 40, v3
    v_add_u32 v7, v2, v3
    s_mul_i32 s27, s21, {16*1280}
    s_mul_i32 s3, s18, 160
    s_add_u32 s27, s27, s3
    s_mul_i32 s3, s19, 5120
    s_add_u32 s3, s3, 102400
    v_add_u32 v6, s3, v13
    """)
    srd(a, 28, 6, 2048*1280)
    stamp(a, cfg, 2)
    a("s_waitcnt vmcnt(10)")
    a("s_barrier")
    stamp(a, cfg, 3)
    def reads(ks, buf):
        r = []
        for t in range(5):
            for u in range(2):
                if ks < 8: ad, off = 14, (40*ks + 8*u)*160 + 8*t
                else: ad, off = 15, (160*(ks-8) + 40*u)*160 + 8*t
                r.append(f"ds_read_b64_tr_b16 {vr(WF+20*buf+4*t+2*u,2)}, v{ad} offset:{off}")
        return r
    for r in reads(0, 0): a(r)
    for ks in range(10):
        buf = ks & 1
        a(f"s_waitcnt vmcnt({9-ks}) lgkmcnt(0)")
        nxt = reads(ks+1, buf ^ 1) if ks < 9 else []
        for t in range(5):
            for r in nxt[2*t:2*t+2]: a(r)
            c = "0" if ks == 0 else vr(AC+4*t, 4)
            a(f"v_mfma_f32_16x16x32_bf16 {vr(AC+4*t,4)}, {vr(WF+20*buf+4*t,4)}, {vr(OF+4*ks,4)}, {c}")
    stamp(a, cfg, 4)
    a("""
    s_cmp_lt_u32 s16, 4
    s_cbranch_scc1 L_out_lo
    s_nop 2
    """)
    for t in range(5):
        a(f"ds_write_b128 v6, {vr(AC+4*t,4)} offset:{1024*t}")
        if t < 4: a("s_nop 0")
    a("""
    s_waitcnt lgkmcnt(0)
    s_barrier
    """)
    if cfg.get("stamp"): a("s_branch L_out_fin")
    else: a("s_endpgm")
    a("""
    L_out_lo:
    s_barrier
    """)
    for t in range(5):
        a(f"ds_read_b128 {vr(WF+4*t,4)}, v6 offset:{1024*t}")
    if cfg.get("stamp"): a("s_waitcnt lgkmcnt(0)")
    for t in range(5):
        a(f"s_waitcnt lgkmcnt({4-t})")
        for r in range(4):
            a(f"v_add_f32 v{AC+4*t+r}, v{AC+4*t+r}, v{WF+4*t+r}")
        a(f"v_cvt_pk_bf16_f32 v{OF+2*t}, v{AC+4*t}, v{AC+4*t+1}")
        a(f"v_cvt_pk_bf16_f32 v{OF+2*t+1}, v{AC+4*t+2}, v{AC+4*t+3}")
        if t == 1: a(f"buffer_store_dwordx4 {vr(OF,4)}, v7, s[28:31], s27 offen")
        if t == 3: a(f"buffer_store_dwordx4 {vr(OF+4,4)}, v7, s[28:31], s27 offen offset:16")
        if t == 4: a(f"buffer_store_dwordx2 {vr(OF+8,2)}, v7, s[28:31], s27 offen offset:32")
    a("L_out_fin:")
    if cfg.get("stamp"): a("s_waitcnt vmcnt(0)")
    stamp(a, cfg, 5); stamp(a, cfg, 6, real=True)
    stamp_flush(a, cfg, 2, 16, 8, wsptr=40)
    a("""
    L_out_end:
    s_endpgm
    """)
    return descriptor("out_kernel", 116)
```

```python
from asmlib import *
import struct
HS = 81920
QKV_BYTES = 96 * HS
CSCALE = struct.unpack("<I", struct.pack("<f", (20 ** -0.5) * 1.4426950408889634))[0]
NSLOT = 5
NCH = 10
ACC = 0
def gen_qkv(a, cfg):
    kernel_begin(a, "qkv_kernel")
    a("""
    s_cmp_ge_u32 s2, 240
    s_cbranch_scc1 L_qkv_end
    """)
    stamp(a, cfg, 0, real=True); stamp(a, cfg, 1)
    a("""
    s_load_dwordx4 s[4:7], s[0:1], 0
    s_load_dwordx2 s[40:41], s[0:1], 40
    v_lshrrev_b32 v2, 6, v0
    v_and_b32 v1, 63, v0
    v_readfirstlane_b32 s16, v2
    """)
    if cfg.get("codepf"):
        a("""
        s_getpc_b64 s[42:43]
        v_lshlrev_b32 v3, 7, v1
        global_load_dword v4, v3, s[42:43]
        """)
    a("""
    s_bfe_u32 s3, s2, 0x10002
    s_mul_i32 s3, s3, 30
    s_lshr_b32 s17, s2, 3
    s_add_u32 s3, s3, s17
    s_lshr_b32 s17, s3, 2
    s_and_b32 s3, s3, 3
    s_and_b32 s18, s2, 3
    s_lshl_b32 s18, s18, 2
    s_add_u32 s18, s18, s3
    s_cmp_lt_u32 s16, 4
    s_cbranch_scc1 L_qkv_cons
    """)
    a.c("loader waves: s17=cb s18=tb")
    a(f"""
    s_and_b32 s19, s16, 3
    v_lshrrev_b32 v2, 3, v1
    v_and_b32 v3, 7, v1
    v_lshrrev_b32 v5, 4, v1
    v_xor_b32 v6, v3, v5
    v_xor_b32 v7, 4, v6
    v_mul_u32_u24 v2, 1280, v2
    v_lshl_add_u32 v8, v6, 4, v2
    v_lshl_add_u32 v9, v7, 4, v2
    v_add_u32 v9, {8*1280-1024}, v9
    v_add_u32 v10, {2*(8*1280-1024)}, v8
    v_add_u32 v11, {2*(8*1280-1024)}, v9
    v_and_b32 v3, 15, v1
    v_lshlrev_b32 v6, 2, v5
    v_xor_b32 v3, v3, v6
    v_mul_u32_u24 v2, 3840, v5
    v_lshl_add_u32 v12, v3, 4, v2
    v_add_u32 v13, {4*3840-1024}, v12
    v_add_u32 v14, {2*(4*3840-1024)}, v12
    v_add_u32 v15, {3*(4*3840-1024)}, v12
    s_lshl_b32 s20, s18, 2
    s_add_u32 s20, s20, s19
    s_mul_i32 s20, s20, {32*1280}
    s_mul_i32 s21, s19, {16*3840}
    s_lshl_b32 s3, s17, 8
    s_add_u32 s21, s21, s3
    s_lshl_b32 s22, s19, 12
    s_waitcnt lgkmcnt(0)
    """)
    srd(a, 8, 4, 2048*1280)
    srd(a, 12, 6, 640*3840)
    def issue(c):
        slot = c % NSLOT
        a(f"s_add_u32 m0, s22, {slot*32768}")
        a("s_nop 0")
        for j in range(4):
            a(f"buffer_load_dwordx4 v{8+j}, s[8:11], s20 offen offset:{1024*j} lds")
        a(f"s_add_u32 m0, s22, {slot*32768+16384}")
        a("s_add_u32 s20, s20, 128")
        for j in range(4):
            a(f"buffer_load_dwordx4 v{12+j}, s[12:15], s21 offen offset:{1024*j} lds")
        a(f"s_add_u32 s21, s21, {64*3840}")
    for c in range(NSLOT):
        issue(c)
    stamp(a, cfg, 2)
    issued = NSLOT
    for c in range(NCH):
        a(f"s_waitcnt vmcnt({8*(issued-1-c)})")
        if c in (0, 4, 9): stamp(a, cfg, {0: 3, 4: 4, 9: 5}[c])
        a("s_barrier")
        if c >= 1 and issued < NCH:
            issue(issued); issued += 1
    stamp(a, cfg, 6, real=True)
    stamp_flush(a, cfg, 0, 16, 8, wsptr=40)
    a("s_endpgm")
    a("L_qkv_cons:")
    XA = 16
    WA = 28
    FR = 36
    AC = 68
    ST = 132
    a(f"""
    s_and_b32 s19, s16, 1
    s_lshr_b32 s20, s16, 1
    v_and_b32 v2, 31, v1
    v_lshrrev_b32 v3, 5, v1
    v_mov_b32 v5, v2
    s_cmp_lt_u32 s17, 10
    s_cbranch_scc1 L_qkv_noperm
    v_and_b32 v5, 0x13, v2
    v_bfe_u32 v6, v2, 2, 1
    v_lshl_or_b32 v5, v6, 3, v5
    v_bfe_u32 v6, v2, 3, 1
    v_lshl_or_b32 v5, v6, 2, v5
    L_qkv_noperm:
    v_bfe_u32 v6, v5, 1, 3
    v_xor_b32 v6, v6, v3
    v_lshlrev_b32 v6, 4, v6
    v_lshl_add_u32 v6, v5, 7, v6
    s_lshl_b32 s3, s19, 13
    v_add_u32 v{XA}, s3, v6
    v_xor_b32 v{XA+1}, 32, v{XA}
    v_xor_b32 v{XA+2}, 64, v{XA}
    v_xor_b32 v{XA+3}, 96, v{XA}
    v_bfe_u32 v6, v1, 2, 2
    v_and_b32 v7, 3, v1
    v_bfe_u32 v8, v1, 4, 1
    v_lshlrev_b32 v7, 3, v7
    v_lshl_add_u32 v7, v8, 5, v7
    v_lshl_add_u32 v8, v3, 3, v6
    v_lshl_add_u32 v7, v8, 8, v7
    s_lshl_b32 s3, s20, 1
    v_xor_b32 v6, s3, v6
    v_lshl_add_u32 v7, v6, 6, v7
    v_add_u32 v{WA}, 16384, v7
    v_xor_b32 v{WA+1}, 64, v{WA}
    """)
    for st in (1, 2):
        for s in range(4): a(f"v_add_u32 v{XA+4*st+s}, {65536*st}, v{XA+s}")
        for ct in range(2): a(f"v_add_u32 v{WA+2*st+ct}, {65536*st}, v{WA+ct}")
    a("s_waitcnt lgkmcnt(0)")
    srd(a, 8, 40, QKV_BYTES)
    def reads(ks, buf):
        c, s = divmod(ks, 4)
        slot = c % NSLOT
        st, so = slot >> 1, (slot & 1) * 32768
        f = FR + 16 * buf
        r = []
        r.append(f"ds_read_b128 {vr(f,4)}, v{XA+4*st+s} offset:{so}")
        r.append(f"ds_read_b64_tr_b16 {vr(f+8,2)}, v{WA+2*st} offset:{so+16*s*256}")
        r.append(f"ds_read_b64_tr_b16 {vr(f+10,2)}, v{WA+2*st} offset:{so+(16*s+4)*256}")
        r.append(f"ds_read_b128 {vr(f+4,4)}, v{XA+4*st+s} offset:{so+4096}")
        r.append(f"ds_read_b64_tr_b16 {vr(f+12,2)}, v{WA+2*st+1} offset:{so+16*s*256}")
        r.append(f"ds_read_b64_tr_b16 {vr(f+14,2)}, v{WA+2*st+1} offset:{so+(16*s+4)*256}")
        return r
    def mainloop(isv):
        a("s_barrier")
        stamp(a, cfg, 2)
        for r in reads(0, 0): a(r)
        for ks in range(40):
            buf = ks & 1
            f = FR + 16 * buf
            a("s_waitcnt lgkmcnt(0)")
            nxt = []
            if ks < 39:
                if (ks + 1) % 4 == 0:
                    a("s_barrier")
                nxt = reads(ks + 1, buf ^ 1)
            order = [(0, 0), (1, 0), (0, 1), (1, 1)]
            split = [nxt[0:3], nxt[3:6], [], []]
            if cfg.get("rfirst"):
                for r in nxt[0:2]: a(r)
                split = [nxt[2:6], [], [], []]
            for i, (tt, ct) in enumerate(order):
                acc = AC + 16 * (2 * ct + tt)
                x, w = vr(f + 4 * tt, 4), vr(f + 8 + 4 * ct, 4)
                A, B = (x, w) if isv else (w, x)
                c = "0" if ks == 0 else vr(acc, 16)
                a(f"v_mfma_f32_32x32x16_bf16 {vr(acc,16)}, {A}, {B}, {c}")
                for r in split[i]: a(r)
        stamp(a, cfg, 3)
    a("""
    s_cmp_lt_u32 s17, 10
    s_cbranch_scc0 L_qkv_v
    """)
    a(f"""
    s_lshl_b32 s3, s17, 5
    s_lshl_b32 s21, s20, 4
    s_add_u32 s3, s3, s21
    v_add_u32 v6, s3, v3
    s_mul_i32 s21, s18, 5120
    s_lshl_b32 s22, s19, 11
    s_lshl_b32 s23, s19, 3
    s_add_u32 s23, s23, 4096
    v_lshlrev_b32 v4, 4, v2
    v_mov_b32 v11, s23
    s_mov_b32 s24, {HS}
    s_cmp_lt_u32 s17, 5
    s_cselect_b32 s25, {CSCALE}, 1.0
    """)
    for q in range(8):
        a(f"""
        v_add_u32 v7, {2*q}, v6
        v_mul_u32_u24 v8, 52429, v7
        v_lshrrev_b32 v8, 18, v8
        v_mul_u32_u24 v9, 5, v8
        v_sub_u32 v9, v7, v9
        v_cmp_eq_u32 vcc, 4, v9
        v_and_b32 v10, 1, v9
        v_lshrrev_b32 v9, 1, v9
        v_lshlrev_b32 v9, 10, v9
        v_lshl_add_u32 v9, v10, 3, v9
        v_add_u32 v9, s22, v9
        v_cndmask_b32 v9, v9, v11, vcc
        v_mad_u32_u24 v8, v8, s24, v4
        v_add_u32 v{ST+q}, v8, v9
        """)
    mainloop(False)
    n = 0
    a("s_nop 8")
    for (tt, ct) in [(0, 0), (1, 0), (0, 1), (1, 1)]:
        acc = AC + 16 * (2 * ct + tt)
        for i in range(4):
            for j in range(4):
                a(f"v_mul_f32 v{acc+4*i+j}, s25, v{acc+4*i+j}")
            a(f"v_cvt_pk_bf16_f32 v{acc+4*i}, v{acc+4*i}, v{acc+4*i+1}")
            a(f"v_cvt_pk_bf16_f32 v{acc+4*i+1}, v{acc+4*i+2}, v{acc+4*i+3}")
            a(f"buffer_store_dwordx2 {vr(acc+4*i,2)}, v{ST+4*ct+i}, s[8:11], s21 offen offset:{512*tt}")
    a("s_branch L_qkv_fin")
    a("L_qkv_v:")
    a(f"""
    s_sub_u32 s3, s17, 10
    s_lshl_b32 s3, s3, 7
    s_lshl_b32 s21, s20, 6
    s_add_u32 s3, s3, s21
    v_add_u32 v6, s3, v2
    s_mul_i32 s21, s18, 5120
    s_mul_i32 s22, s19, 2560
    s_add_u32 s21, s21, s22
    s_add_u32 s21, s21, {64*HS}
    v_mul_u32_u24 v4, 320, v3
    s_mov_b32 s24, {HS}
    """)
    for ct in range(2):
        a(f"""
        v_add_u32 v7, {32*ct}, v6
        v_mul_u32_u24 v8, 13108, v7
        v_lshrrev_b32 v8, 18, v8
        v_mul_u32_u24 v9, 20, v8
        v_sub_u32 v9, v7, v9
        v_lshl_add_u32 v9, v9, 4, v4
        v_mad_u32_u24 v{ST+ct}, v8, s24, v9
        """)
    mainloop(True)
    a("s_nop 8")
    for (tt, ct) in [(0, 0), (1, 0), (0, 1), (1, 1)]:
        acc = AC + 16 * (2 * ct + tt)
        for f in range(2):
            for j in range(4):
                a(f"v_cvt_pk_bf16_f32 v{acc+8*f+j}, v{acc+8*f+2*j}, v{acc+8*f+2*j+1}")
            a(f"buffer_store_dwordx4 {vr(acc+8*f,4)}, v{ST+ct}, s[8:11], s21 offen offset:{1280*tt+640*f}")
        if (tt, ct) == (0, 1): a("s_nop 3")
    a("L_qkv_fin:")
    stamp(a, cfg, 4)
    if cfg.get("stamp"): a("s_waitcnt vmcnt(0)")
    stamp(a, cfg, 5); stamp(a, cfg, 6, real=True)
    stamp_flush(a, cfg, 0, 16, 8, wsptr=40)
    a("""
    L_qkv_end:
    s_endpgm
    """)
    return descriptor("qkv_kernel", 140)
```

```python
import sys, json
from asmlib import *
import k_attn, k_qkv, k_out
HEADER = open("standalone__softmax_full_mha__prompt.s.ref").read().split("; Override launch")[0]

def build(kernels, cfg):
    a = Asm()
    head = HEADER
    for name, gen, grid, block, lds in kernels:
        head += f"; @launch kernel={name} grid=({grid},1,1) block=({block},1,1) lds={lds}\n"
    head += '.amdgcn_target "amdgcn-amd-amdhsa--gfx950"\n.text\n'
    descs = []
    done = set()
    for name, gen, grid, block, lds in kernels:
        if name in done: continue
        done.add(name)
        descs.append(gen(a, cfg))
    return head + a.text() + '.section .rodata,"a"\n' + "".join(descs)

if __name__ == "__main__":
    cfg = json.loads(sys.argv[2]) if len(sys.argv) > 2 else {}
    K = {"q": ("qkv_kernel", k_qkv.gen_qkv, 240, 512, 163840), "a": ("attn_kernel", k_attn.gen_attn, 256, 512, 8*3328),
         "o": ("out_kernel", k_out.gen_out, 256, 512, k_out.LDS_OUT)}
    s = build([K[c] for c in cfg.get("k", "qao")], cfg)
    open(sys.argv[1], "w").write(s)
```

```python
from asmlib import *
def reduce(a, region, col, n, op, dst, tag):
    srd(a, 8, 4, 1 << 20, add=STAMP_OFF + region * (1 << 20))
    a(f"""
    v_lshlrev_b32 v1, 6, v0
    v_add_u32 v1, {4*col}, v1
    buffer_load_dword v2, v1, s[8:11], 0 offen
    s_mov_b32 s20, 4096
    L_pr_{tag}:
    buffer_load_dword v3, v1, s[8:11], s20 offen
    s_waitcnt vmcnt(0)
    v_{op}_u32 v2, v2, v3
    s_add_u32 s20, s20, 4096
    s_cmp_lt_u32 s20, {n*64}
    s_cbranch_scc1 L_pr_{tag}
    s_nop 1
    v_readlane_b32 s{dst}, v2, 0
    """)
    for l in range(1, 64):
        a(f"v_readlane_b32 s21, v2, {l}")
        a("s_nop 0")
        a(f"s_{op}_u32 s{dst}, s{dst}, s21")
def gen_probe(a, cfg):
    kernel_begin(a, "probe_kernel")
    a("""
    s_cmp_ge_u32 s2, 1
    s_cbranch_scc1 L_probe_end
    s_load_dwordx2 s[4:5], s[0:1], 40
    s_waitcnt lgkmcnt(0)
    """)
    r0, n0 = cfg.get("p0", [0, 1920])
    reduce(a, r0, 0, n0, "min", 30, "a")
    region, col, n, op, mult = cfg["probe"]
    reduce(a, region, col, n, op, 31, "b")
    a(f"""
    s_sub_u32 s31, s31, s30
    s_min_u32 s31, s31, 20000
    s_mul_i32 s31, s31, {mult}
    s_add_u32 s31, s31, 10000
    s_mov_b32 s34, 0
    L_probe_spin:
    s_memrealtime s[32:33]
    s_waitcnt lgkmcnt(0)
    s_sub_u32 s32, s32, s30
    s_add_u32 s34, s34, 1
    s_cmp_gt_u32 s34, 100000
    s_cbranch_scc1 L_probe_end
    s_cmp_lt_u32 s32, s31
    s_cbranch_scc1 L_probe_spin
    L_probe_end:
    s_endpgm
    """)
    return descriptor("probe_kernel", 8)
```

```python
import sys, json
from asmlib import *
import k_attn, k_qkv, k_out, k_probe
HEADER = open("standalone__softmax_full_mha__prompt.s.ref").read().split("; Override launch")[0]

def build(kernels, cfg):
    a = Asm()
    head = HEADER
    for name, gen, grid, block, lds in kernels:
        head += f"; @launch kernel={name} grid=({grid},1,1) block=({block},1,1) lds={lds}\n"
    head += '.amdgcn_target "amdgcn-amd-amdhsa--gfx950"\n.text\n'
    descs = []
    done = set()
    for name, gen, grid, block, lds in kernels:
        if name in done: continue
        done.add(name)
        descs.append(gen(a, cfg))
    return head + a.text() + '.section .rodata,"a"\n' + "".join(descs)

def gen_empty(a, cfg):
    kernel_begin(a, "empty_kernel")
    a("s_endpgm")
    return descriptor("empty_kernel", 8)

if __name__ == "__main__":
    cfg = json.loads(sys.argv[2]) if len(sys.argv) > 2 else {}
    K = {"q": ("qkv_kernel", k_qkv.gen_qkv, 240, 512, 163840), "a": ("attn_kernel", k_attn.gen_attn, 256, 512, 8*3328),
         "p": ("probe_kernel", k_probe.gen_probe, 1, 64, 0), "e": ("empty_kernel", gen_empty, 1, 64, 0), "o": ("out_kernel", k_out.gen_out, 256, 512, k_out.LDS_OUT)}
    s = build([K[c] for c in cfg.get("k", "qao")], cfg)
    open(sys.argv[1], "w").write(s)
```

```python
import sys, json, struct
from asmlib import *
NAME = "standalone__softmax_full_mha__prompt_kernel"
HS = 81920
O_OFF = 96 * HS
F1_OFF = O_OFF + 128 * 20480
F1_STRIDE = 512
F2_OFF = F1_OFF + 8192
F2_STRIDE = 256
WS_BYTES = F2_OFF + 64 * F2_STRIDE
CSCALE = struct.unpack("<I", struct.pack("<f", (20 ** -0.5) * 1.4426950408889634))[0]
WS, WO, OUT, DBG = "s[44:47]", "s[48:51]", "s[52:55]", "s[56:59]"
SPIN_MAX = 1 << 18

def spin_tail(a, label):
    a(f"""
    s_cbranch_scc1 {label}_ok
    s_add_u32 s35, s35, 1
    s_cmp_lt_u32 s35, {SPIN_MAX}
    s_cbranch_scc1 {label}
    {label}_ok:
    """)

def poll_ready(a, label):
    a(f"""
    v_mov_b32 v2, 0
    s_mov_b32 s35, 0
    {label}:
    buffer_load_dword v3, v2, {DBG}, 0 offen sc1
    s_waitcnt vmcnt(0)
    v_readfirstlane_b32 s34, v3
    s_cmp_lg_u32 s34, 0
    """)
    spin_tail(a, label)

def phase1(a, cfg):
    NSLOT, NCH = 5, 10
    NPRE = cfg.get("npre", 2)
    ST_FL = cfg.get("stfl", "sc1")
    a.c("tile: xcd j = id&7 ; u = (j>>2)*30 + (id>>3) ; cb(s17) = u>>2 ; tb(s18) = (j&3)*4 + (u&3)")
    a("""
    s_bfe_u32 s3, s2, 0x10002
    s_mul_i32 s3, s3, 30
    s_lshr_b32 s17, s2, 3
    s_add_u32 s3, s3, s17
    s_lshr_b32 s17, s3, 2
    s_and_b32 s3, s3, 3
    s_and_b32 s18, s2, 3
    s_lshl_b32 s18, s18, 2
    s_add_u32 s18, s18, s3
    s_cmp_lt_u32 s16, 4
    s_cbranch_scc1 L_qkv_cons
    """)
    a.c("---------------- loader waves")
    if cfg.get("rot", 1):
        a("""
        s_mul_i32 s23, s3, 5
        s_add_u32 s23, s23, 1
        s_lshr_b32 s23, s23, 1
        s_add_u32 s23, s23, s17
        s_mul_i32 s24, s23, 26
        s_lshr_b32 s24, s24, 8
        s_mul_i32 s24, s24, 10
        s_sub_u32 s23, s23, s24
        """)
    else:
        a("s_mov_b32 s23, 0")
    a(f"""
    s_and_b32 s19, s16, 3
    v_lshrrev_b32 v2, 3, v1
    v_and_b32 v3, 7, v1
    v_lshrrev_b32 v5, 4, v1
    v_xor_b32 v6, v3, v5
    v_xor_b32 v7, 4, v6
    v_mul_u32_u24 v2, 1280, v2
    v_lshl_add_u32 v8, v6, 4, v2
    v_lshl_add_u32 v9, v7, 4, v2
    v_add_u32 v9, {8*1280-1024}, v9
    v_add_u32 v10, {2*(8*1280-1024)}, v8
    v_add_u32 v11, {2*(8*1280-1024)}, v9
    v_and_b32 v3, 15, v1
    v_lshlrev_b32 v6, 2, v5
    v_xor_b32 v3, v3, v6
    v_mul_u32_u24 v2, 3840, v5
    v_lshl_add_u32 v12, v3, 4, v2
    v_add_u32 v13, {4*3840-1024}, v12
    v_add_u32 v14, {2*(4*3840-1024)}, v12
    v_add_u32 v15, {3*(4*3840-1024)}, v12
    s_lshl_b32 s20, s18, 2
    s_add_u32 s20, s20, s19
    s_mul_i32 s20, s20, {32*1280}
    s_mul_i32 s21, s19, {16*3840}
    s_lshl_b32 s3, s17, 8
    s_add_u32 s21, s21, s3
    s_lshl_b32 s22, s19, 12
    s_mov_b32 s10, {2048*1280}
    s_mov_b32 s11, 0x00020000
    s_mov_b32 s14, {640*3840}
    s_mov_b32 s15, 0x00020000
    s_waitcnt lgkmcnt(0)
    s_mov_b32 s8, s4
    s_mov_b32 s9, s5
    s_mov_b32 s12, s6
    s_mov_b32 s13, s7
    """)
    def issue(c):
        slot = c % NSLOT
        a(f"""
        s_lshl_b32 s24, s23, 7
        s_add_u32 m0, s22, {slot*32768}
        s_add_u32 s24, s24, s20
        """)
        for j in range(4):
            a(f"buffer_load_dwordx4 v{8+j}, s[8:11], s24 offen offset:{1024*j} lds")
        a(f"""
        s_mul_i32 s25, s23, {64*3840}
        s_add_u32 m0, s22, {slot*32768+16384}
        s_add_u32 s25, s25, s21
        """)
        for j in range(4):
            a(f"buffer_load_dwordx4 v{12+j}, s[12:15], s25 offen offset:{1024*j} lds")
        if c < NCH - 1:
            a("""
            s_add_u32 s23, s23, 1
            s_cmp_eq_u32 s23, 10
            s_cselect_b32 s23, 0, s23
            """)
    for c in range(NPRE): issue(c)
    common_srds(a)
    issued = NPRE
    for c in range(NCH):
        a(f"s_waitcnt vmcnt({8*(issued-1-c)})")
        if c in (0, 9): stamp(a, cfg, {0: 2, 9: 3}[c])
        a("s_barrier")
        if issued < NCH:
            issue(issued); issued += 1
    a("s_branch L_p1_helper_join")
    a.c("---------------- consumer waves")
    a("L_qkv_cons:")
    XA, WA, FR, AC, ST = 16, 28, 36, 68, 132
    a(f"""
    s_and_b32 s19, s16, 1
    s_lshr_b32 s20, s16, 1
    v_and_b32 v2, 31, v1
    v_lshrrev_b32 v3, 5, v1
    v_mov_b32 v5, v2
    s_cmp_lt_u32 s17, 10
    s_cbranch_scc1 L_qkv_noperm
    v_and_b32 v5, 0x13, v2
    v_bfe_u32 v6, v2, 2, 1
    v_lshl_or_b32 v5, v6, 3, v5
    v_bfe_u32 v6, v2, 3, 1
    v_lshl_or_b32 v5, v6, 2, v5
    L_qkv_noperm:
    v_bfe_u32 v6, v5, 1, 3
    v_xor_b32 v6, v6, v3
    v_lshlrev_b32 v6, 4, v6
    v_lshl_add_u32 v6, v5, 7, v6
    s_lshl_b32 s3, s19, 13
    v_add_u32 v{XA}, s3, v6
    v_xor_b32 v{XA+1}, 32, v{XA}
    v_xor_b32 v{XA+2}, 64, v{XA}
    v_xor_b32 v{XA+3}, 96, v{XA}
    v_bfe_u32 v6, v1, 2, 2
    v_and_b32 v7, 3, v1
    v_bfe_u32 v8, v1, 4, 1
    v_lshlrev_b32 v7, 3, v7
    v_lshl_add_u32 v7, v8, 5, v7
    v_lshl_add_u32 v8, v3, 3, v6
    v_lshl_add_u32 v7, v8, 8, v7
    s_lshl_b32 s3, s20, 1
    v_xor_b32 v6, s3, v6
    v_lshl_add_u32 v7, v6, 6, v7
    v_add_u32 v{WA}, 16384, v7
    v_xor_b32 v{WA+1}, 64, v{WA}
    """)
    for st in (1, 2):
        for s in range(4): a(f"v_add_u32 v{XA+4*st+s}, {65536*st}, v{XA+s}")
        for ct in range(2): a(f"v_add_u32 v{WA+2*st+ct}, {65536*st}, v{WA+ct}")
    a("""
    s_mul_i32 s21, s18, 5120
    s_mul_i32 s22, s19, 2560
    s_add_u32 s21, s21, s22
    s_waitcnt lgkmcnt(0)
    """)
    common_srds(a)
    def reads(ks, buf):
        c, s = divmod(ks, 4)
        slot = c % NSLOT
        st, so = slot >> 1, (slot & 1) * 32768
        f = FR + 16 * buf
        return [f"ds_read_b128 {vr(f,4)}, v{XA+4*st+s} offset:{so}",
                f"ds_read_b64_tr_b16 {vr(f+8,2)}, v{WA+2*st} offset:{so+16*s*256}",
                f"ds_read_b64_tr_b16 {vr(f+10,2)}, v{WA+2*st} offset:{so+(16*s+4)*256}",
                f"ds_read_b128 {vr(f+4,4)}, v{XA+4*st+s} offset:{so+4096}",
                f"ds_read_b64_tr_b16 {vr(f+12,2)}, v{WA+2*st+1} offset:{so+16*s*256}",
                f"ds_read_b64_tr_b16 {vr(f+14,2)}, v{WA+2*st+1} offset:{so+(16*s+4)*256}"]
    def mainloop(isv):
        a("s_barrier")
        stamp(a, cfg, 2)
        a(".p2align 3")
        for r in reads(0, 0): a(r)
        for ks in range(40):
            buf = ks & 1
            f = FR + 16 * buf
            a("s_waitcnt lgkmcnt(0)")
            nxt = []
            if ks < 39:
                if (ks + 1) % 4 == 0: a("s_barrier")
                else: a("s_nop 0")
                nxt = reads(ks + 1, buf ^ 1)
            split = [nxt[0:3], nxt[3:6], [], []]
            for i, (tt, ct) in enumerate([(0, 0), (1, 0), (0, 1), (1, 1)]):
                acc = AC + 16 * (2 * ct + tt)
                x, w = vr(f + 4 * tt, 4), vr(f + 8 + 4 * ct, 4)
                A, B = (x, w) if isv else (w, x)
                c = "0" if ks == 0 else vr(acc, 16)
                a(f"v_mfma_f32_32x32x16_bf16 {vr(acc,16)}, {A}, {B}, {c}")
                for r in split[i]: a(r)
        stamp(a, cfg, 3)
        a("s_nop 8")
    a("""
    s_cmp_lt_u32 s17, 10
    s_cbranch_scc0 L_qkv_v
    """)
    a.c("Q/K tiles: g = cb*32 + wc*16 + 8ct + 2i + h ; head = g/5 ; pos = g%5")
    a(f"""
    s_lshl_b32 s3, s17, 5
    s_lshl_b32 s22, s20, 4
    s_add_u32 s3, s3, s22
    v_add_u32 v6, s3, v3
    v_lshlrev_b32 v4, 3, v2
    s_mov_b32 s24, {HS - 5*512}
    s_cmp_lt_u32 s17, 5
    s_cselect_b32 s25, {CSCALE}, 1.0
    """)
    for q in range(8):
        a(f"""
        v_add_u32 v7, {2*q}, v6
        v_mul_u32_u24 v8, 52429, v7
        v_lshrrev_b32 v8, 18, v8
        v_lshl_add_u32 v7, v7, 9, v4
        v_mad_u32_u24 v{ST+q}, v8, s24, v7
        """)
    mainloop(False)
    for (tt, ct) in [(0, 0), (1, 0), (0, 1), (1, 1)]:
        acc = AC + 16 * (2 * ct + tt)
        for i in range(4):
            for j in range(4):
                a(f"v_mul_f32 v{acc+4*i+j}, s25, v{acc+4*i+j}")
            a(f"v_cvt_pk_bf16_f32 v{acc+4*i}, v{acc+4*i}, v{acc+4*i+1}")
            a(f"v_cvt_pk_bf16_f32 v{acc+4*i+1}, v{acc+4*i+2}, v{acc+4*i+3}")
            a(f"buffer_store_dwordx2 {vr(acc+4*i,2)}, v{ST+4*ct+i}, {WS}, s21 offen offset:{256*tt} {ST_FL}")
    a("s_branch L_qkv_fin")
    a("L_qkv_v:")
    a.c("V tiles: col = (cb-10)*128 + 64wc + 32ct + n ; head = col/20 ; d = col%20")
    a(f"""
    s_sub_u32 s3, s17, 10
    s_lshl_b32 s3, s3, 7
    s_lshl_b32 s22, s20, 6
    s_add_u32 s3, s3, s22
    v_add_u32 v6, s3, v2
    s_add_u32 s21, s21, {64*HS}
    v_mul_u32_u24 v4, 320, v3
    s_mov_b32 s24, {HS - 320}
    """)
    for ct in range(2):
        a(f"""
        v_add_u32 v7, {32*ct}, v6
        v_mul_u32_u24 v8, 13108, v7
        v_lshrrev_b32 v8, 18, v8
        v_lshl_add_u32 v7, v7, 4, v4
        v_mad_u32_u24 v{ST+ct}, v8, s24, v7
        """)
    mainloop(True)
    for (tt, ct) in [(0, 0), (1, 0), (0, 1), (1, 1)]:
        acc = AC + 16 * (2 * ct + tt)
        for f in range(2):
            for j in range(4):
                a(f"v_cvt_pk_bf16_f32 v{acc+8*f+j}, v{acc+8*f+2*j}, v{acc+8*f+2*j+1}")
            a(f"buffer_store_dwordx4 {vr(acc+8*f,4)}, v{ST+ct}, {WS}, s21 offen offset:{1280*tt+640*f} {ST_FL}")
    a("L_qkv_fin:")
    stamp(a, cfg, 4)
    a(f"""
    s_mul_i32 s60, s17, {F1_STRIDE}
    s_lshl_b32 s3, s18, 2
    s_add_u32 s60, s60, s3
    s_add_u32 s60, s60, {F1_OFF}
    s_branch L_p1_join
    """)

def common_srds(a):
    srd(a, 44, 42, WS_BYTES)
    srd(a, 48, 36, 640 * 1280)
    srd(a, 52, 38, 2048 * 1280)
    srd(a, 56, 40, 256)

SA, SB = 144, 176
O0, O1 = 208, 224
QM0, QM1, QT = 240, 244, 248
IDX, VKE, VKO, VT, VV0, VV1 = 250, 251, 252, 253, 254, 255
KM, KT, VV = 16, 24, 32
WOA = 48
VL16 = 53
VQ, VQT = 54, 55

def attn_setup(a, cfg):
    a.c("attention ids: s17=head s18=q pair s19=key half")
    a(f"""
    s_and_b32 s17, s2, 7
    s_lshl_b32 s17, s17, 2
    s_bfe_u32 s3, s2, 0x20003
    s_add_u32 s17, s17, s3
    s_lshr_b32 s18, s2, 5
    s_lshl_b32 s18, s18, 2
    s_and_b32 s3, s16, 3
    s_add_u32 s18, s18, s3
    s_lshr_b32 s19, s16, 2
    s_mul_i32 s20, s19, {HS}
    v_and_b32 v2, 31, v1
    v_lshrrev_b32 v3, 5, v1
    v_lshlrev_b32 v4, 3, v2
    v_lshl_add_u32 v{VQ}, v3, 9, v4
    v_add_u32 v{VKE}, s20, v{VQ}
    v_add_u32 v{VKO}, 256, v{VKE}
    v_lshlrev_b32 v4, 3, v1
    v_add_u32 v{VT}, s20, v4
    s_lshl_b32 s3, s19, 8
    v_xor_b32 v{VQT}, s3, v4
    v_mul_u32_u24 v5, 320, v3
    v_lshl_add_u32 v5, v2, 4, v5
    s_add_u32 s3, s20, 5120
    v_add_u32 v{VV0}, s3, v5
    v_add_u32 v{VV1}, 40960, v{VV0}
    v_lshlrev_b32 v{VL16}, 4, v1
    v_mov_b32 v{IDX}, 0xdddddddd
    s_mov_b32 s24, 0x000fffff
    s_mov_b32 s25, 0x000fffff
    v_cmp_eq_u32 vcc, 20, v2
    v_mov_b32 v5, 0x3f803f80
    s_mul_i32 s21, s17, {HS}
    v_cndmask_b32 v{VV}, 0, v5, vcc
    """)
    for i in range(1, 16): a(f"v_mov_b32 v{VV+i}, v{VV}")
    for i in range(32): a(f"v_mov_b32 v{O0+i}, 0")
    for i in range(5):
        a(f"""
        v_add_u32 v2, {64*i}, v1
        v_mul_u32_u24 v3, 6554, v2
        v_lshrrev_b32 v3, 16, v3
        v_mul_u32_u24 v4, {1280-160}, v3
        v_lshl_add_u32 v{WOA+i}, v2, 4, v4
        """)
    a.c("s22/s23: Q soffsets role0/role1, s26: Q tail ; s27: K/V dma source ; s28: dma lds dest")
    a(f"""
    s_mul_i32 s26, s18, 2560
    s_add_u32 s26, s26, s21
    s_lshl_b32 s3, s19, 8
    s_add_u32 s22, s26, s3
    s_xor_b32 s3, s3, 256
    s_add_u32 s23, s26, s3
    s_and_b32 s3, s16, 1
    s_mul_i32 s27, s3, {32*HS}
    s_add_u32 s27, s27, s21
    s_add_u32 s27, s27, {32*HS}
    s_bfe_u32 s29, s16, 0x10001
    s_mul_i32 s29, s29, 5120
    s_add_u32 s27, s27, s29
    s_and_b32 s28, s16, 3
    s_mul_i32 s28, s28, 5120
    """)

def poll_flags1(a, cfg):
    a(f"""
    s_mul_i32 s30, s17, 20
    s_add_u32 s31, s30, 19
    s_lshr_b32 s30, s30, 7
    s_lshr_b32 s31, s31, 7
    s_sub_u32 s31, s31, s30
    v_bfe_u32 v2, v1, 4, 1
    v_mul_u32_u24 v2, s31, v2
    v_add_u32 v2, s30, v2
    v_mul_u32_u24 v5, {F1_STRIDE}, v2
    v_lshrrev_b32 v3, 5, v1
    v_mul_u32_u24 v3, {5*F1_STRIDE}, v3
    v_and_b32 v4, 15, v1
    v_lshl_add_u32 v3, v4, 2, v3
    v_add_u32 v3, v3, v5
    v_add_u32 v3, {5*F1_STRIDE}, v3
    s_lshr_b32 s3, s2, 5
    s_lshl_b32 s3, s3, 3
    v_and_b32 v4, 1, v1
    v_lshl_add_u32 v4, v4, 2, v5
    v_add_u32 v4, s3, v4
    s_mov_b32 s33, {F1_OFF}
    s_mov_b32 s35, 0
    """)

def poll_flags1_loop(a, cfg):
    a(f"""
    L_poll1:
    buffer_load_dword v5, v3, {WS}, s33 offen sc1
    buffer_load_dword v6, v4, {WS}, s33 offen sc1
    s_waitcnt vmcnt(0)
    v_and_b32 v5, v5, v6
    v_cmp_ne_u32 vcc, 0, v5
    s_nop 0
    s_cmp_eq_u64 vcc, -1
    """)
    spin_tail(a, "L_poll1")

def attn(a, cfg):
    LD = cfg.get("ldfl", "sc1")
    def qloads():
        a(f"""
        buffer_load_dwordx2 {vr(QT,2)}, v{VQT}, {WS}, s26 offen offset:2048 {LD}
        buffer_load_dwordx2 {vr(QM0,2)}, v{VQ}, {WS}, s22 offen {LD}
        buffer_load_dwordx2 {vr(QM0+2,2)}, v{VQ}, {WS}, s22 offen offset:1024 {LD}
        buffer_load_dwordx2 {vr(QM1,2)}, v{VQ}, {WS}, s23 offen {LD}
        buffer_load_dwordx2 {vr(QM1+2,2)}, v{VQ}, {WS}, s23 offen offset:1024 {LD}
        """)
    def dma_group(g):
        a(f"""
        s_add_u32 m0, s28, {g*20480}
        s_add_u32 s29, s27, {g*10240}
        """)
        for j in range(4):
            a(f"buffer_load_dwordx4 v{VL16}, {WS}, s29 offen offset:{1024*j} {LD} lds")
        a(f"""
        s_add_u32 m0, s28, {g*20480+4096}
        s_add_u32 s29, s27, {g*10240+4096}
        buffer_load_dwordx4 v{VL16}, {WS}, s29 offen {LD} lds
        """)
    a("""
    s_cmp_lt_u32 s16, 4
    s_cbranch_scc1 L_at_old
    """)
    dma_group(0); dma_group(1)
    a("s_waitcnt vmcnt(5)")
    a("s_barrier")
    for g in range(2, 8): dma_group(g)
    qloads()
    a("s_waitcnt vmcnt(0)")
    a("s_branch L_at_go")
    a("L_at_old:")
    qloads()
    a("s_waitcnt vmcnt(0)")
    a("L_at_go:")
    a("s_barrier")
    stamp(a, cfg, 7)
    def kread(t):
        b, T = divmod(t, 4)
        o = 20*b + 5*(T >> 1)
        return f"ds_read2st64_b64 {vr(KM+4*(t&1),4)}, v{VKO if T & 1 else VKE} offset0:{o} offset1:{o+2}"
    def tread(b):
        return f"ds_read2st64_b64 {vr(KT+4*(b&1),4)}, v{VT} offset0:{20*b+4} offset1:{20*b+9}"
    def vread(t, f):
        b, T = divmod(t, 4)
        ad = VV0 if b < 4 else VV1
        return f"ds_read_b128 {vr(VV+8*(t&1)+4*f,4)}, v{ad} offset:{10240*(b&3)+1280*T+640*f}"
    def Tm(t, dst):
        b, T = divmod(t, 4)
        return f"v_mfma_f32_32x32x4_2b_bf16 {vr(dst,32)}, {vr(KT+4*(b&1)+2*(T>>1),2)}, {vr(QT,2)}, 0 cbsz:1 abid:{T&1}"
    def Mm(t, dst, r):
        return f"v_mfma_f32_32x32x16_bf16 {vr(dst+16*r,16)}, {vr(KM+4*(t&1),4)}, {vr(QM1 if r else QM0,4)}, {vr(dst+16*r,16)}"
    def Pm(o, t, f, s):
        return f"v_smfmac_f32_32x32x32_bf16 {vr(o,16)}, {vr(VV+8*(t&1)+4*f,4)}, {vr(s,8)}, v{IDX}"
    a(tread(0)); a(kread(0)); a(kread(1))
    a("s_mov_b64 exec, s[24:25]"); a(vread(0, 0)); a(vread(0, 1)); a("s_mov_b64 exec, -1")
    a.c("wo dma: s30 source, s31 lds dest")
    a(f"""
    s_lshr_b32 s3, s2, 5
    s_mul_i32 s30, s3, 160
    s_mul_i32 s3, s16, {32*1280}
    s_add_u32 s30, s30, s3
    s_mul_i32 s31, s16, 5120
    s_waitcnt lgkmcnt({0 if cfg.get('stamp') else 4})
    """)
    a(Tm(0, SA)); a("s_nop 15"); a("s_nop 1"); a("s_waitcnt lgkmcnt(3)")
    a(Mm(0, SA, 0)); a(Mm(0, SA, 1)); a("s_nop 10")
    prio = {int(k): v for k, v in cfg.get("prio", {"0": 3, "13": 2, "17": 1, "19": 0, "20": 3, "25": 2, "27": 1, "28": 3, "30": 2, "31": 1}).items()}
    BAR_B, BAR_C, BAR_C2 = 5, 19, 27
    wo_list = [(p, i) for p in range(3) for i in range(5)]
    a(".p2align 3")
    for t in range(32):
        cur, nxt = (SA, SB) if t % 2 == 0 else (SB, SA)
        e = iter(range(32))
        def E(n):
            for _ in range(n):
                i = next(e); a(f"v_exp_f32 v{cur+i}, v{cur+i}")
        def wo(n):
            for _ in range(n):
                if t <= BAR_C or not wo_list: return
                p, i = wo_list.pop(0)
                if i == 0:
                    a(f"""
                    s_add_u32 s3, s16, {8*p}
                    s_min_u32 s3, s3, 19
                    s_mul_i32 s31, s3, 5120
                    s_cmp_ge_u32 s3, 10
                    s_cselect_b32 s32, {HS-51200}, 0
                    s_add_u32 s31, s31, s32
                    s_sub_u32 s3, s3, s16
                    s_mul_i32 s3, s3, {32*1280}
                    s_add_u32 s32, s30, s3
                    s_nop 0
                    """)
                a(f"s_add_u32 m0, s31, {1024*i}")
                a("s_nop 0")
                a(f"buffer_load_dwordx4 v{WOA+i}, {WO}, s32 offen lds")
                a("s_nop 0")
        a.c(f"step {t}")
        E(2)
        if t > 0: a(Pm(O1, t-1, 1, nxt+24))
        a("s_waitcnt lgkmcnt(0)")
        if t == BAR_B:
            a("""
            s_cmp_lt_u32 s16, 4
            s_cbranch_scc0 L_at_nob
            s_barrier
            L_at_nob:
            """)
        elif t in (BAR_C, BAR_C2):
            a("s_barrier")
        elif t in prio: a(f"s_setprio {prio[t]}")
        else: a("s_nop 0")
        if t in (BAR_B, BAR_C, BAR_C2) and t in prio: a(f"s_setprio {prio[t]}"); a("s_nop 0")
        if t + 2 < 32: a(kread(t+2))
        E(4)
        if t < 31: a(Tm(t+1, nxt))
        E(8)
        a(Pm(O0, t, 0, cur))
        if t < 31: a("s_mov_b64 exec, s[24:25]"); a(vread(t+1, 0)); a("s_mov_b64 exec, -1")
        E(4)
        a(Pm(O0, t, 1, cur+8))
        if t < 31: a("s_mov_b64 exec, s[24:25]"); a(vread(t+1, 1)); a("s_mov_b64 exec, -1")
        E(4)
        if t < 31: a(Mm(t+1, nxt, 0))
        wo(1)
        E(4)
        a(Pm(O1, t, 0, cur+16))
        if t % 4 == 1 and t // 4 < 7: a(tread(t//4+1))
        wo(1)
        E(4)
        if t < 31: a(Mm(t+1, nxt, 1))
        E(2)
    assert not wo_list
    stamp(a, cfg, 8)
    a.c("---- epilogue: exchange role-0 tile with the partner wave (other key half)")
    a(f"""
    s_and_b32 s3, s16, 3
    s_mul_i32 s3, s3, 3072
    s_add_u32 s3, s3, 51200
    s_add_u32 s32, s3, s20
    s_xor_b32 s33, s20, {HS}
    s_add_u32 s33, s33, s3
    {Pm(O1, 31, 1, SB+24)}
    v_add_u32 v3, s32, v{VL16}
    v_add_u32 v4, s33, v{VL16}
    ds_write_b128 v3, {vr(O0,4)}
    ds_write_b128 v3, {vr(O0+4,4)} offset:1024
    ds_write_b128 v3, {vr(O0+8,4)} offset:2048
    s_setprio 0
    """)
    a.c("O store addresses: kept tile s27 = 2*qp + (1^kh)")
    a(f"""
    s_lshl_b32 s27, s18, 1
    s_xor_b32 s28, s19, 1
    s_add_u32 s27, s27, s28
    s_mul_i32 s29, s27, 40960
    s_add_u32 s29, s29, {O_OFF}
    s_lshl_b32 s28, s17, 9
    s_add_u32 s28, s28, s29
    s_lshl_b32 s30, s17, 7
    s_add_u32 s29, s29, s30
    s_add_u32 s29, s29, 16384
    v_bfe_u32 v5, v1, 4, 1
    v_mul_u32_u24 v5, 20480, v5
    v_and_b32 v6, 15, v1
    v_lshl_add_u32 v13, v6, 3, v5
    v_lshl_add_u32 v5, v6, 4, v5
    v_lshrrev_b32 v6, 5, v1
    v_lshl_add_u32 v12, v6, 8, v5
    s_mul_i32 s60, s27, {F2_STRIDE}
    s_lshl_b32 s30, s17, 2
    s_add_u32 s60, s60, s30
    s_add_u32 s60, s60, {F2_OFF}
    s_waitcnt vmcnt(0) lgkmcnt(0)
    s_barrier
    ds_read_b128 {vr(O0+8,4)}, v4 offset:2048
    ds_read_b128 {vr(O0,4)}, v4
    ds_read_b128 {vr(O0+4,4)}, v4 offset:1024
    s_waitcnt lgkmcnt(2)
    """)
    for i in range(8, 12): a(f"v_add_f32 v{O1+i}, v{O1+i}, v{O0+i}")
    a(f"""
    v_mov_b32 v7, v{O1+8}
    v_mov_b32 v9, v{O1+8}
    s_waitcnt lgkmcnt(0)
    """)
    for i in range(8):
        a(f"v_add_f32 v{O1+i}, v{O1+i}, v{O0+i}")
        if i == 1: a("v_permlane32_swap_b32 v7, v9")
    a.c("run-time check of the shift-free softmax: row sum in [2^-60, 2^60], finite accumulators; else redo with the true row max")
    a(f"v_add_f32 v8, abs(v{O1}), abs(v{O1+1})")
    for i in range(2, 12): a(f"v_add_f32 v8, v8, abs(v{O1+i})")
    a(f"""
    s_mov_b32 s30, 0x21800000
    s_mov_b32 s31, 0x5d800000
    s_mov_b32 s3, 0x7f800000
    v_cmp_le_f32 s[32:33], s30, v9
    v_cmp_ge_f32 s[34:35], s31, v9
    v_cmp_gt_f32 vcc, s3, v8
    s_nop 1
    s_and_b64 s[32:33], s[32:33], s[34:35]
    s_and_b64 s[32:33], s[32:33], vcc
    s_cmp_eq_u64 s[32:33], -1
    s_cbranch_scc0 L_attn_slow
    L_attn_fin:
    v_rcp_f32 v8, v9
    s_nop 0
    """)
    for i in range(8): a(f"v_mul_f32 v{O1+i}, v{O1+i}, v8")
    for i in range(4): a(f"v_cvt_pk_bf16_f32 v{O0+i}, v{O1+2*i}, v{O1+2*i+1}")
    a(f"buffer_store_dwordx4 {vr(O0,4)}, v12, {WS}, s28 offen sc1")
    for i in range(8, 12): a(f"v_mul_f32 v{O1+i}, v{O1+i}, v8")
    for i in range(4, 6): a(f"v_cvt_pk_bf16_f32 v{O0+i}, v{O1+2*i}, v{O1+2*i+1}")
    a(f"""
    s_mov_b32 exec_hi, 0
    buffer_store_dwordx2 {vr(O0+4,2)}, v13, {WS}, s29 offen sc1
    s_mov_b32 exec_hi, -1
    """)
    stamp(a, cfg, 9)

def attn_slow(a):
    a("L_attn_slow:")
    a(f"""
    v_and_b32 v2, 31, v1
    v_lshlrev_b32 v14, 3, v2
    v_lshrrev_b32 v3, 5, v1
    v_mul_u32_u24 v3, 320, v3
    v_lshl_add_u32 v15, v2, 4, v3
    v_mov_b32 v10, 0xff800000
    s_mov_b32 s34, 0
    """)
    for i in range(16): a(f"v_mov_b32 v{O1+i}, 0")
    a(f"""
    L_slow_pass:
    s_mov_b32 s35, 0
    L_slow_tile:
    s_lshr_b32 s30, s35, 1
    s_mul_i32 s30, s30, 2560
    s_and_b32 s31, s35, 1
    s_lshl_b32 s31, s31, 8
    s_add_u32 s30, s30, s31
    s_add_u32 s30, s30, s21
    s_add_u32 s30, s30, {32*HS}
    s_mul_i32 s31, s35, 1280
    s_add_u32 s31, s31, s21
    s_add_u32 s31, s31, {64*HS}
    buffer_load_dwordx2 {vr(KT,2)}, v14, {WS}, s30 offen offset:2048 sc1
    buffer_load_dwordx2 {vr(KM,2)}, v{VQ}, {WS}, s30 offen sc1
    buffer_load_dwordx2 {vr(KM+2,2)}, v{VQ}, {WS}, s30 offen offset:1024 sc1
    s_mov_b64 exec, s[24:25]
    buffer_load_dwordx4 {vr(VV,4)}, v15, {WS}, s31 offen sc1
    buffer_load_dwordx4 {vr(VV+4,4)}, v15, {WS}, s31 offen offset:640 sc1
    s_mov_b64 exec, -1
    s_waitcnt vmcnt(0)
    v_mfma_f32_32x32x4_2b_bf16 {vr(SA,32)}, {vr(KT,2)}, {vr(QT,2)}, 0
    s_nop 15
    s_nop 3
    v_mfma_f32_32x32x16_bf16 {vr(SA+16,16)}, {vr(KM,4)}, {vr(QM1,4)}, {vr(SA+16,16)}
    s_nop 15
    s_cmp_eq_u32 s34, 0
    s_cbranch_scc0 L_slow_pv
    """)
    for i in range(8): a(f"v_max3_f32 v10, v10, v{SA+16+2*i}, v{SA+17+2*i}")
    a("s_branch L_slow_next")
    a("L_slow_pv:")
    for i in range(16): a(f"v_sub_f32 v{SA+16+i}, v{SA+16+i}, v10")
    for i in range(16): a(f"v_exp_f32 v{SA+16+i}, v{SA+16+i}")
    a(f"""
    s_nop 3
    v_smfmac_f32_32x32x32_bf16 {vr(O1,16)}, {vr(VV,4)}, {vr(SA+16,8)}, v{IDX}
    v_smfmac_f32_32x32x32_bf16 {vr(O1,16)}, {vr(VV+4,4)}, {vr(SA+24,8)}, v{IDX}
    s_nop 15
    L_slow_next:
    s_add_u32 s35, s35, 1
    s_cmp_lt_u32 s35, 64
    s_cbranch_scc1 L_slow_tile
    s_cmp_eq_u32 s34, 0
    s_cbranch_scc0 L_slow_done
    v_mov_b32 v11, v10
    s_nop 1
    v_permlane32_swap_b32 v10, v11
    s_nop 1
    v_max_f32 v10, v10, v11
    s_mov_b32 s34, 1
    s_branch L_slow_pass
    L_slow_done:
    v_mov_b32 v7, v{O1+8}
    v_mov_b32 v9, v{O1+8}
    s_nop 1
    v_permlane32_swap_b32 v7, v9
    s_nop 1
    s_branch L_attn_fin
    """)

def phase3(a, cfg):
    OF, WF, AC = 16, 56, 96
    a.c("---- output projection: s17=tg s18=cg s19=tt s20=kh*HS s21=tile16")
    a(f"""
    s_lshr_b32 s18, s2, 5
    s_and_b32 s19, s16, 3
    s_lshr_b32 s26, s16, 2
    s_lshl_b32 s21, s17, 2
    s_add_u32 s21, s21, s19
    s_mul_i32 s22, s21, 20480
    s_add_u32 s22, s22, {O_OFF}
    s_lshl_b32 s3, s26, 11
    s_add_u32 s23, s22, s3
    s_add_u32 s23, s23, 16384
    s_lshl_b32 s3, s26, 13
    s_add_u32 s22, s22, s3
    s_add_u32 s24, s22, 4096
    s_lshr_b32 s33, s21, 1
    s_mul_i32 s33, s33, {F2_STRIDE}
    s_lshl_b32 s3, s26, 6
    s_add_u32 s33, s33, s3
    s_add_u32 s33, s33, {F2_OFF}
    v_lshlrev_b32 v120, 4, v1
    v_lshlrev_b32 v121, 3, v1
    v_and_b32 v122, 15, v1
    v_lshlrev_b32 v122, 2, v122
    v_lshrrev_b32 v2, 5, v1
    v_bfe_u32 v3, v1, 4, 1
    v_bfe_u32 v4, v1, 2, 2
    v_and_b32 v5, 3, v1
    v_lshlrev_b32 v5, 3, v5
    v_add_u32 v5, s20, v5
    v_mul_u32_u24 v6, 20, v2
    v_lshl_add_u32 v6, v3, 2, v6
    v_add_u32 v6, v6, v4
    v_mul_u32_u24 v6, 160, v6
    v_add_u32 v14, v6, v5
    v_lshrrev_b32 v6, 4, v1
    v_mul_u32_u24 v6, 20, v6
    v_add3_u32 v6, v6, 16, v4
    v_mul_u32_u24 v6, 160, v6
    v_add_u32 v15, v6, v5
    """)
    def reads(ks, buf):
        r = []
        for t in range(5):
            for u in range(2):
                if ks < 8: ad, off = 14, (40*ks + 8*u)*160 + 32*t
                else: ad, off = 15, (160*(ks-8) + 80*u)*160 + 32*t
                r.append(f"ds_read_b64_tr_b16 {vr(WF+20*buf+4*t+2*u,2)}, v{ad} offset:{off}")
        return r
    for r in reads(0, 0): a(r)
    a.c("partial buffer (v123), bf16 staging write (v124), staging read (v125..127) and out offsets (v128..130)")
    a(f"""
    s_lshr_b32 s3, s19, 1
    s_mul_i32 s3, s3, {HS}
    s_and_b32 s30, s19, 1
    s_mul_i32 s30, s30, 5120
    s_add_u32 s30, s30, s3
    s_add_u32 s30, s30, {7*10240}
    v_add_u32 v123, s30, v120
    v_and_b32 v2, 15, v1
    v_lshrrev_b32 v3, 4, v1
    v_mul_u32_u24 v2, 176, v2
    v_lshl_add_u32 v2, v3, 3, v2
    v_add_u32 v124, s30, v2
    s_mul_i32 s27, s21, {16*1280}
    s_mul_i32 s3, s18, 160
    s_add_u32 s27, s27, s3
    """)
    for i in range(3):
        a(f"""
        v_add_u32 v2, {64*i}, v1
        v_mul_u32_u24 v3, 6554, v2
        v_lshrrev_b32 v3, 16, v3
        v_add_u32 v4, v2, v3
        v_lshlrev_b32 v4, 4, v4
        v_add_u32 v{125+i}, s30, v4
        v_mul_u32_u24 v4, {1280-160}, v3
        v_lshl_add_u32 v{128+i}, v2, 4, v4
        """)
    a.c("publish this wave's O tile, then wait for the 16 producers of this wave's input")
    a(f"""
    v_mov_b32 v2, 0
    v_mov_b32 v3, 1
    s_waitcnt vmcnt(0)
    """)
    stamp(a, cfg, 10)
    a(f"""
    s_mov_b64 exec, 1
    buffer_store_dword v3, v2, {WS}, s60 offen sc1
    s_mov_b64 exec, -1
    s_mov_b32 s35, 0
    L_poll2:
    buffer_load_dword v5, v122, {WS}, s33 offen sc1
    s_waitcnt vmcnt(0)
    v_cmp_ne_u32 vcc, 0, v5
    s_nop 0
    s_cmp_eq_u64 vcc, -1
    """)
    spin_tail(a, "L_poll2")
    stamp(a, cfg, 11)
    for ks in range(8):
        a(f"buffer_load_dwordx4 {vr(OF+4*ks,4)}, v120, {WS}, s{22 if ks < 4 else 24} offen offset:{1024*(ks&3)} sc1")
    for q in range(4):
        a(f"buffer_load_dwordx2 {vr(OF+32+2*q,2)}, v121, {WS}, s23 offen offset:{512*q} sc1")
    for ks in range(10):
        buf = ks & 1
        vm = 11 - ks if ks < 8 else (2 if ks == 8 else 0)
        a(f"s_waitcnt vmcnt({vm}) lgkmcnt(0)")
        nxt = reads(ks+1, buf ^ 1) if ks < 9 else []
        for t in range(5):
            for r in nxt[2*t:2*t+2]: a(r)
            c = "0" if ks == 0 else vr(AC+4*t, 4)
            a(f"v_mfma_f32_16x16x32_bf16 {vr(AC+4*t,4)}, {vr(WF+20*buf+4*t,4)}, {vr(OF+4*ks,4)}, {c}")
    stamp(a, cfg, 12)
    a("""
    s_cmp_lt_u32 s16, 4
    s_cbranch_scc1 L_out_lo
    s_nop 2
    """)
    for t in range(5):
        a(f"ds_write_b128 v123, {vr(AC+4*t,4)} offset:{1024*t}")
        if t < 4: a("s_nop 0")
    a("""
    s_waitcnt lgkmcnt(0)
    s_barrier
    s_branch L_fin
    L_out_lo:
    s_barrier
    """)
    for t in range(5): a(f"ds_read_b128 {vr(WF+4*t,4)}, v123 offset:{1024*t}")
    a("s_waitcnt lgkmcnt(0)")
    for t in range(5):
        for r in range(4): a(f"v_add_f32 v{AC+4*t+r}, v{AC+4*t+r}, v{WF+4*t+r}")
        a(f"v_cvt_pk_bf16_f32 v{OF+2*t}, v{AC+4*t}, v{AC+4*t+1}")
        a(f"v_cvt_pk_bf16_f32 v{OF+2*t+1}, v{AC+4*t+2}, v{AC+4*t+3}")
        a(f"ds_write_b64 v124, {vr(OF+2*t,2)} offset:{32*t}")
    a("s_waitcnt lgkmcnt(0)")
    for i in range(3): a(f"ds_read_b128 {vr(WF+4*i,4)}, v{125+i}")
    OFL = cfg.get("outfl", "")
    for i in range(3):
        a(f"s_waitcnt lgkmcnt({2-i})")
        if i == 2: a("s_mov_b32 exec_hi, 0")
        a(f"buffer_store_dwordx4 {vr(WF+4*i,4)}, v{128+i}, {OUT}, s27 offen {OFL}")
    a("L_fin:")

def gen(cfg):
    a = Asm()
    kernel_begin(a, NAME)
    a("""
    s_cmp_ge_u32 s2, 256
    s_cbranch_scc1 L_end
    """)
    stamp(a, cfg, 0, real=True); stamp(a, cfg, 1)
    a("""
    s_load_dwordx4 s[4:7], s[0:1], 0
    s_load_dwordx8 s[36:43], s[0:1], 16
    v_lshrrev_b32 v2, 6, v0
    v_and_b32 v1, 63, v0
    v_readfirstlane_b32 s16, v2
    """)
    if cfg.get("codepf", 1):
        a.c("touch the kernel's own code once so that instruction fetch hits L2")
        a(f"""
        s_getpc_b64 s[62:63]
        v_lshlrev_b32 v3, 7, v0
        v_min_u32 v3, L_code_end - {NAME} - 256, v3
        s_cmp_lt_u32 s16, 4
        s_cbranch_scc0 L_nopf
        global_load_dword v143, v3, s[62:63]
        L_nopf:
        """)
    a("""
    s_cmp_lt_u32 s2, 240
    s_cbranch_scc1 L_p1
    s_waitcnt lgkmcnt(0)
    """)
    common_srds(a)
    a.c("workgroups without a GEMM tile; 240 clears the hand-off flags and then raises 'ready' in d_debug")
    a(f"""
    s_cmp_eq_u32 s2, 240
    s_cbranch_scc0 L_p1_helper_join
    v_lshlrev_b32 v2, 4, v0
    v_mov_b32 v4, 0
    v_mov_b32 v5, 0
    v_mov_b32 v6, 0
    v_mov_b32 v7, 0
    s_mov_b32 s3, {F1_OFF}
    s_mov_b32 s17, {F1_OFF+8192}
    s_mov_b32 s18, {F1_OFF+16384}
    buffer_store_dwordx4 v[4:7], v2, {WS}, s3 offen sc1
    buffer_store_dwordx4 v[4:7], v2, {WS}, s17 offen sc1
    buffer_store_dwordx4 v[4:7], v2, {WS}, s18 offen sc1
    s_waitcnt vmcnt(0)
    s_barrier
    s_cmp_eq_u32 s16, 0
    s_cbranch_scc0 L_p1_helper_join
    v_mov_b32 v3, 1
    s_mov_b64 exec, 1
    buffer_store_dword v3, v4, {DBG}, 0 offen sc1
    s_mov_b64 exec, -1
    s_branch L_p1_helper_join
    L_p1:
    """)
    phase1(a, cfg)
    a("""
    L_p1_helper_join:
    s_mov_b32 s60, 0
    s_cmp_eq_u32 s16, 4
    s_cbranch_scc0 L_p1_join
    """)
    poll_ready(a, "L_ready")
    a("L_p1_join:")
    attn_setup(a, cfg)
    poll_flags1(a, cfg)
    a("s_waitcnt vmcnt(0)")
    stamp(a, cfg, 5)
    a(f"""
    s_barrier
    s_cmp_eq_u32 s16, 4
    s_cbranch_scc1 L_poll1
    s_cmp_eq_u32 s16, 0
    s_cselect_b32 s60, s60, 0
    s_cmp_eq_u32 s60, 0
    s_cbranch_scc1 L_poll1_ok
    v_mov_b32 v2, 0
    v_mov_b32 v3, 1
    s_mov_b64 exec, 1
    buffer_store_dword v3, v2, {WS}, s60 offen sc1
    s_mov_b64 exec, -1
    s_branch L_poll1_ok
    """)
    poll_flags1_loop(a, cfg)
    a("s_barrier")
    stamp(a, cfg, 6)
    attn(a, cfg)
    phase3(a, cfg)
    if cfg.get("stamp"): a("s_waitcnt vmcnt(0)")
    stamp(a, cfg, 13); stamp(a, cfg, 14, real=True)
    stamp_flush(a, cfg, 0, 16, 8, wsptr=42)
    a("L_end:")
    a("s_endpgm")
    attn_slow(a)
    a("L_code_end:")
    extra = ""
    head = open("standalone__softmax_full_mha__prompt.s.ref").read().split("; Override launch")[0]
    descs = descriptor(NAME, 256)
    if cfg.get("probe"):
        import k_probe
        head += f"; @launch kernel={NAME} grid=(256,1,1) block=(512,1,1) lds=163840\n; @launch kernel=probe_kernel grid=(1,1,1) block=(64,1,1) lds=0\n"
        descs += k_probe.gen_probe(a, cfg)
    elif cfg.get("list"):
        head += f"; @launch kernel={NAME} grid=(256,1,1) block=(512,1,1) lds=163840\n"
    else:
        head += "; @launch grid=(256,1,1) block=(512,1,1) lds=163840\n"
    return head + '.amdgcn_target "amdgcn-amd-amdhsa--gfx950"\n.text\n' + a.text() + '.section .rodata,"a"\n' + descs

if __name__ == "__main__":
    cfg = json.loads(sys.argv[2]) if len(sys.argv) > 2 else {}
    open(sys.argv[1], "w").write(gen(cfg))
```

```python
import sys, json, struct
from asmlib import *
NAME = "standalone__softmax_full_mha__prompt_kernel"
HQ = 81920
HKV = 163840
KV_OFF = 32 * HQ
O_OFF = KV_OFF + 32 * HKV
FB_OFF = O_OFF + 128 * 20480
FA_OFF = FB_OFF + 1024 * 128
F2_OFF = FA_OFF + 256 * 128
WS_BYTES = F2_OFF + 256 * 128
SLOT = [0, 24576, 49152, 81920, 106496, 131072, 0, 24576, 49152, 139264]
CSCALE = struct.unpack("<I", struct.pack("<f", (20 ** -0.5) * 1.4426950408889634))[0]
WS, WO, OUT, DBG = "s[44:47]", "s[48:51]", "s[52:55]", "s[56:59]"
SPIN_MAX = 1 << 18

def spin_tail(a, label, mult=1):
    a(f"""
    s_cbranch_scc1 {label}_ok
    s_add_u32 s35, s35, 1
    s_cmp_lt_u32 s35, {SPIN_MAX*mult}
    s_cbranch_scc1 {label}
    {label}_ok:
    """)

def poll(a, label, vaddr, rsrc, soff, sleep=0):
    a(f"""
    s_mov_b32 s35, 0
    {label}:
    buffer_load_dword v5, v{vaddr}, {rsrc}, {soff} offen sc1
    s_waitcnt vmcnt(0)
    v_cmp_ne_u32 vcc, 0, v5
    s_nop 0
    s_cmp_eq_u64 vcc, -1
    """)
    spin_tail(a, label)

def raise_flag(a, soff):
    a(f"""
    v_mov_b32 v2, 0
    v_mov_b32 v3, 1
    s_mov_b64 exec, 1
    buffer_store_dword v3, v2, {WS}, {soff} offen sc1
    s_mov_b64 exec, -1
    """)

def common_srds(a):
    srd(a, 44, 42, WS_BYTES)
    srd(a, 48, 36, 640 * 1280)
    srd(a, 52, 38, 2048 * 1280)
    srd(a, 56, 40, 256)

GO_ADDR = 81920 - 16
def phase1_loader(a, cfg):
    a.c("---------------- loader waves (become the early attention waves)")
    rot = cfg.get("rot", 3)
    NX0 = cfg.get("nx0", 7)
    if rot == 2:
        a("""
        s_add_u32 s23, s3, s17
        s_and_b32 s23, s23, 1
        s_mul_i32 s23, s23, 5
        """)
    elif rot == 3:
        a("""
        s_add_u32 s23, s3, s17
        s_mul_i32 s24, s23, 43
        s_lshr_b32 s24, s24, 7
        s_mul_i32 s24, s24, 3
        s_sub_u32 s23, s23, s24
        s_mul_i32 s23, s23, 7
        s_lshr_b32 s23, s23, 1
        """)
    elif rot == 4:
        a("""
        s_add_u32 s23, s3, s17
        s_and_b32 s23, s23, 3
        s_mul_i32 s23, s23, 5
        s_lshr_b32 s23, s23, 1
        """)
    else:
        a("s_mov_b32 s23, 0")
    a(f"""
    s_and_b32 s19, s16, 3
    s_lshl_b32 s20, s19, 4
    s_lshr_b32 s24, s19, 1
    s_lshl_b32 s24, s24, 5
    s_and_b32 s25, s19, 1
    s_lshl_b32 s25, s25, 2
    s_add_u32 s24, s24, s25
    s_cmp_lt_u32 s17, 10
    s_cselect_b32 s20, s20, s24
    s_cselect_b32 s24, 4, 8
    s_mul_i32 s24, s24, 1280
    s_lshl_b32 s25, s18, 7
    s_add_u32 s20, s20, s25
    s_mul_i32 s20, s20, 1280
    v_lshrrev_b32 v2, 5, v1
    v_mul_u32_u24 v2, s24, v2
    v_bfe_u32 v3, v1, 3, 2
    v_mul_u32_u24 v3, 1280, v3
    v_lshrrev_b32 v5, 4, v1
    v_and_b32 v4, 7, v1
    v_xor_b32 v4, v4, v5
    v_lshlrev_b32 v4, 4, v4
    v_add3_u32 v8, v2, v3, v4
    v_xor_b32 v4, 64, v4
    v_add3_u32 v9, v2, v3, v4
    s_lshl_b32 s24, s24, 1
    s_sub_u32 s24, s24, 1024
    v_add_u32 v9, s24, v9
    v_and_b32 v3, 15, v1
    v_lshlrev_b32 v6, 1, v5
    v_xor_b32 v3, v3, v6
    v_mul_u32_u24 v2, 3840, v5
    v_lshl_add_u32 v12, v3, 4, v2
    v_add_u32 v13, {4*3840-1024}, v12
    v_xor_b32 v3, 8, v3
    v_lshl_add_u32 v14, v3, 4, v2
    v_add_u32 v15, {3*(4*3840-1024)}, v14
    v_add_u32 v14, {2*(4*3840-1024)}, v14
    s_mul_i32 s21, s19, {16*3840}
    s_lshl_b32 s3, s17, 8
    s_add_u32 s21, s21, s3
    s_lshl_b32 s22, s19, 11
    s_lshl_b32 s26, s19, 12
    s_mov_b32 s10, {2048*1280}
    s_mov_b32 s11, 0x00020000
    s_mov_b32 s14, {640*3840}
    s_mov_b32 s15, 0x00020000
    """)
    stamp(a, cfg, 8, grp="st")
    a("s_waitcnt lgkmcnt(0)")
    stamp(a, cfg, 9, grp="st")
    a(f"""
    s_mov_b32 s8, s4
    s_mov_b32 s9, s5
    s_mov_b32 s12, s6
    s_mov_b32 s13, s7
    """)
    XF1, XF2, WF_ = cfg.get("xfl", "nt"), cfg.get("x2fl", ""), cfg.get("wfl", "")
    def adv():
        a("""
        s_add_u32 s23, s23, 1
        s_cmp_eq_u32 s23, 10
        s_cselect_b32 s23, 0, s23
        """)
    def issue_x(lds, XF):
        a(f"""
        s_lshl_b32 s24, s23, 7
        s_add_u32 m0, s22, {lds}
        s_add_u32 s24, s24, s20
        """)
        for j in range(2):
            a(f"buffer_load_dwordx4 v{8+j}, s[8:11], s24 offen offset:{1024*j} {XF} lds")
    def issue(c):
        slot = SLOT[c]
        issue_x(slot, XF1)
        a(f"""
        s_mul_i32 s25, s23, {64*3840}
        s_add_u32 m0, s26, {slot+8192}
        s_add_u32 s25, s25, s21
        """)
        for j in range(4):
            a(f"buffer_load_dwordx4 v{12+j}, s[12:15], s25 offen offset:{1024*j} {WF_} lds")
        adv()
    def issue2(c):
        if c == 0: a(f"s_add_u32 s20, s20, {64*1280}")
        issue_x(81920 + 8192*c, XF2)
        if c < 9: adv()
    NPRE = cfg.get("npre", 2)
    groups = [[("c", c)] for c in range(10)]
    q = list(range(NX0))
    while q: groups.append([("x", i) for i in q[:3]]); q = q[3:]
    while len(groups) > 10 + NPRE:
        g = groups.pop(); groups[-1] = groups[-1] + g
    pend = []
    def put(g):
        for kind, i in g:
            if kind == "c": issue(i); pend.append(((kind, i), 6))
            else: issue2(i); pend.append(((kind, i), 2))
    def wait_for(item):
        k = [p[0] for p in pend].index(item)
        del pend[:k+1]
        a(f"s_waitcnt vmcnt({sum(p[1] for p in pend)})")
    for i in range(NPRE):
        put(groups.pop(0))
        if i == 0: stamp(a, cfg, 10, grp="st")
    common_srds(a)
    a(f"""
    v_and_b32 v10, 15, v1
    v_lshlrev_b32 v10, 2, v10
    s_lshl_b32 s60, s17, 4
    s_add_u32 s60, s60, s18
    s_lshl_b32 s60, s60, 7
    s_add_u32 s60, s60, {FA_OFF}
    """)
    for c in range(10):
        wait_for(("c", c))
        if c == 0: stamp(a, cfg, 2)
        if c in (3, 6): stamp(a, cfg, {3: 11, 6: 12}[c], grp="st")
        a("s_barrier")
        if groups: put(groups.pop(0))
    a(f"buffer_load_dword v5, v10, {DBG}, 0 offen sc1"); pend.append((("r", 0), 1))
    stamp(a, cfg, 3)
    wait_for(("x", 2))
    a("s_barrier")
    a(f"""
    v_mov_b32 v11, {GO_ADDR}
    v_mov_b32 v7, 0
    ds_write_b32 v11, v7
    s_waitcnt vmcnt(0)
    v_cmp_ne_u32 vcc, 0, v5
    s_waitcnt lgkmcnt(0)
    s_cmp_eq_u64 vcc, -1
    s_cbranch_scc1 L_rdy_l_ok
    """)
    poll(a, "L_rdy_l", 10, DBG, "0")
    a("s_barrier")
    for q in range(NX0, 10): issue2(q)
    attn_setup(a, cfg, early=True)
    a("""
    s_barrier
    s_cmp_eq_u32 s16, 4
    s_cbranch_scc0 L_ld_nofl
    """)
    raise_flag(a, "s60")
    stamp(a, cfg, 4)
    a("""
    s_waitcnt vmcnt(1)
    s_barrier
    s_branch L_early
    L_ld_nofl:
    """)
    stamp(a, cfg, 4)
    a("""
    s_waitcnt vmcnt(0)
    s_barrier
    s_branch L_early
    """)

def phase1_consumer(a, cfg):
    a.c("---------------- consumer waves (become the late attention waves)")
    XA, WA, ST, XF, AC, WR = 8, 10, 12, 16, 48, 96
    XB, WB = 4, 6
    SFLAG = cfg.get("sflag", 9)
    XBAR = [0, 3, cfg.get("nx0", 7)]
    assert 5 < SFLAG < 2 * XBAR[2] - 1
    a(f"""
    v_and_b32 v2, 15, v1
    v_lshrrev_b32 v3, 4, v1
    v_bfe_u32 v4, v1, 1, 3
    v_xor_b32 v4, v4, v3
    v_lshlrev_b32 v4, 4, v4
    v_lshl_add_u32 v{XA}, v2, 7, v4
    v_xor_b32 v{XA+1}, 64, v{XA}
    v_bfe_u32 v4, v1, 2, 2
    v_lshl_add_u32 v5, v3, 3, v4
    v_and_b32 v6, 1, v3
    v_lshl_or_b32 v4, v6, 2, v4
    s_lshl_b32 s3, s16, 1
    v_xor_b32 v4, s3, v4
    v_lshlrev_b32 v4, 5, v4
    v_lshl_add_u32 v4, v5, 8, v4
    v_and_b32 v5, 3, v1
    v_lshl_add_u32 v4, v5, 3, v4
    v_add_u32 v{WA}, 8192, v4
    v_xor_b32 v{WA+1}, 32, v{WA}
    s_lshl_b32 s60, s17, 2
    s_add_u32 s60, s60, s16
    s_lshl_b32 s60, s60, 4
    s_add_u32 s60, s60, s18
    s_lshl_b32 s60, s60, 7
    s_add_u32 s60, s60, {FB_OFF}
    s_mul_i32 s21, s18, 5120
    v_min_u32 v15, 19, v1
    v_lshlrev_b32 v15, 7, v15
    s_and_b32 s3, s17, 7
    s_lshl_b32 s3, s3, 2
    s_add_u32 s3, s3, s16
    s_lshl_b32 s28, s18, 6
    s_add_u32 s3, s3, s28
    s_add_u32 s3, s3, 32
    s_mul_i32 s28, s3, 2560
    s_waitcnt lgkmcnt(0)
    """)
    common_srds(a)
    srd(a, 8, 4, 2048 * 1280)
    VPF = cfg.get("vpf", 30)
    def x2touch():
        a.c("pull this wave's share of the second-stage x rows into L2 (one dword per line)")
        a(f"buffer_load_dword v15, v15, s[8:11], s28 offen {cfg.get('vpffl', '')}")
    if VPF == -1: x2touch()
    def xread(stage, ks, tt):
        c, s = divmod(ks, 2)
        if stage == 0: ad, off = (XA, SLOT[c]) if SLOT[c] < 81920 else (XB, SLOT[c] - 81920)
        else: ad, off = (XB, c * 8192) if c < 5 else (XA, (c - 5) * 8192)
        return f"ds_read_b128 {vr(XF+16*(ks&1)+4*tt,4)}, v{ad+s} offset:{off+2048*tt}"
    def wread(ks, ct, u):
        c, s = divmod(ks, 2)
        ad, off = (WA, SLOT[c]) if SLOT[c] < 81920 else (WB, SLOT[c] - 81920)
        if c == 9: off -= 8192
        return f"ds_read_b64_tr_b16 {vr(WR+8*ks+4*ct+2*u,2)}, v{ad+ct} offset:{off+(32*s+4*u)*256}"
    def reads(stage, ks):
        if stage == 0:
            return [wread(ks,0,0), wread(ks,0,1), xread(0,ks,0), wread(ks,1,0), wread(ks,1,1), xread(0,ks,1), xread(0,ks,2), xread(0,ks,3)]
        return [xread(1,ks,tt) for tt in range(4)]
    def gemm(isv, epi):
        for i in range(2):
            a(f"v_add_u32 v{XB+i}, 81920, v{XA+i}")
            a(f"v_add_u32 v{WB+i}, 81920, v{WA+i}")
        a("s_barrier")
        stamp(a, cfg, 2)
        a(".p2align 3")
        for r in reads(0, 0): a(r)
        for stage in range(2):
            for ks in range(20):
                fl = stage == 1 and ks == SFLAG
                a("s_waitcnt vmcnt(0) lgkmcnt(0)" if fl else "s_waitcnt lgkmcnt(0)")
                nxt = []
                bar = fl
                if ks < 19:
                    nxt = reads(stage, ks + 1)
                    if ks % 2 == 1:
                        bar = bar or stage == 0 or ((ks + 1) // 2) in XBAR
                a("s_barrier" if bar else "s_nop 0")
                if fl: stamp(a, cfg, 4)
                if stage == 0 and ks == 13:
                    for i in range(2): a(f"v_add_u32 v{WB+i}, 8192, v{WB+i}")
                if stage == 1 and ks in (5, 13, 19): stamp(a, cfg, {5: 10, 13: 11, 19: 12}[ks], grp="p1")
                if stage == 0 and ks == VPF: x2touch()
                per = 2 if stage == 0 else 1
                for i in range(8):
                    tt, ct = i >> 1, (i & 1) ^ ((i >> 1) & 1)
                    acc = AC + 8 * tt + 4 * ct
                    x, w = vr(XF+16*(ks&1)+4*tt, 4), vr(WR+8*ks+4*ct, 4)
                    A, B = (x, w) if isv else (w, x)
                    c = "0" if ks == 0 else vr(acc, 4)
                    a(f"v_mfma_f32_16x16x32_bf16 {vr(acc,4)}, {A}, {B}, {c}")
                    for r in nxt[per*i:per*i+per]: a(r)
            if stage == 0:
                stamp(a, cfg, 3)
                a(f"v_add_u32 v{XA}, 122880, v{XA}")
                a(f"v_add_u32 v{XA+1}, 122880, v{XA+1}")
                epi(0)
                stamp(a, cfg, 8, grp="p1")
                a("s_barrier")
                stamp(a, cfg, 9, grp="p1")
                a(".p2align 3")
                for r in reads(1, 0): a(r)
            else:
                a("s_nop 1")
                epi(1)
    a("""
    s_cmp_lt_u32 s17, 10
    s_cbranch_scc0 L_qkv_v
    """)
    a.c("Q/K tiles: G = (cb%5)*32 + 8w + 4ct + g ; head = G/5 ; pos = G%5")
    a(f"""
    s_cmp_lt_u32 s17, 5
    s_cselect_b32 s25, 0, 81920
    s_cselect_b32 s26, {CSCALE}, 1.0
    s_cselect_b32 s23, 0, {KV_OFF}
    s_cselect_b32 s3, 0, 5
    s_add_u32 s24, s25, {HQ-2560}
    s_max_u32 s22, s25, 2560
    s_mov_b32 s27, s26
    s_add_u32 s21, s21, s23
    s_add_u32 s22, s22, s21
    s_sub_u32 s3, s17, s3
    s_lshl_b32 s3, s3, 2
    s_add_u32 s3, s3, s16
    s_lshl_b32 s3, s3, 3
    v_add_u32 v6, s3, v3
    v_lshlrev_b32 v4, 3, v2
    """)
    for ct in range(2):
        a(f"""
        v_add_u32 v7, {4*ct}, v6
        v_mul_u32_u24 v5, 52429, v7
        v_lshrrev_b32 v5, 18, v5
        v_lshl_add_u32 v7, v7, 9, v4
        v_mad_u32_u24 v{ST+ct}, v5, s24, v7
        """)
    late_qk, late_v = [], []
    def epi_qk(stage):
        for i in range(8):
            tt, ct = i >> 1, (i & 1) ^ ((i >> 1) & 1)
            acc = AC + 8 * tt + 4 * ct
            d = 80 + 2 * i
            a(f"v_pk_mul_f32 {vr(acc,2)}, {vr(acc,2)}, s[26:27]")
            a(f"v_pk_mul_f32 {vr(acc+2,2)}, {vr(acc+2,2)}, s[26:27]")
            a(f"v_cvt_pk_bf16_f32 v{d}, v{acc}, v{acc+1}")
            a(f"v_cvt_pk_bf16_f32 v{d+1}, v{acc+2}, v{acc+3}")
            st = f"buffer_store_dwordx2 {vr(d,2)}, v{ST+ct}, {WS}, s{62 if stage else 21} offen offset:{128*tt} sc1"
            if stage == 0: a(st)
            else: late_qk.append(st)
    gemm(False, epi_qk)
    a("s_mov_b32 s63, 1")
    a("s_branch L_qkv_fin")
    a("L_qkv_v:")
    a.c("V tiles: col = (cb-10)*128 + 32w + 16ct + n ; head = col/20 ; d = col%20")
    a(f"""
    s_sub_u32 s3, s17, 10
    s_lshl_b32 s3, s3, 2
    s_add_u32 s3, s3, s16
    s_lshl_b32 s3, s3, 5
    v_add_u32 v6, s3, v2
    s_add_u32 s21, s21, {KV_OFF+2560}
    s_add_u32 s22, s21, 81920
    v_mul_u32_u24 v4, 320, v3
    s_mov_b32 s24, {HKV - 320}
    """)
    for ct in range(2):
        a(f"""
        v_add_u32 v7, {16*ct}, v6
        v_mul_u32_u24 v5, 13108, v7
        v_lshrrev_b32 v5, 18, v5
        v_lshl_add_u32 v7, v7, 4, v4
        v_mad_u32_u24 v{ST+ct}, v5, s24, v7
        """)
    def epi_v(stage):
        a("s_nop 2")
        for P in range(2):
            for ct in range(2):
                d = 80 + 8 * P + 4 * ct
                for ab in range(2):
                    acc = AC + 8 * (2 * P + ab) + 4 * ct
                    a(f"v_cvt_pk_bf16_f32 v{d+2*ab}, v{acc}, v{acc+1}")
                    a(f"v_cvt_pk_bf16_f32 v{d+2*ab+1}, v{acc+2}, v{acc+3}")
                st = f"buffer_store_dwordx4 {vr(d,4)}, v{ST+ct}, {WS}, s{62 if stage else 21} offen offset:{1280*P} sc1"
                if stage == 0: a(st)
                else: late_v.append(st)
    gemm(True, epi_v)
    a("s_mov_b32 s63, 2")
    a("L_qkv_fin:")
    stamp(a, cfg, 5)
    a("s_mov_b32 s62, s22")
    return late_qk, late_v

SA, SB = 144, 176
O0, O1 = 208, 224
QM0, QM1, QT = 240, 244, 248
IDX, VKE, VKO, VT, VV0, VV1 = 250, 251, 252, 253, 254, 255
KM, KT, VV = 16, 24, 32
WOA = 48
VL16, VQ, VQT, VPOLL = 53, 54, 55, 56

def attn_setup(a, cfg, early, keep5=False):
    late = 0 if early else 1
    a.c("attention ids: s17=head s18=q pair s19=key half s21=KV base of head")
    a(f"""
    s_and_b32 s17, s2, 7
    s_lshl_b32 s17, s17, 2
    s_bfe_u32 s3, s2, 0x20003
    s_add_u32 s17, s17, s3
    s_lshr_b32 s29, s2, 5
    s_lshl_b32 s18, s29, 2
    s_and_b32 s3, s16, 2
    s_add_u32 s18, s18, s3
    s_add_u32 s18, s18, {late}
    s_and_b32 s19, s16, 1
    s_mul_i32 s20, s19, 5120
    v_and_b32 v2, 31, v1
    v_lshrrev_b32 v3, 5, v1
    v_lshlrev_b32 v4, 3, v2
    v_lshl_add_u32 v{VQ}, v3, 9, v4
    v_add_u32 v{VKE}, s20, v{VQ}
    v_add_u32 v{VKO}, 256, v{VKE}
    v_lshlrev_b32 v4, 3, v1
    v_add_u32 v{VT}, s20, v4
    s_lshl_b32 s3, s19, 8
    v_xor_b32 v{VQT}, s3, v4
    v_mul_u32_u24 v6, 320, v3
    v_lshl_add_u32 v6, v2, 4, v6
    s_add_u32 s3, s20, 2560
    v_add_u32 v{VV0}, s3, v6
    v_add_u32 v{VV1}, 40960, v{VV0}
    v_lshlrev_b32 v{VL16}, 4, v1
    v_mov_b32 v{IDX}, 0xdddddddd
    s_mov_b32 s24, 0x000fffff
    s_mov_b32 s25, 0x000fffff
    v_cmp_eq_u32 vcc, 20, v2
    v_mov_b32 v6, 0x3f803f80
    s_mul_i32 s21, s17, {HKV}
    v_cndmask_b32 v{VV}, 0, v6, vcc
    s_add_u32 s21, s21, {KV_OFF}
    """)
    for i in range(1, 16): a(f"v_mov_b32 v{VV+i}, v{VV}")
    for i in range(32): a(f"v_mov_b32 v{O0+i}, 0")
    for i in range(5):
        a(f"""
        v_add_u32 v2, {64*i}, v1
        v_mul_u32_u24 v3, 6554, v2
        v_lshrrev_b32 v3, 16, v3
        v_mul_u32_u24 v4, {1280-160}, v3
        v_lshl_add_u32 v{WOA+i}, v2, 4, v4
        """)
    a.c("s22/s23: Q soffsets role0/role1, s26: Q pair base ; s27: first token block of this wave's K/V units ; s28: dma lds dest")
    a(f"""
    s_mul_i32 s26, s18, 2560
    s_mul_i32 s3, s17, {HQ}
    s_add_u32 s26, s26, s3
    s_lshl_b32 s3, s19, 8
    s_add_u32 s22, s26, s3
    s_xor_b32 s3, s3, 256
    s_add_u32 s23, s26, s3
    s_and_b32 s28, s16, 3
    s_lshl_b32 s27, s29, 1
    s_add_u32 s27, s27, s28
    s_mul_i32 s28, s28, 5120
    s_add_u32 s28, s28, {late*81920}
    s_add_u32 s61, s21, {late*81920}
    """)
    sh, sec = (7, 5) if early else (5, 20)
    a.c("poll addresses of the polling wave: K/V producers of all 16 token blocks, Q producers of both pairs")
    a(f"""
    s_mul_i32 s30, s17, 20
    s_add_u32 s31, s30, 19
    s_lshr_b32 s30, s30, {sh}
    s_lshr_b32 s31, s31, {sh}
    s_sub_u32 s31, s31, s30
    v_and_b32 v2, 1, v1
    v_mul_u32_u24 v2, s31, v2
    v_add_u32 v2, s30, v2
    v_lshrrev_b32 v4, 5, v1
    v_mul_u32_u24 v3, {sec}, v4
    v_add3_u32 v3, v2, v3, {sec}
    v_bfe_u32 v6, v1, 1, 4
    v_lshl_add_u32 v3, v3, 4, v6
    v_lshlrev_b32 v{VPOLL}, 7, v3
    v_bfe_u32 v2, v1, 4, 1
    v_mul_u32_u24 v2, s31, v2
    v_add_u32 v2, s30, v2
    s_lshr_b32 s3, s2, 5
    s_lshl_b32 s3, s3, 1
    v_lshl_add_u32 v2, v2, 4, v4
    v_add_u32 v2, s3, v2
    v_lshlrev_b32 v{VPOLL+1}, 7, v2
    s_mov_b32 s33, {FA_OFF if early else FB_OFF}
    """)

def wait_stage(a, cfg, tag, wave):
    a(f"""
    s_mov_b32 s35, 0
    s_cmp_eq_u32 s16, {wave}
    s_cbranch_scc0 L_gw{tag}
    L_poll1{tag}:
    buffer_load_dword v5, v{VPOLL}, {WS}, s33 offen sc1
    buffer_load_dword v6, v{VPOLL+1}, {WS}, s33 offen sc1
    s_waitcnt vmcnt(0)
    v_and_b32 v5, v5, v6
    v_cmp_ne_u32 vcc, 0, v5
    s_nop 0
    s_cmp_eq_u64 vcc, -1
    """)
    spin_tail(a, f"L_poll1{tag}")
    a(f"""
    v_mov_b32 v7, 1
    ds_write_b32 v11, v7
    s_branch L_gw{tag}_ok
    L_gw{tag}:
    s_sleep 1
    ds_read_b32 v7, v11
    s_waitcnt lgkmcnt(0)
    v_readfirstlane_b32 s34, v7
    s_cmp_lg_u32 s34, 0
    """)
    spin_tail(a, f"L_gw{tag}", mult=16)

def kread(t):
    tl = t & 15
    o = 20 * (tl >> 1)
    return f"ds_read2st64_b64 {vr(KM+4*(t&1),4)}, v{VKO if t & 1 else VKE} offset0:{o} offset1:{o+2}"
def tread(b):
    o = 40 * (b & 3)
    return f"ds_read2st64_b64 {vr(KT+4*(b&1),4)}, v{VT} offset0:{o+4} offset1:{o+24}"
def vread(t, f):
    tl = t & 15
    ad = VV0 if tl < 8 else VV1
    return f"ds_read_b128 {vr(VV+8*(t&1)+4*f,4)}, v{ad} offset:{10240*((tl>>1)&3)+1280*(t&1)+640*f}"
def Tm(t, dst):
    b, T = divmod(t, 4)
    return f"v_mfma_f32_32x32x4_2b_bf16 {vr(dst,32)}, {vr(KT+4*(b&1)+2*(T>>1),2)}, {vr(QT,2)}, 0 cbsz:1 abid:{T&1}"
def Mm(t, dst, r):
    return f"v_mfma_f32_32x32x16_bf16 {vr(dst+16*r,16)}, {vr(KM+4*(t&1),4)}, {vr(QM1 if r else QM0,4)}, {vr(dst+16*r,16)}"
def Pm(o, t, f, s):
    return f"v_smfmac_f32_32x32x32_bf16 {vr(o,16)}, {vr(VV+8*(t&1)+4*f,4)}, {vr(s,8)}, v{IDX}"

def qloads(a):
    a(f"""
    buffer_load_dwordx2 {vr(QT,2)}, v{VQT}, {WS}, s26 offen offset:2048 sc1
    buffer_load_dwordx2 {vr(QM0,2)}, v{VQ}, {WS}, s22 offen sc1
    buffer_load_dwordx2 {vr(QM0+2,2)}, v{VQ}, {WS}, s22 offen offset:1024 sc1
    buffer_load_dwordx2 {vr(QM1,2)}, v{VQ}, {WS}, s23 offen sc1
    buffer_load_dwordx2 {vr(QM1+2,2)}, v{VQ}, {WS}, s23 offen offset:1024 sc1
    """)
def kv_dma(i, back=0):
    g = [f"""
        s_add_u32 s3, s27, {4*i}
        s_and_b32 s3, s3, 15
        s_mul_i32 s3, s3, 5120
        s_sub_u32 s3, s3, {back}
        s_add_u32 m0, s28, {(i*20480 - back) & 0xffffffff}
        s_add_u32 s29, s61, s3
        buffer_load_dwordx4 v{VL16}, {WS}, s29 offen sc1 lds"""]
    for j in range(1, 4):
        g.append(f"buffer_load_dwordx4 v{VL16}, {WS}, s29 offen offset:{1024*j} sc1 lds")
    g.append(f"""
        s_add_u32 m0, s28, {(i*20480+4096 - back) & 0xffffffff}
        s_add_u32 s29, s29, 4096
        buffer_load_dwordx4 v{VL16}, {WS}, s29 offen sc1 lds""")
    return g
def wo_dma(nper):
    g = []
    for p in range(nper):
        for i in range(5):
            pre = ""
            if i == 0:
                pre = f"""
                s_add_u32 s31, s30, {p*8*32*1280}
                """
            g.append(pre + f"""
                s_add_u32 m0, s32, {p*8*5120 + 1024*i}
                s_nop 0
                buffer_load_dwordx4 v{WOA+i}, {WO}, s31 offen lds
                s_nop 0""")
    return g

def attn_loop(a, cfg, early):
    tag = "e" if early else "l"
    a(tread(0)); a(kread(0)); a(kread(1))
    a("s_mov_b64 exec, s[24:25]"); a(vread(0, 0)); a(vread(0, 1)); a("s_mov_b64 exec, -1")
    a.c("wo dma: s30 source, s32 lds dest")
    a(f"""
    s_lshr_b32 s3, s2, 5
    s_mul_i32 s30, s3, 160
    s_mul_i32 s3, s16, {32*1280}
    s_add_u32 s30, s30, s3
    s_mul_i32 s32, s16, 5120
    s_waitcnt lgkmcnt({0 if cfg.get('stamp') else 4})
    """)
    a(Tm(0, SA)); a("s_nop 15"); a("s_nop 1"); a("s_waitcnt lgkmcnt(3)")
    a(Mm(0, SA, 0)); a(Mm(0, SA, 1)); a("s_nop 10")
    C1, C2 = 18, 25
    dma = {}
    if early:
        bars = {2: "vmcnt(5)", 6: "vmcnt(0)", 14: None, C1: None, C2: None}
        prio = cfg.get("prio_e", {"0": 3, "14": 1, "17": 0, "18": 3, "23": 1, "25": 3, "29": 2, "31": 1})
    else:
        bars = {C1: "vmcnt(0)", C2: None}
        prio = cfg.get("prio_l", {"0": 2, "16": 1, "17": 0, "18": 2, "24": 0, "25": 3, "28": 2, "30": 1, "31": 0})
    prio = {int(k): v for k, v in prio.items()}
    wo = wo_dma(2 if early else 3)
    for i in range(5): dma[C1 + i] = wo[2*i:2*i+2]
    for i in range(3): dma[C2 + i] = wo[10+2*i:12+2*i]
    a(".p2align 3")
    for t in range(32):
        cur, nxt = (SA, SB) if t % 2 == 0 else (SB, SA)
        e = iter(range(32))
        def E(n):
            for _ in range(n):
                i = next(e); a(f"v_exp_f32 v{cur+i}, v{cur+i}")
        dq = list(dma.get(t, []))
        def D(n):
            for _ in range(n):
                if dq: a(dq.pop(0))
        many = len(dq) > 2
        a.c(f"step {t}")
        E(2)
        if t > 0: a(Pm(O1, t-1, 1, nxt+24))
        vm = bars.get(t)
        a(f"s_waitcnt {vm + ' ' if vm else ''}lgkmcnt(0)")
        n4 = 1
        if t in bars: a("s_barrier"); n4 += 1
        if t in prio: a(f"s_setprio {prio[t]}"); n4 += 1
        if n4 % 2: a("s_nop 0")
        if t == 14:
            for r in (VKE, VKO, VT, VV0): a(f"v_add_u32 v{r}, 81920, v{r}")
        if t == 16: a(f"v_add_u32 v{VV1}, 81920, v{VV1}")
        if t + 2 < 32: a(kread(t+2))
        if many: D(1)
        E(4)
        if t < 31: a(Tm(t+1, nxt))
        E(8)
        a(Pm(O0, t, 0, cur))
        if t < 31: a("s_mov_b64 exec, s[24:25]"); a(vread(t+1, 0)); a("s_mov_b64 exec, -1")
        if many: D(1)
        E(4)
        a(Pm(O0, t, 1, cur+8))
        if t < 31: a("s_mov_b64 exec, s[24:25]"); a(vread(t+1, 1)); a("s_mov_b64 exec, -1")
        if many: D(1)
        E(4)
        if t < 31: a(Mm(t+1, nxt, 0))
        D(1)
        E(4)
        a(Pm(O1, t, 0, cur+16))
        if t % 4 == 2 and t // 4 < 7: a(tread(t//4+1))
        D(1)
        E(4)
        if t < 31: a(Mm(t+1, nxt, 1))
        E(2)
        assert not dq

def attn_epilogue(a, cfg):
    stamp(a, cfg, 8)
    a.c("---- epilogue: exchange role-0 tile with the partner wave (other key half)")
    a(f"""
    s_mul_i32 s32, s16, 3072
    s_add_u32 s32, s32, 102400
    s_xor_b32 s33, s16, 1
    s_mul_i32 s33, s33, 3072
    s_add_u32 s33, s33, 102400
    {Pm(O1, 31, 1, SB+24)}
    v_add_u32 v3, s32, v{VL16}
    v_add_u32 v4, s33, v{VL16}
    ds_write_b128 v3, {vr(O0,4)}
    ds_write_b128 v3, {vr(O0+4,4)} offset:1024
    ds_write_b128 v3, {vr(O0+8,4)} offset:2048
    s_setprio 0
    """)
    a.c("O store addresses: kept tile s27 = 2*qp + (1^kh)")
    a(f"""
    s_lshl_b32 s27, s18, 1
    s_xor_b32 s28, s19, 1
    s_add_u32 s27, s27, s28
    s_mul_i32 s29, s27, 40960
    s_add_u32 s29, s29, {O_OFF}
    s_lshl_b32 s28, s17, 9
    s_add_u32 s28, s28, s29
    s_lshl_b32 s30, s17, 7
    s_add_u32 s29, s29, s30
    s_add_u32 s29, s29, 16384
    v_bfe_u32 v5, v1, 4, 1
    v_mul_u32_u24 v5, 20480, v5
    v_and_b32 v6, 15, v1
    v_lshl_add_u32 v13, v6, 3, v5
    v_lshl_add_u32 v5, v6, 4, v5
    v_lshrrev_b32 v6, 5, v1
    v_lshl_add_u32 v12, v6, 8, v5
    s_lshr_b32 s60, s2, 5
    s_lshl_b32 s60, s60, 12
    s_add_u32 s60, s60, s30
    s_add_u32 s60, s60, {F2_OFF}
    s_waitcnt vmcnt(0) lgkmcnt(0)
    s_barrier
    ds_read_b128 {vr(O0+8,4)}, v4 offset:2048
    ds_read_b128 {vr(O0,4)}, v4
    ds_read_b128 {vr(O0+4,4)}, v4 offset:1024
    s_waitcnt lgkmcnt(2)
    """)
    a(f"""
    v_pk_add_f32 {vr(O1+8,2)}, {vr(O1+8,2)}, {vr(O0+8,2)}
    v_pk_add_f32 {vr(O1+10,2)}, {vr(O1+10,2)}, {vr(O0+10,2)}
    v_mov_b32 v7, v{O1+8}
    v_mov_b32 v9, v{O1+8}
    s_mov_b32 s30, 0x21800000
    s_waitcnt lgkmcnt(1)
    v_permlane32_swap_b32 v7, v9
    v_pk_add_f32 {vr(O1,2)}, {vr(O1,2)}, {vr(O0,2)}
    v_pk_add_f32 {vr(O1+2,2)}, {vr(O1+2,2)}, {vr(O0+2,2)}
    s_mov_b32 s31, 0x5d800000
    s_waitcnt lgkmcnt(0)
    v_pk_add_f32 {vr(O1+4,2)}, {vr(O1+4,2)}, {vr(O0+4,2)}
    v_pk_add_f32 {vr(O1+6,2)}, {vr(O1+6,2)}, {vr(O0+6,2)}
    """)
    a.c("run-time check of the shift-free softmax: row sum in [2^-60, 2^60], finite accumulators; else redo with the true row max")
    a(f"""
    v_cmp_le_f32 s[32:33], s30, v9
    v_cmp_ge_f32 s[34:35], s31, v9
    v_pk_mul_f32 v[10:11], {vr(O1+8,2)}, 0
    """)
    for i in (10, 0, 2, 4, 6): a(f"v_pk_fma_f32 v[10:11], {vr(O1+i,2)}, 0, v[10:11]")
    a(f"""
    s_and_b64 s[32:33], s[32:33], s[34:35]
    v_cmp_o_f32 vcc, v10, v11
    v_rcp_f32 v8, v9
    s_and_b64 s[32:33], s[32:33], vcc
    s_cmp_eq_u64 s[32:33], -1
    s_cbranch_scc0 L_attn_slow
    L_attn_fin:
    """)
    for i in range(4): a(f"v_pk_mul_f32 {vr(O1+2*i,2)}, {vr(O1+2*i,2)}, v[8:9] op_sel_hi:[1,0]")
    for i in range(4): a(f"v_cvt_pk_bf16_f32 v{O0+i}, v{O1+2*i}, v{O1+2*i+1}")
    a(f"buffer_store_dwordx4 {vr(O0,4)}, v12, {WS}, s28 offen sc1")
    for i in range(4, 6): a(f"v_pk_mul_f32 {vr(O1+2*i,2)}, {vr(O1+2*i,2)}, v[8:9] op_sel_hi:[1,0]")
    for i in range(4, 6): a(f"v_cvt_pk_bf16_f32 v{O0+i}, v{O1+2*i}, v{O1+2*i+1}")
    a(f"""
    s_mov_b32 exec_hi, 0
    buffer_store_dwordx2 {vr(O0+4,2)}, v13, {WS}, s29 offen sc1
    s_mov_b32 exec_hi, -1
    """)
    stamp(a, cfg, 9)

def attn_slow(a):
    a("L_attn_slow:")
    a(f"""
    v_and_b32 v2, 31, v1
    v_lshlrev_b32 v14, 3, v2
    v_lshrrev_b32 v3, 5, v1
    v_mul_u32_u24 v3, 320, v3
    v_lshl_add_u32 v15, v2, 4, v3
    v_mov_b32 v10, 0xff800000
    s_mov_b32 s34, 0
    """)
    for i in range(16): a(f"v_mov_b32 v{O1+i}, 0")
    a(f"""
    L_slow_pass:
    s_mov_b32 s35, 0
    L_slow_tile:
    s_lshr_b32 s30, s35, 1
    s_mul_i32 s30, s30, 5120
    s_add_u32 s30, s30, s21
    s_and_b32 s3, s35, 1
    s_mul_i32 s31, s3, 1280
    s_add_u32 s31, s31, s30
    s_lshl_b32 s3, s3, 8
    s_add_u32 s30, s30, s3
    buffer_load_dwordx2 {vr(KT,2)}, v14, {WS}, s30 offen offset:2048 sc1
    buffer_load_dwordx2 {vr(KM,2)}, v{VQ}, {WS}, s30 offen sc1
    buffer_load_dwordx2 {vr(KM+2,2)}, v{VQ}, {WS}, s30 offen offset:1024 sc1
    s_mov_b64 exec, s[24:25]
    buffer_load_dwordx4 {vr(VV,4)}, v15, {WS}, s31 offen offset:2560 sc1
    buffer_load_dwordx4 {vr(VV+4,4)}, v15, {WS}, s31 offen offset:3200 sc1
    s_mov_b64 exec, -1
    s_waitcnt vmcnt(0)
    v_mfma_f32_32x32x4_2b_bf16 {vr(SA,32)}, {vr(KT,2)}, {vr(QT,2)}, 0
    s_nop 15
    s_nop 3
    v_mfma_f32_32x32x16_bf16 {vr(SA+16,16)}, {vr(KM,4)}, {vr(QM1,4)}, {vr(SA+16,16)}
    s_nop 15
    s_cmp_eq_u32 s34, 0
    s_cbranch_scc0 L_slow_pv
    """)
    for i in range(8): a(f"v_max3_f32 v10, v10, v{SA+16+2*i}, v{SA+17+2*i}")
    a("s_branch L_slow_next")
    a("L_slow_pv:")
    for i in range(16): a(f"v_sub_f32 v{SA+16+i}, v{SA+16+i}, v10")
    for i in range(16): a(f"v_exp_f32 v{SA+16+i}, v{SA+16+i}")
    a(f"""
    s_nop 3
    v_smfmac_f32_32x32x32_bf16 {vr(O1,16)}, {vr(VV,4)}, {vr(SA+16,8)}, v{IDX}
    v_smfmac_f32_32x32x32_bf16 {vr(O1,16)}, {vr(VV+4,4)}, {vr(SA+24,8)}, v{IDX}
    s_nop 15
    L_slow_next:
    s_add_u32 s35, s35, 1
    s_cmp_lt_u32 s35, 64
    s_cbranch_scc1 L_slow_tile
    s_cmp_eq_u32 s34, 0
    s_cbranch_scc0 L_slow_done
    v_mov_b32 v11, v10
    s_nop 1
    v_permlane32_swap_b32 v10, v11
    s_nop 1
    v_max_f32 v10, v10, v11
    s_mov_b32 s34, 1
    s_branch L_slow_pass
    L_slow_done:
    v_mov_b32 v7, v{O1+8}
    v_mov_b32 v9, v{O1+8}
    s_nop 1
    v_permlane32_swap_b32 v7, v9
    s_nop 1
    v_rcp_f32 v8, v9
    s_branch L_attn_fin
    """)

def phase3(a, cfg):
    OF, AC, WF = 16, 56, 76
    VW, VWT, VL, VL8, VP, VPB, VSW, VSR, VO = 14, 15, 0, 4, 6, 7, 8, 9, 2
    a.c("---- output projection: s17=tg s18=cg s19=tt s26=kh s21=tile16")
    a(f"""
    s_lshr_b32 s18, s2, 5
    s_and_b32 s19, s16, 3
    s_lshr_b32 s26, s16, 2
    s_xor_b32 s26, s26, s18
    s_and_b32 s26, s26, 1
    """ if cfg.get("khswap", 1) else """
    s_lshr_b32 s18, s2, 5
    s_and_b32 s19, s16, 3
    s_lshr_b32 s26, s16, 2
    """)
    a(f"""
    s_mul_i32 s20, s26, 51200
    v_lshrrev_b32 v2, 5, v1
    v_bfe_u32 v3, v1, 4, 1
    v_bfe_u32 v4, v1, 2, 2
    v_and_b32 v5, 3, v1
    v_lshl_add_u32 v5, v5, 3, s20
    v_mul_u32_u24 v6, 20, v2
    v_lshl_add_u32 v6, v3, 2, v6
    v_add_u32 v6, v6, v4
    v_mul_u32_u24 v6, 160, v6
    v_add_u32 v{VW}, v6, v5
    v_lshrrev_b32 v6, 4, v1
    v_mul_u32_u24 v6, 20, v6
    v_add3_u32 v6, v6, 16, v4
    v_mul_u32_u24 v6, 160, v6
    v_add_u32 v{VWT}, v6, v5
    """)
    def reads(ks):
        r = []
        for t in range(5):
            for u in range(2):
                if ks < 8: ad, off = VW, (40*ks + 8*u)*160 + 32*t
                else: ad, off = VWT, (160*(ks-8) + 80*u)*160 + 32*t
                r.append(f"ds_read_b64_tr_b16 {vr(WF+20*(ks%9)+4*t+2*u,2)}, v{ad} offset:{off}")
        return r
    NPB = cfg.get("npb", 5)
    assert NPB <= 6
    for ks in range(NPB):
        for r in reads(ks): a(r)
    a(f"""
    s_lshl_b32 s21, s17, 2
    s_add_u32 s21, s21, s19
    s_mul_i32 s22, s21, 20480
    s_add_u32 s22, s22, {O_OFF}
    s_lshl_b32 s3, s26, 11
    s_add_u32 s23, s22, s3
    s_add_u32 s23, s23, 16384
    s_and_b32 s33, s2, 7
    s_lshl_b32 s33, s33, 12
    s_add_u32 s33, s33, {F2_OFF}
    s_lshl_b32 s3, s26, 13
    s_add_u32 s22, s22, s3
    s_add_u32 s24, s22, 4096
    v_lshrrev_b32 v{VP}, 1, v1
    v_lshlrev_b32 v{VP}, 7, v{VP}
    s_waitcnt vmcnt(0)
    """)
    stamp(a, cfg, 10)
    a.c("publish this workgroup's O tiles, then wait for the 32 producers of this workgroup's input")
    a("""
    s_barrier
    s_cmp_eq_u32 s16, 0
    s_cbranch_scc0 L_p3_nofl
    """)
    raise_flag(a, "s60")
    a(f"""
    L_p3_nofl:
    v_lshlrev_b32 v{VL}, 4, v1
    v_lshlrev_b32 v{VL8}, 3, v1
    s_cmp_eq_u32 s16, 4
    s_cbranch_scc1 L_p3_poll
    """)
    def oloads():
        stamp(a, cfg, 11)
        for ks in range(8):
            a(f"buffer_load_dwordx4 {vr(OF+4*ks,4)}, v{VL}, {WS}, s{22 if ks < 4 else 24} offen offset:{1024*(ks&3)} sc1")
        for q in range(4):
            a(f"buffer_load_dwordx2 {vr(OF+32+2*q,2)}, v{VL8}, {WS}, s23 offen offset:{512*q} sc1")
    for ks in range(NPB, 9):
        for r in reads(ks): a(r)
    a("s_barrier")
    oloads()
    a("s_branch L_p3_go")
    a("L_p3_poll:")
    poll(a, "L_poll2", VP, WS, "s33")
    a("s_barrier")
    for ks in range(NPB, 9):
        for r in reads(ks): a(r)
    oloads()
    a("L_p3_go:")
    a.c("partial buffer, bf16 staging write / read addresses and out offsets")
    a(f"""
    s_mul_i32 s30, s19, 5120
    s_add_u32 s30, s30, 143360
    s_mul_i32 s31, s19, 3584
    s_add_u32 s31, s31, 102400
    v_add_u32 v{VPB}, s30, v{VL}
    v_and_b32 v2, 15, v1
    v_lshrrev_b32 v3, 4, v1
    v_mul_u32_u24 v2, 176, v2
    v_lshl_add_u32 v2, v3, 3, v2
    v_add_u32 v{VSW}, s31, v2
    s_mul_i32 s27, s21, {16*1280}
    s_mul_i32 s3, s18, 160
    s_add_u32 s27, s27, s3
    """)
    VOS = [2, 3, 5]
    for i in range(3):
        a(f"""
        v_add_u32 v12, {64*i}, v1
        v_mul_u32_u24 v13, 6554, v12
        v_lshrrev_b32 v13, 16, v13
        v_add_u32 v6, v12, v13
        v_lshl_add_u32 v{VSR+i}, v6, 4, s31
        v_mul_u32_u24 v6, {1280-160}, v13
        v_lshl_add_u32 v{VOS[i]}, v12, 4, v6
        """)
    def mf(ks):
        vm = 11 - ks if ks < 8 else (2 if ks == 8 else 0)
        a(f"s_waitcnt vmcnt({vm})" + (" lgkmcnt(0)" if ks == 0 else ""))
        for t in range(5):
            c = "0" if ks == 0 else vr(AC+4*t, 4)
            a(f"v_mfma_f32_16x16x32_bf16 {vr(AC+4*t,4)}, {vr(WF+20*(ks%9)+4*t,4)}, {vr(OF+4*ks,4)}, {c}")
        if ks == 0:
            for r in reads(9): a(r)
    KB = cfg.get("kb", 8)
    for ks in range(KB): mf(ks)
    a("""
    s_waitcnt lgkmcnt(0)
    s_cmp_lt_u32 s16, 4
    s_cbranch_scc0 L_out_fin
    """)
    for ks in range(KB, 10): mf(ks)
    stamp(a, cfg, 12)
    a("s_nop 3")
    for t in range(5):
        a(f"ds_write_b128 v{VPB}, {vr(AC+4*t,4)} offset:{1024*t}")
        if t < 4: a("s_nop 0")
    a("""
    s_waitcnt lgkmcnt(0)
    s_barrier
    s_branch L_fin
    L_out_fin:
    s_barrier
    """)
    PB = WF + 20
    for t in range(5): a(f"ds_read_b128 {vr(PB+4*t,4)}, v{VPB} offset:{1024*t}")
    for ks in range(KB, 10): mf(ks)
    stamp(a, cfg, 12)
    a("s_waitcnt lgkmcnt(0)")
    a("s_nop 2")
    for t in range(5):
        a(f"v_pk_add_f32 {vr(AC+4*t,2)}, {vr(AC+4*t,2)}, {vr(PB+4*t,2)}")
        a(f"v_pk_add_f32 {vr(AC+4*t+2,2)}, {vr(AC+4*t+2,2)}, {vr(PB+4*t+2,2)}")
        a(f"v_cvt_pk_bf16_f32 v{OF+2*t}, v{AC+4*t}, v{AC+4*t+1}")
        a(f"v_cvt_pk_bf16_f32 v{OF+2*t+1}, v{AC+4*t+2}, v{AC+4*t+3}")
        a(f"ds_write_b64 v{VSW}, {vr(OF+2*t,2)} offset:{32*t}")
    a("s_waitcnt lgkmcnt(0)")
    for i in range(3): a(f"ds_read_b128 {vr(PB+4*i,4)}, v{VSR+i}")
    OFL = cfg.get("outfl", "")
    for i in range(3):
        a(f"s_waitcnt lgkmcnt({2-i})")
        if i == 2: a("s_mov_b32 exec_hi, 0")
        a(f"buffer_store_dwordx4 {vr(PB+4*i,4)}, v{VOS[i]}, {OUT}, s27 offen {OFL}")
    a("L_fin:")

def gen(cfg):
    a = Asm()
    a(f".globl {NAME}")
    a(".p2align 12")
    a(f".fill {cfg.get('pad', 3328)//4}, 4, 0xbf800000")
    a(".p2align 8")
    a(f".type {NAME},@function")
    a(f"{NAME}:")
    a("""
    s_cmp_ge_u32 s2, 256
    s_cbranch_scc1 L_end
    """)
    stamp(a, cfg, 0, real=True); stamp(a, cfg, 1)
    a("""
    s_load_dwordx4 s[4:7], s[0:1], 0
    s_load_dwordx8 s[36:43], s[0:1], 16
    v_lshrrev_b32 v2, 6, v0
    v_and_b32 v1, 63, v0
    v_readfirstlane_b32 s16, v2
    """)
    if cfg.get("codepf", 1):
        a.c("wave 0 touches an 8 KB share of the kernel's own code so that instruction fetch hits L2")
        a(f"""
        s_getpc_b64 s[26:27]
        L_pc:
        s_bfe_u32 s3, s2, 0x30003
        s_lshl_b32 s3, s3, 13
        s_cmp_eq_u32 s16, 0
        s_cbranch_scc0 L_nopf
        v_lshl_add_u32 v3, v1, 7, s3
        v_min_u32 v3, L_code_end - L_pc - 4, v3
        global_load_dword v14, v3, s[26:27]
        L_nopf:
        """)
    a("""
    s_cmp_lt_u32 s2, 240
    s_cbranch_scc0 L_idle
    """)
    a.c("tile: xcd j = id&7 ; u = (j>>2)*30 + (id>>3) ; cb(s17) = u>>2 ; tb(s18) = (j&3)*4 + (u&3)")
    a("""
    s_bfe_u32 s3, s2, 0x10002
    s_mul_i32 s3, s3, 30
    s_lshr_b32 s17, s2, 3
    s_add_u32 s3, s3, s17
    s_lshr_b32 s17, s3, 2
    s_and_b32 s3, s3, 3
    s_and_b32 s18, s2, 3
    s_lshl_b32 s18, s18, 2
    s_add_u32 s18, s18, s3
    s_cmp_lt_u32 s16, 4
    s_cbranch_scc1 L_qkv_cons
    """)
    phase1_loader(a, cfg)
    a("L_idle:")
    a.c("workgroups without a GEMM tile: clear the hand-off flags, raise 'ready' in d_debug, pull second-stage x rows into L2")
    a(f"""
    s_sub_u32 s3, s2, 240
    s_lshl_b32 s19, s3, 2
    s_mul_i32 s17, s3, {96*128}
    s_add_u32 s17, s17, {FB_OFF}
    s_and_b32 s3, s2, 3
    s_lshl_b32 s3, s3, 1
    s_bfe_u32 s18, s2, 0x10003
    s_add_u32 s3, s3, s18
    s_lshl_b32 s3, s3, 1
    s_and_b32 s18, s16, 1
    s_add_u32 s3, s3, s18
    s_mul_i32 s3, s3, {128*1280}
    s_lshr_b32 s18, s16, 1
    s_mul_i32 s18, s18, {16*1280}
    s_add_u32 s3, s3, s18
    s_add_u32 s20, s3, {64*1280}
    s_add_u32 s21, s20, 8192
    s_add_u32 s22, s20, 16384
    v_lshlrev_b32 v2, 7, v1
    v_min_u32 v3, {31*128}, v2
    v_mov_b32 v4, 0
    v_and_b32 v10, 15, v1
    v_lshlrev_b32 v10, 2, v10
    v_mov_b32 v11, {GO_ADDR}
    ds_write_b32 v11, v4
    s_waitcnt lgkmcnt(0)
    """)
    common_srds(a)
    srd(a, 8, 4, 2048 * 1280)
    a(f"""
    s_cmp_eq_u32 s16, 0
    s_cbranch_scc0 L_idle_nost
    s_add_u32 s18, s17, 8192
    buffer_store_dword v4, v2, {WS}, s17 offen sc1
    buffer_store_dword v4, v3, {WS}, s18 offen sc1
    v_mov_b32 v6, 1
    s_waitcnt vmcnt(0)
    s_mov_b64 exec, 1
    buffer_store_dword v6, v4, {DBG}, s19 offen sc1
    s_mov_b64 exec, -1
    L_idle_nost:
    """)
    if cfg.get("x2pf", 1):
        a(f"""
        buffer_load_dword v140, v2, s[8:11], s20 offen
        buffer_load_dword v141, v2, s[8:11], s21 offen
        buffer_load_dword v142, v3, s[8:11], s22 offen
        """)
    a("""
    s_cmp_eq_u32 s16, 0
    s_cbranch_scc0 L_rdy_i_ok
    """)
    poll(a, "L_rdy_i", 10, DBG, "0")
    a("""
    s_waitcnt vmcnt(0)
    s_barrier
    s_mov_b32 s63, 0
    s_mov_b32 s62, 0
    v_mov_b32 v12, 0
    v_mov_b32 v13, 0
    s_mov_b32 s60, 0
    s_cmp_lt_u32 s16, 4
    s_cbranch_scc1 L_late_setup
    """)
    attn_setup(a, cfg, early=True)
    a("s_branch L_early")
    a("L_qkv_cons:")
    late_qk, late_v = phase1_consumer(a, cfg)
    a("L_late_setup:")
    attn_setup(a, cfg, early=False)
    a(f"v_mov_b32 v11, {GO_ADDR + 81920}")
    a("v_mov_b32 v7, 0")
    a("s_barrier")
    a("ds_write_b32 v11, v7")
    for g in kv_dma(3, back=81920): a(g)
    a("""
    s_cmp_eq_u32 s63, 1
    s_cbranch_scc0 L_late_nqk
    """)
    for st in late_qk: a(st)
    a("""
    s_branch L_late_st
    L_late_nqk:
    s_cmp_eq_u32 s63, 2
    s_cbranch_scc0 L_late_st
    """)
    for st in late_v: a(st)
    a("""
    L_late_st:
    s_barrier
    s_waitcnt vmcnt(0) lgkmcnt(0)
    s_cmp_eq_u32 s63, 0
    s_cbranch_scc1 L_late_nofl
    """)
    raise_flag(a, "s60")
    a("""
    L_late_nofl:
    s_barrier
    """)
    wait_stage(a, cfg, "l", 0)
    stamp(a, cfg, 6)
    for g in kv_dma(0): a(g)
    qloads(a)
    for g in kv_dma(1): a(g)
    a("s_waitcnt vmcnt(10) lgkmcnt(0)")
    stamp(a, cfg, 15)
    a("s_barrier")
    for g in kv_dma(2) + kv_dma(3): a(g)
    a("s_waitcnt vmcnt(15)")
    stamp(a, cfg, 7)
    attn_loop(a, cfg, early=False)
    a("s_branch L_epi")
    a("L_early:")
    wait_stage(a, cfg, "e", cfg.get("epoll", 5))
    stamp(a, cfg, 6)
    for g in kv_dma(0): a(g)
    qloads(a)
    for g in kv_dma(1) + kv_dma(2): a(g)
    a("s_waitcnt vmcnt(10) lgkmcnt(0)")
    stamp(a, cfg, 5)
    a("s_barrier")
    stamp(a, cfg, 7)
    attn_loop(a, cfg, early=True)
    a("L_epi:")
    attn_epilogue(a, cfg)
    phase3(a, cfg)
    if cfg.get("stamp"): a("s_waitcnt vmcnt(0)")
    stamp(a, cfg, 13); stamp(a, cfg, 14, real=True)
    stamp_flush(a, cfg, 0, 16, 8, wsptr=42)
    a("L_end:")
    a("s_endpgm")
    a("L_code_end:")
    attn_slow(a)
    head = open("standalone__softmax_full_mha__prompt.s.ref").read().split("; Override launch")[0]
    descs = descriptor(NAME, 256)
    if cfg.get("probe"):
        import k_probe
        head += f"; @launch kernel={NAME} grid=(256,1,1) block=(512,1,1) lds=163840\n; @launch kernel=probe_kernel grid=(1,1,1) block=(64,1,1) lds=0\n"
        descs += k_probe.gen_probe(a, cfg)
    elif cfg.get("list"):
        head += f"; @launch kernel={NAME} grid=(256,1,1) block=(512,1,1) lds=163840\n"
    else:
        head += "; @launch grid=(256,1,1) block=(512,1,1) lds=163840\n"
    return head + '.amdgcn_target "amdgcn-amd-amdhsa--gfx950"\n.text\n' + a.text() + '.section .rodata,"a"\n' + descs

if __name__ == "__main__":
    cfg = json.loads(sys.argv[2]) if len(sys.argv) > 2 else {}
    open(sys.argv[1], "w").write(gen(cfg))
```

```python
from asmlib import *
def reduce(a, region, col, n, op, dst, tag):
    srd(a, 8, 4, 1 << 20, add=STAMP_OFF + region * (1 << 20))
    a(f"""
    v_lshlrev_b32 v1, 6, v0
    v_add_u32 v1, {4*col}, v1
    buffer_load_dword v2, v1, s[8:11], 0 offen
    s_mov_b32 s20, 4096
    L_pr_{tag}:
    buffer_load_dword v3, v1, s[8:11], s20 offen
    s_waitcnt vmcnt(0)
    v_{op}_u32 v2, v2, v3
    s_add_u32 s20, s20, 4096
    s_cmp_lt_u32 s20, {n*64}
    s_cbranch_scc1 L_pr_{tag}
    s_nop 1
    v_readlane_b32 s{dst}, v2, 0
    """)
    for l in range(1, 64):
        a(f"v_readlane_b32 s21, v2, {l}")
        a("s_nop 0")
        a(f"s_{op}_u32 s{dst}, s{dst}, s21")
def gen_probe(a, cfg):
    kernel_begin(a, "probe_kernel")
    a("""
    s_cmp_ge_u32 s2, 1
    s_cbranch_scc1 L_probe_end
    s_load_dwordx2 s[4:5], s[0:1], 40
    s_waitcnt lgkmcnt(0)
    """)
    r0, n0 = cfg.get("p0", [0, 1920])
    reduce(a, r0, 0, n0, "min", 30, "a")
    region, col, n, op, mult = cfg["probe"]
    reduce(a, region, col, n, op, 31, "b")
    if cfg.get("prange"):
        reduce(a, region, col, n, "min", 29, "c")
        a("s_sub_u32 s31, s31, s29")
        a("s_add_u32 s31, s31, s30")
    a(f"""
    s_sub_u32 s31, s31, s30
    s_min_u32 s31, s31, 20000
    s_mul_i32 s31, s31, {mult}
    s_add_u32 s31, s31, 10000
    s_mov_b32 s34, 0
    L_probe_spin:
    s_memrealtime s[32:33]
    s_waitcnt lgkmcnt(0)
    s_sub_u32 s32, s32, s30
    s_add_u32 s34, s34, 1
    s_cmp_gt_u32 s34, 100000
    s_cbranch_scc1 L_probe_end
    s_cmp_lt_u32 s32, s31
    s_cbranch_scc1 L_probe_spin
    L_probe_end:
    s_endpgm
    """)
    return descriptor("probe_kernel", 8)
```

```python
import sys, json, struct
from asmlib import *
NAME = "standalone__softmax_full_mha__prompt_kernel"
HQ = 81920
HKV = 163840
KV_OFF = 32 * HQ
O_OFF = KV_OFF + 32 * HKV
FB_OFF = O_OFF + 128 * 20480
FA_OFF = FB_OFF + 1024 * 128
F2_OFF = FA_OFF + 256 * 128
WS_BYTES = F2_OFF + 256 * 128
SLOT = [0, 24576, 49152, 81920, 106496, 131072, 0, 24576, 49152, 139264]
CSCALE = struct.unpack("<I", struct.pack("<f", (20 ** -0.5) * 1.4426950408889634))[0]
WS, WO, OUT, DBG = "s[44:47]", "s[48:51]", "s[52:55]", "s[56:59]"
SPIN_MAX = 1 << 18

def spin_tail(a, label, mult=1):
    a(f"""
    s_cbranch_scc1 {label}_ok
    s_add_u32 s35, s35, 1
    s_cmp_lt_u32 s35, {SPIN_MAX*mult}
    s_cbranch_scc1 {label}
    {label}_ok:
    """)

def poll(a, label, vaddr, rsrc, soff, sleep=0):
    a(f"""
    s_mov_b32 s35, 0
    {label}:
    buffer_load_dword v5, v{vaddr}, {rsrc}, {soff} offen sc1
    s_waitcnt vmcnt(0)
    v_cmp_ne_u32 vcc, 0, v5
    s_nop 0
    s_cmp_eq_u64 vcc, -1
    """)
    spin_tail(a, label)

def raise_flag(a, soff):
    a(f"""
    v_mov_b32 v2, 0
    v_mov_b32 v3, 1
    s_mov_b64 exec, 1
    buffer_store_dword v3, v2, {WS}, {soff} offen sc1
    s_mov_b64 exec, -1
    """)

def common_srds(a):
    srd(a, 44, 42, WS_BYTES)
    srd(a, 48, 36, 640 * 1280)
    srd(a, 52, 38, 2048 * 1280)
    srd(a, 56, 40, 256)

GO_ADDR = 81920 - 16
def phase1_loader(a, cfg):
    a.c("---------------- loader waves (become the early attention waves)")
    rot = cfg.get("rot", 3)
    NX0 = cfg.get("nx0", 7)
    if rot == 2:
        a("""
        s_add_u32 s23, s3, s17
        s_and_b32 s23, s23, 1
        s_mul_i32 s23, s23, 5
        """)
    elif rot == 3:
        a("""
        s_add_u32 s23, s3, s17
        s_mul_i32 s24, s23, 43
        s_lshr_b32 s24, s24, 7
        s_mul_i32 s24, s24, 3
        s_sub_u32 s23, s23, s24
        s_mul_i32 s23, s23, 7
        s_lshr_b32 s23, s23, 1
        """)
    elif rot == 4:
        a("""
        s_add_u32 s23, s3, s17
        s_and_b32 s23, s23, 3
        s_mul_i32 s23, s23, 5
        s_lshr_b32 s23, s23, 1
        """)
    else:
        a("s_mov_b32 s23, 0")
    a(f"""
    s_and_b32 s19, s16, 3
    s_lshl_b32 s20, s19, 4
    s_lshr_b32 s24, s19, 1
    s_lshl_b32 s24, s24, 5
    s_and_b32 s25, s19, 1
    s_lshl_b32 s25, s25, 2
    s_add_u32 s24, s24, s25
    s_cmp_lt_u32 s17, 10
    s_cselect_b32 s20, s20, s24
    s_cselect_b32 s24, 4, 8
    s_mul_i32 s24, s24, 1280
    s_lshl_b32 s25, s18, 7
    s_add_u32 s20, s20, s25
    s_mul_i32 s20, s20, 1280
    v_lshrrev_b32 v2, 5, v1
    v_mul_u32_u24 v2, s24, v2
    v_bfe_u32 v3, v1, 3, 2
    v_mul_u32_u24 v3, 1280, v3
    v_lshrrev_b32 v5, 4, v1
    v_and_b32 v4, 7, v1
    v_xor_b32 v4, v4, v5
    v_lshlrev_b32 v4, 4, v4
    v_add3_u32 v8, v2, v3, v4
    v_xor_b32 v4, 64, v4
    v_add3_u32 v9, v2, v3, v4
    s_lshl_b32 s24, s24, 1
    s_sub_u32 s24, s24, 1024
    v_add_u32 v9, s24, v9
    v_and_b32 v3, 15, v1
    v_lshlrev_b32 v6, 1, v5
    v_xor_b32 v3, v3, v6
    v_mul_u32_u24 v2, 3840, v5
    v_lshl_add_u32 v12, v3, 4, v2
    v_add_u32 v13, {4*3840-1024}, v12
    v_xor_b32 v3, 8, v3
    v_lshl_add_u32 v14, v3, 4, v2
    v_add_u32 v15, {3*(4*3840-1024)}, v14
    v_add_u32 v14, {2*(4*3840-1024)}, v14
    s_mul_i32 s21, s19, {16*3840}
    s_lshl_b32 s3, s17, 8
    s_add_u32 s21, s21, s3
    s_lshl_b32 s22, s19, 11
    s_lshl_b32 s26, s19, 12
    s_mov_b32 s10, {2048*1280}
    s_mov_b32 s11, 0x00020000
    s_mov_b32 s14, {640*3840}
    s_mov_b32 s15, 0x00020000
    """)
    stamp(a, cfg, 8, grp="st")
    a("s_waitcnt lgkmcnt(0)")
    stamp(a, cfg, 9, grp="st")
    a(f"""
    s_mov_b32 s8, s4
    s_mov_b32 s9, s5
    s_mov_b32 s12, s6
    s_mov_b32 s13, s7
    """)
    XF1, XF2, WF_ = cfg.get("xfl", ""), cfg.get("x2fl", ""), cfg.get("wfl", "")
    def adv():
        a("""
        s_add_u32 s23, s23, 1
        s_cmp_eq_u32 s23, 10
        s_cselect_b32 s23, 0, s23
        """)
    def issue_x(lds, XF):
        a(f"""
        s_lshl_b32 s24, s23, 7
        s_add_u32 m0, s22, {lds}
        s_add_u32 s24, s24, s20
        """)
        for j in range(2):
            a(f"buffer_load_dwordx4 v{8+j}, s[8:11], s24 offen offset:{1024*j} {XF} lds")
    def issue(c):
        slot = SLOT[c]
        issue_x(slot, XF1)
        a(f"""
        s_mul_i32 s25, s23, {64*3840}
        s_add_u32 m0, s26, {slot+8192}
        s_add_u32 s25, s25, s21
        """)
        for j in range(4):
            a(f"buffer_load_dwordx4 v{12+j}, s[12:15], s25 offen offset:{1024*j} {WF_} lds")
        adv()
    def issue2(c):
        if c == 0: a(f"s_add_u32 s20, s20, {64*1280}")
        issue_x(81920 + 8192*c, XF2)
        if c < 9: adv()
    NPRE = cfg.get("npre", 2)
    groups = [[("c", c)] for c in range(10)]
    q = list(range(NX0))
    while q: groups.append([("x", i) for i in q[:3]]); q = q[3:]
    while len(groups) > 10 + NPRE:
        g = groups.pop(); groups[-1] = groups[-1] + g
    pend = []
    def put(g):
        for kind, i in g:
            if kind == "c": issue(i); pend.append(((kind, i), 6))
            else: issue2(i); pend.append(((kind, i), 2))
    def wait_for(item):
        k = [p[0] for p in pend].index(item)
        del pend[:k+1]
        a(f"s_waitcnt vmcnt({sum(p[1] for p in pend)})")
    for i in range(NPRE):
        put(groups.pop(0))
        if i == 0: stamp(a, cfg, 10, grp="st")
    common_srds(a)
    a(f"""
    v_and_b32 v10, 15, v1
    v_lshlrev_b32 v10, 2, v10
    s_lshl_b32 s60, s17, 4
    s_add_u32 s60, s60, s18
    s_lshl_b32 s60, s60, 7
    s_add_u32 s60, s60, {FA_OFF}
    """)
    for c in range(10):
        wait_for(("c", c))
        if c == 0: stamp(a, cfg, 2)
        if c in (3, 6): stamp(a, cfg, {3: 11, 6: 12}[c], grp="st")
        a("s_barrier")
        if groups: put(groups.pop(0))
    a(f"buffer_load_dword v5, v10, {DBG}, 0 offen sc1"); pend.append((("r", 0), 1))
    stamp(a, cfg, 3)
    wait_for(("x", 2))
    a("s_barrier")
    a(f"""
    v_mov_b32 v11, {GO_ADDR}
    v_mov_b32 v7, 0
    ds_write_b32 v11, v7
    s_waitcnt vmcnt(0)
    v_cmp_ne_u32 vcc, 0, v5
    s_waitcnt lgkmcnt(0)
    s_cmp_eq_u64 vcc, -1
    s_cbranch_scc1 L_rdy_l_ok
    """)
    poll(a, "L_rdy_l", 10, DBG, "0")
    a("s_barrier")
    for q in range(NX0, 10): issue2(q)
    attn_setup(a, cfg, early=True)
    a("""
    s_barrier
    s_cmp_eq_u32 s16, 4
    s_cbranch_scc0 L_ld_nofl
    """)
    raise_flag(a, "s60")
    stamp(a, cfg, 4)
    a("""
    s_waitcnt vmcnt(1)
    s_barrier
    s_branch L_early
    L_ld_nofl:
    """)
    stamp(a, cfg, 4)
    a("""
    s_waitcnt vmcnt(0)
    s_barrier
    s_branch L_early
    """)

def phase1_consumer(a, cfg):
    a.c("---------------- consumer waves (become the late attention waves)")
    XA, WA, ST, XF, AC, WR = 8, 10, 12, 16, 48, 96
    XB, WB = 4, 6
    SFLAG = cfg.get("sflag", 9)
    XBAR = [0, 3, cfg.get("nx0", 7)]
    assert 5 < SFLAG < 2 * XBAR[2] - 1
    a(f"""
    v_and_b32 v2, 15, v1
    v_lshrrev_b32 v3, 4, v1
    v_bfe_u32 v4, v1, 1, 3
    v_xor_b32 v4, v4, v3
    v_lshlrev_b32 v4, 4, v4
    v_lshl_add_u32 v{XA}, v2, 7, v4
    v_xor_b32 v{XA+1}, 64, v{XA}
    v_bfe_u32 v4, v1, 2, 2
    v_lshl_add_u32 v5, v3, 3, v4
    v_and_b32 v6, 1, v3
    v_lshl_or_b32 v4, v6, 2, v4
    s_lshl_b32 s3, s16, 1
    v_xor_b32 v4, s3, v4
    v_lshlrev_b32 v4, 5, v4
    v_lshl_add_u32 v4, v5, 8, v4
    v_and_b32 v5, 3, v1
    v_lshl_add_u32 v4, v5, 3, v4
    v_add_u32 v{WA}, 8192, v4
    v_xor_b32 v{WA+1}, 32, v{WA}
    s_lshl_b32 s60, s17, 2
    s_add_u32 s60, s60, s16
    s_lshl_b32 s60, s60, 4
    s_add_u32 s60, s60, s18
    s_lshl_b32 s60, s60, 7
    s_add_u32 s60, s60, {FB_OFF}
    s_mul_i32 s21, s18, 5120
    v_min_u32 v15, 19, v1
    v_lshlrev_b32 v15, 7, v15
    s_and_b32 s3, s17, 7
    s_lshl_b32 s3, s3, 2
    s_add_u32 s3, s3, s16
    s_lshl_b32 s28, s18, 6
    s_add_u32 s3, s3, s28
    s_add_u32 s3, s3, 32
    s_mul_i32 s28, s3, 2560
    s_waitcnt lgkmcnt(0)
    """)
    common_srds(a)
    srd(a, 8, 4, 2048 * 1280)
    VPF = cfg.get("vpf", 30)
    def x2touch():
        a.c("pull this wave's share of the second-stage x rows into L2 (one dword per line)")
        a(f"buffer_load_dword v15, v15, s[8:11], s28 offen {cfg.get('vpffl', '')}")
    if VPF == -1: x2touch()
    def xread(stage, ks, tt):
        c, s = divmod(ks, 2)
        if stage == 0: ad, off = (XA, SLOT[c]) if SLOT[c] < 81920 else (XB, SLOT[c] - 81920)
        else: ad, off = (XB, c * 8192) if c < 5 else (XA, (c - 5) * 8192)
        return f"ds_read_b128 {vr(XF+16*(ks&1)+4*tt,4)}, v{ad+s} offset:{off+2048*tt}"
    def wread(ks, ct, u):
        c, s = divmod(ks, 2)
        ad, off = (WA, SLOT[c]) if SLOT[c] < 81920 else (WB, SLOT[c] - 81920)
        if c == 9: off -= 8192
        return f"ds_read_b64_tr_b16 {vr(WR+8*ks+4*ct+2*u,2)}, v{ad+ct} offset:{off+(32*s+4*u)*256}"
    def reads(stage, ks):
        if stage == 0:
            return [wread(ks,0,0), wread(ks,0,1), xread(0,ks,0), wread(ks,1,0), wread(ks,1,1), xread(0,ks,1), xread(0,ks,2), xread(0,ks,3)]
        return [xread(1,ks,tt) for tt in range(4)]
    def gemm(isv, epi):
        for i in range(2):
            a(f"v_add_u32 v{XB+i}, 81920, v{XA+i}")
            a(f"v_add_u32 v{WB+i}, 81920, v{WA+i}")
        a("s_barrier")
        stamp(a, cfg, 2)
        a(".p2align 3")
        for r in reads(0, 0): a(r)
        for stage in range(2):
            for ks in range(20):
                fl = stage == 1 and ks == SFLAG
                a("s_waitcnt vmcnt(0) lgkmcnt(0)" if fl else "s_waitcnt lgkmcnt(0)")
                nxt = []
                bar = fl
                if ks < 19:
                    nxt = reads(stage, ks + 1)
                    if ks % 2 == 1:
                        bar = bar or stage == 0 or ((ks + 1) // 2) in XBAR
                a("s_barrier" if bar else "s_nop 0")
                if fl: stamp(a, cfg, 4)
                if stage == 0 and ks == 13:
                    for i in range(2): a(f"v_add_u32 v{WB+i}, 8192, v{WB+i}")
                if stage == 1 and ks in (5, 13, 19): stamp(a, cfg, {5: 10, 13: 11, 19: 12}[ks], grp="p1")
                if stage == 0 and ks == VPF: x2touch()
                per = 2 if stage == 0 else 1
                for i in range(8):
                    tt, ct = i >> 1, (i & 1) ^ ((i >> 1) & 1)
                    acc = AC + 8 * tt + 4 * ct
                    x, w = vr(XF+16*(ks&1)+4*tt, 4), vr(WR+8*ks+4*ct, 4)
                    A, B = (x, w) if isv else (w, x)
                    c = "0" if ks == 0 else vr(acc, 4)
                    a(f"v_mfma_f32_16x16x32_bf16 {vr(acc,4)}, {A}, {B}, {c}")
                    for r in nxt[per*i:per*i+per]: a(r)
            if stage == 0:
                stamp(a, cfg, 3)
                a(f"v_add_u32 v{XA}, 122880, v{XA}")
                a(f"v_add_u32 v{XA+1}, 122880, v{XA+1}")
                epi(0)
                stamp(a, cfg, 8, grp="p1")
                a("s_barrier")
                stamp(a, cfg, 9, grp="p1")
                a(".p2align 3")
                for r in reads(1, 0): a(r)
            else:
                a("s_nop 1")
                epi(1)
    a("""
    s_cmp_lt_u32 s17, 10
    s_cbranch_scc0 L_qkv_v
    """)
    a.c("Q/K tiles: G = (cb%5)*32 + 8w + 4ct + g ; head = G/5 ; pos = G%5")
    a(f"""
    s_cmp_lt_u32 s17, 5
    s_cselect_b32 s25, 0, 81920
    s_cselect_b32 s26, {CSCALE}, 1.0
    s_cselect_b32 s23, 0, {KV_OFF}
    s_cselect_b32 s3, 0, 5
    s_add_u32 s24, s25, {HQ-2560}
    s_max_u32 s22, s25, 2560
    s_mov_b32 s27, s26
    s_add_u32 s21, s21, s23
    s_add_u32 s22, s22, s21
    s_sub_u32 s3, s17, s3
    s_lshl_b32 s3, s3, 2
    s_add_u32 s3, s3, s16
    s_lshl_b32 s3, s3, 3
    v_add_u32 v6, s3, v3
    v_lshlrev_b32 v4, 3, v2
    """)
    for ct in range(2):
        a(f"""
        v_add_u32 v7, {4*ct}, v6
        v_mul_u32_u24 v5, 52429, v7
        v_lshrrev_b32 v5, 18, v5
        v_lshl_add_u32 v7, v7, 9, v4
        v_mad_u32_u24 v{ST+ct}, v5, s24, v7
        """)
    late_qk, late_v = [], []
    def epi_qk(stage):
        for i in range(8):
            tt, ct = i >> 1, (i & 1) ^ ((i >> 1) & 1)
            acc = AC + 8 * tt + 4 * ct
            d = 80 + 2 * i
            a(f"v_pk_mul_f32 {vr(acc,2)}, {vr(acc,2)}, s[26:27]")
            a(f"v_pk_mul_f32 {vr(acc+2,2)}, {vr(acc+2,2)}, s[26:27]")
            a(f"v_cvt_pk_bf16_f32 v{d}, v{acc}, v{acc+1}")
            a(f"v_cvt_pk_bf16_f32 v{d+1}, v{acc+2}, v{acc+3}")
            st = f"buffer_store_dwordx2 {vr(d,2)}, v{ST+ct}, {WS}, s{62 if stage else 21} offen offset:{128*tt} sc1"
            if stage == 0: a(st)
            else: late_qk.append(st)
    gemm(False, epi_qk)
    a("s_mov_b32 s63, 1")
    a("s_branch L_qkv_fin")
    a("L_qkv_v:")
    a.c("V tiles: col = (cb-10)*128 + 32w + 16ct + n ; head = col/20 ; d = col%20")
    a(f"""
    s_sub_u32 s3, s17, 10
    s_lshl_b32 s3, s3, 2
    s_add_u32 s3, s3, s16
    s_lshl_b32 s3, s3, 5
    v_add_u32 v6, s3, v2
    s_add_u32 s21, s21, {KV_OFF+2560}
    s_add_u32 s22, s21, 81920
    v_mul_u32_u24 v4, 320, v3
    s_mov_b32 s24, {HKV - 320}
    """)
    for ct in range(2):
        a(f"""
        v_add_u32 v7, {16*ct}, v6
        v_mul_u32_u24 v5, 13108, v7
        v_lshrrev_b32 v5, 18, v5
        v_lshl_add_u32 v7, v7, 4, v4
        v_mad_u32_u24 v{ST+ct}, v5, s24, v7
        """)
    def epi_v(stage):
        a("s_nop 2")
        for P in range(2):
            for ct in range(2):
                d = 80 + 8 * P + 4 * ct
                for ab in range(2):
                    acc = AC + 8 * (2 * P + ab) + 4 * ct
                    a(f"v_cvt_pk_bf16_f32 v{d+2*ab}, v{acc}, v{acc+1}")
                    a(f"v_cvt_pk_bf16_f32 v{d+2*ab+1}, v{acc+2}, v{acc+3}")
                st = f"buffer_store_dwordx4 {vr(d,4)}, v{ST+ct}, {WS}, s{62 if stage else 21} offen offset:{1280*P} sc1"
                if stage == 0: a(st)
                else: late_v.append(st)
    gemm(True, epi_v)
    a("s_mov_b32 s63, 2")
    a("L_qkv_fin:")
    stamp(a, cfg, 5)
    a("s_mov_b32 s62, s22")
    return late_qk, late_v

SA, SB = 144, 176
O0, O1 = 208, 224
QM0, QM1, QT = 240, 244, 248
IDX, VKE, VKO, VT, VV0, VV1 = 250, 251, 252, 253, 254, 255
KM, KT, VV = 16, 24, 32
WOA = 48
VL16, VQ, VQT, VPOLL = 53, 54, 55, 56

def attn_setup(a, cfg, early, keep5=False):
    late = 0 if early else 1
    a.c("attention ids: s17=head s18=q pair s19=key half s21=KV base of head")
    a(f"""
    s_and_b32 s17, s2, 7
    s_lshl_b32 s17, s17, 2
    s_bfe_u32 s3, s2, 0x20003
    s_add_u32 s17, s17, s3
    s_lshr_b32 s29, s2, 5
    s_lshl_b32 s18, s29, 2
    s_and_b32 s3, s16, 2
    s_add_u32 s18, s18, s3
    s_add_u32 s18, s18, {late}
    s_and_b32 s19, s16, 1
    s_mul_i32 s20, s19, 5120
    v_and_b32 v2, 31, v1
    v_lshrrev_b32 v3, 5, v1
    v_lshlrev_b32 v4, 3, v2
    v_lshl_add_u32 v{VQ}, v3, 9, v4
    v_add_u32 v{VKE}, s20, v{VQ}
    v_add_u32 v{VKO}, 256, v{VKE}
    v_lshlrev_b32 v4, 3, v1
    v_add_u32 v{VT}, s20, v4
    s_lshl_b32 s3, s19, 8
    v_xor_b32 v{VQT}, s3, v4
    v_mul_u32_u24 v6, 320, v3
    v_lshl_add_u32 v6, v2, 4, v6
    s_add_u32 s3, s20, 2560
    v_add_u32 v{VV0}, s3, v6
    v_add_u32 v{VV1}, 40960, v{VV0}
    v_lshlrev_b32 v{VL16}, 4, v1
    v_mov_b32 v{IDX}, 0xdddddddd
    s_mov_b32 s24, 0x000fffff
    s_mov_b32 s25, 0x000fffff
    v_cmp_eq_u32 vcc, 20, v2
    v_mov_b32 v6, 0x3f803f80
    s_mul_i32 s21, s17, {HKV}
    v_cndmask_b32 v{VV}, 0, v6, vcc
    s_add_u32 s21, s21, {KV_OFF}
    """)
    for i in range(1, 16): a(f"v_mov_b32 v{VV+i}, v{VV}")
    for i in range(32): a(f"v_mov_b32 v{O0+i}, 0")
    for i in range(5):
        a(f"""
        v_add_u32 v2, {64*i}, v1
        v_mul_u32_u24 v3, 6554, v2
        v_lshrrev_b32 v3, 16, v3
        v_mul_u32_u24 v4, {1280-160}, v3
        v_lshl_add_u32 v{WOA+i}, v2, 4, v4
        """)
    a.c("s22/s23: Q soffsets role0/role1, s26: Q pair base ; s27: first token block of this wave's K/V units ; s28: dma lds dest")
    a(f"""
    s_mul_i32 s26, s18, 2560
    s_mul_i32 s3, s17, {HQ}
    s_add_u32 s26, s26, s3
    s_lshl_b32 s3, s19, 8
    s_add_u32 s22, s26, s3
    s_xor_b32 s3, s3, 256
    s_add_u32 s23, s26, s3
    s_and_b32 s28, s16, 3
    s_lshl_b32 s27, s29, 1
    s_add_u32 s27, s27, s28
    s_mul_i32 s28, s28, 5120
    s_add_u32 s28, s28, {late*81920}
    s_add_u32 s61, s21, {late*81920}
    """)
    sh, sec = (7, 5) if early else (5, 20)
    a.c("poll addresses of the polling wave: K/V producers of all 16 token blocks, Q producers of both pairs")
    a(f"""
    s_mul_i32 s30, s17, 20
    s_add_u32 s31, s30, 19
    s_lshr_b32 s30, s30, {sh}
    s_lshr_b32 s31, s31, {sh}
    s_sub_u32 s31, s31, s30
    v_and_b32 v2, 1, v1
    v_mul_u32_u24 v2, s31, v2
    v_add_u32 v2, s30, v2
    v_lshrrev_b32 v4, 5, v1
    v_mul_u32_u24 v3, {sec}, v4
    v_add3_u32 v3, v2, v3, {sec}
    v_bfe_u32 v6, v1, 1, 4
    v_lshl_add_u32 v3, v3, 4, v6
    v_lshlrev_b32 v{VPOLL}, 7, v3
    v_bfe_u32 v2, v1, 4, 1
    v_mul_u32_u24 v2, s31, v2
    v_add_u32 v2, s30, v2
    s_lshr_b32 s3, s2, 5
    s_lshl_b32 s3, s3, 1
    v_lshl_add_u32 v2, v2, 4, v4
    v_add_u32 v2, s3, v2
    v_lshlrev_b32 v{VPOLL+1}, 7, v2
    s_mov_b32 s33, {FA_OFF if early else FB_OFF}
    """)

def wait_stage(a, cfg, tag, wave):
    a(f"""
    s_mov_b32 s35, 0
    s_cmp_eq_u32 s16, {wave}
    s_cbranch_scc0 L_gw{tag}
    L_poll1{tag}:
    buffer_load_dword v5, v{VPOLL}, {WS}, s33 offen sc1
    buffer_load_dword v6, v{VPOLL+1}, {WS}, s33 offen sc1
    s_waitcnt vmcnt(0)
    v_and_b32 v5, v5, v6
    v_cmp_ne_u32 vcc, 0, v5
    s_nop 0
    s_cmp_eq_u64 vcc, -1
    """)
    spin_tail(a, f"L_poll1{tag}")
    a(f"""
    v_mov_b32 v7, 1
    ds_write_b32 v11, v7
    s_branch L_gw{tag}_ok
    L_gw{tag}:
    s_sleep 1
    ds_read_b32 v7, v11
    s_waitcnt lgkmcnt(0)
    v_readfirstlane_b32 s34, v7
    s_cmp_lg_u32 s34, 0
    """)
    spin_tail(a, f"L_gw{tag}", mult=16)

def kread(t):
    tl = t & 15
    o = 20 * (tl >> 1)
    return f"ds_read2st64_b64 {vr(KM+4*(t&1),4)}, v{VKO if t & 1 else VKE} offset0:{o} offset1:{o+2}"
def tread(b):
    o = 40 * (b & 3)
    return f"ds_read2st64_b64 {vr(KT+4*(b&1),4)}, v{VT} offset0:{o+4} offset1:{o+24}"
def vread(t, f):
    tl = t & 15
    ad = VV0 if tl < 8 else VV1
    return f"ds_read_b128 {vr(VV+8*(t&1)+4*f,4)}, v{ad} offset:{10240*((tl>>1)&3)+1280*(t&1)+640*f}"
def Tm(t, dst):
    b, T = divmod(t, 4)
    return f"v_mfma_f32_32x32x4_2b_bf16 {vr(dst,32)}, {vr(KT+4*(b&1)+2*(T>>1),2)}, {vr(QT,2)}, 0 cbsz:1 abid:{T&1}"
def Mm(t, dst, r):
    return f"v_mfma_f32_32x32x16_bf16 {vr(dst+16*r,16)}, {vr(KM+4*(t&1),4)}, {vr(QM1 if r else QM0,4)}, {vr(dst+16*r,16)}"
def Pm(o, t, f, s):
    return f"v_smfmac_f32_32x32x32_bf16 {vr(o,16)}, {vr(VV+8*(t&1)+4*f,4)}, {vr(s,8)}, v{IDX}"

def qloads(a):
    a(f"""
    buffer_load_dwordx2 {vr(QT,2)}, v{VQT}, {WS}, s26 offen offset:2048 sc1
    buffer_load_dwordx2 {vr(QM0,2)}, v{VQ}, {WS}, s22 offen sc1
    buffer_load_dwordx2 {vr(QM0+2,2)}, v{VQ}, {WS}, s22 offen offset:1024 sc1
    buffer_load_dwordx2 {vr(QM1,2)}, v{VQ}, {WS}, s23 offen sc1
    buffer_load_dwordx2 {vr(QM1+2,2)}, v{VQ}, {WS}, s23 offen offset:1024 sc1
    """)
def kv_dma(i, back=0):
    g = [f"""
        s_add_u32 s3, s27, {4*i}
        s_and_b32 s3, s3, 15
        s_mul_i32 s3, s3, 5120
        s_sub_u32 s3, s3, {back}
        s_add_u32 m0, s28, {(i*20480 - back) & 0xffffffff}
        s_add_u32 s29, s61, s3
        buffer_load_dwordx4 v{VL16}, {WS}, s29 offen sc1 lds"""]
    for j in range(1, 4):
        g.append(f"buffer_load_dwordx4 v{VL16}, {WS}, s29 offen offset:{1024*j} sc1 lds")
    g.append(f"""
        s_add_u32 m0, s28, {(i*20480+4096 - back) & 0xffffffff}
        s_add_u32 s29, s29, 4096
        buffer_load_dwordx4 v{VL16}, {WS}, s29 offen sc1 lds""")
    return g
def wo_dma(nper):
    g = []
    for p in range(nper):
        for i in range(5):
            pre = ""
            if i == 0:
                pre = f"""
                s_add_u32 s31, s30, {p*8*32*1280}
                """
            g.append(pre + f"""
                s_add_u32 m0, s32, {p*8*5120 + 1024*i}
                s_nop 0
                buffer_load_dwordx4 v{WOA+i}, {WO}, s31 offen lds
                s_nop 0""")
    return g

def attn_loop(a, cfg, early):
    tag = "e" if early else "l"
    a(tread(0)); a(kread(0)); a(kread(1))
    a("s_mov_b64 exec, s[24:25]"); a(vread(0, 0)); a(vread(0, 1)); a("s_mov_b64 exec, -1")
    a.c("wo dma: s30 source, s32 lds dest")
    a(f"""
    s_lshr_b32 s3, s2, 5
    s_mul_i32 s30, s3, 160
    s_mul_i32 s3, s16, {32*1280}
    s_add_u32 s30, s30, s3
    s_mul_i32 s32, s16, 5120
    s_waitcnt lgkmcnt({0 if cfg.get('stamp') else 4})
    """)
    a(Tm(0, SA)); a("s_nop 15"); a("s_nop 1"); a("s_waitcnt lgkmcnt(3)")
    a(Mm(0, SA, 0)); a(Mm(0, SA, 1)); a("s_nop 10")
    C1, C2 = 18, 25
    dma = {}
    if early:
        bars = {2: "vmcnt(5)", 6: "vmcnt(0)", 14: None, C1: None, C2: None}
        prio = cfg.get("prio_e", {"0": 3, "14": 1, "17": 0, "18": 3, "23": 1, "25": 3, "29": 2, "31": 1})
    else:
        bars = {C1: "vmcnt(0)", C2: None}
        prio = cfg.get("prio_l", {"0": 2, "16": 1, "17": 0, "18": 2, "24": 0, "25": 3, "28": 2, "30": 1, "31": 0})
    prio = {int(k): v for k, v in prio.items()}
    wo = wo_dma(2 if early else 3)
    for i in range(5): dma[C1 + i] = wo[2*i:2*i+2]
    for i in range(3): dma[C2 + i] = wo[10+2*i:12+2*i]
    a(".p2align 3")
    for t in range(32):
        cur, nxt = (SA, SB) if t % 2 == 0 else (SB, SA)
        e = iter(range(32))
        def E(n):
            for _ in range(n):
                i = next(e); a(f"v_exp_f32 v{cur+i}, v{cur+i}")
        dq = list(dma.get(t, []))
        def D(n):
            for _ in range(n):
                if dq: a(dq.pop(0))
        many = len(dq) > 2
        a.c(f"step {t}")
        E(2)
        if t > 0: a(Pm(O1, t-1, 1, nxt+24))
        vm = bars.get(t)
        a(f"s_waitcnt {vm + ' ' if vm else ''}lgkmcnt(0)")
        n4 = 1
        if t in bars: a("s_barrier"); n4 += 1
        if t in prio: a(f"s_setprio {prio[t]}"); n4 += 1
        if n4 % 2: a("s_nop 0")
        if t == 14:
            for r in (VKE, VKO, VT, VV0): a(f"v_add_u32 v{r}, 81920, v{r}")
        if t == 16: a(f"v_add_u32 v{VV1}, 81920, v{VV1}")
        if t + 2 < 32: a(kread(t+2))
        if many: D(1)
        E(4)
        if t < 31: a(Tm(t+1, nxt))
        E(8)
        a(Pm(O0, t, 0, cur))
        if t < 31: a("s_mov_b64 exec, s[24:25]"); a(vread(t+1, 0)); a("s_mov_b64 exec, -1")
        if many: D(1)
        E(4)
        a(Pm(O0, t, 1, cur+8))
        if t < 31: a("s_mov_b64 exec, s[24:25]"); a(vread(t+1, 1)); a("s_mov_b64 exec, -1")
        if many: D(1)
        E(4)
        if t < 31: a(Mm(t+1, nxt, 0))
        D(1)
        E(4)
        a(Pm(O1, t, 0, cur+16))
        if t % 4 == 2 and t // 4 < 7: a(tread(t//4+1))
        D(1)
        E(4)
        if t < 31: a(Mm(t+1, nxt, 1))
        E(2)
        assert not dq

def attn_epilogue(a, cfg):
    stamp(a, cfg, 8)
    a.c("---- epilogue: exchange role-0 tile with the partner wave (other key half)")
    a(f"""
    s_mul_i32 s32, s16, 3072
    s_add_u32 s32, s32, 102400
    s_xor_b32 s33, s16, 1
    s_mul_i32 s33, s33, 3072
    s_add_u32 s33, s33, 102400
    {Pm(O1, 31, 1, SB+24)}
    v_add_u32 v3, s32, v{VL16}
    v_add_u32 v4, s33, v{VL16}
    ds_write_b128 v3, {vr(O0,4)}
    ds_write_b128 v3, {vr(O0+4,4)} offset:1024
    ds_write_b128 v3, {vr(O0+8,4)} offset:2048
    s_setprio 0
    """)
    a.c("O store addresses: kept tile s27 = 2*qp + (1^kh)")
    a(f"""
    s_lshl_b32 s27, s18, 1
    s_xor_b32 s28, s19, 1
    s_add_u32 s27, s27, s28
    s_mul_i32 s29, s27, 40960
    s_add_u32 s29, s29, {O_OFF}
    s_lshl_b32 s28, s17, 9
    s_add_u32 s28, s28, s29
    s_lshl_b32 s30, s17, 7
    s_add_u32 s29, s29, s30
    s_add_u32 s29, s29, 16384
    v_bfe_u32 v5, v1, 4, 1
    v_mul_u32_u24 v5, 20480, v5
    v_and_b32 v6, 15, v1
    v_lshl_add_u32 v13, v6, 3, v5
    v_lshl_add_u32 v5, v6, 4, v5
    v_lshrrev_b32 v6, 5, v1
    v_lshl_add_u32 v12, v6, 8, v5
    s_lshr_b32 s60, s2, 5
    s_lshl_b32 s60, s60, 12
    s_add_u32 s60, s60, s30
    s_add_u32 s60, s60, {F2_OFF}
    s_waitcnt vmcnt(0) lgkmcnt(0)
    s_barrier
    ds_read_b128 {vr(O0+8,4)}, v4 offset:2048
    ds_read_b128 {vr(O0,4)}, v4
    ds_read_b128 {vr(O0+4,4)}, v4 offset:1024
    s_waitcnt lgkmcnt(2)
    """)
    a(f"""
    v_pk_add_f32 {vr(O1+8,2)}, {vr(O1+8,2)}, {vr(O0+8,2)}
    v_pk_add_f32 {vr(O1+10,2)}, {vr(O1+10,2)}, {vr(O0+10,2)}
    v_mov_b32 v7, v{O1+8}
    v_mov_b32 v9, v{O1+8}
    s_mov_b32 s30, 0x21800000
    s_waitcnt lgkmcnt(1)
    v_permlane32_swap_b32 v7, v9
    v_pk_add_f32 {vr(O1,2)}, {vr(O1,2)}, {vr(O0,2)}
    v_pk_add_f32 {vr(O1+2,2)}, {vr(O1+2,2)}, {vr(O0+2,2)}
    s_mov_b32 s31, 0x5d800000
    s_waitcnt lgkmcnt(0)
    v_pk_add_f32 {vr(O1+4,2)}, {vr(O1+4,2)}, {vr(O0+4,2)}
    v_pk_add_f32 {vr(O1+6,2)}, {vr(O1+6,2)}, {vr(O0+6,2)}
    """)
    a.c("run-time check of the shift-free softmax: row sum in [2^-60, 2^60], finite accumulators; else redo with the true row max")
    a(f"""
    v_cmp_le_f32 s[32:33], s30, v9
    v_cmp_ge_f32 s[34:35], s31, v9
    v_pk_mul_f32 v[10:11], {vr(O1+8,2)}, 0
    """)
    for i in (10, 0, 2, 4, 6): a(f"v_pk_fma_f32 v[10:11], {vr(O1+i,2)}, 0, v[10:11]")
    a(f"""
    s_and_b64 s[32:33], s[32:33], s[34:35]
    v_cmp_o_f32 vcc, v10, v11
    v_rcp_f32 v8, v9
    s_and_b64 s[32:33], s[32:33], vcc
    s_cmp_eq_u64 s[32:33], -1
    s_cbranch_scc0 L_attn_slow
    L_attn_fin:
    """)
    for i in range(4): a(f"v_pk_mul_f32 {vr(O1+2*i,2)}, {vr(O1+2*i,2)}, v[8:9] op_sel_hi:[1,0]")
    for i in range(4): a(f"v_cvt_pk_bf16_f32 v{O0+i}, v{O1+2*i}, v{O1+2*i+1}")
    a(f"buffer_store_dwordx4 {vr(O0,4)}, v12, {WS}, s28 offen sc1")
    for i in range(4, 6): a(f"v_pk_mul_f32 {vr(O1+2*i,2)}, {vr(O1+2*i,2)}, v[8:9] op_sel_hi:[1,0]")
    for i in range(4, 6): a(f"v_cvt_pk_bf16_f32 v{O0+i}, v{O1+2*i}, v{O1+2*i+1}")
    a(f"""
    s_mov_b32 exec_hi, 0
    buffer_store_dwordx2 {vr(O0+4,2)}, v13, {WS}, s29 offen sc1
    s_mov_b32 exec_hi, -1
    """)
    stamp(a, cfg, 9)

def attn_slow(a):
    a("L_attn_slow:")
    a(f"""
    v_and_b32 v2, 31, v1
    v_lshlrev_b32 v14, 3, v2
    v_lshrrev_b32 v3, 5, v1
    v_mul_u32_u24 v3, 320, v3
    v_lshl_add_u32 v15, v2, 4, v3
    v_mov_b32 v10, 0xff800000
    s_mov_b32 s34, 0
    """)
    for i in range(16): a(f"v_mov_b32 v{O1+i}, 0")
    a(f"""
    L_slow_pass:
    s_mov_b32 s35, 0
    L_slow_tile:
    s_lshr_b32 s30, s35, 1
    s_mul_i32 s30, s30, 5120
    s_add_u32 s30, s30, s21
    s_and_b32 s3, s35, 1
    s_mul_i32 s31, s3, 1280
    s_add_u32 s31, s31, s30
    s_lshl_b32 s3, s3, 8
    s_add_u32 s30, s30, s3
    buffer_load_dwordx2 {vr(KT,2)}, v14, {WS}, s30 offen offset:2048 sc1
    buffer_load_dwordx2 {vr(KM,2)}, v{VQ}, {WS}, s30 offen sc1
    buffer_load_dwordx2 {vr(KM+2,2)}, v{VQ}, {WS}, s30 offen offset:1024 sc1
    s_mov_b64 exec, s[24:25]
    buffer_load_dwordx4 {vr(VV,4)}, v15, {WS}, s31 offen offset:2560 sc1
    buffer_load_dwordx4 {vr(VV+4,4)}, v15, {WS}, s31 offen offset:3200 sc1
    s_mov_b64 exec, -1
    s_waitcnt vmcnt(0)
    v_mfma_f32_32x32x4_2b_bf16 {vr(SA,32)}, {vr(KT,2)}, {vr(QT,2)}, 0
    s_nop 15
    s_nop 3
    v_mfma_f32_32x32x16_bf16 {vr(SA+16,16)}, {vr(KM,4)}, {vr(QM1,4)}, {vr(SA+16,16)}
    s_nop 15
    s_cmp_eq_u32 s34, 0
    s_cbranch_scc0 L_slow_pv
    """)
    for i in range(8): a(f"v_max3_f32 v10, v10, v{SA+16+2*i}, v{SA+17+2*i}")
    a("s_branch L_slow_next")
    a("L_slow_pv:")
    for i in range(16): a(f"v_sub_f32 v{SA+16+i}, v{SA+16+i}, v10")
    for i in range(16): a(f"v_exp_f32 v{SA+16+i}, v{SA+16+i}")
    a(f"""
    s_nop 3
    v_smfmac_f32_32x32x32_bf16 {vr(O1,16)}, {vr(VV,4)}, {vr(SA+16,8)}, v{IDX}
    v_smfmac_f32_32x32x32_bf16 {vr(O1,16)}, {vr(VV+4,4)}, {vr(SA+24,8)}, v{IDX}
    s_nop 15
    L_slow_next:
    s_add_u32 s35, s35, 1
    s_cmp_lt_u32 s35, 64
    s_cbranch_scc1 L_slow_tile
    s_cmp_eq_u32 s34, 0
    s_cbranch_scc0 L_slow_done
    v_mov_b32 v11, v10
    s_nop 1
    v_permlane32_swap_b32 v10, v11
    s_nop 1
    v_max_f32 v10, v10, v11
    s_mov_b32 s34, 1
    s_branch L_slow_pass
    L_slow_done:
    v_mov_b32 v7, v{O1+8}
    v_mov_b32 v9, v{O1+8}
    s_nop 1
    v_permlane32_swap_b32 v7, v9
    s_nop 1
    v_rcp_f32 v8, v9
    s_branch L_attn_fin
    """)

def phase3(a, cfg):
    OF, AC, WF = 16, 56, 76
    VW, VWT, VL, VL8, VP, VPB, VSW, VSR, VO = 14, 15, 0, 4, 6, 7, 8, 9, 2
    a.c("---- output projection: s17=tg s18=cg s19=tt s26=kh s21=tile16")
    a(f"""
    s_lshr_b32 s18, s2, 5
    s_and_b32 s19, s16, 3
    s_lshr_b32 s26, s16, 2
    s_xor_b32 s26, s26, s18
    s_and_b32 s26, s26, 1
    """ if cfg.get("khswap", 1) else """
    s_lshr_b32 s18, s2, 5
    s_and_b32 s19, s16, 3
    s_lshr_b32 s26, s16, 2
    """)
    a(f"""
    s_mul_i32 s20, s26, 51200
    v_lshrrev_b32 v2, 5, v1
    v_bfe_u32 v3, v1, 4, 1
    v_bfe_u32 v4, v1, 2, 2
    v_and_b32 v5, 3, v1
    v_lshl_add_u32 v5, v5, 3, s20
    v_mul_u32_u24 v6, 20, v2
    v_lshl_add_u32 v6, v3, 2, v6
    v_add_u32 v6, v6, v4
    v_mul_u32_u24 v6, 160, v6
    v_add_u32 v{VW}, v6, v5
    v_lshrrev_b32 v6, 4, v1
    v_mul_u32_u24 v6, 20, v6
    v_add3_u32 v6, v6, 16, v4
    v_mul_u32_u24 v6, 160, v6
    v_add_u32 v{VWT}, v6, v5
    """)
    def reads(ks):
        r = []
        for t in range(5):
            for u in range(2):
                if ks < 8: ad, off = VW, (40*ks + 8*u)*160 + 32*t
                else: ad, off = VWT, (160*(ks-8) + 80*u)*160 + 32*t
                r.append(f"ds_read_b64_tr_b16 {vr(WF+20*(ks%9)+4*t+2*u,2)}, v{ad} offset:{off}")
        return r
    NPB = cfg.get("npb", 5)
    assert NPB <= 6
    for ks in range(NPB):
        for r in reads(ks): a(r)
    a(f"""
    s_lshl_b32 s21, s17, 2
    s_add_u32 s21, s21, s19
    s_mul_i32 s22, s21, 20480
    s_add_u32 s22, s22, {O_OFF}
    s_lshl_b32 s3, s26, 11
    s_add_u32 s23, s22, s3
    s_add_u32 s23, s23, 16384
    s_and_b32 s33, s2, 7
    s_lshl_b32 s33, s33, 12
    s_add_u32 s33, s33, {F2_OFF}
    s_lshl_b32 s3, s26, 13
    s_add_u32 s22, s22, s3
    s_add_u32 s24, s22, 4096
    v_lshrrev_b32 v{VP}, 1, v1
    v_lshlrev_b32 v{VP}, 7, v{VP}
    s_waitcnt vmcnt(0)
    """)
    stamp(a, cfg, 10)
    a.c("publish this workgroup's O tiles, then wait for the 32 producers of this workgroup's input")
    a("""
    s_barrier
    s_cmp_eq_u32 s16, 0
    s_cbranch_scc0 L_p3_nofl
    """)
    raise_flag(a, "s60")
    a(f"""
    L_p3_nofl:
    v_lshlrev_b32 v{VL}, 4, v1
    v_lshlrev_b32 v{VL8}, 3, v1
    s_cmp_eq_u32 s16, 4
    s_cbranch_scc1 L_p3_poll
    """)
    def oloads():
        stamp(a, cfg, 11)
        for ks in range(8):
            a(f"buffer_load_dwordx4 {vr(OF+4*ks,4)}, v{VL}, {WS}, s{22 if ks < 4 else 24} offen offset:{1024*(ks&3)} sc1")
        for q in range(4):
            a(f"buffer_load_dwordx2 {vr(OF+32+2*q,2)}, v{VL8}, {WS}, s23 offen offset:{512*q} sc1")
    for ks in range(NPB, 9):
        for r in reads(ks): a(r)
    a("s_barrier")
    oloads()
    a("s_branch L_p3_go")
    a("L_p3_poll:")
    poll(a, "L_poll2", VP, WS, "s33")
    a("s_barrier")
    for ks in range(NPB, 9):
        for r in reads(ks): a(r)
    oloads()
    a("L_p3_go:")
    a.c("partial buffer, bf16 staging write / read addresses and out offsets")
    a(f"""
    s_mul_i32 s30, s19, 5120
    s_add_u32 s30, s30, 143360
    s_mul_i32 s31, s19, 3584
    s_add_u32 s31, s31, 102400
    v_add_u32 v{VPB}, s30, v{VL}
    v_and_b32 v2, 15, v1
    v_lshrrev_b32 v3, 4, v1
    v_mul_u32_u24 v2, 176, v2
    v_lshl_add_u32 v2, v3, 3, v2
    v_add_u32 v{VSW}, s31, v2
    s_mul_i32 s27, s21, {16*1280}
    s_mul_i32 s3, s18, 160
    s_add_u32 s27, s27, s3
    """)
    VOS = [2, 3, 5]
    for i in range(3):
        a(f"""
        v_add_u32 v12, {64*i}, v1
        v_mul_u32_u24 v13, 6554, v12
        v_lshrrev_b32 v13, 16, v13
        v_add_u32 v6, v12, v13
        v_lshl_add_u32 v{VSR+i}, v6, 4, s31
        v_mul_u32_u24 v6, {1280-160}, v13
        v_lshl_add_u32 v{VOS[i]}, v12, 4, v6
        """)
    def mf(ks):
        vm = 11 - ks if ks < 8 else (2 if ks == 8 else 0)
        a(f"s_waitcnt vmcnt({vm})" + (" lgkmcnt(0)" if ks == 0 else ""))
        for t in range(5):
            c = "0" if ks == 0 else vr(AC+4*t, 4)
            a(f"v_mfma_f32_16x16x32_bf16 {vr(AC+4*t,4)}, {vr(WF+20*(ks%9)+4*t,4)}, {vr(OF+4*ks,4)}, {c}")
        if ks == 0:
            for r in reads(9): a(r)
    KB = cfg.get("kb", 8)
    for ks in range(KB): mf(ks)
    a("""
    s_waitcnt lgkmcnt(0)
    s_cmp_lt_u32 s16, 4
    s_cbranch_scc0 L_out_fin
    """)
    for ks in range(KB, 10): mf(ks)
    stamp(a, cfg, 12)
    a("s_nop 3")
    for t in range(5):
        a(f"ds_write_b128 v{VPB}, {vr(AC+4*t,4)} offset:{1024*t}")
        if t < 4: a("s_nop 0")
    a("""
    s_waitcnt lgkmcnt(0)
    s_barrier
    s_branch L_fin
    L_out_fin:
    s_barrier
    """)
    PB = WF + 20
    for t in range(5): a(f"ds_read_b128 {vr(PB+4*t,4)}, v{VPB} offset:{1024*t}")
    for ks in range(KB, 10): mf(ks)
    stamp(a, cfg, 12)
    a("s_waitcnt lgkmcnt(0)")
    a("s_nop 2")
    for t in range(5):
        a(f"v_pk_add_f32 {vr(AC+4*t,2)}, {vr(AC+4*t,2)}, {vr(PB+4*t,2)}")
        a(f"v_pk_add_f32 {vr(AC+4*t+2,2)}, {vr(AC+4*t+2,2)}, {vr(PB+4*t+2,2)}")
        a(f"v_cvt_pk_bf16_f32 v{OF+2*t}, v{AC+4*t}, v{AC+4*t+1}")
        a(f"v_cvt_pk_bf16_f32 v{OF+2*t+1}, v{AC+4*t+2}, v{AC+4*t+3}")
        a(f"ds_write_b64 v{VSW}, {vr(OF+2*t,2)} offset:{32*t}")
    a("s_waitcnt lgkmcnt(0)")
    for i in range(3): a(f"ds_read_b128 {vr(PB+4*i,4)}, v{VSR+i}")
    OFL = cfg.get("outfl", "")
    for i in range(3):
        a(f"s_waitcnt lgkmcnt({2-i})")
        if i == 2: a("s_mov_b32 exec_hi, 0")
        a(f"buffer_store_dwordx4 {vr(PB+4*i,4)}, v{VOS[i]}, {OUT}, s27 offen {OFL}")
    a("L_fin:")

def gen(cfg):
    a = Asm()
    a(f".globl {NAME}")
    a(".p2align 12")
    a(f".fill {cfg.get('pad', 3328)//4}, 4, 0xbf800000")
    a(".p2align 8")
    a(f".type {NAME},@function")
    a(f"{NAME}:")
    a("""
    s_cmp_ge_u32 s2, 256
    s_cbranch_scc1 L_end
    """)
    stamp(a, cfg, 0, real=True); stamp(a, cfg, 1)
    a("""
    s_load_dwordx4 s[4:7], s[0:1], 0
    s_load_dwordx8 s[36:43], s[0:1], 16
    v_lshrrev_b32 v2, 6, v0
    v_and_b32 v1, 63, v0
    v_readfirstlane_b32 s16, v2
    """)
    if cfg.get("codepf", 1):
        a.c("wave 0 touches an 8 KB share of the kernel's own code so that instruction fetch hits L2")
        a(f"""
        s_getpc_b64 s[26:27]
        L_pc:
        s_bfe_u32 s3, s2, 0x30003
        s_lshl_b32 s3, s3, 13
        s_cmp_eq_u32 s16, 0
        s_cbranch_scc0 L_nopf
        v_lshl_add_u32 v3, v1, 7, s3
        v_min_u32 v3, L_code_end - L_pc - 4, v3
        global_load_dword v14, v3, s[26:27]
        L_nopf:
        """)
    a("""
    s_cmp_lt_u32 s2, 240
    s_cbranch_scc0 L_idle
    """)
    a.c("tile: xcd j = id&7 ; u = (j>>2)*30 + (id>>3) ; cb(s17) = u>>2 ; tb(s18) = (j&3)*4 + (u&3)")
    a("""
    s_bfe_u32 s3, s2, 0x10002
    s_mul_i32 s3, s3, 30
    s_lshr_b32 s17, s2, 3
    s_add_u32 s3, s3, s17
    s_lshr_b32 s17, s3, 2
    s_and_b32 s3, s3, 3
    s_and_b32 s18, s2, 3
    s_lshl_b32 s18, s18, 2
    s_add_u32 s18, s18, s3
    s_cmp_lt_u32 s16, 4
    s_cbranch_scc1 L_qkv_cons
    """)
    phase1_loader(a, cfg)
    a("L_idle:")
    a.c("workgroups without a GEMM tile: clear the hand-off flags, raise 'ready' in d_debug, pull second-stage x rows into L2")
    a(f"""
    s_sub_u32 s3, s2, 240
    s_lshl_b32 s19, s3, 2
    s_mul_i32 s17, s3, {96*128}
    s_add_u32 s17, s17, {FB_OFF}
    s_and_b32 s3, s2, 3
    s_lshl_b32 s3, s3, 1
    s_bfe_u32 s18, s2, 0x10003
    s_add_u32 s3, s3, s18
    s_lshl_b32 s3, s3, 1
    s_and_b32 s18, s16, 1
    s_add_u32 s3, s3, s18
    s_mul_i32 s3, s3, {128*1280}
    s_lshr_b32 s18, s16, 1
    s_mul_i32 s18, s18, {16*1280}
    s_add_u32 s3, s3, s18
    s_add_u32 s20, s3, {64*1280}
    s_add_u32 s21, s20, 8192
    s_add_u32 s22, s20, 16384
    v_lshlrev_b32 v2, 7, v1
    v_min_u32 v3, {31*128}, v2
    v_mov_b32 v4, 0
    v_and_b32 v10, 15, v1
    v_lshlrev_b32 v10, 2, v10
    v_mov_b32 v11, {GO_ADDR}
    ds_write_b32 v11, v4
    s_waitcnt lgkmcnt(0)
    """)
    common_srds(a)
    srd(a, 8, 4, 2048 * 1280)
    a(f"""
    s_cmp_eq_u32 s16, 0
    s_cbranch_scc0 L_idle_nost
    s_add_u32 s18, s17, 8192
    buffer_store_dword v4, v2, {WS}, s17 offen sc1
    buffer_store_dword v4, v3, {WS}, s18 offen sc1
    v_mov_b32 v6, 1
    s_waitcnt vmcnt(0)
    s_mov_b64 exec, 1
    buffer_store_dword v6, v4, {DBG}, s19 offen sc1
    s_mov_b64 exec, -1
    L_idle_nost:
    """)
    if cfg.get("x2pf", 1):
        a(f"""
        buffer_load_dword v140, v2, s[8:11], s20 offen
        buffer_load_dword v141, v2, s[8:11], s21 offen
        buffer_load_dword v142, v3, s[8:11], s22 offen
        """)
    a("""
    s_cmp_eq_u32 s16, 0
    s_cbranch_scc0 L_rdy_i_ok
    """)
    poll(a, "L_rdy_i", 10, DBG, "0")
    a("""
    s_waitcnt vmcnt(0)
    s_barrier
    s_mov_b32 s63, 0
    s_mov_b32 s62, 0
    v_mov_b32 v12, 0
    v_mov_b32 v13, 0
    s_mov_b32 s60, 0
    s_cmp_lt_u32 s16, 4
    s_cbranch_scc1 L_late_setup
    """)
    attn_setup(a, cfg, early=True)
    a("s_branch L_early")
    a("L_qkv_cons:")
    late_qk, late_v = phase1_consumer(a, cfg)
    a("L_late_setup:")
    attn_setup(a, cfg, early=False)
    a(f"v_mov_b32 v11, {GO_ADDR + 81920}")
    a("v_mov_b32 v7, 0")
    a("s_barrier")
    a("ds_write_b32 v11, v7")
    for g in kv_dma(3, back=81920): a(g)
    a("""
    s_cmp_eq_u32 s63, 1
    s_cbranch_scc0 L_late_nqk
    """)
    for st in late_qk: a(st)
    a("""
    s_branch L_late_st
    L_late_nqk:
    s_cmp_eq_u32 s63, 2
    s_cbranch_scc0 L_late_st
    """)
    for st in late_v: a(st)
    a("""
    L_late_st:
    s_barrier
    s_waitcnt vmcnt(0) lgkmcnt(0)
    s_cmp_eq_u32 s63, 0
    s_cbranch_scc1 L_late_nofl
    """)
    raise_flag(a, "s60")
    a("""
    L_late_nofl:
    s_barrier
    """)
    wait_stage(a, cfg, "l", 0)
    stamp(a, cfg, 6)
    for g in kv_dma(0): a(g)
    qloads(a)
    for g in kv_dma(1): a(g)
    a("s_waitcnt vmcnt(10) lgkmcnt(0)")
    stamp(a, cfg, 15)
    a("s_barrier")
    for g in kv_dma(2) + kv_dma(3): a(g)
    a("s_waitcnt vmcnt(15)")
    stamp(a, cfg, 7)
    attn_loop(a, cfg, early=False)
    a("s_branch L_epi")
    a("L_early:")
    wait_stage(a, cfg, "e", cfg.get("epoll", 5))
    stamp(a, cfg, 6)
    for g in kv_dma(0): a(g)
    qloads(a)
    for g in kv_dma(1) + kv_dma(2): a(g)
    a("s_waitcnt vmcnt(10) lgkmcnt(0)")
    stamp(a, cfg, 5)
    a("s_barrier")
    stamp(a, cfg, 7)
    attn_loop(a, cfg, early=True)
    a("L_epi:")
    attn_epilogue(a, cfg)
    phase3(a, cfg)
    if cfg.get("stamp"): a("s_waitcnt vmcnt(0)")
    stamp(a, cfg, 13); stamp(a, cfg, 14, real=True)
    if cfg.get("xcc"):
        a("""
        s_waitcnt lgkmcnt(0)
        s_getreg_b32 s90, hwreg(HW_REG_XCC_ID, 0, 4)
        s_sub_u32 s90, s90, s2
        s_and_b32 s90, s90, 7
        s_mul_i32 s90, s90, 200
        """)
    stamp_flush(a, cfg, 0, 16, 8, wsptr=42)
    a("L_end:")
    a("s_endpgm")
    a("L_code_end:")
    attn_slow(a)
    head = open("standalone__softmax_full_mha__prompt.s.ref").read().split("; Override launch")[0]
    descs = descriptor(NAME, 256)
    if cfg.get("probe"):
        import k_probe
        head += f"; @launch kernel={NAME} grid=(256,1,1) block=(512,1,1) lds=163840\n; @launch kernel=probe_kernel grid=(1,1,1) block=(64,1,1) lds=0\n"
        descs += k_probe.gen_probe(a, cfg)
    elif cfg.get("list"):
        head += f"; @launch kernel={NAME} grid=(256,1,1) block=(512,1,1) lds=163840\n"
    else:
        head += "; @launch grid=(256,1,1) block=(512,1,1) lds=163840\n"
    return head + '.amdgcn_target "amdgcn-amd-amdhsa--gfx950"\n.text\n' + a.text() + '.section .rodata,"a"\n' + descs

if __name__ == "__main__":
    cfg = json.loads(sys.argv[2]) if len(sys.argv) > 2 else {}
    open(sys.argv[1], "w").write(gen(cfg))
```

```python
from asmlib import *
def reduce(a, region, col, n, op, dst, tag):
    srd(a, 8, 4, 1 << 20, add=STAMP_OFF + region * (1 << 20))
    a(f"""
    v_lshlrev_b32 v1, 6, v0
    v_add_u32 v1, {4*col}, v1
    buffer_load_dword v2, v1, s[8:11], 0 offen
    s_mov_b32 s20, 4096
    L_pr_{tag}:
    buffer_load_dword v3, v1, s[8:11], s20 offen
    s_waitcnt vmcnt(0)
    v_{op}_u32 v2, v2, v3
    s_add_u32 s20, s20, 4096
    s_cmp_lt_u32 s20, {n*64}
    s_cbranch_scc1 L_pr_{tag}
    s_nop 1
    v_readlane_b32 s{dst}, v2, 0
    """)
    for l in range(1, 64):
        a(f"v_readlane_b32 s21, v2, {l}")
        a("s_nop 0")
        a(f"s_{op}_u32 s{dst}, s{dst}, s21")
def gen_probe(a, cfg):
    kernel_begin(a, "probe_kernel")
    a("""
    s_cmp_ge_u32 s2, 1
    s_cbranch_scc1 L_probe_end
    s_load_dwordx2 s[4:5], s[0:1], 40
    s_waitcnt lgkmcnt(0)
    """)
    r0, n0 = cfg.get("p0", [0, 1920])
    reduce(a, r0, 0, n0, "min", 30, "a")
    region, col, n, op, mult = cfg["probe"]
    reduce(a, region, col, n, op, 31, "b")
    if cfg.get("prange"):
        reduce(a, region, col, n, "min", 29, "c")
        a("s_sub_u32 s31, s31, s29")
        a("s_add_u32 s31, s31, s30")
    a(f"""
    s_sub_u32 s31, s31, s30
    s_min_u32 s31, s31, 20000
    s_mul_i32 s31, s31, {mult}
    s_add_u32 s31, s31, 10000
    s_mov_b32 s34, 0
    L_probe_spin:
    s_memrealtime s[32:33]
    s_waitcnt lgkmcnt(0)
    s_sub_u32 s32, s32, s30
    s_add_u32 s34, s34, 1
    s_cmp_gt_u32 s34, 100000
    s_cbranch_scc1 L_probe_end
    s_cmp_lt_u32 s32, s31
    s_cbranch_scc1 L_probe_spin
    L_probe_end:
    s_endpgm
    """)
    return descriptor("probe_kernel", 8)

def gen_lat(a, cfg):
    slot, nbytes, off0 = cfg["lat"]
    kernel_begin(a, "lat_kernel")
    a(f"""
    s_cmp_ge_u32 s2, 1
    s_cbranch_scc1 L_lat_end
    s_load_dwordx2 s[4:5], s[0:1], {slot*8}
    s_load_dwordx2 s[6:7], s[0:1], 40
    s_waitcnt lgkmcnt(0)
    """)
    srd(a, 8, 4, nbytes, add=off0)
    srd(a, 12, 6, 1 << 20, add=STAMP_OFF + (1 << 20))
    a(f"""
    v_mov_b32 v2, 0
    s_mov_b32 s20, 0
    s_mov_b32 s21, 0
    buffer_load_dword v3, v2, s[8:11], s20 offen sc1
    s_waitcnt vmcnt(0)
    s_memrealtime s[22:23]
    s_waitcnt lgkmcnt(0)
    L_lat:
    s_add_u32 s20, s20, {nbytes // 33 // 128 * 128}
    buffer_load_dword v3, v2, s[8:11], s20 offen sc1
    s_waitcnt vmcnt(0)
    s_add_u32 s21, s21, 1
    s_cmp_lt_u32 s21, 32
    s_cbranch_scc1 L_lat
    s_memrealtime s[24:25]
    s_waitcnt lgkmcnt(0)
    s_sub_u32 s24, s24, s22
    v_lshlrev_b32 v1, 6, v0
    v_mov_b32 v4, s24
    s_mov_b32 s20, 4096
    buffer_store_dword v2, v1, s[12:15], 0 offen
    buffer_store_dword v4, v1, s[12:15], s20 offen
    s_waitcnt vmcnt(0)
    L_lat_end:
    s_endpgm
    """)
    return descriptor("lat_kernel", 8)
```

```python
import sys, json, struct, re
from asmlib import *
NAME = "standalone__softmax_full_mha__prompt_kernel"
HQ = 81920
HKV = 163840
KV_OFF = 32 * HQ
O_OFF = KV_OFF + 32 * HKV
FB_OFF = O_OFF + 128 * 20480
FA_OFF = FB_OFF + 1024 * 128
F2_OFF = FA_OFF + 256 * 128
F3_OFF = F2_OFF + 256 * 128
WS_BYTES = F3_OFF + 256 * 128
SLOT = [0, 24576, 49152, 81920, 106496, 131072, 0, 24576, 49152, 139264]
CSCALE = struct.unpack("<I", struct.pack("<f", (20 ** -0.5) * 1.4426950408889634))[0]
WS, WO, OUT, DBG = "s[44:47]", "s[48:51]", "s[52:55]", "s[56:59]"
SPIN_MAX = 1 << 18

def spin_tail(a, label, mult=1):
    a(f"""
    s_cbranch_scc1 {label}_ok
    s_add_u32 s35, s35, 1
    s_cmp_lt_u32 s35, {SPIN_MAX*mult}
    s_cbranch_scc1 {label}
    {label}_ok:
    """)

def poll(a, label, vaddr, rsrc, soff, sleep=0):
    a(f"""
    s_mov_b32 s35, 0
    {label}:
    buffer_load_dword v5, v{vaddr}, {rsrc}, {soff} offen sc1
    s_waitcnt vmcnt(0)
    v_cmp_ne_u32 vcc, 0, v5
    s_nop 0
    s_cmp_eq_u64 vcc, -1
    """)
    spin_tail(a, label)

def paced_poll(a, cfg, label, vaddrs, soff):
    pace = cfg.get("pace" + label[-1], -1)
    n = len(vaddrs)
    dst = [5, 3][:n]
    if pace < 0:
        a(f"s_mov_b32 s35, 0\n{label}:")
        if pace < -1: a(f"s_sleep {-pace}")
        for d, v in zip(dst, vaddrs): a(f"buffer_load_dword v{d}, v{v}, {WS}, {soff} offen sc1")
        a("s_waitcnt vmcnt(0)")
    else:
        for d in dst: a(f"v_mov_b32 v{d}, 0")
        a(f"s_mov_b32 s35, 0\n{label}:")
        for d, v in zip(dst, vaddrs): a(f"buffer_load_dword v{d}, v{v}, {WS}, {soff} offen sc1")
        if pace: a(f"s_sleep {pace}")
        a(f"s_waitcnt vmcnt({n * cfg.get('pdepth', 4)})")
    if n == 2: a("v_and_b32 v2, v5, v3"); a("v_cmp_ne_u32 vcc, 0, v2")
    else: a("v_cmp_ne_u32 vcc, 0, v5")
    a("s_nop 0")
    a("s_cmp_eq_u64 vcc, -1")
    spin_tail(a, label, mult=4)

def raise_flag(a, soff):
    a(f"""
    v_mov_b32 v2, 0
    v_mov_b32 v3, 1
    s_mov_b64 exec, 1
    buffer_store_dword v3, v2, {WS}, {soff} offen sc1
    s_mov_b64 exec, -1
    """)

def common_srds(a):
    srd(a, 44, 42, WS_BYTES)
    srd(a, 48, 36, 640 * 1280)
    srd(a, 52, 38, 2048 * 1280)
    srd(a, 56, 40, 256)

GO_ADDR = 81920 - 16
def phase1_loader(a, cfg):
    a.c("---------------- loader waves (become the early attention waves)")
    rot = cfg.get("rot", 2)
    NX0 = cfg.get("nx0", 7)
    if rot == 2:
        a("""
        s_add_u32 s100, s3, s17
        s_and_b32 s100, s100, 1
        s_mul_i32 s100, s100, 5
        """)
    elif rot == 3:
        a("""
        s_add_u32 s100, s3, s17
        s_mul_i32 s101, s100, 43
        s_lshr_b32 s101, s101, 7
        s_mul_i32 s101, s101, 3
        s_sub_u32 s100, s100, s101
        s_mul_i32 s100, s100, 7
        s_lshr_b32 s100, s100, 1
        """)
    elif rot == 4:
        a("""
        s_add_u32 s100, s3, s17
        s_and_b32 s100, s100, 3
        s_mul_i32 s100, s100, 5
        s_lshr_b32 s100, s100, 1
        """)
    else:
        a("s_mov_b32 s100, 0")
    a(f"""
    s_and_b32 s19, s16, 3
    s_lshl_b32 s96, s19, 4
    s_lshr_b32 s101, s19, 1
    s_lshl_b32 s101, s101, 5
    s_and_b32 s34, s19, 1
    s_lshl_b32 s34, s34, 2
    s_add_u32 s101, s101, s34
    s_cmp_lt_u32 s17, 10
    s_cselect_b32 s96, s96, s101
    s_cselect_b32 s101, 4, 8
    s_mul_i32 s101, s101, 1280
    s_lshl_b32 s34, s18, 7
    s_add_u32 s96, s96, s34
    s_mul_i32 s96, s96, 1280
    v_lshrrev_b32 v2, 5, v1
    v_mul_u32_u24 v2, s101, v2
    v_bfe_u32 v3, v1, 3, 2
    v_mul_u32_u24 v3, 1280, v3
    v_lshrrev_b32 v5, 4, v1
    v_and_b32 v4, 7, v1
    v_xor_b32 v4, v4, v5
    v_lshlrev_b32 v4, 4, v4
    v_add3_u32 v8, v2, v3, v4
    v_xor_b32 v4, 64, v4
    v_add3_u32 v9, v2, v3, v4
    s_lshl_b32 s101, s101, 1
    s_sub_u32 s101, s101, 1024
    v_add_u32 v9, s101, v9
    v_and_b32 v3, 15, v1
    v_lshlrev_b32 v6, 1, v5
    v_xor_b32 v3, v3, v6
    v_mul_u32_u24 v2, 3840, v5
    v_lshl_add_u32 v16, v3, 4, v2
    v_add_u32 v17, {4*3840-1024}, v16
    v_xor_b32 v3, 8, v3
    v_lshl_add_u32 v18, v3, 4, v2
    v_add_u32 v19, {3*(4*3840-1024)}, v18
    v_add_u32 v18, {2*(4*3840-1024)}, v18
    s_mul_i32 s97, s19, {16*3840}
    s_lshl_b32 s3, s17, 8
    s_add_u32 s97, s97, s3
    s_lshl_b32 s98, s19, 11
    s_lshl_b32 s99, s19, 12
    s_mov_b32 s10, {2048*1280}
    s_mov_b32 s11, 0x00020000
    s_mov_b32 s14, {640*3840}
    s_mov_b32 s15, 0x00020000
    """)
    stamp(a, cfg, 8, grp="st")
    a("s_waitcnt lgkmcnt(0)")
    stamp(a, cfg, 9, grp="st")
    a(f"""
    s_mov_b32 s8, s4
    s_mov_b32 s9, s5
    s_mov_b32 s12, s6
    s_mov_b32 s13, s7
    """)
    XF1, XF2, WF_ = cfg.get("xfl", ""), cfg.get("x2fl", ""), cfg.get("wfl", "")
    def adv():
        a("""
        s_add_u32 s100, s100, 1
        s_cmp_eq_u32 s100, 10
        s_cselect_b32 s100, 0, s100
        """)
    def issue_x(lds, XF):
        a(f"""
        s_lshl_b32 s101, s100, 7
        s_add_u32 m0, s98, {lds}
        s_add_u32 s101, s101, s96
        """)
        for j in range(2):
            a(f"buffer_load_dwordx4 v{8+j}, s[8:11], s101 offen offset:{1024*j} {XF} lds")
    def issue(c):
        slot = SLOT[c]
        issue_x(slot, XF1)
        a(f"""
        s_mul_i32 s34, s100, {64*3840}
        s_add_u32 m0, s99, {slot+8192}
        s_add_u32 s34, s34, s97
        """)
        for j in range(4):
            a(f"buffer_load_dwordx4 v{16+j}, s[12:15], s34 offen offset:{1024*j} {WF_} lds")
        adv()
    def issue2(c):
        if c == 0: a(f"s_add_u32 s96, s96, {64*1280}")
        issue_x(81920 + 8192*c, XF2)
        if c < 9: adv()
    NPRE = cfg.get("npre", 3)
    groups = [[("c", c)] for c in range(10)]
    q = list(range(NX0))
    while q: groups.append([("x", i) for i in q[:3]]); q = q[3:]
    while len(groups) > 10 + NPRE:
        g = groups.pop(); groups[-1] = groups[-1] + g
    pend = []
    def put(g):
        for kind, i in g:
            if kind == "c": issue(i); pend.append(((kind, i), 6))
            else: issue2(i); pend.append(((kind, i), 2))
    def wait_for(item):
        k = [p[0] for p in pend].index(item)
        del pend[:k+1]
        a(f"s_waitcnt vmcnt({sum(p[1] for p in pend)})")
    for i in range(NPRE):
        put(groups.pop(0))
        if i == 0: stamp(a, cfg, 10, grp="st")
    common_srds(a)
    a(f"""
    v_and_b32 v10, 15, v1
    v_lshlrev_b32 v10, 2, v10
    s_lshl_b32 s60, s17, 4
    s_add_u32 s60, s60, s18
    s_lshl_b32 s60, s60, 7
    s_add_u32 s60, s60, {FA_OFF}
    """)
    attn_setup(a, cfg, early=True)
    for c in range(10):
        wait_for(("c", c))
        if c == 0: stamp(a, cfg, 2)
        if c in (3, 6): stamp(a, cfg, {3: 11, 6: 12}[c], grp="st")
        a("s_barrier")
        if groups: put(groups.pop(0))
    a(f"buffer_load_dword v5, v10, {DBG}, 0 offen sc1"); pend.append((("r", 0), 1))
    stamp(a, cfg, 3)
    wait_for(("x", 2))
    a("s_barrier")
    a(f"""
    v_mov_b32 v11, {GO_ADDR}
    v_mov_b32 v7, 0
    ds_write_b32 v11, v7
    s_waitcnt vmcnt(0)
    v_cmp_ne_u32 vcc, 0, v5
    s_waitcnt lgkmcnt(0)
    s_cmp_eq_u64 vcc, -1
    s_cbranch_scc1 L_rdy_l_ok
    """)
    poll(a, "L_rdy_l", 10, DBG, "0")
    if NX0 > 3: a("s_barrier")
    if not cfg.get("flfirst", 1):
        for q in range(NX0, 10): issue2(q)
    a("""
    s_barrier
    s_cmp_eq_u32 s16, 4
    s_cbranch_scc0 L_ld_nofl
    """)
    a(f"""
    s_mov_b64 exec, 1
    buffer_store_dword v{VONE}, v{VZ}, {WS}, s60 offen sc1
    s_mov_b64 exec, -1
    L_ld_nofl:
    """)
    stamp(a, cfg, 4)
    if cfg.get("flfirst", 1):
        for q in range(NX0, 10): issue2(q)
    NX1 = cfg.get("nx1", 10)
    if NX1 < 10:
        a(f"s_waitcnt vmcnt({2*(10-NX1)})")
        a("s_barrier")
    a("""
    s_waitcnt vmcnt(0)
    s_barrier
    s_branch L_early
    """)

def phase1_consumer(a, cfg):
    a.c("---------------- consumer waves (become the late attention waves)")
    XA, WA, ST, XF, AC, WR = 8, 10, 12, 16, 48, 96
    XB, WB = 4, 6
    SFLAG = cfg.get("sflag", 6)
    NX0 = cfg.get("nx0", 7)
    XBAR = {3, NX0, cfg.get("nx1", 10)}
    assert (NX0 == 3 or SFLAG >= 5) and SFLAG <= 2 * NX0 - 1
    a(f"""
    v_and_b32 v2, 15, v1
    v_lshrrev_b32 v3, 4, v1
    v_bfe_u32 v4, v1, 1, 3
    v_xor_b32 v4, v4, v3
    v_lshlrev_b32 v4, 4, v4
    v_lshl_add_u32 v{XA}, v2, 7, v4
    v_xor_b32 v{XA+1}, 64, v{XA}
    v_bfe_u32 v4, v1, 2, 2
    v_lshl_add_u32 v5, v3, 3, v4
    v_and_b32 v6, 1, v3
    v_lshl_or_b32 v4, v6, 2, v4
    s_lshl_b32 s3, s16, 1
    v_xor_b32 v4, s3, v4
    v_lshlrev_b32 v4, 5, v4
    v_lshl_add_u32 v4, v5, 8, v4
    v_and_b32 v5, 3, v1
    v_lshl_add_u32 v4, v5, 3, v4
    v_add_u32 v{WA}, 8192, v4
    v_xor_b32 v{WA+1}, 32, v{WA}
    s_lshl_b32 s60, s17, 2
    s_add_u32 s60, s60, s16
    s_lshl_b32 s60, s60, 4
    s_add_u32 s60, s60, s18
    s_lshl_b32 s60, s60, 7
    s_add_u32 s60, s60, {FB_OFF}
    s_mul_i32 s21, s18, 5120
    s_waitcnt lgkmcnt(0)
    """)
    common_srds(a)
    def xread(stage, ks, tt):
        c, s = divmod(ks, 2)
        if stage == 0: ad, off = (XA, SLOT[c]) if SLOT[c] < 81920 else (XB, SLOT[c] - 81920)
        else: ad, off = (XB, c * 8192) if c < 5 else (XA, (c - 5) * 8192)
        return f"ds_read_b128 {vr(XF+16*(ks&1)+4*tt,4)}, v{ad+s} offset:{off+2048*tt}"
    def wread(ks, ct, u):
        c, s = divmod(ks, 2)
        ad, off = (WA, SLOT[c]) if SLOT[c] < 81920 else (WB, SLOT[c] - 81920)
        if c == 9: off -= 8192
        return f"ds_read_b64_tr_b16 {vr(WR+8*ks+4*ct+2*u,2)}, v{ad+ct} offset:{off+(32*s+4*u)*256}"
    def reads(stage, ks):
        if stage == 0:
            return [wread(ks,0,0), wread(ks,0,1), xread(0,ks,0), wread(ks,1,0), wread(ks,1,1), xread(0,ks,1), xread(0,ks,2), xread(0,ks,3)]
        return [xread(1,ks,tt) for tt in range(4)]
    def gemm(isv, epi):
        t = Asm(); attn_setup(t, cfg, early=False)
        su = [l.strip() for l in t.lines if not l.strip().startswith(";")] if cfg.get("suin", 1) else []
        def filler(ks, n):
            while n and su:
                m = re.match(r"v_\w+ v\[?(\d+)", su[0])
                if m and int(m.group(1)) >= WR + 8 * ks: return
                a(su.pop(0)); n -= 1
        for i in range(2):
            a(f"v_add_u32 v{XB+i}, 81920, v{XA+i}")
            a(f"v_add_u32 v{WB+i}, 81920, v{WA+i}")
        a("s_barrier")
        stamp(a, cfg, 2)
        a(".p2align 3")
        for r in reads(0, 0): a(r)
        for stage in range(2):
            for ks in range(20):
                fl = stage == 1 and ks == SFLAG
                nxt = []
                bar = False
                if ks < 19:
                    nxt = reads(stage, ks + 1)
                    if ks % 2 == 1: bar = stage == 0 or ((ks + 1) // 2) in XBAR
                if fl and bar and (ks + 1) // 2 != NX0:
                    a("s_waitcnt lgkmcnt(0)"); a("s_barrier"); a("s_waitcnt vmcnt(0)"); a("s_barrier")
                elif fl and bar:
                    a("s_waitcnt vmcnt(0) lgkmcnt(0)"); a("s_barrier"); a("s_barrier"); a("s_nop 0")
                else:
                    a("s_waitcnt vmcnt(0) lgkmcnt(0)" if fl else "s_waitcnt lgkmcnt(0)")
                    a("s_barrier" if bar or fl else "s_nop 0")
                if fl: stamp(a, cfg, 4)
                if stage == 0 and ks == 13:
                    for i in range(2): a(f"v_add_u32 v{WB+i}, 8192, v{WB+i}")
                if stage == 1 and ks in (5, 13, 19): stamp(a, cfg, {5: 10, 13: 11, 19: 12}[ks], grp="p1")
                per = 2 if stage == 0 else 1
                for i in range(8):
                    tt, ct = i >> 1, (i & 1) ^ ((i >> 1) & 1)
                    acc = AC + 8 * tt + 4 * ct
                    x, w = vr(XF+16*(ks&1)+4*tt, 4), vr(WR+8*ks+4*ct, 4)
                    A, B = (x, w) if isv else (w, x)
                    c = "0" if ks == 0 else vr(acc, 4)
                    a(f"v_mfma_f32_16x16x32_bf16 {vr(acc,4)}, {A}, {B}, {c}")
                    if stage == 1 and ks >= cfg.get("su0", 5) and su and su[0].startswith("s_"): filler(ks, 1)
                    for r in nxt[per*i:per*i+per]: a(r)
                    if stage == 1 and ks >= cfg.get("su0", 5): filler(ks, 1 if nxt[i:i+1] else 2)
            if stage == 0:
                stamp(a, cfg, 3)
                a(f"v_add_u32 v{XA}, 122880, v{XA}")
                a(f"v_add_u32 v{XA+1}, 122880, v{XA+1}")
                epi(0)
                stamp(a, cfg, 8, grp="p1")
                if cfg.get("ackdiag"): a("s_waitcnt vmcnt(0)")
                a("s_barrier")
                stamp(a, cfg, 9, grp="p1")
                a(".p2align 3")
                for r in reads(1, 0): a(r)
            else:
                a("s_nop 1")
                epi(1)
                filler(20, 999)
    a("""
    s_cmp_lt_u32 s17, 10
    s_cbranch_scc0 L_qkv_v
    """)
    a.c("Q/K tiles: G = (cb%5)*32 + 8w + 4ct + g ; head = G/5 ; pos = G%5")
    a(f"""
    s_cmp_lt_u32 s17, 5
    s_cselect_b32 s25, 0, 81920
    s_cselect_b32 s12, {CSCALE}, 1.0
    s_cselect_b32 s23, 0, {KV_OFF}
    s_cselect_b32 s3, 0, 5
    s_add_u32 s24, s25, {HQ-2560}
    s_max_u32 s22, s25, 2560
    s_mov_b32 s13, s12
    s_add_u32 s21, s21, s23
    s_add_u32 s62, s22, s21
    s_sub_u32 s3, s17, s3
    s_lshl_b32 s3, s3, 2
    s_add_u32 s3, s3, s16
    s_lshl_b32 s3, s3, 3
    v_add_u32 v6, s3, v3
    v_lshlrev_b32 v4, 3, v2
    """)
    for ct in range(2):
        a(f"""
        v_add_u32 v7, {4*ct}, v6
        v_mul_u32_u24 v5, 52429, v7
        v_lshrrev_b32 v5, 18, v5
        v_lshl_add_u32 v7, v7, 9, v4
        v_mad_u32_u24 v{ST+ct}, v5, s24, v7
        """)
    late_qk, late_v = [], []
    def epi_qk(stage):
        for i in range(8):
            tt, ct = i >> 1, (i & 1) ^ ((i >> 1) & 1)
            acc = AC + 8 * tt + 4 * ct
            d = 80 + 2 * i
            a(f"v_pk_mul_f32 {vr(acc,2)}, {vr(acc,2)}, s[12:13]")
            a(f"v_pk_mul_f32 {vr(acc+2,2)}, {vr(acc+2,2)}, s[12:13]")
            a(f"v_cvt_pk_bf16_f32 v{d}, v{acc}, v{acc+1}")
            a(f"v_cvt_pk_bf16_f32 v{d+1}, v{acc+2}, v{acc+3}")
            st = f"buffer_store_dwordx2 {vr(d,2)}, v{ST+ct}, {WS}, s{62 if stage else 21} offen offset:{128*tt} sc1"
            if stage == 0: a(st)
            else: late_qk.append(st)
    gemm(False, epi_qk)
    a("s_mov_b32 s63, 1")
    a("s_branch L_qkv_fin")
    a("L_qkv_v:")
    a.c("V tiles: col = (cb-10)*128 + 32w + 16ct + n ; head = col/20 ; d = col%20")
    a(f"""
    s_sub_u32 s3, s17, 10
    s_lshl_b32 s3, s3, 2
    s_add_u32 s3, s3, s16
    s_lshl_b32 s3, s3, 5
    v_add_u32 v6, s3, v2
    s_add_u32 s21, s21, {KV_OFF+2560}
    s_add_u32 s62, s21, 81920
    v_mul_u32_u24 v4, 320, v3
    s_mov_b32 s24, {HKV - 320}
    """)
    for ct in range(2):
        a(f"""
        v_add_u32 v7, {16*ct}, v6
        v_mul_u32_u24 v5, 13108, v7
        v_lshrrev_b32 v5, 18, v5
        v_lshl_add_u32 v7, v7, 4, v4
        v_mad_u32_u24 v{ST+ct}, v5, s24, v7
        """)
    def epi_v(stage):
        a("s_nop 2")
        for P in range(2):
            for ct in range(2):
                d = 80 + 8 * P + 4 * ct
                for ab in range(2):
                    acc = AC + 8 * (2 * P + ab) + 4 * ct
                    a(f"v_cvt_pk_bf16_f32 v{d+2*ab}, v{acc}, v{acc+1}")
                    a(f"v_cvt_pk_bf16_f32 v{d+2*ab+1}, v{acc+2}, v{acc+3}")
                st = f"buffer_store_dwordx4 {vr(d,4)}, v{ST+ct}, {WS}, s{62 if stage else 21} offen offset:{1280*P} sc1"
                if stage == 0: a(st)
                else: late_v.append(st)
    gemm(True, epi_v)
    a("s_mov_b32 s63, 2")
    a("L_qkv_fin:")
    stamp(a, cfg, 5)
    return late_qk, late_v

SA, SB = 178, 210
O0, O1 = 146, 162
QM0, QM1, QT = 242, 246, 250
KM, KT = 16, 24
VV, SENT, WOA = 96, 112, 116
VL16, VQ, VQT, VPOLL = 121, 122, 123, 124
VOM, VOT, VXW, VXR, VONE, VZ = 126, 127, 128, 129, 130, 131
IDX, VKE, VKO, VT, VV0, VV1 = 132, 133, 134, 135, 136, 137

P3 = 138
PK = 70
def p3_setup(a):
    a(f"""
    s_lshr_b32 s30, s16, 2
    s_and_b32 s31, s16, 3
    s_mul_i32 s3, s30, 51200
    v_lshrrev_b32 v2, 5, v1
    v_bfe_u32 v3, v1, 4, 1
    v_bfe_u32 v14, v1, 2, 2
    v_mul_u32_u24 v15, 20, v2
    v_lshl_add_u32 v15, v3, 2, v15
    v_add_u32 v15, v15, v14
    v_mul_u32_u24 v15, 160, v15
    v_and_b32 v2, 3, v1
    v_lshl_add_u32 v2, v2, 3, s3
    v_add_u32 v{P3}, v15, v2
    v_lshrrev_b32 v3, 4, v1
    v_mul_u32_u24 v15, 20, v3
    v_add3_u32 v15, v15, 16, v14
    v_mul_u32_u24 v15, 160, v15
    v_add_u32 v{P3+1}, v15, v2
    s_mul_i32 s3, s31, 5120
    s_add_u32 s3, s3, 143360
    v_add_u32 v{P3+2}, s3, v{VL16}
    s_mul_i32 s3, s31, 3584
    s_add_u32 s3, s3, 102400
    v_and_b32 v2, 15, v1
    v_mul_u32_u24 v2, 176, v2
    v_lshl_add_u32 v2, v3, 3, v2
    v_add_u32 v{P3+3}, s3, v2
    s_and_b32 s40, s2, 7
    s_lshl_b32 s40, s40, 12
    s_add_u32 s40, s40, {F2_OFF}
    s_lshl_b32 s41, s17, 2
    s_add_u32 s41, s41, s31
    s_mul_i32 s41, s41, 20480
    v_lshrrev_b32 v2, 1, v1
    v_lshlrev_b32 v{P3+7}, 7, v2
    """)
    for i in range(5):
        a(f"""
        v_add_u32 v2, {64*i}, v1
        v_mul_u32_u24 v3, 6554, v2
        v_lshrrev_b32 v3, 16, v3
        v_mul_u32_u24 v14, {1280-160}, v3
        v_lshl_add_u32 v{WOA+i}, v2, 4, v14
        """)
        if i < 3:
            a(f"""
            v_add_u32 v14, v2, v3
            v_lshl_add_u32 v{P3+4+i}, v14, 4, s3
            """)

def attn_setup(a, cfg, early, keep5=False):
    late = 0 if early else 1
    a.c("attention ids: s17=head s18=q pair s19=key half s21=KV base of head")
    a(f"""
    s_and_b32 s17, s2, 7
    s_lshl_b32 s17, s17, 2
    s_bfe_u32 s3, s2, 0x20003
    s_add_u32 s17, s17, s3
    s_lshr_b32 s29, s2, 5
    s_lshl_b32 s18, s29, 2
    s_and_b32 s3, s16, 2
    s_add_u32 s18, s18, s3
    s_add_u32 s18, s18, {late}
    s_and_b32 s19, s16, 1
    s_mul_i32 s20, s19, 5120
    v_and_b32 v2, 31, v1
    v_lshrrev_b32 v3, 5, v1
    v_lshlrev_b32 v14, 3, v2
    v_lshl_add_u32 v{VQ}, v3, 9, v14
    v_add_u32 v{VKE}, s20, v{VQ}
    v_add_u32 v{VKO}, 256, v{VKE}
    v_lshlrev_b32 v14, 3, v1
    v_add_u32 v{VT}, s20, v14
    s_lshl_b32 s3, s19, 8
    v_xor_b32 v{VQT}, s3, v14
    v_mul_u32_u24 v15, 320, v3
    v_lshl_add_u32 v15, v2, 4, v15
    s_add_u32 s3, s20, 2560
    v_add_u32 v{VV0}, s3, v15
    v_add_u32 v{VV1}, 40960, v{VV0}
    v_lshlrev_b32 v{VL16}, 4, v1
    v_mov_b32 v{IDX}, 0xdddddddd
    s_mov_b32 s24, 0x000fffff
    s_mov_b32 s25, 0x000fffff
    v_cmp_eq_u32 vcc, 20, v2
    v_mov_b32 v15, 0x3f803f80
    s_mul_i32 s21, s17, {HKV}
    v_cndmask_b32 v{VV}, 0, v15, vcc
    s_add_u32 s21, s21, {KV_OFF}
    """)
    a(f"v_mov_b32 v{VV+1}, v{VV}")
    for i in range(1, 8): a(f"v_mov_b64 {vr(VV+2*i,2)}, {vr(VV,2)}")
    a.c("s22/s23: Q soffsets role0/role1, s26: Q pair base ; s27: first token block of this wave's K/V units ; s28: dma lds dest")
    a(f"""
    s_mul_i32 s26, s18, 2560
    s_mul_i32 s3, s17, {HQ}
    s_add_u32 s26, s26, s3
    s_lshl_b32 s3, s19, 8
    s_add_u32 s22, s26, s3
    s_xor_b32 s3, s3, 256
    s_add_u32 s23, s26, s3
    s_and_b32 s28, s16, 3
    s_lshl_b32 s27, s29, 1
    s_add_u32 s27, s27, s28
    s_mul_i32 s28, s28, 5120
    s_add_u32 s28, s28, {late*81920}
    s_add_u32 s61, s21, {late*81920}
    """)
    a.c("O tile of this wave = 2*pair + (1^kh): s36/s37 store offsets, s38 workgroup flag, s39 wave flag")
    a(f"""
    s_lshl_b32 s30, s18, 1
    s_xor_b32 s31, s19, 1
    s_add_u32 s30, s30, s31
    s_mul_i32 s37, s30, 40960
    s_add_u32 s37, s37, {O_OFF}
    s_lshl_b32 s36, s17, 9
    s_add_u32 s36, s36, s37
    s_lshl_b32 s3, s17, 7
    s_add_u32 s37, s37, s3
    s_add_u32 s37, s37, 16384
    s_lshr_b32 s38, s2, 5
    s_lshl_b32 s38, s38, 12
    s_add_u32 s38, s38, s3
    s_add_u32 s38, s38, {F2_OFF}
    s_add_u32 s39, s38, {F3_OFF - F2_OFF}
    v_bfe_u32 v2, v1, 4, 1
    v_mul_u32_u24 v2, 20480, v2
    v_and_b32 v3, 15, v1
    v_lshl_add_u32 v{VOT}, v3, 3, v2
    v_lshl_add_u32 v2, v3, 4, v2
    v_lshrrev_b32 v3, 5, v1
    v_lshl_add_u32 v{VOM}, v3, 8, v2
    s_mul_i32 s3, s16, 3072
    s_add_u32 s3, s3, 102400
    v_add_u32 v{VXW}, s3, v{VL16}
    s_xor_b32 s3, s16, 1
    s_mul_i32 s3, s3, 3072
    s_add_u32 s3, s3, 102400
    v_add_u32 v{VXR}, s3, v{VL16}
    v_mov_b64 {vr(SENT,2)}, -1
    v_mov_b64 {vr(SENT+2,2)}, -1
    v_mov_b32 v{VONE}, 1
    v_mov_b32 v{VZ}, 0
    """)
    p3_setup(a)
    sh, sec = (7, 5) if early else (5, 20)
    a.c("poll addresses of the polling wave: K/V producers of all 16 token blocks, Q producers of both pairs")
    a(f"""
    s_mul_i32 s30, s17, 20
    s_add_u32 s31, s30, 19
    s_lshr_b32 s30, s30, {sh}
    s_lshr_b32 s31, s31, {sh}
    s_sub_u32 s31, s31, s30
    v_and_b32 v2, 1, v1
    v_mul_u32_u24 v2, s31, v2
    v_add_u32 v2, s30, v2
    v_lshrrev_b32 v14, 5, v1
    v_mul_u32_u24 v3, {sec}, v14
    v_add3_u32 v3, v2, v3, {sec}
    v_bfe_u32 v15, v1, 1, 4
    v_lshl_add_u32 v3, v3, 4, v15
    v_lshlrev_b32 v{VPOLL}, 7, v3
    v_bfe_u32 v2, v1, 4, 1
    v_mul_u32_u24 v2, s31, v2
    v_add_u32 v2, s30, v2
    s_lshr_b32 s3, s2, 5
    s_lshl_b32 s3, s3, 1
    v_lshl_add_u32 v2, v2, 4, v14
    v_add_u32 v2, s3, v2
    v_lshlrev_b32 v{VPOLL+1}, 7, v2
    s_mov_b32 s33, {FA_OFF if early else FB_OFF}
    """)
    for i in range(16): a(f"v_mov_b64 {vr(O0+2*i,2)}, 0")

def wait_stage(a, cfg, tag, wave):
    a(f"""
    s_mov_b32 s35, 0
    s_cmp_eq_u32 s16, {wave}
    s_cbranch_scc0 L_gw{tag}
    """)
    paced_poll(a, cfg, f"L_poll1{tag}", [VPOLL, VPOLL+1], "s33")
    a(f"""
    v_mov_b32 v7, 1
    ds_write_b32 v11, v7
    s_branch L_gw{tag}_ok
    L_gw{tag}:
    s_sleep 1
    ds_read_b32 v7, v11
    s_waitcnt lgkmcnt(0)
    v_readfirstlane_b32 s34, v7
    s_cmp_lg_u32 s34, 0
    """)
    spin_tail(a, f"L_gw{tag}", mult=16)

def kread(t):
    tl = t & 15
    o = 20 * (tl >> 1)
    return f"ds_read2st64_b64 {vr(KM+4*(t&1),4)}, v{VKO if t & 1 else VKE} offset0:{o} offset1:{o+2}"
def tread(b):
    o = 40 * (b & 3)
    return f"ds_read2st64_b64 {vr(KT+4*(b&1),4)}, v{VT} offset0:{o+4} offset1:{o+24}"
def vread(t, f):
    tl = t & 15
    ad = VV0 if tl < 8 else VV1
    return f"ds_read_b128 {vr(VV+8*(t&1)+4*f,4)}, v{ad} offset:{10240*((tl>>1)&3)+1280*(t&1)+640*f}"
def Tm(t, dst):
    b, T = divmod(t, 4)
    return f"v_mfma_f32_32x32x4_2b_bf16 {vr(dst,32)}, {vr(KT+4*(b&1)+2*(T>>1),2)}, {vr(QT,2)}, 0 cbsz:1 abid:{T&1}"
def Mm(t, dst, r):
    return f"v_mfma_f32_32x32x16_bf16 {vr(dst+16*r,16)}, {vr(KM+4*(t&1),4)}, {vr(QM1 if r else QM0,4)}, {vr(dst+16*r,16)}"
def Pm(o, t, f, s):
    return f"v_smfmac_f32_32x32x32_bf16 {vr(o,16)}, {vr(VV+8*(t&1)+4*f,4)}, {vr(s,8)}, v{IDX}"

def qloads(a):
    a(f"""
    buffer_load_dwordx2 {vr(QT,2)}, v{VQT}, {WS}, s26 offen offset:2048 sc1
    buffer_load_dwordx2 {vr(QM0,2)}, v{VQ}, {WS}, s22 offen sc1
    buffer_load_dwordx2 {vr(QM0+2,2)}, v{VQ}, {WS}, s22 offen offset:1024 sc1
    buffer_load_dwordx2 {vr(QM1,2)}, v{VQ}, {WS}, s23 offen sc1
    buffer_load_dwordx2 {vr(QM1+2,2)}, v{VQ}, {WS}, s23 offen offset:1024 sc1
    """)
def kv_dma(i, back=0):
    g = [f"""
        s_add_u32 s3, s27, {4*i}
        s_and_b32 s3, s3, 15
        s_mul_i32 s3, s3, 5120
        s_sub_u32 s3, s3, {back}
        s_add_u32 m0, s28, {(i*20480 - back) & 0xffffffff}
        s_add_u32 s29, s61, s3
        buffer_load_dwordx4 v{VL16}, {WS}, s29 offen sc1 lds"""]
    for j in range(1, 4):
        g.append(f"buffer_load_dwordx4 v{VL16}, {WS}, s29 offen offset:{1024*j} sc1 lds")
    g.append(f"""
        s_add_u32 m0, s28, {(i*20480+4096 - back) & 0xffffffff}
        s_add_u32 s29, s29, 4096
        buffer_load_dwordx4 v{VL16}, {WS}, s29 offen sc1 lds""")
    return g
def wo_dma(nper):
    g = []
    for p in range(nper):
        for i in range(5):
            pre = ""
            if i == 0:
                pre = f"""
                s_add_u32 s31, s30, {p*8*32*1280}
                """
            g.append(pre + f"""
                s_add_u32 m0, s32, {p*8*5120 + 1024*i}
                s_nop 0
                buffer_load_dwordx4 v{WOA+i}, {WO}, s31 offen lds
                s_nop 0""")
    return g

def attn_loop(a, cfg, early):
    tag = "e" if early else "l"
    a(f"s_setprio {3 if early else 2}")
    a(tread(0)); a(kread(0)); a(kread(1))
    a("s_mov_b64 exec, s[24:25]"); a(vread(0, 0)); a(vread(0, 1)); a("s_mov_b64 exec, -1")
    a.c("wo dma: s30 source, s32 lds dest")
    a(f"""
    s_lshr_b32 s3, s2, 5
    s_mul_i32 s30, s3, 160
    s_mul_i32 s3, s16, {32*1280}
    s_add_u32 s30, s30, s3
    s_mul_i32 s32, s16, 5120
    s_waitcnt lgkmcnt({0 if cfg.get('stamp') else 4})
    """)
    if cfg.get("lp", {}).get("pro"): a("s_memtime s[70:71]")
    a(Tm(0, SA)); a("s_nop 15"); a("s_nop 1"); a("s_waitcnt lgkmcnt(3)")
    a(Mm(0, SA, 0)); a(Mm(0, SA, 1)); a("s_nop 10")
    dma = {}
    be, bl = cfg.get("be", [18, 20, 26]), cfg.get("bl", [5, 20, 26])
    assert be[0] <= 18 and min(be[1], bl[1]) >= 15 and min(be[2], bl[2]) >= 25
    if early:
        B2, C1, C2 = be
        bars = {2: "vmcnt(0)", 6: None, 14: None, B2: None, C1: None, C2: None}
        prio = cfg.get("prio_e", {"14": 1, "20": 3, "25": 1, "26": 3, "29": 2, "31": 1})
    else:
        B2, C1, C2 = bl
        bars = {B2: "vmcnt(0)", C1: None, C2: None}
        b0 = cfg.get("bl0", 0)
        if b0: bars[b0] = None
        dma[b0] = kv_dma(2); dma[b0 + 1] = kv_dma(3)
        assert B2 >= b0 + 3
        prio = cfg.get("prio_l", {"19": 0, "20": 2, "25": 0, "26": 3, "29": 2, "30": 1, "31": 0})
    prio = {int(k): v for k, v in prio.items()}
    wo = wo_dma(2 if early else 3)
    for i in range(5): dma[C1 + i] = wo[2*i:2*i+2]
    for i in range(3): dma[C2 + i] = wo[10+2*i:12+2*i]
    if cfg.get("opt", 1):
        assert not dma.get(B2 + 1)
        dma[B2 + 1] = [f"buffer_store_dwordx4 {vr(SENT,4)}, v{VOM}, {WS}, s36 offen sc1",
            f"""s_mov_b32 exec_hi, 0
            buffer_store_dwordx2 {vr(SENT,2)}, v{VOT}, {WS}, s37 offen sc1
            s_mov_b32 exec_hi, -1"""]
    a(".p2align 3")
    for t in range(32):
        cur, nxt = (SA, SB) if t % 2 == 0 else (SB, SA)
        e = iter(range(32))
        def E(n):
            for _ in range(n):
                i = next(e); a(f"v_exp_f32 v{cur+i}, v{cur+i}")
        dq = list(dma.get(t, []))
        def D(n):
            for _ in range(n):
                if dq: a(dq.pop(0))
        many = len(dq) > 2
        a.c(f"step {t}")
        E(2)
        if t > 0: a(Pm(O1, t-1, 1, nxt+24))
        vm = bars.get(t)
        a(f"s_waitcnt {vm + ' ' if vm else ''}lgkmcnt(0)")
        n4 = 1
        lp = cfg.get("lp", {}).get(tag + str(t))
        if lp and lp[0]: a(f"s_memtime s[{64+2*lp[0]}:{65+2*lp[0]}]")
        if t in bars: a("s_barrier"); n4 += 1
        if lp and lp[1]: a(f"s_memtime s[{64+2*lp[1]}:{65+2*lp[1]}]")
        if t in prio: a(f"s_setprio {prio[t]}"); n4 += 1
        if n4 % 2: a("s_nop 0")
        if t == 14:
            for r in (VKE, VKO, VT, VV0): a(f"v_add_u32 v{r}, 81920, v{r}")
        if t == 16: a(f"v_add_u32 v{VV1}, 81920, v{VV1}")
        if t + 2 < 32: a(kread(t+2))
        if many: D(1)
        E(4)
        if t < 31: a(Tm(t+1, nxt))
        E(8)
        a(Pm(O0, t, 0, cur))
        if t < 31: a("s_mov_b64 exec, s[24:25]"); a(vread(t+1, 0)); a("s_mov_b64 exec, -1")
        if many: D(1)
        E(4)
        a(Pm(O0, t, 1, cur+8))
        if t < 31: a("s_mov_b64 exec, s[24:25]"); a(vread(t+1, 1)); a("s_mov_b64 exec, -1")
        if many: D(1)
        E(4)
        if t < 31: a(Mm(t+1, nxt, 0))
        D(1)
        E(4)
        a(Pm(O1, t, 0, cur+16))
        if t % 4 == 2 and t // 4 < 7: a(tread(t//4+1))
        D(1)
        E(4)
        if t < 31: a(Mm(t+1, nxt, 1))
        else:
            a.c("hand the role-0 tile to the partner wave (other key half)")
            for i in (2, 0, 1): a(f"ds_write_b128 v{VXW}, {vr(O0+4*i,4)} offset:{1024*i}")
        E(2)
        assert not dq

def attn_epilogue(a, cfg):
    stamp(a, cfg, 8)
    if cfg.get("lp"): a("s_memtime s[88:89]")
    a(f"""
    s_setprio 0
    s_nop 0
    {Pm(O1, 31, 1, SB+24)}
    s_waitcnt vmcnt(0) lgkmcnt(0)
    s_barrier
    ds_read_b128 {vr(O0+8,4)}, v{VXR} offset:2048
    ds_read_b128 {vr(O0,4)}, v{VXR}
    ds_read_b128 {vr(O0+4,4)}, v{VXR} offset:1024
    s_nop 6
    s_waitcnt lgkmcnt(2)
    """)
    a(f"""
    v_pk_add_f32 {vr(O1+8,2)}, {vr(O1+8,2)}, {vr(O0+8,2)}
    v_pk_add_f32 {vr(O1+10,2)}, {vr(O1+10,2)}, {vr(O0+10,2)}
    v_mov_b32 v7, v{O1+8}
    v_mov_b32 v9, v{O1+8}
    s_mov_b32 s30, 0x21800000
    s_waitcnt lgkmcnt(1)
    v_permlane32_swap_b32 v7, v9
    v_pk_add_f32 {vr(O1,2)}, {vr(O1,2)}, {vr(O0,2)}
    v_pk_add_f32 {vr(O1+2,2)}, {vr(O1+2,2)}, {vr(O0+2,2)}
    s_mov_b32 s31, 0x5d800000
    s_waitcnt lgkmcnt(0)
    v_pk_add_f32 {vr(O1+4,2)}, {vr(O1+4,2)}, {vr(O0+4,2)}
    v_pk_add_f32 {vr(O1+6,2)}, {vr(O1+6,2)}, {vr(O0+6,2)}
    """)
    a.c("run-time check of the shift-free softmax: row sum in [2^-60, 2^60], finite accumulators; else redo with the true row max")
    a(f"""
    v_cmp_le_f32 s[32:33], s30, v9
    v_cmp_ge_f32 s[34:35], s31, v9
    v_pk_mul_f32 v[10:11], {vr(O1+8,2)}, 0
    """)
    for i in (10, 0, 2, 4, 6): a(f"v_pk_fma_f32 v[10:11], {vr(O1+i,2)}, 0, v[10:11]")
    a(f"""
    s_and_b64 s[32:33], s[32:33], s[34:35]
    v_cmp_o_f32 vcc, v10, v11
    v_rcp_f32 v8, v9
    s_and_b64 s[32:33], s[32:33], vcc
    s_cmp_eq_u64 s[32:33], -1
    s_cbranch_scc0 L_attn_slow
    L_attn_fin:
    """)
    for i in range(4): a(f"v_pk_mul_f32 {vr(O1+2*i,2)}, {vr(O1+2*i,2)}, v[8:9] op_sel_hi:[1,0]")
    for i in range(4): a(f"v_cvt_pk_bf16_f32 v{PK+i}, v{O1+2*i}, v{O1+2*i+1}")
    a(f"buffer_store_dwordx4 {vr(PK,4)}, v{VOM}, {WS}, s36 offen sc1")
    for i in range(4, 6): a(f"v_pk_mul_f32 {vr(O1+2*i,2)}, {vr(O1+2*i,2)}, v[8:9] op_sel_hi:[1,0]")
    for i in range(4, 6): a(f"v_cvt_pk_bf16_f32 v{PK+i}, v{O1+2*i}, v{O1+2*i+1}")
    a(f"""
    s_mov_b32 exec_hi, 0
    buffer_store_dwordx2 {vr(PK+4,2)}, v{VOT}, {WS}, s37 offen sc1
    s_mov_b32 exec_hi, -1
    """)
    stamp(a, cfg, 9)
    if cfg.get("opt", 1):
        a.c("early notice: readers check the tiles for the filler words written before and fall back to the per-wave flags")
        a(f"""
        s_barrier
        s_cmp_eq_u32 s16, 0
        s_cbranch_scc0 L_nonotice
        s_mov_b64 exec, 1
        buffer_store_dword v{VONE}, v{VZ}, {WS}, s38 offen sc1
        s_mov_b64 exec, -1
        L_nonotice:
        """)

def attn_slow(a):
    a("L_attn_slow:")
    a(f"""
    v_and_b32 v2, 31, v1
    v_lshlrev_b32 v14, 3, v2
    v_lshrrev_b32 v3, 5, v1
    v_mul_u32_u24 v3, 320, v3
    v_lshl_add_u32 v15, v2, 4, v3
    v_mov_b32 v10, 0xff800000
    s_mov_b32 s34, 0
    """)
    for i in range(16): a(f"v_mov_b32 v{O1+i}, 0")
    a(f"""
    L_slow_pass:
    s_mov_b32 s35, 0
    L_slow_tile:
    s_lshr_b32 s30, s35, 1
    s_mul_i32 s30, s30, 5120
    s_add_u32 s30, s30, s21
    s_and_b32 s3, s35, 1
    s_mul_i32 s31, s3, 1280
    s_add_u32 s31, s31, s30
    s_lshl_b32 s3, s3, 8
    s_add_u32 s30, s30, s3
    buffer_load_dwordx2 {vr(KT,2)}, v14, {WS}, s30 offen offset:2048 sc1
    buffer_load_dwordx2 {vr(KM,2)}, v{VQ}, {WS}, s30 offen sc1
    buffer_load_dwordx2 {vr(KM+2,2)}, v{VQ}, {WS}, s30 offen offset:1024 sc1
    s_mov_b64 exec, s[24:25]
    buffer_load_dwordx4 {vr(VV,4)}, v15, {WS}, s31 offen offset:2560 sc1
    buffer_load_dwordx4 {vr(VV+4,4)}, v15, {WS}, s31 offen offset:3200 sc1
    s_mov_b64 exec, -1
    s_waitcnt vmcnt(0)
    v_mfma_f32_32x32x4_2b_bf16 {vr(SA,32)}, {vr(KT,2)}, {vr(QT,2)}, 0
    s_nop 15
    s_nop 3
    v_mfma_f32_32x32x16_bf16 {vr(SA+16,16)}, {vr(KM,4)}, {vr(QM1,4)}, {vr(SA+16,16)}
    s_nop 15
    s_cmp_eq_u32 s34, 0
    s_cbranch_scc0 L_slow_pv
    """)
    for i in range(8): a(f"v_max3_f32 v10, v10, v{SA+16+2*i}, v{SA+17+2*i}")
    a("s_branch L_slow_next")
    a("L_slow_pv:")
    for i in range(16): a(f"v_sub_f32 v{SA+16+i}, v{SA+16+i}, v10")
    for i in range(16): a(f"v_exp_f32 v{SA+16+i}, v{SA+16+i}")
    a(f"""
    s_nop 3
    v_smfmac_f32_32x32x32_bf16 {vr(O1,16)}, {vr(VV,4)}, {vr(SA+16,8)}, v{IDX}
    v_smfmac_f32_32x32x32_bf16 {vr(O1,16)}, {vr(VV+4,4)}, {vr(SA+24,8)}, v{IDX}
    s_nop 15
    L_slow_next:
    s_add_u32 s35, s35, 1
    s_cmp_lt_u32 s35, 64
    s_cbranch_scc1 L_slow_tile
    s_cmp_eq_u32 s34, 0
    s_cbranch_scc0 L_slow_done
    v_mov_b32 v11, v10
    s_nop 1
    v_permlane32_swap_b32 v10, v11
    s_nop 1
    v_max_f32 v10, v10, v11
    s_mov_b32 s34, 1
    s_branch L_slow_pass
    L_slow_done:
    v_mov_b32 v7, v{O1+8}
    v_mov_b32 v9, v{O1+8}
    s_nop 1
    v_permlane32_swap_b32 v7, v9
    s_nop 1
    v_rcp_f32 v8, v9
    s_branch L_attn_fin
    """)

TAIL = []
def phase3(a, cfg):
    OF, AC, WF = 16, 56, 76
    VW, VWT, VPB, VSW, VSR, VL, VL8 = 6, 7, 8, 9, 10, 0, 4
    VOS = [13, 14, 15]
    OPT = cfg.get("opt", 1)
    def reads(ks):
        r = []
        for t in range(5):
            for u in range(2):
                if ks < 8: ad, off = VW, (40*ks + 8*u)*160 + 32*t
                else: ad, off = VWT, (160*(ks-8) + 80*u)*160 + 32*t
                r.append(f"ds_read_b64_tr_b16 {vr(WF+20*(ks%9)+4*t+2*u,2)}, v{ad} offset:{off}")
        return r
    def unpack():
        for i in range(7): a(f"v_mov_b32 v{VW+i}, v{P3+i}")
        for i in range(3): a(f"v_mov_b32 v{VOS[i]}, v{WOA+i}")
        a(f"""
        v_mov_b32 v{VL}, v{VL16}
        v_lshlrev_b32 v{VL8}, 3, v1
        s_lshr_b32 s26, s16, 2
        s_lshr_b32 s27, s2, 5
        s_mul_i32 s27, s27, 160
        s_add_u32 s27, s27, s41
        s_add_u32 s22, s41, {O_OFF}
        s_lshl_b32 s3, s26, 11
        s_add_u32 s23, s22, s3
        s_add_u32 s23, s23, 16384
        s_lshl_b32 s3, s26, 13
        s_add_u32 s22, s22, s3
        s_add_u32 s24, s22, 4096
        """)
    def oloads():
        for ks in range(8):
            a(f"buffer_load_dwordx4 {vr(OF+4*ks,4)}, v{VL}, {WS}, s{22 if ks < 4 else 24} offen offset:{1024*(ks&3)} sc1")
        for q in range(4):
            a(f"buffer_load_dwordx2 {vr(OF+32+2*q,2)}, v{VL8}, {WS}, s23 offen offset:{512*q} sc1")
    a.c("---- output projection: 64 tokens x 80 columns")
    if not OPT:
        a("""
        s_waitcnt vmcnt(0)
        s_barrier
        s_cmp_eq_u32 s16, 0
        s_cbranch_scc0 L_p3_nofl
        """)
        raise_flag(a, "s38")
        a("L_p3_nofl:")
    NPB, WIN = cfg.get("npb", 6), cfg.get("win", 5)
    LOADS = [[f"buffer_load_dwordx4 {vr(OF+4*ks,4)}, v{VL}, {WS}, s{22 if ks < 4 else 24} offen offset:{1024*(ks&3)} sc1"] for ks in range(8)]
    LOADS += [[f"buffer_load_dwordx2 {vr(OF+32+2*q,2)}, v{VL8}, {WS}, s23 offen offset:{512*q} sc1" for q in (2*j, 2*j+1)] for j in range(2)]
    PM = cfg.get("pm", 0)
    PW = cfg.get("pw", 1)
    a(f"""
    v_mov_b32 v2, v{P3+7}
    s_mov_b32 s35, 0
    """)
    if PM == 1:
        a(f"""
        s_cmp_eq_u32 s16, {PW}
        s_cbranch_scc0 L_p3_np
        buffer_load_dword v5, v2, {WS}, s40 offen sc1
        L_p3_np:
        """)
    unpack()
    if PM == 2:
        a(f"""
        s_cmp_eq_u32 s16, {PW}
        s_cbranch_scc1 L_poll2
        """)
    for ks in range(NPB):
        for r in reads(ks): a(r)
    a(f"""
    s_cmp_eq_u32 s16, {PW}
    s_cbranch_scc0 L_poll2_ok
    """)
    if PM == 1: a("s_branch L_poll2_chk")
    a(f"""
    L_poll2:
    buffer_load_dword v5, v2, {WS}, s40 offen sc1
    L_poll2_chk:
    s_waitcnt vmcnt(0)
    v_cmp_ne_u32 vcc, 0, v5
    s_nop 0
    s_cmp_eq_u64 vcc, -1
    """)
    spin_tail(a, "L_poll2")
    a("s_waitcnt vmcnt(0)")
    stamp(a, cfg, 10)
    a("s_barrier")
    stamp(a, cfg, 11)
    for g in LOADS[:WIN]:
        for l in g: a(l)
    if PM == 2:
        a(f"""
        s_cmp_eq_u32 s16, {PW}
        s_cbranch_scc0 L_p3_have
        """)
        for ks in range(NPB):
            for r in reads(ks): a(r)
        a("L_p3_have:")
    for ks in range(NPB, 9):
        for r in reads(ks): a(r)
    a("L_p3_go:")
    if cfg.get("p3d"): a("s_memtime s[68:69]")
    VMX = 1
    a(f"v_mov_b32 v{VMX}, 0")
    a("v_mov_b32 v2, 0")
    a("v_mov_b32 v3, 1")
    def mf(ks, extra=0, check=OPT):
        win = 10 if extra else WIN
        vm = sum(len(g) for g in LOADS[ks+1:ks+win])
        a(f"s_waitcnt vmcnt({vm})" + (" lgkmcnt(0)" if ks == 0 or (ks == 9 and not check) else ""))
        if ks + win < 10:
            for l in LOADS[ks + win]: a(l)
        if OPT and not extra and ks + win == 9 + (win == 10):
            a.c("every wave's stores were acknowledged before the barrier above: tell readers that fall back")
            a(f"""
            s_cmp_eq_u32 s16, 7
            s_cbranch_scc0 L_p3_noconf
            s_mov_b64 exec, 1
            buffer_store_dword v3, v2, {WS}, s39 offen sc1
            s_mov_b64 exec, -1
            L_p3_noconf:
            """)
        if cfg.get("p3d") and check and ks in (0, 3, 7, 9): a("s_memtime s[%d:%d]" % {0: (70, 71), 3: (72, 73), 7: (74, 75), 9: (76, 77)}[ks])
        for t in range(5):
            c = "0" if ks == 0 else vr(AC+4*t, 4)
            a(f"v_mfma_f32_16x16x32_bf16 {vr(AC+4*t,4)}, {vr(WF+20*(ks%9)+4*t,4)}, {vr(OF+4*ks,4)}, {c}")
            if check and t < 2: a(f"v_max3_u32 v{VMX}, v{VMX}, v{OF+4*ks+2*t}, v{OF+4*ks+2*t+1}")
            if check and ks == 9 and t == 2: a(f"v_cmp_eq_u32 vcc, -1, v{VMX}")
        if ks == 0:
            for r in reads(9): a(r)
    def redo():
        a(f"""
        L_redo:
        s_add_u32 s33, s40, {F3_OFF - F2_OFF}
        v_bfe_u32 v2, v{VL}, 5, 5
        v_lshlrev_b32 v2, 7, v2
        """)
        poll(a, "L_poll3", 2, WS, "s33")
        a("s_waitcnt lgkmcnt(0)")
        for r in reads(0) + reads(1): a(r)
        for ks in range(8):
            a(f"buffer_load_dwordx4 {vr(OF+4*ks,4)}, v{VL}, {WS}, s{22 if ks < 4 else 24} offen offset:{1024*(ks&3)} sc1")
        for q in range(4):
            a(f"buffer_load_dwordx2 {vr(OF+32+2*q,2)}, v{VL8}, {WS}, s23 offen offset:{512*q} sc1")
        for ks in range(10): mf(ks, 1, 0)
        a("""
        s_cmp_lt_u32 s16, 4
        s_cbranch_scc1 L_back_w
        """)
        for t in range(5): a(f"ds_read_b128 {vr(WF+20+4*t,4)}, v{VPB} offset:{1024*t}")
        a("s_branch L_back_f")
    TAIL.append(redo if OPT else (lambda: None))
    FORCE = "s_branch L_redo" if cfg.get("force_redo") else "s_cbranch_vccnz L_redo"
    KB = cfg.get("kb", 10)
    for ks in range(KB): mf(ks)
    a("""
    s_waitcnt lgkmcnt(0)
    s_cmp_lt_u32 s16, 4
    s_cbranch_scc0 L_out_fin
    """)
    for ks in range(KB, 10): mf(ks)
    if OPT: a(FORCE); a("L_back_w:")
    stamp(a, cfg, 12)
    a("s_nop 3")
    for t in range(5):
        a(f"ds_write_b128 v{VPB}, {vr(AC+4*t,4)} offset:{1024*t}")
        if t < 4: a("s_nop 0")
    a("""
    s_waitcnt lgkmcnt(0)
    s_barrier
    s_branch L_fin
    L_out_fin:
    s_barrier
    """)
    PB = WF + 20
    for t in range(5): a(f"ds_read_b128 {vr(PB+4*t,4)}, v{VPB} offset:{1024*t}")
    for ks in range(KB, 10): mf(ks)
    if OPT: a(FORCE); a("L_back_f:")
    stamp(a, cfg, 12)
    a("s_waitcnt lgkmcnt(0)")
    a("s_nop 2")
    for t in range(5):
        a(f"v_pk_add_f32 {vr(AC+4*t,2)}, {vr(AC+4*t,2)}, {vr(PB+4*t,2)}")
        a(f"v_pk_add_f32 {vr(AC+4*t+2,2)}, {vr(AC+4*t+2,2)}, {vr(PB+4*t+2,2)}")
        a(f"v_cvt_pk_bf16_f32 v{OF+2*t}, v{AC+4*t}, v{AC+4*t+1}")
        a(f"v_cvt_pk_bf16_f32 v{OF+2*t+1}, v{AC+4*t+2}, v{AC+4*t+3}")
        a(f"ds_write_b64 v{VSW}, {vr(OF+2*t,2)} offset:{32*t}")
    a("s_waitcnt lgkmcnt(0)")
    for i in range(3): a(f"ds_read_b128 {vr(PB+4*i,4)}, v{VSR+i}")
    OFL = cfg.get("outfl", "nt")
    for i in range(3):
        a(f"s_waitcnt lgkmcnt({2-i})")
        if i == 2: a("s_mov_b32 exec_hi, 0")
        a(f"buffer_store_dwordx4 {vr(PB+4*i,4)}, v{VOS[i]}, {OUT}, s27 offen {OFL}")
    a("L_fin:")

def gen(cfg):
    a = Asm()
    a(f".globl {NAME}")
    a(".p2align 12")
    a(f".fill {cfg.get('pad', 3328)//4}, 4, 0xbf800000")
    a(".p2align 8")
    a(f".type {NAME},@function")
    a(f"{NAME}:")
    a("""
    s_cmp_ge_u32 s2, 256
    s_cbranch_scc1 L_end
    """)
    stamp(a, cfg, 0, real=True); stamp(a, cfg, 1)
    a("""
    s_load_dwordx4 s[4:7], s[0:1], 0
    s_load_dwordx8 s[36:43], s[0:1], 16
    v_lshrrev_b32 v2, 6, v0
    v_and_b32 v1, 63, v0
    v_readfirstlane_b32 s16, v2
    """)
    if cfg.get("codepf", 1):
        a.c("wave 0 touches an 8 KB share of the kernel's own code so that instruction fetch hits L2")
        a(f"""
        s_getpc_b64 s[26:27]
        L_pc:
        s_bfe_u32 s3, s2, 0x30003
        s_lshl_b32 s3, s3, 13
        s_cmp_eq_u32 s16, 0
        s_cbranch_scc0 L_nopf
        v_lshl_add_u32 v3, v1, 7, s3
        v_min_u32 v3, L_code_end - L_pc - 4, v3
        global_load_dword v0, v3, s[26:27]
        L_nopf:
        """)
    a("""
    s_cmp_lt_u32 s2, 240
    s_cbranch_scc0 L_idle
    """)
    a.c("tile: xcd j = id&7 ; u = (j>>2)*30 + (id>>3) ; cb(s17) = u>>2 ; tb(s18) = (j&3)*4 + (u&3)")
    a("""
    s_bfe_u32 s3, s2, 0x10002
    s_mul_i32 s3, s3, 30
    s_lshr_b32 s17, s2, 3
    s_add_u32 s3, s3, s17
    s_lshr_b32 s17, s3, 2
    s_and_b32 s3, s3, 3
    s_and_b32 s18, s2, 3
    s_lshl_b32 s18, s18, 2
    s_add_u32 s18, s18, s3
    s_cmp_lt_u32 s16, 4
    s_cbranch_scc1 L_qkv_cons
    """)
    phase1_loader(a, cfg)
    a("L_idle:")
    a.c("workgroups without a GEMM tile: clear the hand-off flags, raise 'ready' in d_debug, pull second-stage x rows into L2")
    a(f"""
    s_sub_u32 s3, s2, 240
    s_lshl_b32 s19, s3, 2
    s_mul_i32 s17, s3, {112*128}
    s_add_u32 s17, s17, {FB_OFF}
    s_and_b32 s3, s2, 3
    s_lshl_b32 s3, s3, 1
    s_bfe_u32 s18, s2, 0x10003
    s_add_u32 s3, s3, s18
    s_lshl_b32 s3, s3, 1
    s_and_b32 s18, s16, 1
    s_add_u32 s3, s3, s18
    s_mul_i32 s3, s3, {128*1280}
    s_lshr_b32 s18, s16, 1
    s_mul_i32 s18, s18, {16*1280}
    s_add_u32 s3, s3, s18
    s_add_u32 s20, s3, {64*1280}
    s_add_u32 s21, s20, 8192
    s_add_u32 s22, s20, 16384
    v_lshlrev_b32 v2, 7, v1
    v_min_u32 v3, {31*128}, v2
    v_mov_b32 v4, 0
    v_and_b32 v10, 15, v1
    v_lshlrev_b32 v10, 2, v10
    v_mov_b32 v11, {GO_ADDR}
    ds_write_b32 v11, v4
    s_waitcnt lgkmcnt(0)
    """)
    common_srds(a)
    srd(a, 8, 4, 2048 * 1280)
    a(f"""
    s_cmp_eq_u32 s16, 0
    s_cbranch_scc0 L_idle_nost
    s_add_u32 s18, s17, 8192
    buffer_store_dword v4, v2, {WS}, s17 offen sc1
    v_min_u32 v7, {47*128}, v2
    buffer_store_dword v4, v7, {WS}, s18 offen sc1
    v_mov_b32 v6, 1
    s_waitcnt vmcnt(0)
    s_mov_b64 exec, 1
    buffer_store_dword v6, v4, {DBG}, s19 offen sc1
    s_mov_b64 exec, -1
    L_idle_nost:
    """)
    if cfg.get("x2pf", 1):
        a(f"""
        buffer_load_dword v90, v2, s[8:11], s20 offen
        buffer_load_dword v91, v2, s[8:11], s21 offen
        buffer_load_dword v92, v3, s[8:11], s22 offen
        """)
    a("""
    s_cmp_eq_u32 s16, 0
    s_cbranch_scc0 L_rdy_i_ok
    """)
    poll(a, "L_rdy_i", 10, DBG, "0")
    a("""
    s_waitcnt vmcnt(0)
    s_barrier
    s_mov_b32 s63, 0
    s_mov_b32 s62, 0
    v_mov_b32 v12, 0
    v_mov_b32 v13, 0
    s_mov_b32 s60, 0
    s_cmp_lt_u32 s16, 4
    s_cbranch_scc1 L_late_setup
    """)
    attn_setup(a, cfg, early=True)
    a("s_branch L_early")
    a("L_qkv_cons:")
    late_qk, late_v = phase1_consumer(a, cfg)
    if cfg.get("suin", 1): a("s_branch L_late_have")
    a("L_late_setup:")
    attn_setup(a, cfg, early=False)
    a("L_late_have:")
    a(f"v_mov_b32 v11, {GO_ADDR + 81920}")
    a("v_mov_b32 v7, 0")
    a("s_barrier")
    a("""
    s_cmp_eq_u32 s63, 1
    s_cbranch_scc0 L_late_nqk
    """)
    for st in late_qk: a(st)
    a("""
    s_branch L_late_st
    L_late_nqk:
    s_cmp_eq_u32 s63, 2
    s_cbranch_scc0 L_late_st
    """)
    for st in late_v: a(st)
    a("""
    L_late_st:
    ds_write_b32 v11, v7
    s_barrier
    """)
    for g in kv_dma(2, back=81920): a(g)
    a("""
    s_waitcnt vmcnt(5)
    s_cmp_eq_u32 s63, 0
    s_cbranch_scc1 L_late_nofl
    """)
    raise_flag(a, "s60")
    a("L_late_nofl:")
    for g in kv_dma(3, back=81920): a(g)
    a("""
    s_waitcnt vmcnt(0) lgkmcnt(0)
    s_barrier
    """)
    wait_stage(a, cfg, "l", 0)
    stamp(a, cfg, 6)
    for g in kv_dma(0): a(g)
    qloads(a)
    a("s_waitcnt vmcnt(5) lgkmcnt(0)")
    stamp(a, cfg, 15)
    if not cfg.get("bl0"): a("s_barrier")
    for g in kv_dma(1): a(g)
    a("s_waitcnt vmcnt(5)")
    stamp(a, cfg, 7)
    attn_loop(a, cfg, early=False)
    a("s_branch L_epi")
    a("L_early:")
    wait_stage(a, cfg, "e", cfg.get("epoll", 5))
    stamp(a, cfg, 6)
    for g in kv_dma(0): a(g)
    qloads(a)
    for g in kv_dma(1): a(g)
    a("s_waitcnt vmcnt(5) lgkmcnt(0)")
    stamp(a, cfg, 5)
    a("s_barrier")
    stamp(a, cfg, 7)
    attn_loop(a, cfg, early=True)
    a("L_epi:")
    attn_epilogue(a, cfg)
    phase3(a, cfg)
    if cfg.get("stamp"): a("s_waitcnt vmcnt(0)")
    stamp(a, cfg, 13); stamp(a, cfg, 14, real=True)
    if cfg.get("xcc"):
        a("""
        s_waitcnt lgkmcnt(0)
        s_getreg_b32 s90, hwreg(HW_REG_XCC_ID, 0, 4)
        s_sub_u32 s90, s90, s2
        s_and_b32 s90, s90, 7
        s_mul_i32 s90, s90, 200
        """)
    stamp_flush(a, cfg, 0, 16, 8, wsptr=42)
    a("L_end:")
    a("s_endpgm")
    a("L_code_end:")
    attn_slow(a)
    TAIL.pop()()
    head = open("standalone__softmax_full_mha__prompt.s.ref").read().split("; Override launch")[0]
    descs = descriptor(NAME, 256)
    if cfg.get("probe"):
        import k_probe
        if cfg.get("lat"):
            head += "; @launch kernel=lat_kernel grid=(1,1,1) block=(64,1,1) lds=0\n"
            descs += k_probe.gen_lat(a, cfg)
        head += f"; @launch kernel={NAME} grid=(256,1,1) block=(512,1,1) lds=163840\n; @launch kernel=probe_kernel grid=(1,1,1) block=(64,1,1) lds=0\n"
        descs += k_probe.gen_probe(a, cfg)
    elif cfg.get("list"):
        head += f"; @launch kernel={NAME} grid=(256,1,1) block=(512,1,1) lds=163840\n"
    else:
        head += "; @launch grid=(256,1,1) block=(512,1,1) lds=163840\n"
    return head + '.amdgcn_target "amdgcn-amd-amdhsa--gfx950"\n.text\n' + a.text() + '.section .rodata,"a"\n' + descs

if __name__ == "__main__":
    cfg = json.loads(sys.argv[2]) if len(sys.argv) > 2 else {}
    open(sys.argv[1], "w").write(gen(cfg))
```

```python
import sys, json, struct, re
from asmlib import *
NAME = "standalone__softmax_full_mha__prompt_kernel"
HQ = 81920
HKV = 163840
KV_OFF = 32 * HQ
O_OFF = KV_OFF + 32 * HKV
FB_OFF = O_OFF + 128 * 20480
FA_OFF = FB_OFF + 1024 * 128
F2_OFF = FA_OFF + 256 * 128
F3_OFF = F2_OFF + 256 * 128
WS_BYTES = F3_OFF + 256 * 128
SLOT = [0, 24576, 49152, 81920, 106496, 131072, 0, 24576, 49152, 139264]
CSCALE = struct.unpack("<I", struct.pack("<f", (20 ** -0.5) * 1.4426950408889634))[0]
WS, WO, OUT, DBG = "s[44:47]", "s[48:51]", "s[52:55]", "s[56:59]"
SPIN_MAX = 1 << 18

def spin_head(a, label):
    a(f"{label}:")
def spin_tail(a, label, mult=1):
    a(f"""
    s_cselect_b32 s35, {SPIN_MAX*mult}, s35
    s_add_u32 s35, s35, 1
    s_cmp_lt_u32 s35, {SPIN_MAX*mult}
    s_cbranch_scc1 {label}
    {label}_ok:
    """)

def poll(a, label, vaddr, rsrc, soff, dst=5):
    a(f"""
    s_mov_b32 s35, 0
    {label}:
    buffer_load_dword v{dst}, v{vaddr}, {rsrc}, {soff} offen sc1
    s_waitcnt vmcnt(0)
    v_cmp_ne_u32 vcc, 0, v{dst}
    s_nop 0
    s_cmp_eq_u64 vcc, -1
    """)
    spin_tail(a, label)

def paced_poll(a, cfg, label, vaddrs, soff):
    pace = cfg.get("pace" + label[-1], -1)
    n = len(vaddrs)
    dst = [5, 3][:n]
    if pace < 0:
        a(f"s_mov_b32 s35, 0\n{label}:")
        if pace < -1: a(f"s_sleep {-pace}")
        for d, v in zip(dst, vaddrs): a(f"buffer_load_dword v{d}, v{v}, {WS}, {soff} offen sc1")
        a("s_waitcnt vmcnt(0)")
    else:
        for d in dst: a(f"v_mov_b32 v{d}, 0")
        a(f"s_mov_b32 s35, 0\n{label}:")
        for d, v in zip(dst, vaddrs): a(f"buffer_load_dword v{d}, v{v}, {WS}, {soff} offen sc1")
        if pace: a(f"s_sleep {pace}")
        a(f"s_waitcnt vmcnt({n * cfg.get('pdepth', 4)})")
    if n == 2: a("v_and_b32 v2, v5, v3"); a("v_cmp_ne_u32 vcc, 0, v2")
    else: a("v_cmp_ne_u32 vcc, 0, v5")
    a("s_nop 0")
    a("s_cmp_eq_u64 vcc, -1")
    spin_tail(a, label, mult=4)

def raise_flag(a, soff):
    a(f"""
    v_mov_b32 v2, 0
    v_mov_b32 v3, 1
    s_mov_b64 exec, 1
    buffer_store_dword v3, v2, {WS}, {soff} offen sc1
    s_mov_b64 exec, -1
    """)

def common_srds(a):
    srd(a, 44, 42, WS_BYTES)
    srd(a, 48, 36, 640 * 1280)
    srd(a, 52, 38, 2048 * 1280)
    srd(a, 56, 40, 256)

GO_ADDR = 81920 - 16
def phase1_loader(a, cfg):
    a.c("---------------- loader waves (become the early attention waves)")
    rot = cfg.get("rot", 2)
    NX0 = cfg.get("nx0", 7)
    if rot == 2:
        a("""
        s_add_u32 s100, s3, s17
        s_and_b32 s100, s100, 1
        s_mul_i32 s100, s100, 5
        """)
    elif rot == 3:
        a("""
        s_add_u32 s100, s3, s17
        s_mul_i32 s101, s100, 43
        s_lshr_b32 s101, s101, 7
        s_mul_i32 s101, s101, 3
        s_sub_u32 s100, s100, s101
        s_mul_i32 s100, s100, 7
        s_lshr_b32 s100, s100, 1
        """)
    elif rot == 4:
        a("""
        s_add_u32 s100, s3, s17
        s_and_b32 s100, s100, 3
        s_mul_i32 s100, s100, 5
        s_lshr_b32 s100, s100, 1
        """)
    else:
        a("s_mov_b32 s100, 0")
    xr = cfg.get("xrot", [0, 1, 3, 4, 3, 4, 1, 2])
    if xr:
        a(f"""
        s_and_b32 s101, s2, 7
        s_lshl_b32 s101, s101, 2
        s_lshr_b32 s101, {sum(v << (4*i) for i, v in enumerate(xr))}, s101
        s_and_b32 s101, s101, 15
        s_add_u32 s100, s100, s101
        s_sub_u32 s101, s100, 10
        s_cselect_b32 s100, s100, s101
        """)
    a(f"""
    s_and_b32 s19, s16, 3
    s_lshl_b32 s96, s19, 4
    s_lshr_b32 s101, s19, 1
    s_lshl_b32 s101, s101, 5
    s_and_b32 s34, s19, 1
    s_lshl_b32 s34, s34, 2
    s_add_u32 s101, s101, s34
    s_cmp_lt_u32 s17, 10
    s_cselect_b32 s96, s96, s101
    s_cselect_b32 s101, 4, 8
    s_mul_i32 s101, s101, 1280
    s_lshl_b32 s34, s18, 7
    s_add_u32 s96, s96, s34
    s_mul_i32 s96, s96, 1280
    v_lshrrev_b32 v2, 5, v1
    v_mul_u32_u24 v2, s101, v2
    v_bfe_u32 v3, v1, 3, 2
    v_mul_u32_u24 v3, 1280, v3
    v_lshrrev_b32 v5, 4, v1
    v_and_b32 v4, 7, v1
    v_xor_b32 v4, v4, v5
    v_lshlrev_b32 v4, 4, v4
    v_add3_u32 v8, v2, v3, v4
    v_xor_b32 v4, 64, v4
    v_add3_u32 v9, v2, v3, v4
    s_lshl_b32 s101, s101, 1
    s_sub_u32 s101, s101, 1024
    v_add_u32 v9, s101, v9
    v_and_b32 v3, 15, v1
    v_lshlrev_b32 v6, 1, v5
    v_xor_b32 v3, v3, v6
    v_mul_u32_u24 v2, 3840, v5
    v_lshl_add_u32 v16, v3, 4, v2
    v_add_u32 v17, {4*3840-1024}, v16
    v_xor_b32 v3, 8, v3
    v_lshl_add_u32 v18, v3, 4, v2
    v_add_u32 v19, {3*(4*3840-1024)}, v18
    v_add_u32 v18, {2*(4*3840-1024)}, v18
    s_mul_i32 s97, s19, {16*3840}
    s_lshl_b32 s3, s17, 8
    s_add_u32 s97, s97, s3
    s_lshl_b32 s98, s19, 11
    s_lshl_b32 s99, s19, 12
    s_mov_b32 s10, {2048*1280}
    s_mov_b32 s11, 0x00020000
    s_mov_b32 s14, {640*3840}
    s_mov_b32 s15, 0x00020000
    """)
    stamp(a, cfg, 8, grp="st")
    a("s_waitcnt lgkmcnt(0)")
    stamp(a, cfg, 9, grp="st")
    a(f"""
    s_mov_b32 s8, s4
    s_mov_b32 s9, s5
    s_mov_b32 s12, s6
    s_mov_b32 s13, s7
    """)
    XF1, XF2, WF_ = cfg.get("xfl", ""), cfg.get("x2fl", ""), cfg.get("wfl", "")
    def adv():
        a("""
        s_add_u32 s100, s100, 1
        s_cmp_eq_u32 s100, 10
        s_cselect_b32 s100, 0, s100
        """)
    def issue_x(lds, XF):
        a(f"""
        s_lshl_b32 s101, s100, 7
        s_add_u32 m0, s98, {lds}
        s_add_u32 s101, s101, s96
        """)
        for j in range(2):
            a(f"buffer_load_dwordx4 v{8+j}, s[8:11], s101 offen offset:{1024*j} {XF} lds")
    def issue(c):
        slot = SLOT[c]
        issue_x(slot, XF1)
        a(f"""
        s_mul_i32 s34, s100, {64*3840}
        s_add_u32 m0, s99, {slot+8192}
        s_add_u32 s34, s34, s97
        """)
        for j in range(4):
            a(f"buffer_load_dwordx4 v{16+j}, s[12:15], s34 offen offset:{1024*j} {WF_} lds")
        adv()
    def issue2(c):
        if c == 0: a(f"s_add_u32 s96, s96, {64*1280}")
        issue_x(81920 + 8192*c, XF2)
        if c < 9: adv()
    NPRE = cfg.get("npre", 3)
    groups = [[("c", c)] for c in range(10)]
    q = list(range(NX0))
    while q: groups.append([("x", i) for i in q[:3]]); q = q[3:]
    while len(groups) > 10 + NPRE:
        g = groups.pop(); groups[-1] = groups[-1] + g
    pend = []
    def put(g):
        for kind, i in g:
            if kind == "c": issue(i); pend.append(((kind, i), 6))
            else: issue2(i); pend.append(((kind, i), 2))
    def wait_for(item):
        k = [p[0] for p in pend].index(item)
        del pend[:k+1]
        a(f"s_waitcnt vmcnt({sum(p[1] for p in pend)})")
    for i in range(NPRE):
        put(groups.pop(0))
        if i == 0: stamp(a, cfg, 10, grp="st")
    common_srds(a)
    a(f"""
    v_and_b32 v10, 15, v1
    v_lshlrev_b32 v10, 2, v10
    s_lshl_b32 s60, s17, 4
    s_add_u32 s60, s60, s18
    s_lshl_b32 s60, s60, 7
    s_add_u32 s60, s60, {FA_OFF}
    """)
    t = Asm(); attn_setup(t, cfg, early=True)
    su = [l.strip() for l in t.lines if not l.strip().startswith(";")]
    at = cfg.get("esu", [0, 1, 2, 3, 4])
    per = -(-len(su) // len(at))
    def slice_(c):
        if c in at:
            for l in su[:per]: a(l)
            del su[:per]
    slice_(-1)
    for c in range(10):
        wait_for(("c", c))
        if c == 0: stamp(a, cfg, 2)
        if c in (3, 6): stamp(a, cfg, {3: 11, 6: 12}[c], grp="st")
        a("s_barrier")
        if groups: put(groups.pop(0))
        slice_(c)
    a(f"buffer_load_dword v5, v10, {DBG}, 0 offen sc1"); pend.append((("r", 0), 1))
    stamp(a, cfg, 3)
    wait_for(("x", 2))
    a("s_barrier")
    a(f"""
    v_mov_b32 v11, {GO_ADDR}
    v_mov_b32 v7, 0
    ds_write_b32 v11, v7
    s_waitcnt vmcnt(0)
    v_cmp_ne_u32 vcc, 0, v5
    s_waitcnt lgkmcnt(0)
    s_cmp_eq_u64 vcc, -1
    s_cbranch_scc1 L_rdy_l_ok
    """)
    poll(a, "L_rdy_l", 10, DBG, "0")
    if NX0 > 3: a("s_barrier")
    if not cfg.get("flfirst", 1):
        for q in range(NX0, 10): issue2(q)
    a("""
    s_barrier
    s_cmp_eq_u32 s16, 4
    s_cbranch_scc0 L_ld_nofl
    """)
    a(f"""
    s_mov_b64 exec, 1
    buffer_store_dword v{VONE}, v{VZ}, {WS}, s60 offen sc1
    s_mov_b64 exec, -1
    L_ld_nofl:
    """)
    stamp(a, cfg, 4)
    if cfg.get("flfirst", 1):
        for q in range(NX0, 10): issue2(q)
    NX1 = cfg.get("nx1", 10)
    if NX1 < 10:
        a(f"s_waitcnt vmcnt({2*(10-NX1)})")
        a("s_barrier")
    a("""
    s_waitcnt vmcnt(0)
    s_barrier
    s_branch L_early
    """)

def phase1_consumer(a, cfg):
    a.c("---------------- consumer waves (become the late attention waves)")
    XA, WA, ST, XF, AC, WR = 8, 10, 12, 16, 48, 96
    XB, WB = 4, 6
    SFLAG = cfg.get("sflag", 6)
    NX0 = cfg.get("nx0", 7)
    XBAR = {3, NX0, cfg.get("nx1", 10)}
    assert (NX0 == 3 or SFLAG >= 5) and SFLAG <= 2 * NX0 - 1
    a(f"""
    v_and_b32 v2, 15, v1
    v_lshrrev_b32 v3, 4, v1
    v_bfe_u32 v4, v1, 1, 3
    v_xor_b32 v4, v4, v3
    v_lshlrev_b32 v4, 4, v4
    v_lshl_add_u32 v{XA}, v2, 7, v4
    v_xor_b32 v{XA+1}, 64, v{XA}
    v_bfe_u32 v4, v1, 2, 2
    v_lshl_add_u32 v5, v3, 3, v4
    v_and_b32 v6, 1, v3
    v_lshl_or_b32 v4, v6, 2, v4
    s_lshl_b32 s3, s16, 1
    v_xor_b32 v4, s3, v4
    v_lshlrev_b32 v4, 5, v4
    v_lshl_add_u32 v4, v5, 8, v4
    v_and_b32 v5, 3, v1
    v_lshl_add_u32 v4, v5, 3, v4
    v_add_u32 v{WA}, 8192, v4
    v_xor_b32 v{WA+1}, 32, v{WA}
    s_lshl_b32 s60, s17, 2
    s_add_u32 s60, s60, s16
    s_lshl_b32 s60, s60, 4
    s_add_u32 s60, s60, s18
    s_lshl_b32 s60, s60, 7
    s_add_u32 s60, s60, {FB_OFF}
    s_mul_i32 s21, s18, 5120
    s_waitcnt lgkmcnt(0)
    """)
    common_srds(a)
    def xread(stage, ks, tt):
        c, s = divmod(ks, 2)
        if stage == 0: ad, off = (XA, SLOT[c]) if SLOT[c] < 81920 else (XB, SLOT[c] - 81920)
        else: ad, off = (XB, c * 8192) if c < 5 else (XA, (c - 5) * 8192)
        return f"ds_read_b128 {vr(XF+16*(ks&1)+4*tt,4)}, v{ad+s} offset:{off+2048*tt}"
    def wread(ks, ct, u):
        c, s = divmod(ks, 2)
        ad, off = (WA, SLOT[c]) if SLOT[c] < 81920 else (WB, SLOT[c] - 81920)
        if c == 9: off -= 8192
        return f"ds_read_b64_tr_b16 {vr(WR+8*ks+4*ct+2*u,2)}, v{ad+ct} offset:{off+(32*s+4*u)*256}"
    def reads(stage, ks):
        if stage == 0:
            return [wread(ks,0,0), wread(ks,0,1), xread(0,ks,0), wread(ks,1,0), wread(ks,1,1), xread(0,ks,1), xread(0,ks,2), xread(0,ks,3)]
        return [xread(1,ks,tt) for tt in range(4)]
    def gemm(isv, epi):
        t = Asm(); attn_setup(t, cfg, early=False)
        su = [l.strip() for l in t.lines if not l.strip().startswith(";")] if cfg.get("suin", 1) else []
        def filler(ks, n):
            while n and su:
                m = re.match(r"v_\w+ v\[?(\d+)", su[0])
                if m and int(m.group(1)) >= WR + 8 * ks: return
                a(su.pop(0)); n -= 1
        for i in range(2):
            a(f"v_add_u32 v{XB+i}, 81920, v{XA+i}")
            a(f"v_add_u32 v{WB+i}, 81920, v{WA+i}")
        a("s_barrier")
        stamp(a, cfg, 2)
        a(".p2align 3")
        for r in reads(0, 0): a(r)
        for stage in range(2):
            for ks in range(20):
                fl = stage == 1 and ks == SFLAG
                nxt = []
                bar = False
                if ks < 19:
                    nxt = reads(stage, ks + 1)
                    if ks % 2 == 1: bar = stage == 0 or ((ks + 1) // 2) in XBAR
                if fl and bar and (ks + 1) // 2 != NX0:
                    a("s_waitcnt lgkmcnt(0)"); a("s_barrier"); a("s_waitcnt vmcnt(0)"); a("s_barrier")
                elif fl and bar:
                    a("s_waitcnt vmcnt(0) lgkmcnt(0)"); a("s_barrier"); a("s_barrier"); a("s_nop 0")
                else:
                    a("s_waitcnt vmcnt(0) lgkmcnt(0)" if fl else "s_waitcnt lgkmcnt(0)")
                    a("s_barrier" if bar or fl else "s_nop 0")
                if fl: stamp(a, cfg, 4)
                if stage == 0 and ks == 13:
                    for i in range(2): a(f"v_add_u32 v{WB+i}, 8192, v{WB+i}")
                if stage == 1 and ks in (5, 13, 19): stamp(a, cfg, {5: 10, 13: 11, 19: 12}[ks], grp="p1")
                per = 2 if stage == 0 else 1
                for i in range(8):
                    tt, ct = i >> 1, (i & 1) ^ ((i >> 1) & 1)
                    acc = AC + 8 * tt + 4 * ct
                    x, w = vr(XF+16*(ks&1)+4*tt, 4), vr(WR+8*ks+4*ct, 4)
                    A, B = (x, w) if isv else (w, x)
                    c = "0" if ks == 0 else vr(acc, 4)
                    a(f"v_mfma_f32_16x16x32_bf16 {vr(acc,4)}, {A}, {B}, {c}")
                    if stage == 1 and ks >= cfg.get("su0", 5) and su and su[0].startswith("s_"): filler(ks, 1)
                    for r in nxt[per*i:per*i+per]: a(r)
                    if stage == 1 and ks >= cfg.get("su0", 5): filler(ks, 1 if nxt[i:i+1] else 2)
            if stage == 0:
                stamp(a, cfg, 3)
                a(f"v_add_u32 v{XA}, 122880, v{XA}")
                a(f"v_add_u32 v{XA+1}, 122880, v{XA+1}")
                epi(0)
                stamp(a, cfg, 8, grp="p1")
                if cfg.get("ackdiag"): a("s_waitcnt vmcnt(0)")
                a("s_barrier")
                stamp(a, cfg, 9, grp="p1")
                a(".p2align 3")
                for r in reads(1, 0): a(r)
            else:
                a("s_nop 1")
                epi(1)
                filler(20, 999)
    a("""
    s_cmp_lt_u32 s17, 10
    s_cbranch_scc0 L_qkv_v
    """)
    a.c("Q/K tiles: G = (cb%5)*32 + 8w + 4ct + g ; head = G/5 ; pos = G%5")
    a(f"""
    s_cmp_lt_u32 s17, 5
    s_cselect_b32 s25, 0, 81920
    s_cselect_b32 s12, {CSCALE}, 1.0
    s_cselect_b32 s23, 0, {KV_OFF}
    s_cselect_b32 s3, 0, 5
    s_add_u32 s24, s25, {HQ-2560}
    s_max_u32 s22, s25, 2560
    s_mov_b32 s13, s12
    s_add_u32 s21, s21, s23
    s_add_u32 s62, s22, s21
    s_sub_u32 s3, s17, s3
    s_lshl_b32 s3, s3, 2
    s_add_u32 s3, s3, s16
    s_lshl_b32 s3, s3, 3
    v_add_u32 v6, s3, v3
    v_lshlrev_b32 v4, 3, v2
    """)
    for ct in range(2):
        a(f"""
        v_add_u32 v7, {4*ct}, v6
        v_mul_u32_u24 v5, 52429, v7
        v_lshrrev_b32 v5, 18, v5
        v_lshl_add_u32 v7, v7, 9, v4
        v_mad_u32_u24 v{ST+ct}, v5, s24, v7
        """)
    late_qk, late_v = [], []
    def epi_qk(stage):
        for i in range(8):
            tt, ct = i >> 1, (i & 1) ^ ((i >> 1) & 1)
            acc = AC + 8 * tt + 4 * ct
            d = 80 + 2 * i
            a(f"v_pk_mul_f32 {vr(acc,2)}, {vr(acc,2)}, s[12:13]")
            a(f"v_pk_mul_f32 {vr(acc+2,2)}, {vr(acc+2,2)}, s[12:13]")
            a(f"v_cvt_pk_bf16_f32 v{d}, v{acc}, v{acc+1}")
            a(f"v_cvt_pk_bf16_f32 v{d+1}, v{acc+2}, v{acc+3}")
            st = f"buffer_store_dwordx2 {vr(d,2)}, v{ST+ct}, {WS}, s{62 if stage else 21} offen offset:{128*tt} sc1"
            if stage == 0: a(st)
            else: late_qk.append(st)
    gemm(False, epi_qk)
    a("s_mov_b32 s63, 1")
    a("s_branch L_qkv_fin")
    a("L_qkv_v:")
    a.c("V tiles: col = (cb-10)*128 + 32w + 16ct + n ; head = col/20 ; d = col%20")
    a(f"""
    s_sub_u32 s3, s17, 10
    s_lshl_b32 s3, s3, 2
    s_add_u32 s3, s3, s16
    s_lshl_b32 s3, s3, 5
    v_add_u32 v6, s3, v2
    s_add_u32 s21, s21, {KV_OFF+2560}
    s_add_u32 s62, s21, 81920
    v_mul_u32_u24 v4, 320, v3
    s_mov_b32 s24, {HKV - 320}
    """)
    for ct in range(2):
        a(f"""
        v_add_u32 v7, {16*ct}, v6
        v_mul_u32_u24 v5, 13108, v7
        v_lshrrev_b32 v5, 18, v5
        v_lshl_add_u32 v7, v7, 4, v4
        v_mad_u32_u24 v{ST+ct}, v5, s24, v7
        """)
    def epi_v(stage):
        a("s_nop 2")
        for P in range(2):
            for ct in range(2):
                d = 80 + 8 * P + 4 * ct
                for ab in range(2):
                    acc = AC + 8 * (2 * P + ab) + 4 * ct
                    a(f"v_cvt_pk_bf16_f32 v{d+2*ab}, v{acc}, v{acc+1}")
                    a(f"v_cvt_pk_bf16_f32 v{d+2*ab+1}, v{acc+2}, v{acc+3}")
                st = f"buffer_store_dwordx4 {vr(d,4)}, v{ST+ct}, {WS}, s{62 if stage else 21} offen offset:{1280*P} sc1"
                if stage == 0: a(st)
                else: late_v.append(st)
    gemm(True, epi_v)
    a("s_mov_b32 s63, 2")
    a("L_qkv_fin:")
    stamp(a, cfg, 5)
    return late_qk, late_v

SA, SB = 178, 210
O0, O1 = 146, 162
QM0, QM1, QT = 242, 246, 250
KM, KT = 16, 24
VV, SENT, WOA = 96, 112, 116
VL16, VQ, VQT, VPOLL = 121, 122, 123, 124
VOM, VOT, VXW, VXR, VONE, VZ = 126, 127, 128, 129, 130, 131
IDX, VKE, VKO, VT, VV0, VV1 = 132, 133, 134, 135, 136, 137

P3 = 138
PK = 70
def p3_kh(a, cfg, d):
    a(f"s_lshr_b32 s{d}, s16, 2")
    if cfg.get("khswap"):
        a(f"""
        s_bfe_u32 s3, s2, 0x10005
        s_xor_b32 s{d}, s{d}, s3
        """)
def p3_setup(a, cfg):
    p3_kh(a, cfg, 30)
    a(f"""
    s_and_b32 s31, s16, 3
    s_mul_i32 s3, s30, 51200
    v_lshrrev_b32 v2, 5, v1
    v_bfe_u32 v3, v1, 4, 1
    v_bfe_u32 v14, v1, 2, 2
    v_mul_u32_u24 v15, 20, v2
    v_lshl_add_u32 v15, v3, 2, v15
    v_add_u32 v15, v15, v14
    v_mul_u32_u24 v15, 160, v15
    v_and_b32 v2, 3, v1
    v_lshl_add_u32 v2, v2, 3, s3
    v_add_u32 v{P3}, v15, v2
    v_lshrrev_b32 v3, 4, v1
    v_mul_u32_u24 v15, 20, v3
    v_add3_u32 v15, v15, 16, v14
    v_mul_u32_u24 v15, 160, v15
    v_add_u32 v{P3+1}, v15, v2
    s_mul_i32 s3, s31, 5120
    s_add_u32 s3, s3, 143360
    v_add_u32 v{P3+2}, s3, v{VL16}
    s_mul_i32 s3, s31, 3584
    s_add_u32 s3, s3, 102400
    v_and_b32 v2, 15, v1
    v_mul_u32_u24 v2, 176, v2
    v_lshl_add_u32 v2, v3, 3, v2
    v_add_u32 v{P3+3}, s3, v2
    s_and_b32 s40, s2, 7
    s_lshl_b32 s40, s40, 12
    s_add_u32 s40, s40, {F2_OFF}
    s_lshl_b32 s41, s17, 2
    s_add_u32 s41, s41, s31
    s_mul_i32 s41, s41, 20480
    v_lshrrev_b32 v2, 1, v1
    v_lshlrev_b32 v{P3+7}, 7, v2
    """)
    for i in range(5):
        a(f"""
        v_add_u32 v2, {64*i}, v1
        v_mul_u32_u24 v3, 6554, v2
        v_lshrrev_b32 v3, 16, v3
        v_mul_u32_u24 v14, {1280-160}, v3
        v_lshl_add_u32 v{WOA+i}, v2, 4, v14
        """)
        if i < 3:
            a(f"""
            v_add_u32 v14, v2, v3
            v_lshl_add_u32 v{P3+4+i}, v14, 4, s3
            """)

def attn_setup(a, cfg, early, keep5=False):
    late = 0 if early else 1
    a.c("attention ids: s17=head s18=q pair s19=key half s21=KV base of head")
    a(f"""
    s_and_b32 s17, s2, 7
    s_lshl_b32 s17, s17, 2
    s_bfe_u32 s3, s2, 0x20003
    s_add_u32 s17, s17, s3
    s_lshr_b32 s29, s2, 5
    s_lshl_b32 s18, s29, 2
    s_and_b32 s3, s16, 2
    s_add_u32 s18, s18, s3
    s_add_u32 s18, s18, {late}
    s_and_b32 s19, s16, 1
    s_mul_i32 s20, s19, 5120
    v_and_b32 v2, 31, v1
    v_lshrrev_b32 v3, 5, v1
    v_lshlrev_b32 v14, 3, v2
    v_lshl_add_u32 v{VQ}, v3, 9, v14
    v_add_u32 v{VKE}, s20, v{VQ}
    v_add_u32 v{VKO}, 256, v{VKE}
    v_lshlrev_b32 v14, 3, v1
    v_add_u32 v{VT}, s20, v14
    s_lshl_b32 s3, s19, 8
    v_xor_b32 v{VQT}, s3, v14
    v_mul_u32_u24 v15, 320, v3
    v_lshl_add_u32 v15, v2, 4, v15
    s_add_u32 s3, s20, 2560
    v_add_u32 v{VV0}, s3, v15
    v_add_u32 v{VV1}, 40960, v{VV0}
    v_lshlrev_b32 v{VL16}, 4, v1
    v_mov_b32 v{IDX}, 0xdddddddd
    s_mov_b32 s24, 0x000fffff
    s_mov_b32 s25, 0x000fffff
    v_cmp_eq_u32 vcc, 20, v2
    v_mov_b32 v15, 0x3f803f80
    s_mul_i32 s21, s17, {HKV}
    v_cndmask_b32 v{VV}, 0, v15, vcc
    s_add_u32 s21, s21, {KV_OFF}
    """)
    a(f"v_mov_b32 v{VV+1}, v{VV}")
    for i in range(1, 8): a(f"v_mov_b64 {vr(VV+2*i,2)}, {vr(VV,2)}")
    a.c("s22/s23: Q soffsets role0/role1, s26: Q pair base ; s27: first token block of this wave's K/V units ; s28: dma lds dest")
    a(f"""
    s_mul_i32 s26, s18, 2560
    s_mul_i32 s3, s17, {HQ}
    s_add_u32 s26, s26, s3
    s_lshl_b32 s3, s19, 8
    s_add_u32 s22, s26, s3
    s_xor_b32 s3, s3, 256
    s_add_u32 s23, s26, s3
    s_and_b32 s28, s16, 3
    s_mul_i32 s27, s29, {cfg.get("krot", 0)}
    s_add_u32 s27, s27, s28
    s_mul_i32 s28, s28, 5120
    s_add_u32 s28, s28, {late*81920}
    s_add_u32 s61, s21, {late*81920}
    """)
    a.c("O tile of this wave = 2*pair + (1^kh): s36/s37 store offsets, s38 workgroup flag, s39 wave flag")
    a(f"""
    s_lshl_b32 s30, s18, 1
    s_xor_b32 s31, s19, 1
    s_add_u32 s30, s30, s31
    s_mul_i32 s37, s30, 40960
    s_add_u32 s37, s37, {O_OFF}
    s_lshl_b32 s36, s17, 9
    s_add_u32 s36, s36, s37
    s_lshl_b32 s3, s17, 7
    s_add_u32 s37, s37, s3
    s_add_u32 s37, s37, 16384
    s_lshr_b32 s38, s2, 5
    s_lshl_b32 s38, s38, 12
    s_add_u32 s38, s38, s3
    s_add_u32 s38, s38, {F2_OFF}
    s_add_u32 s39, s38, {F3_OFF - F2_OFF}
    v_bfe_u32 v2, v1, 4, 1
    v_mul_u32_u24 v2, 20480, v2
    v_and_b32 v3, 15, v1
    v_lshl_add_u32 v{VOT}, v3, 3, v2
    v_lshl_add_u32 v2, v3, 4, v2
    v_lshrrev_b32 v3, 5, v1
    v_lshl_add_u32 v{VOM}, v3, 8, v2
    s_mul_i32 s3, s16, 3072
    s_add_u32 s3, s3, 102400
    v_add_u32 v{VXW}, s3, v{VL16}
    s_xor_b32 s3, s16, 1
    s_mul_i32 s3, s3, 3072
    s_add_u32 s3, s3, 102400
    v_add_u32 v{VXR}, s3, v{VL16}
    v_mov_b64 {vr(SENT,2)}, -1
    v_mov_b64 {vr(SENT+2,2)}, -1
    v_mov_b32 v{VONE}, 1
    v_mov_b32 v{VZ}, 0
    """)
    p3_setup(a, cfg)
    sh, sec = (7, 5) if early else (5, 20)
    a.c("poll addresses of the polling wave: K/V producers of all 16 token blocks, Q producers of both pairs")
    a(f"""
    s_mul_i32 s30, s17, 20
    s_add_u32 s31, s30, 19
    s_lshr_b32 s30, s30, {sh}
    s_lshr_b32 s31, s31, {sh}
    s_sub_u32 s31, s31, s30
    v_and_b32 v2, 1, v1
    v_mul_u32_u24 v2, s31, v2
    v_add_u32 v2, s30, v2
    v_lshrrev_b32 v14, 5, v1
    v_mul_u32_u24 v3, {sec}, v14
    v_add3_u32 v3, v2, v3, {sec}
    v_bfe_u32 v15, v1, 1, 4
    v_lshl_add_u32 v3, v3, 4, v15
    v_lshlrev_b32 v{VPOLL}, 7, v3
    v_bfe_u32 v2, v1, 4, 1
    v_mul_u32_u24 v2, s31, v2
    v_add_u32 v2, s30, v2
    s_lshr_b32 s3, s2, 5
    s_lshl_b32 s3, s3, 1
    v_lshl_add_u32 v2, v2, 4, v14
    v_add_u32 v2, s3, v2
    v_lshlrev_b32 v{VPOLL+1}, 7, v2
    s_mov_b32 s33, {FA_OFF if early else FB_OFF}
    """)
    for i in range(16): a(f"v_mov_b64 {vr(O0+2*i,2)}, 0")

def wait_stage(a, cfg, tag, wave):
    a(f"""
    s_mov_b32 s35, 0
    v_mov_b32 v7, 1
    s_cmp_eq_u32 s16, {wave}
    s_cbranch_scc0 L_gw{tag}
    """)
    paced_poll(a, cfg, f"L_poll1{tag}", [VPOLL, VPOLL+1], "s33")
    a(f"""
    ds_write_b32 v11, v7
    s_branch L_gw{tag}_ok
    L_gw{tag}:
    {"s_sleep " + str(cfg.get('gs' + tag, 1)) if cfg.get('gs' + tag, 1) else ""}
    ds_read_b32 v7, v11
    s_waitcnt lgkmcnt(0)
    v_readfirstlane_b32 s34, v7
    s_cmp_lg_u32 s34, 0
    """)
    spin_tail(a, f"L_gw{tag}", mult=16)

def kread(t):
    tl = t & 15
    o = 20 * (tl >> 1)
    return f"ds_read2st64_b64 {vr(KM+4*(t&1),4)}, v{VKO if t & 1 else VKE} offset0:{o} offset1:{o+2}"
def tread(b):
    o = 40 * (b & 3)
    return f"ds_read2st64_b64 {vr(KT+4*(b&1),4)}, v{VT} offset0:{o+4} offset1:{o+24}"
def vread(t, f):
    tl = t & 15
    ad = VV0 if tl < 8 else VV1
    return f"ds_read_b128 {vr(VV+8*(t&1)+4*f,4)}, v{ad} offset:{10240*((tl>>1)&3)+1280*(t&1)+640*f}"
def Tm(t, dst):
    b, T = divmod(t, 4)
    return f"v_mfma_f32_32x32x4_2b_bf16 {vr(dst,32)}, {vr(KT+4*(b&1)+2*(T>>1),2)}, {vr(QT,2)}, 0 cbsz:1 abid:{T&1}"
def Mm(t, dst, r):
    return f"v_mfma_f32_32x32x16_bf16 {vr(dst+16*r,16)}, {vr(KM+4*(t&1),4)}, {vr(QM1 if r else QM0,4)}, {vr(dst+16*r,16)}"
def Pm(o, t, f, s):
    return f"v_smfmac_f32_32x32x32_bf16 {vr(o,16)}, {vr(VV+8*(t&1)+4*f,4)}, {vr(s,8)}, v{IDX}"

def qloads(a):
    a(f"""
    buffer_load_dwordx2 {vr(QT,2)}, v{VQT}, {WS}, s26 offen offset:2048 sc1
    buffer_load_dwordx2 {vr(QM0,2)}, v{VQ}, {WS}, s22 offen sc1
    buffer_load_dwordx2 {vr(QM0+2,2)}, v{VQ}, {WS}, s22 offen offset:1024 sc1
    buffer_load_dwordx2 {vr(QM1,2)}, v{VQ}, {WS}, s23 offen sc1
    buffer_load_dwordx2 {vr(QM1+2,2)}, v{VQ}, {WS}, s23 offen offset:1024 sc1
    """)
def kv_dma(i, back=0):
    g = [f"""
        s_add_u32 s3, s27, {4*i}
        s_and_b32 s3, s3, 15
        s_mul_i32 s3, s3, 5120
        s_sub_u32 s3, s3, {back}
        s_add_u32 m0, s28, {(i*20480 - back) & 0xffffffff}
        s_add_u32 s29, s61, s3
        buffer_load_dwordx4 v{VL16}, {WS}, s29 offen sc1 lds"""]
    for j in range(1, 4):
        g.append(f"buffer_load_dwordx4 v{VL16}, {WS}, s29 offen offset:{1024*j} sc1 lds")
    g.append(f"""
        s_add_u32 m0, s28, {(i*20480+4096 - back) & 0xffffffff}
        s_add_u32 s29, s29, 4096
        buffer_load_dwordx4 v{VL16}, {WS}, s29 offen sc1 lds""")
    return g
def wo_dma(nper):
    g = []
    for p in range(nper):
        for i in range(5):
            pre = ""
            if i == 0:
                pre = f"""
                s_add_u32 s31, s30, {p*8*32*1280}
                """
            g.append(pre + f"""
                s_add_u32 m0, s32, {p*8*5120 + 1024*i}
                s_nop 0
                buffer_load_dwordx4 v{WOA+i}, {WO}, s31 offen lds
                s_nop 0""")
    return g

def attn_loop(a, cfg, early):
    tag = "e" if early else "l"
    a(f"s_setprio {3 if early else 2}")
    a(tread(0)); a(kread(0)); a(kread(1))
    a("s_mov_b64 exec, s[24:25]"); a(vread(0, 0)); a(vread(0, 1)); a("s_mov_b64 exec, -1")
    a.c("wo dma: s30 source, s32 lds dest")
    a(f"""
    s_lshr_b32 s3, s2, 5
    s_mul_i32 s30, s3, 160
    s_mul_i32 s3, s16, {32*1280}
    s_add_u32 s30, s30, s3
    s_mul_i32 s32, s16, 5120
    s_waitcnt lgkmcnt({0 if cfg.get('stamp') else 4})
    """)
    if cfg.get("lp", {}).get("pro"): a("s_memtime s[70:71]")
    a(Tm(0, SA)); a("s_nop 15"); a("s_nop 1"); a("s_waitcnt lgkmcnt(3)")
    a(Mm(0, SA, 0)); a(Mm(0, SA, 1)); a("s_nop 10")
    dma = {}
    be, bl = cfg.get("be", [18, 20, 26]), cfg.get("bl", [11, 20, 26])
    assert (be[0] == be[1]) == (bl[0] == bl[1])
    assert be[0] <= 18 and min(be[1], bl[1]) >= 15 and min(be[2], bl[2]) >= 25
    if early:
        B2, C1, C2 = be
        bars = {2: "vmcnt(0)", 6: None, 14: None, B2: None, C1: None, C2: None}
        prio = cfg.get("prio_e", {"14": 1, "20": 3, "25": 1, "26": 3, "29": 2, "31": 1})
    else:
        B2, C1, C2 = bl
        bars = {C1: None, C2: None}
        bars[B2] = "vmcnt(0)"
        b0 = cfg.get("bl0", 0)
        if b0: bars[b0] = None
        dma[b0] = kv_dma(2); dma[b0 + 1] = kv_dma(3)
        assert B2 >= b0 + 3
        prio = cfg.get("prio_l", {"19": 0, "20": 2, "25": 0, "26": 3, "29": 2, "30": 1, "31": 0})
    prio = {int(k): v for k, v in prio.items()}
    wo = wo_dma(2 if early else 3)
    for i in range(5): dma[C1 + i] = wo[2*i:2*i+2]
    for i in range(3): dma[C2 + i] = wo[10+2*i:12+2*i]
    if cfg.get("opt", 1):
        ts = cfg.get("tsent", [15, 6])[0 if early else 1]
        assert not dma.get(ts)
        dma[ts] = [f"buffer_store_dwordx4 {vr(SENT,4)}, v{VOM}, {WS}, s36 offen sc1",
            f"""s_mov_b32 exec_hi, 0
            buffer_store_dwordx2 {vr(SENT,2)}, v{VOT}, {WS}, s37 offen sc1
            s_mov_b32 exec_hi, -1"""]
    a(".p2align 3")
    for t in range(32):
        cur, nxt = (SA, SB) if t % 2 == 0 else (SB, SA)
        e = iter(range(32))
        def E(n):
            for _ in range(n):
                i = next(e); a(f"v_exp_f32 v{cur+i}, v{cur+i}")
        dq = list(dma.get(t, []))
        def D(n):
            for _ in range(n):
                if dq: a(dq.pop(0))
        many = len(dq) > 2
        a.c(f"step {t}")
        E(2)
        if t > 0: a(Pm(O1, t-1, 1, nxt+24))
        vm = bars.get(t)
        a(f"s_waitcnt {vm + ' ' if vm else ''}lgkmcnt(0)")
        n4 = 1
        lp = cfg.get("lp", {}).get(tag + str(t))
        if lp and lp[0]: a(f"s_memtime s[{64+2*lp[0]}:{65+2*lp[0]}]")
        if t in bars: a("s_barrier"); n4 += 1
        if lp and lp[1]: a(f"s_memtime s[{64+2*lp[1]}:{65+2*lp[1]}]")
        if t in prio: a(f"s_setprio {prio[t]}"); n4 += 1
        if n4 % 2: a("s_nop 0")
        if t == 14:
            for r in (VKE, VKO, VT, VV0): a(f"v_add_u32 v{r}, 81920, v{r}")
        if t == 16: a(f"v_add_u32 v{VV1}, 81920, v{VV1}")
        if t + 2 < 32: a(kread(t+2))
        if many: D(1)
        E(4)
        if t < 31: a(Tm(t+1, nxt))
        E(8)
        a(Pm(O0, t, 0, cur))
        one = early and t < cfg.get("vone", 16)
        if one: a("s_mov_b64 exec, s[24:25]"); a(vread(t+1, 0)); a(vread(t+1, 1)); a("s_mov_b64 exec, -1")
        elif t < 31: a("s_mov_b64 exec, s[24:25]"); a(vread(t+1, 0)); a("s_mov_b64 exec, -1")
        if many: D(1)
        E(4)
        a(Pm(O0, t, 1, cur+8))
        if t < 31 and not one: a("s_mov_b64 exec, s[24:25]"); a(vread(t+1, 1)); a("s_mov_b64 exec, -1")
        if many: D(1)
        E(4)
        if t < 31: a(Mm(t+1, nxt, 0))
        D(1)
        E(4)
        a(Pm(O1, t, 0, cur+16))
        if t % 4 == 2 and t // 4 < 7: a(tread(t//4+1))
        D(1)
        E(4)
        if t < 31: a(Mm(t+1, nxt, 1))
        else:
            a.c("hand the role-0 tile to the partner wave (other key half)")
            for i in (2, 0, 1): a(f"ds_write_b128 v{VXW}, {vr(O0+4*i,4)} offset:{1024*i}")
        E(2)
        assert not dq

def attn_epilogue(a, cfg):
    stamp(a, cfg, 8)
    if cfg.get("lp"): a("s_memtime s[88:89]")
    a(f"""
    s_setprio 0
    s_nop 0
    {Pm(O1, 31, 1, SB+24)}
    s_waitcnt vmcnt(0) lgkmcnt(0)
    s_barrier
    ds_read_b128 {vr(O0+8,4)}, v{VXR} offset:2048
    ds_read_b128 {vr(O0,4)}, v{VXR}
    ds_read_b128 {vr(O0+4,4)}, v{VXR} offset:1024
    """)
    if cfg.get("opt", 1) and cfg.get("notice", 1) == 2: notice(a, cfg, False)
    a("""
    s_nop 6
    s_waitcnt lgkmcnt(2)
    """)
    a(f"""
    v_pk_add_f32 {vr(O1+8,2)}, {vr(O1+8,2)}, {vr(O0+8,2)}
    v_pk_add_f32 {vr(O1+10,2)}, {vr(O1+10,2)}, {vr(O0+10,2)}
    v_mov_b32 v7, v{O1+8}
    v_mov_b32 v9, v{O1+8}
    s_mov_b32 s30, 0x21800000
    s_waitcnt lgkmcnt(1)
    v_permlane32_swap_b32 v7, v9
    v_pk_add_f32 {vr(O1,2)}, {vr(O1,2)}, {vr(O0,2)}
    v_pk_add_f32 {vr(O1+2,2)}, {vr(O1+2,2)}, {vr(O0+2,2)}
    s_mov_b32 s31, 0x5d800000
    s_waitcnt lgkmcnt(0)
    v_pk_add_f32 {vr(O1+4,2)}, {vr(O1+4,2)}, {vr(O0+4,2)}
    v_pk_add_f32 {vr(O1+6,2)}, {vr(O1+6,2)}, {vr(O0+6,2)}
    """)
    a.c("run-time check of the shift-free softmax: row sum in [2^-60, 2^60], finite accumulators; else redo with the true row max")
    a(f"""
    v_cmp_le_f32 s[32:33], s30, v9
    v_cmp_ge_f32 s[34:35], s31, v9
    v_pk_mul_f32 v[10:11], {vr(O1+8,2)}, 0
    """)
    for i in (10, 0, 2, 4, 6): a(f"v_pk_fma_f32 v[10:11], {vr(O1+i,2)}, 0, v[10:11]")
    a(f"""
    s_and_b64 s[32:33], s[32:33], s[34:35]
    v_cmp_o_f32 vcc, v10, v11
    v_rcp_f32 v8, v9
    s_and_b64 s[32:33], s[32:33], vcc
    s_cmp_eq_u64 s[32:33], -1
    s_cbranch_scc0 L_attn_slow
    L_attn_fin:
    """)
    for i in range(4): a(f"v_pk_mul_f32 {vr(O1+2*i,2)}, {vr(O1+2*i,2)}, v[8:9] op_sel_hi:[1,0]")
    for i in range(4): a(f"v_cvt_pk_bf16_f32 v{PK+i}, v{O1+2*i}, v{O1+2*i+1}")
    a(f"buffer_store_dwordx4 {vr(PK,4)}, v{VOM}, {WS}, s36 offen sc1")
    for i in range(4, 6): a(f"v_pk_mul_f32 {vr(O1+2*i,2)}, {vr(O1+2*i,2)}, v[8:9] op_sel_hi:[1,0]")
    for i in range(4, 6): a(f"v_cvt_pk_bf16_f32 v{PK+i}, v{O1+2*i}, v{O1+2*i+1}")
    a(f"""
    s_mov_b32 exec_hi, 0
    buffer_store_dwordx2 {vr(PK+4,2)}, v{VOT}, {WS}, s37 offen sc1
    s_mov_b32 exec_hi, -1
    """)
    stamp(a, cfg, 9)
    if cfg.get("opt", 1) and cfg.get("notice", 1) < 2: notice(a, cfg, cfg.get("notice", 1) == 0)

def notice(a, cfg, bar):
    a.c("early notice: readers check the tiles for the filler words written before and fall back to the acknowledged flags")
    if bar: a("s_barrier")
    a(f"""
    s_cmp_eq_u32 s16, {cfg.get("nw", 0)}
    s_cbranch_scc0 L_nonotice
    s_mov_b64 exec, 1
    buffer_store_dword v{VONE}, v{VZ}, {WS}, s38 offen sc1
    s_mov_b64 exec, -1
    L_nonotice:
    """)

def attn_slow(a):
    a("L_attn_slow:")
    a(f"""
    v_and_b32 v2, 31, v1
    v_lshlrev_b32 v14, 3, v2
    v_lshrrev_b32 v3, 5, v1
    v_mul_u32_u24 v3, 320, v3
    v_lshl_add_u32 v15, v2, 4, v3
    v_mov_b32 v10, 0xff800000
    s_mov_b32 s34, 0
    """)
    for i in range(16): a(f"v_mov_b32 v{O1+i}, 0")
    a(f"""
    L_slow_pass:
    s_mov_b32 s35, 0
    L_slow_tile:
    s_lshr_b32 s30, s35, 1
    s_mul_i32 s30, s30, 5120
    s_add_u32 s30, s30, s21
    s_and_b32 s3, s35, 1
    s_mul_i32 s31, s3, 1280
    s_add_u32 s31, s31, s30
    s_lshl_b32 s3, s3, 8
    s_add_u32 s30, s30, s3
    buffer_load_dwordx2 {vr(KT,2)}, v14, {WS}, s30 offen offset:2048 sc1
    buffer_load_dwordx2 {vr(KM,2)}, v{VQ}, {WS}, s30 offen sc1
    buffer_load_dwordx2 {vr(KM+2,2)}, v{VQ}, {WS}, s30 offen offset:1024 sc1
    s_mov_b64 exec, s[24:25]
    buffer_load_dwordx4 {vr(VV,4)}, v15, {WS}, s31 offen offset:2560 sc1
    buffer_load_dwordx4 {vr(VV+4,4)}, v15, {WS}, s31 offen offset:3200 sc1
    s_mov_b64 exec, -1
    s_waitcnt vmcnt(0)
    v_mfma_f32_32x32x4_2b_bf16 {vr(SA,32)}, {vr(KT,2)}, {vr(QT,2)}, 0
    s_nop 15
    s_nop 3
    v_mfma_f32_32x32x16_bf16 {vr(SA+16,16)}, {vr(KM,4)}, {vr(QM1,4)}, {vr(SA+16,16)}
    s_nop 15
    s_cmp_eq_u32 s34, 0
    s_cbranch_scc0 L_slow_pv
    """)
    for i in range(8): a(f"v_max3_f32 v10, v10, v{SA+16+2*i}, v{SA+17+2*i}")
    a("s_branch L_slow_next")
    a("L_slow_pv:")
    for i in range(16): a(f"v_sub_f32 v{SA+16+i}, v{SA+16+i}, v10")
    for i in range(16): a(f"v_exp_f32 v{SA+16+i}, v{SA+16+i}")
    a(f"""
    s_nop 3
    v_smfmac_f32_32x32x32_bf16 {vr(O1,16)}, {vr(VV,4)}, {vr(SA+16,8)}, v{IDX}
    v_smfmac_f32_32x32x32_bf16 {vr(O1,16)}, {vr(VV+4,4)}, {vr(SA+24,8)}, v{IDX}
    s_nop 15
    L_slow_next:
    s_add_u32 s35, s35, 1
    s_cmp_lt_u32 s35, 64
    s_cbranch_scc1 L_slow_tile
    s_cmp_eq_u32 s34, 0
    s_cbranch_scc0 L_slow_done
    v_mov_b32 v11, v10
    s_nop 1
    v_permlane32_swap_b32 v10, v11
    s_nop 1
    v_max_f32 v10, v10, v11
    s_mov_b32 s34, 1
    s_branch L_slow_pass
    L_slow_done:
    v_mov_b32 v7, v{O1+8}
    v_mov_b32 v9, v{O1+8}
    s_nop 1
    v_permlane32_swap_b32 v7, v9
    s_nop 1
    v_rcp_f32 v8, v9
    s_branch L_attn_fin
    """)

TAIL = []
def phase3(a, cfg):
    OF, AC, WF = 16, 56, 76
    VW, VWT, VPB, VSW, VSR, VL, VL8 = 6, 7, 8, 9, 10, 0, 4
    VOS = [13, 14, 15]
    VW2, VWT2 = 3, 5
    OPT = cfg.get("opt", 1)
    def reads(ks):
        hf, p = divmod(ks, 5)
        r = []
        for t in range(5):
            for u in range(2):
                if p < 4: ad, off = (VW2 if hf else VW), (40*p + 8*u)*160 + 32*t
                else: ad, off = (VWT2 if hf else VWT), 80*u*160 + 32*t
                r.append(f"ds_read_b64_tr_b16 {vr(WF+20*(ks%9)+4*t+2*u,2)}, v{ad} offset:{off}")
        return r
    def unpack():
        a(f"""
        s_bfe_u32 s30, s2, {0x10006 if cfg.get("khswap") else 0x10005}
        s_and_b32 s30, s30, {cfg.get("hswap", 1)}
        s_mul_i32 s31, s30, 25600
        s_sub_u32 s32, 25600, s31
        v_add_u32 v{VW}, s31, v{P3}
        v_add_u32 v{VWT}, s31, v{P3+1}
        v_add_u32 v{VW2}, s32, v{P3}
        v_add_u32 v{VWT2}, s32, v{P3+1}
        """)
        for i in range(2, 7): a(f"v_mov_b32 v{VW+i}, v{P3+i}")
        for i in range(3): a(f"v_mov_b32 v{VOS[i]}, v{WOA+i}")
        a(f"""
        v_mov_b32 v{VL}, v{VL16}
        v_lshlrev_b32 v{VL8}, 3, v1
        """)
        p3_kh(a, cfg, 26)
        a(f"""
        s_lshr_b32 s27, s2, 5
        s_mul_i32 s27, s27, 160
        s_add_u32 s27, s27, s41
        s_add_u32 s28, s41, {O_OFF}
        s_lshl_b32 s3, s26, 1
        s_add_u32 s3, s3, s30
        s_xor_b32 s29, s3, 1
        s_lshl_b32 s22, s3, 12
        s_add_u32 s22, s22, s28
        s_lshl_b32 s24, s29, 12
        s_add_u32 s24, s24, s28
        s_add_u32 s28, s28, 16384
        s_lshl_b32 s23, s3, 10
        s_add_u32 s23, s23, s28
        s_lshl_b32 s25, s29, 10
        s_add_u32 s25, s25, s28
        """)
    a.c("---- output projection: 64 tokens x 80 columns")
    if not OPT:
        a("""
        s_waitcnt vmcnt(0)
        s_barrier
        s_cmp_eq_u32 s16, 0
        s_cbranch_scc0 L_p3_nofl
        """)
        raise_flag(a, "s38")
        a("L_p3_nofl:")
    NPB, WIN = cfg.get("npb", 6), cfg.get("win", 5)
    LOADS = []
    for ks in range(10):
        hf, p = divmod(ks, 5)
        if p < 4: LOADS.append([f"buffer_load_dwordx4 {vr(OF+4*ks,4)}, v{VL}, {WS}, s{22+2*hf} offen offset:{1024*p} sc1"])
        else: LOADS.append([f"buffer_load_dwordx2 {vr(OF+4*ks+2*u,2)}, v{VL8}, {WS}, s{23+2*hf} offen offset:{512*u} sc1" for u in range(2)])
    PM = cfg.get("pm", 0)
    PW = cfg.get("pw", 1)
    a(f"""
    v_mov_b32 v2, v{P3+7}
    s_mov_b32 s35, 0
    """)
    if PM == 1:
        a(f"""
        s_cmp_eq_u32 s16, {PW}
        s_cbranch_scc0 L_p3_np
        buffer_load_dword v1, v2, {WS}, s40 offen sc1
        L_p3_np:
        """)
    unpack()
    if PM == 2:
        a(f"""
        s_cmp_eq_u32 s16, {PW}
        s_cbranch_scc1 L_poll2
        """)
    for ks in range(NPB):
        for r in reads(ks): a(r)
    a(f"""
    s_cmp_eq_u32 s16, {PW}
    s_cbranch_scc0 L_poll2_ok
    """)
    if PM == 1: a("s_branch L_poll2_chk")
    a(f"""
    L_poll2:
    buffer_load_dword v1, v2, {WS}, s40 offen sc1
    L_poll2_chk:
    s_waitcnt vmcnt(0)
    v_cmp_ne_u32 vcc, 0, v1
    s_nop 0
    s_cmp_eq_u64 vcc, -1
    """)
    spin_tail(a, "L_poll2")
    a("s_waitcnt vmcnt(0)")
    stamp(a, cfg, 10)
    a("s_barrier")
    stamp(a, cfg, 11)
    assert PM != 2
    def first(il, pre):
        rest = [r for ks in range(NPB, 9) for r in reads(ks)]
        for r in rest[:pre]: a(r)
        rest = rest[pre:]
        for g in LOADS[:WIN]:
            for l in g: a(l)
            for r in rest[:il]: a(r)
            rest = rest[il:]
        for r in rest: a(r)
    if cfg.get("seq"):
        a("""
        s_cmp_lt_u32 s16, 4
        s_cbranch_scc0 L_p3_y
        """)
        first(cfg.get("il", 3), 0)
        a("s_branch L_p3_go")
        a("L_p3_y:")
        first(0, 99)
    else:
        first(cfg.get("il", 3), 0)
    a("L_p3_go:")
    if cfg.get("p3d"): a("s_memtime s[68:69]")
    VMX = 1
    a(f"v_mov_b32 v{VMX}, 0")
    a("v_mov_b32 v2, 1")
    def mf(ks, extra=0, check=OPT):
        win = 10 if extra else WIN
        vm = sum(len(g) for g in LOADS[ks+1:ks+win])
        a(f"s_waitcnt vmcnt({vm})" + (" lgkmcnt(0)" if ks == 0 or (ks == 9 and (extra or cfg.get("kb", 9) == 10)) else ""))
        if ks + win < 10:
            for l in LOADS[ks + win]: a(l)
        if OPT and not extra and ks + win == 9 + (win == 10):
            a.c("every wave's stores were acknowledged before the barrier above: tell readers that fall back")
            a(f"""
            s_cmp_eq_u32 s16, 7
            s_cbranch_scc0 L_p3_noconf
            s_mov_b64 exec, 1
            buffer_store_dword v2, v{VL}, {WS}, s39 offen sc1
            s_mov_b64 exec, -1
            L_p3_noconf:
            """)
        if cfg.get("p3d") and check and ks in (0, 3, 7, 9): a("s_memtime s[%d:%d]" % {0: (70, 71), 3: (72, 73), 7: (74, 75), 9: (76, 77)}[ks])
        for t in range(5):
            c = "0" if ks == 0 else vr(AC+4*t, 4)
            a(f"v_mfma_f32_16x16x32_bf16 {vr(AC+4*t,4)}, {vr(WF+20*(ks%9)+4*t,4)}, {vr(OF+4*ks,4)}, {c}")
            if check and t < 2: a(f"v_max3_u32 v{VMX}, v{VMX}, v{OF+4*ks+2*t}, v{OF+4*ks+2*t+1}")
            if check and ks == 9 and t == 2: a(f"v_cmp_eq_u32 vcc, -1, v{VMX}")
        if ks == 0:
            for r in reads(9): a(r)
    def redo():
        a("L_redo:")
        if cfg.get("stamp"): a("s_waitcnt lgkmcnt(0)"); a("s_mov_b32 s68, -1")
        a(f"""
        s_add_u32 s33, s40, {F3_OFF - F2_OFF}
        v_bfe_u32 v2, v{VL}, 5, 5
        v_lshlrev_b32 v2, 7, v2
        """)
        poll(a, "L_poll3", 2, WS, "s33", dst=1)
        a("s_waitcnt lgkmcnt(0)")
        for r in reads(0) + reads(1): a(r)
        for g in LOADS:
            for l in g: a(l)
        for ks in range(10): mf(ks, 1, 0)
        a("""
        s_cmp_lt_u32 s16, 4
        s_cbranch_scc1 L_back_w
        """)
        for t in range(5): a(f"ds_read_b128 {vr(WF+20+4*t,4)}, v{VPB} offset:{1024*t}")
        a("s_branch L_back_f")
    TAIL.append(redo if OPT else (lambda: None))
    FORCE = "s_branch L_redo" if cfg.get("force_redo") else "s_cbranch_vccnz L_redo"
    KB = cfg.get("kb", 9)
    for ks in range(KB): mf(ks)
    a("""
    s_waitcnt lgkmcnt(0)
    s_cmp_lt_u32 s16, 4
    s_cbranch_scc0 L_out_fin
    """)
    for ks in range(KB, 10): mf(ks)
    if OPT: a(FORCE); a("L_back_w:")
    stamp(a, cfg, 12)
    a("s_nop 3")
    for t in range(5):
        a(f"ds_write_b128 v{VPB}, {vr(AC+4*t,4)} offset:{1024*t}")
        if t < 4: a("s_nop 0")
    a("""
    s_waitcnt lgkmcnt(0)
    s_barrier
    s_branch L_fin
    L_out_fin:
    s_barrier
    """)
    PB = WF + 20
    for t in range(5): a(f"ds_read_b128 {vr(PB+4*t,4)}, v{VPB} offset:{1024*t}")
    for ks in range(KB, 10): mf(ks)
    if OPT: a(FORCE); a("L_back_f:")
    stamp(a, cfg, 12)
    a("s_waitcnt lgkmcnt(0)")
    a("s_nop 2")
    for t in range(5):
        a(f"v_pk_add_f32 {vr(AC+4*t,2)}, {vr(AC+4*t,2)}, {vr(PB+4*t,2)}")
        a(f"v_pk_add_f32 {vr(AC+4*t+2,2)}, {vr(AC+4*t+2,2)}, {vr(PB+4*t+2,2)}")
        a(f"v_cvt_pk_bf16_f32 v{OF+2*t}, v{AC+4*t}, v{AC+4*t+1}")
        a(f"v_cvt_pk_bf16_f32 v{OF+2*t+1}, v{AC+4*t+2}, v{AC+4*t+3}")
        a(f"ds_write_b64 v{VSW}, {vr(OF+2*t,2)} offset:{32*t}")
    for i in range(3): a(f"ds_read_b128 {vr(PB+4*i,4)}, v{VSR+i}")
    OFL = cfg.get("outfl", "nt")
    for i in range(3):
        a(f"s_waitcnt lgkmcnt({2-i})")
        if i == 2: a("s_mov_b32 exec_hi, 0")
        a(f"buffer_store_dwordx4 {vr(PB+4*i,4)}, v{VOS[i]}, {OUT}, s27 offen {OFL}")
    a("L_fin:")

def gen(cfg):
    a = Asm()
    a(f".globl {NAME}")
    a(".p2align 12")
    a(f".fill {cfg.get('pad', 3328)//4}, 4, 0xbf800000")
    a(".p2align 8")
    a(f".type {NAME},@function")
    a(f"{NAME}:")
    a("""
    s_cmp_ge_u32 s2, 256
    s_cbranch_scc1 L_end
    """)
    stamp(a, cfg, 0, real=True); stamp(a, cfg, 1)
    a("""
    s_load_dwordx4 s[4:7], s[0:1], 0
    s_load_dwordx8 s[36:43], s[0:1], 16
    v_lshrrev_b32 v2, 6, v0
    v_and_b32 v1, 63, v0
    v_readfirstlane_b32 s16, v2
    """)
    if cfg.get("codepf", 1):
        a.c("wave 0 touches an 8 KB share of the kernel's own code so that instruction fetch hits L2")
        a(f"""
        s_getpc_b64 s[26:27]
        L_pc:
        s_bfe_u32 s3, s2, 0x30003
        s_lshl_b32 s3, s3, 13
        s_cmp_eq_u32 s16, 0
        s_cbranch_scc0 L_nopf
        v_lshl_add_u32 v3, v1, 7, s3
        v_min_u32 v3, L_code_end - L_pc - 4, v3
        global_load_dword v0, v3, s[26:27]
        L_nopf:
        """)
    a("""
    s_cmp_lt_u32 s2, 240
    s_cbranch_scc0 L_idle
    """)
    a.c("tile: xcd j = id&7 ; u = (j>>2)*30 + (id>>3) ; cb(s17) = u>>2 ; tb(s18) = (j&3)*4 + (u&3)")
    a("""
    s_bfe_u32 s3, s2, 0x10002
    s_mul_i32 s3, s3, 30
    s_lshr_b32 s17, s2, 3
    s_add_u32 s3, s3, s17
    s_lshr_b32 s17, s3, 2
    s_and_b32 s3, s3, 3
    s_and_b32 s18, s2, 3
    s_lshl_b32 s18, s18, 2
    s_add_u32 s18, s18, s3
    s_cmp_lt_u32 s16, 4
    s_cbranch_scc1 L_qkv_cons
    """)
    phase1_loader(a, cfg)
    a("L_idle:")
    a.c("workgroups without a GEMM tile: clear the hand-off flags, raise 'ready' in d_debug, pull second-stage x rows into L2")
    a(f"""
    s_sub_u32 s3, s2, 240
    s_lshl_b32 s19, s3, 2
    s_mul_i32 s17, s3, {112*128}
    s_add_u32 s17, s17, {FB_OFF}
    s_and_b32 s3, s2, 3
    s_lshl_b32 s3, s3, 1
    s_bfe_u32 s18, s2, 0x10003
    s_add_u32 s3, s3, s18
    s_lshl_b32 s3, s3, 1
    s_and_b32 s18, s16, 1
    s_add_u32 s3, s3, s18
    s_mul_i32 s3, s3, {128*1280}
    s_lshr_b32 s18, s16, 1
    s_mul_i32 s18, s18, {16*1280}
    s_add_u32 s3, s3, s18
    s_add_u32 s20, s3, {64*1280}
    s_add_u32 s21, s20, 8192
    s_add_u32 s22, s20, 16384
    v_lshlrev_b32 v2, 7, v1
    v_min_u32 v3, {31*128}, v2
    v_mov_b32 v4, 0
    v_and_b32 v10, 15, v1
    v_lshlrev_b32 v10, 2, v10
    v_mov_b32 v11, {GO_ADDR}
    ds_write_b32 v11, v4
    s_waitcnt lgkmcnt(0)
    """)
    common_srds(a)
    srd(a, 8, 4, 2048 * 1280)
    a(f"""
    s_cmp_eq_u32 s16, 0
    s_cbranch_scc0 L_idle_pf
    s_add_u32 s18, s17, 8192
    v_min_u32 v7, {47*128}, v2
    buffer_store_dword v4, v2, {WS}, s17 offen sc1
    buffer_store_dword v4, v7, {WS}, s18 offen sc1
    v_mov_b32 v6, 1
    s_waitcnt vmcnt(0)
    s_mov_b64 exec, 1
    buffer_store_dword v6, v4, {DBG}, s19 offen sc1
    s_mov_b64 exec, -1
    L_idle_pf:
    buffer_load_dword v92, v3, s[8:11], s22 offen
    s_barrier
    buffer_load_dword v90, v2, s[8:11], s20 offen
    buffer_load_dword v91, v2, s[8:11], s21 offen
    """)
    a("""
    s_cmp_eq_u32 s16, 0
    s_cbranch_scc0 L_rdy_i_ok
    """)
    poll(a, "L_rdy_i", 10, DBG, "0")
    a("""
    s_waitcnt vmcnt(0)
    s_barrier
    s_mov_b32 s63, 0
    s_mov_b32 s62, 0
    v_mov_b32 v12, 0
    v_mov_b32 v13, 0
    s_mov_b32 s60, 0
    s_cmp_lt_u32 s16, 4
    s_cbranch_scc1 L_late_setup
    """)
    attn_setup(a, cfg, early=True)
    a("s_branch L_early")
    a("L_qkv_cons:")
    late_qk, late_v = phase1_consumer(a, cfg)
    if cfg.get("suin", 1): a("s_branch L_late_have")
    a("L_late_setup:")
    attn_setup(a, cfg, early=False)
    a("L_late_have:")
    a(f"v_mov_b32 v11, {GO_ADDR + 81920}")
    a("v_mov_b32 v7, 0")
    a("s_barrier")
    a("""
    s_cmp_eq_u32 s63, 1
    s_cbranch_scc0 L_late_nqk
    """)
    for st in late_qk: a(st)
    a("""
    s_branch L_late_st
    L_late_nqk:
    s_cmp_eq_u32 s63, 2
    s_cbranch_scc0 L_late_st
    """)
    for st in late_v: a(st)
    a("""
    L_late_st:
    ds_write_b32 v11, v7
    s_barrier
    """)
    for g in kv_dma(2, back=81920): a(g)
    a("s_waitcnt vmcnt(5)")
    if cfg.get("u3first", 0):
        for g in kv_dma(3, back=81920): a(g)
        a(f"""
        s_cmp_eq_u32 s63, 0
        s_cbranch_scc1 L_late_nofl
        s_mov_b64 exec, 1
        buffer_store_dword v{VONE}, v{VZ}, {WS}, s60 offen sc1
        s_mov_b64 exec, -1
        s_waitcnt vmcnt(1) lgkmcnt(0)
        s_branch L_late_a3
        L_late_nofl:
        s_waitcnt vmcnt(0) lgkmcnt(0)
        L_late_a3:
        s_barrier
        """)
    else:
        a("""
        s_cmp_eq_u32 s63, 0
        s_cbranch_scc1 L_late_nofl
        """)
        raise_flag(a, "s60")
        a("L_late_nofl:")
        for g in kv_dma(3, back=81920): a(g)
        a("""
        s_waitcnt vmcnt(0) lgkmcnt(0)
        s_barrier
        """)
    wait_stage(a, cfg, "l", 0)
    stamp(a, cfg, 6)
    for g in kv_dma(0): a(g)
    qloads(a)
    a("s_waitcnt vmcnt(5) lgkmcnt(0)")
    stamp(a, cfg, 15)
    if not cfg.get("bl0"): a("s_barrier")
    for g in kv_dma(1): a(g)
    a("s_waitcnt vmcnt(5)")
    stamp(a, cfg, 7)
    attn_loop(a, cfg, early=False)
    a("s_branch L_epi")
    a("L_early:")
    wait_stage(a, cfg, "e", cfg.get("epoll", 5))
    stamp(a, cfg, 6)
    for g in kv_dma(0): a(g)
    qloads(a)
    if cfg.get("u1late", 1):
        a(f"s_waitcnt vmcnt({cfg.get('u1w', 5)})")
    for g in kv_dma(1): a(g)
    a("s_waitcnt vmcnt(5) lgkmcnt(0)")
    stamp(a, cfg, 5)
    a("s_barrier")
    stamp(a, cfg, 7)
    attn_loop(a, cfg, early=True)
    a("L_epi:")
    attn_epilogue(a, cfg)
    phase3(a, cfg)
    if cfg.get("stamp"): a("s_waitcnt vmcnt(0)")
    stamp(a, cfg, 13); stamp(a, cfg, 14, real=True)
    if cfg.get("xcc"):
        a("""
        s_waitcnt lgkmcnt(0)
        s_getreg_b32 s90, hwreg(HW_REG_XCC_ID, 0, 4)
        s_sub_u32 s90, s90, s2
        s_and_b32 s90, s90, 7
        s_mul_i32 s90, s90, 200
        """)
    stamp_flush(a, cfg, 0, 16, 8, wsptr=42)
    a("L_end:")
    a("s_endpgm")
    a("L_code_end:")
    attn_slow(a)
    TAIL.pop()()
    head = open("standalone__softmax_full_mha__prompt.s.ref").read().split("; Override launch")[0]
    descs = descriptor(NAME, 256)
    if cfg.get("probe"):
        import k_probe
        if cfg.get("lat"):
            head += "; @launch kernel=lat_kernel grid=(1,1,1) block=(64,1,1) lds=0\n"
            descs += k_probe.gen_lat(a, cfg)
        head += f"; @launch kernel={NAME} grid=(256,1,1) block=(512,1,1) lds=163840\n; @launch kernel=probe_kernel grid=(1,1,1) block=(64,1,1) lds=0\n"
        descs += k_probe.gen_probe(a, cfg)
    elif cfg.get("list"):
        head += f"; @launch kernel={NAME} grid=(256,1,1) block=(512,1,1) lds=163840\n"
    else:
        head += "; @launch grid=(256,1,1) block=(512,1,1) lds=163840\n"
    return head + '.amdgcn_target "amdgcn-amd-amdhsa--gfx950"\n.text\n' + a.text() + '.section .rodata,"a"\n' + descs

if __name__ == "__main__":
    cfg = json.loads(sys.argv[2]) if len(sys.argv) > 2 else {}
    open(sys.argv[1], "w").write(gen(cfg))
```

```python
from asmlib import *
def reduce(a, region, col, n, op, dst, tag):
    srd(a, 8, 4, 1 << 20, add=STAMP_OFF + region * (1 << 20))
    a(f"""
    v_lshlrev_b32 v1, 6, v0
    v_add_u32 v1, {4*col}, v1
    buffer_load_dword v2, v1, s[8:11], 0 offen
    s_mov_b32 s20, 4096
    L_pr_{tag}:
    buffer_load_dword v3, v1, s[8:11], s20 offen
    s_waitcnt vmcnt(0)
    v_{op}_u32 v2, v2, v3
    s_add_u32 s20, s20, 4096
    s_cmp_lt_u32 s20, {n*64}
    s_cbranch_scc1 L_pr_{tag}
    s_nop 1
    v_readlane_b32 s{dst}, v2, 0
    """)
    for l in range(1, 64):
        a(f"v_readlane_b32 s21, v2, {l}")
        a("s_nop 0")
        a(f"s_{op}_u32 s{dst}, s{dst}, s21")
def gen_probe(a, cfg):
    kernel_begin(a, "probe_kernel")
    a("""
    s_cmp_ge_u32 s2, 1
    s_cbranch_scc1 L_probe_end
    s_load_dwordx2 s[4:5], s[0:1], 40
    s_waitcnt lgkmcnt(0)
    """)
    r0, n0 = cfg.get("p0", [0, 1920])
    reduce(a, r0, 0, n0, "min", 30, "a")
    region, col, n, op, mult = cfg["probe"]
    reduce(a, region, col, n, op, 31, "b")
    if cfg.get("prange"):
        reduce(a, region, col, n, "min", 29, "c")
        a("s_sub_u32 s31, s31, s29")
        a("s_add_u32 s31, s31, s30")
    a(f"""
    s_sub_u32 s31, s31, s30
    s_min_u32 s31, s31, 20000
    s_mul_i32 s31, s31, {mult}
    s_add_u32 s31, s31, 10000
    s_mov_b32 s34, 0
    L_probe_spin:
    s_memrealtime s[32:33]
    s_waitcnt lgkmcnt(0)
    s_sub_u32 s32, s32, s30
    s_add_u32 s34, s34, 1
    s_cmp_gt_u32 s34, 100000
    s_cbranch_scc1 L_probe_end
    s_cmp_lt_u32 s32, s31
    s_cbranch_scc1 L_probe_spin
    L_probe_end:
    s_endpgm
    """)
    return descriptor("probe_kernel", 8)

def gen_lat(a, cfg):
    slot, nbytes, off0 = cfg["lat"]
    kernel_begin(a, "lat_kernel")
    a(f"""
    s_cmp_ge_u32 s2, 1
    s_cbranch_scc1 L_lat_end
    s_load_dwordx2 s[4:5], s[0:1], {slot*8}
    s_load_dwordx2 s[6:7], s[0:1], 40
    s_waitcnt lgkmcnt(0)
    """)
    srd(a, 8, 4, nbytes, add=off0)
    srd(a, 12, 6, 1 << 20, add=STAMP_OFF + (1 << 20))
    a(f"""
    v_mov_b32 v2, 0
    s_mov_b32 s20, 0
    s_mov_b32 s21, 0
    buffer_load_dword v3, v2, s[8:11], s20 offen sc1
    s_waitcnt vmcnt(0)
    s_memrealtime s[22:23]
    s_waitcnt lgkmcnt(0)
    L_lat:
    s_add_u32 s20, s20, {nbytes // 33 // 128 * 128}
    buffer_load_dword v3, v2, s[8:11], s20 offen sc1
    s_waitcnt vmcnt(0)
    s_add_u32 s21, s21, 1
    s_cmp_lt_u32 s21, 32
    s_cbranch_scc1 L_lat
    s_memrealtime s[24:25]
    s_waitcnt lgkmcnt(0)
    s_sub_u32 s24, s24, s22
    v_lshlrev_b32 v1, 6, v0
    v_mov_b32 v4, s24
    s_mov_b32 s20, 4096
    buffer_store_dword v2, v1, s[12:15], 0 offen
    buffer_store_dword v4, v1, s[12:15], s20 offen
    s_waitcnt vmcnt(0)
    L_lat_end:
    s_endpgm
    """)
    return descriptor("lat_kernel", 8)

def gen_next(a, cfg):
    kernel_begin(a, "next_kernel")
    a("""
    s_memrealtime s[20:21]
    s_cmp_ge_u32 s2, 1
    s_cbranch_scc1 L_next_end
    s_load_dwordx2 s[6:7], s[0:1], 40
    s_waitcnt lgkmcnt(0)
    """)
    srd(a, 12, 6, 1 << 20, add=STAMP_OFF + (2 << 20))
    a("""
    v_mov_b32 v1, 64
    v_mov_b32 v2, s20
    buffer_store_dword v2, v1, s[12:15], 0 offen
    s_waitcnt vmcnt(0)
    L_next_end:
    s_endpgm
    """)
    return descriptor("next_kernel", 8)

def gen_prev(a, cfg):
    kernel_begin(a, "prev_kernel")
    a("""
    s_cmp_ge_u32 s2, 1
    s_cbranch_scc1 L_prev_end
    s_memrealtime s[20:21]
    s_load_dwordx2 s[6:7], s[0:1], 40
    s_waitcnt lgkmcnt(0)
    """)
    srd(a, 12, 6, 1 << 20, add=STAMP_OFF + (2 << 20))
    a("""
    s_add_u32 s20, s20, 4000
    v_mov_b32 v1, 68
    v_mov_b32 v2, s20
    buffer_store_dword v2, v1, s[12:15], 0 offen sc1
    s_waitcnt vmcnt(0)
    L_prev_spin:
    s_memrealtime s[22:23]
    s_waitcnt lgkmcnt(0)
    s_sub_u32 s22, s22, s20
    s_cmp_lt_i32 s22, 0
    s_cbranch_scc1 L_prev_spin
    L_prev_end:
    s_endpgm
    """)
    return descriptor("prev_kernel", 8)
```

```python
import sys, json, struct, re
from asmlib import *
NAME = "standalone__softmax_full_mha__prompt_kernel"
HQ = 81920
HKV = 163840
KV_OFF = 32 * HQ
O_OFF = KV_OFF + 32 * HKV
FB_OFF = O_OFF + 128 * 20480
FA_OFF = FB_OFF + 1024 * 128
F2_OFF = FA_OFF + 256 * 128
F3_OFF = F2_OFF + 256 * 128
WS_BYTES = F3_OFF + 256 * 128
SLOT = [0, 24576, 49152, 81920, 106496, 131072, 0, 24576, 49152, 139264]
CSCALE = struct.unpack("<I", struct.pack("<f", (20 ** -0.5) * 1.4426950408889634))[0]
WS, WO, OUT, DBG = "s[44:47]", "s[48:51]", "s[52:55]", "s[56:59]"
SPIN_MAX = 1 << 18

def spin_head(a, label):
    a(f"{label}:")
def spin_tail(a, label, mult=1):
    a(f"""
    s_cselect_b32 s35, {SPIN_MAX*mult}, s35
    s_add_u32 s35, s35, 1
    s_cmp_lt_u32 s35, {SPIN_MAX*mult}
    s_cbranch_scc1 {label}
    {label}_ok:
    """)

def poll(a, label, vaddr, rsrc, soff, dst=5):
    a(f"""
    s_mov_b32 s35, 0
    {label}:
    buffer_load_dword v{dst}, v{vaddr}, {rsrc}, {soff} offen sc1
    s_waitcnt vmcnt(0)
    v_cmp_ne_u32 vcc, 0, v{dst}
    s_nop 0
    s_cmp_eq_u64 vcc, -1
    """)
    spin_tail(a, label)

def paced_poll(a, cfg, label, vaddrs, soff):
    pace = cfg.get("pace" + label[-1], -1)
    n = len(vaddrs)
    dst = [5, 3][:n]
    if pace < 0:
        a(f"s_mov_b32 s35, 0\n{label}:")
        if pace < -1: a(f"s_sleep {-pace}")
        for d, v in zip(dst, vaddrs): a(f"buffer_load_dword v{d}, v{v}, {WS}, {soff} offen sc1")
        a(f"{label}_chk:")
        a("s_waitcnt vmcnt(0)")
    else:
        for d in dst: a(f"v_mov_b32 v{d}, 0")
        a(f"s_mov_b32 s35, 0\n{label}:")
        for d, v in zip(dst, vaddrs): a(f"buffer_load_dword v{d}, v{v}, {WS}, {soff} offen sc1")
        if pace: a(f"s_sleep {pace}")
        a(f"s_waitcnt vmcnt({n * cfg.get('pdepth', 4)})")
    if n == 2: a("v_and_b32 v2, v5, v3"); a("v_cmp_ne_u32 vcc, 0, v2")
    else: a("v_cmp_ne_u32 vcc, 0, v5")
    a("s_nop 0")
    a("s_cmp_eq_u64 vcc, -1")
    spin_tail(a, label, mult=4)

def raise_flag(a, soff):
    a(f"""
    v_mov_b32 v2, 0
    v_mov_b32 v3, 1
    s_mov_b64 exec, 1
    buffer_store_dword v3, v2, {WS}, {soff} offen sc1
    s_mov_b64 exec, -1
    """)

def common_srds(a):
    srd(a, 44, 42, WS_BYTES)
    srd(a, 48, 36, 640 * 1280)
    srd(a, 52, 38, 2048 * 1280)
    srd(a, 56, 40, 256)

XROT = [0, 1, 3, 4, 3, 4, 1, 2]
IDLE2 = True
GO_ADDR = 81920 - 16
def phase1_loader(a, cfg):
    a.c("---------------- loader waves (become the early attention waves)")
    rot = cfg.get("rot", 2)
    NX0 = cfg.get("nx0", 7)
    if rot == 2:
        a("""
        s_add_u32 s100, s3, s17
        s_and_b32 s100, s100, 1
        s_mul_i32 s100, s100, 5
        """)
    elif rot == 3:
        a("""
        s_add_u32 s100, s3, s17
        s_mul_i32 s101, s100, 43
        s_lshr_b32 s101, s101, 7
        s_mul_i32 s101, s101, 3
        s_sub_u32 s100, s100, s101
        s_mul_i32 s100, s100, 7
        s_lshr_b32 s100, s100, 1
        """)
    elif rot == 4:
        a("""
        s_add_u32 s100, s3, s17
        s_and_b32 s100, s100, 3
        s_mul_i32 s100, s100, 5
        s_lshr_b32 s100, s100, 1
        """)
    else:
        a("s_mov_b32 s100, 0")
    xr = cfg.get("xrot", XROT)
    if xr:
        a(f"""
        s_and_b32 s101, s2, 7
        s_lshl_b32 s101, s101, 2
        s_lshr_b32 s101, {sum(v << (4*i) for i, v in enumerate(xr))}, s101
        s_and_b32 s101, s101, 15
        s_add_u32 s100, s100, s101
        s_sub_u32 s101, s100, 10
        s_cselect_b32 s100, s100, s101
        """)
    a(f"""
    s_and_b32 s19, s16, 3
    s_lshl_b32 s96, s19, 4
    s_lshr_b32 s101, s19, 1
    s_lshl_b32 s101, s101, 5
    s_and_b32 s34, s19, 1
    s_lshl_b32 s34, s34, 2
    s_add_u32 s101, s101, s34
    s_cmp_lt_u32 s17, 10
    s_cselect_b32 s96, s96, s101
    s_cselect_b32 s101, 4, 8
    s_mul_i32 s101, s101, 1280
    s_lshl_b32 s34, s18, 7
    s_add_u32 s96, s96, s34
    s_mul_i32 s96, s96, 1280
    v_lshrrev_b32 v2, 5, v1
    v_mul_u32_u24 v2, s101, v2
    v_bfe_u32 v3, v1, 3, 2
    v_mul_u32_u24 v3, 1280, v3
    v_lshrrev_b32 v5, 4, v1
    v_and_b32 v4, 7, v1
    v_xor_b32 v4, v4, v5
    v_lshlrev_b32 v4, 4, v4
    v_add3_u32 v8, v2, v3, v4
    v_xor_b32 v4, 64, v4
    v_add3_u32 v9, v2, v3, v4
    s_lshl_b32 s101, s101, 1
    s_sub_u32 s101, s101, 1024
    v_add_u32 v9, s101, v9
    v_and_b32 v3, 15, v1
    v_lshlrev_b32 v6, 1, v5
    v_xor_b32 v3, v3, v6
    v_mul_u32_u24 v2, 3840, v5
    v_lshl_add_u32 v16, v3, 4, v2
    v_add_u32 v17, {4*3840-1024}, v16
    v_xor_b32 v3, 8, v3
    v_lshl_add_u32 v18, v3, 4, v2
    v_add_u32 v19, {3*(4*3840-1024)}, v18
    v_add_u32 v18, {2*(4*3840-1024)}, v18
    s_mul_i32 s97, s19, {16*3840}
    s_lshl_b32 s3, s17, 8
    s_add_u32 s97, s97, s3
    s_lshl_b32 s98, s19, 11
    s_lshl_b32 s99, s19, 12
    s_mov_b32 s10, {2048*1280}
    s_mov_b32 s11, 0x00020000
    s_mov_b32 s14, {640*3840}
    s_mov_b32 s15, 0x00020000
    """)
    stamp(a, cfg, 8, grp="st")
    a("s_waitcnt lgkmcnt(0)")
    stamp(a, cfg, 9, grp="st")
    a(f"""
    s_mov_b32 s8, s4
    s_mov_b32 s9, s5
    s_mov_b32 s12, s6
    s_mov_b32 s13, s7
    """)
    XF1, XF2, WF_ = cfg.get("xfl", ""), cfg.get("x2fl", ""), cfg.get("wfl", "")
    def adv():
        a("""
        s_add_u32 s100, s100, 1
        s_cmp_eq_u32 s100, 10
        s_cselect_b32 s100, 0, s100
        """)
    def issue_x(lds, XF):
        a(f"""
        s_lshl_b32 s101, s100, 7
        s_add_u32 m0, s98, {lds}
        s_add_u32 s101, s101, s96
        """)
        for j in range(2):
            a(f"buffer_load_dwordx4 v{8+j}, s[8:11], s101 offen offset:{1024*j} {XF} lds")
    def issue(c):
        slot = SLOT[c]
        issue_x(slot, XF1)
        a(f"""
        s_mul_i32 s34, s100, {64*3840}
        s_add_u32 m0, s99, {slot+8192}
        s_add_u32 s34, s34, s97
        """)
        for j in range(4):
            a(f"buffer_load_dwordx4 v{16+j}, s[12:15], s34 offen offset:{1024*j} {WF_} lds")
        adv()
    def issue2(c):
        if c == 0: a(f"s_add_u32 s96, s96, {64*1280}")
        issue_x(81920 + 8192*c, XF2)
        if c < 9: adv()
    NPRE = cfg.get("npre", 3)
    if cfg.get("ldprio"): a(f"s_setprio {cfg['ldprio']}")
    groups = [[("c", c)] for c in range(10)]
    q = list(range(NX0))
    while q: groups.append([("x", i) for i in q[:3]]); q = q[3:]
    while len(groups) > 10 + NPRE:
        g = groups.pop(); groups[-1] = groups[-1] + g
    pend = []
    def put(g):
        for kind, i in g:
            if kind == "c": issue(i); pend.append(((kind, i), 6))
            else: issue2(i); pend.append(((kind, i), 2))
    def wait_for(item):
        k = [p[0] for p in pend].index(item)
        del pend[:k+1]
        a(f"s_waitcnt vmcnt({sum(p[1] for p in pend)})")
    for i in range(NPRE):
        put(groups.pop(0))
        if i == 0: stamp(a, cfg, 10, grp="st")
    common_srds(a)
    a(f"""
    v_and_b32 v10, 15, v1
    v_lshlrev_b32 v10, 2, v10
    s_lshl_b32 s60, s17, 4
    s_add_u32 s60, s60, s18
    s_lshl_b32 s60, s60, 7
    s_add_u32 s60, s60, {FA_OFF}
    """)
    t = Asm(); attn_setup(t, cfg, early=True)
    su = [l.strip() for l in t.lines if not l.strip().startswith(";")]
    at = cfg.get("esu", [0, 1, 2, 3, 4])
    per = -(-len(su) // len(at))
    def slice_(c):
        if c in at:
            for l in su[:per]: a(l)
            del su[:per]
    slice_(-1)
    for c in range(10):
        wait_for(("c", c))
        if c == 0: stamp(a, cfg, 2)
        if c in (3, 6): stamp(a, cfg, {3: 11, 6: 12}[c], grp="st")
        a("s_barrier")
        if cfg.get("rdyearly") == c: a(f"buffer_load_dword v5, v10, {DBG}, 0 offen sc1"); pend.append((("r", 0), 1))
        if groups: put(groups.pop(0))
        slice_(c)
    if not cfg.get("rdyearly"): a(f"buffer_load_dword v5, v10, {DBG}, 0 offen sc1"); pend.append((("r", 0), 1))
    stamp(a, cfg, 3)
    wait_for(("x", 2))
    a("s_barrier")
    a(f"""
    v_mov_b32 v11, {GO_ADDR}
    v_mov_b32 v7, 0
    ds_write_b32 v11, v7
    s_waitcnt vmcnt(0)
    v_cmp_ne_u32 vcc, 0, v5
    s_waitcnt lgkmcnt(0)
    s_cmp_eq_u64 vcc, -1
    s_cbranch_scc1 L_rdy_l_ok
    """)
    poll(a, "L_rdy_l", 10, DBG, "0")
    if NX0 > 3: a("s_barrier")
    if not cfg.get("flfirst", 1):
        for q in range(NX0, 10): issue2(q)
    a("""
    s_barrier
    s_cmp_eq_u32 s16, 4
    s_cbranch_scc0 L_ld_nofl
    """)
    a(f"""
    s_mov_b64 exec, 1
    buffer_store_dword v{VONE}, v{VZ}, {WS}, s60 offen sc1
    s_mov_b64 exec, -1
    L_ld_nofl:
    """)
    stamp(a, cfg, 4)
    if cfg.get("flfirst", 1):
        for q in range(NX0, 10): issue2(q)
    NX1 = cfg.get("nx1", 10)
    def xbars(extra):
        if NX1 < 10:
            a(f"s_waitcnt vmcnt({2*(10-NX1) + extra})")
            a("s_barrier")
        a(f"s_waitcnt vmcnt({extra})")
        a("s_barrier")
    if cfg.get("prepoll", 0):
        a(f"""
        s_cmp_eq_u32 s16, {cfg.get("epoll", 5)}
        s_cbranch_scc0 L_ld_nopoll
        buffer_load_dword v5, v{VPOLL}, {WS}, s33 offen sc1
        buffer_load_dword v3, v{VPOLL+1}, {WS}, s33 offen sc1
        s_mov_b32 s35, 0
        v_mov_b32 v7, 1
        """)
        xbars(2)
        a("s_branch L_poll1e_chk")
        a("L_ld_nopoll:")
    xbars(0)
    a("s_branch L_early")

def phase1_consumer(a, cfg):
    a.c("---------------- consumer waves (become the late attention waves)")
    XA, WA, ST, XF, AC, WR = 8, 10, 12, 16, 48, 96
    XB, WB = 4, 6
    SFLAG = cfg.get("sflag", 6)
    NX0 = cfg.get("nx0", 7)
    XBAR = {3, NX0, cfg.get("nx1", 10)}
    assert (NX0 == 3 or SFLAG >= 5) and SFLAG <= 2 * NX0 - 1
    a(f"""
    v_and_b32 v2, 15, v1
    v_lshrrev_b32 v3, 4, v1
    v_bfe_u32 v4, v1, 1, 3
    v_xor_b32 v4, v4, v3
    v_lshlrev_b32 v4, 4, v4
    v_lshl_add_u32 v{XA}, v2, 7, v4
    v_xor_b32 v{XA+1}, 64, v{XA}
    v_bfe_u32 v4, v1, 2, 2
    v_lshl_add_u32 v5, v3, 3, v4
    v_and_b32 v6, 1, v3
    v_lshl_or_b32 v4, v6, 2, v4
    s_lshl_b32 s3, s16, 1
    v_xor_b32 v4, s3, v4
    v_lshlrev_b32 v4, 5, v4
    v_lshl_add_u32 v4, v5, 8, v4
    v_and_b32 v5, 3, v1
    v_lshl_add_u32 v4, v5, 3, v4
    v_add_u32 v{WA}, 8192, v4
    v_xor_b32 v{WA+1}, 32, v{WA}
    s_lshl_b32 s60, s17, 2
    s_add_u32 s60, s60, s16
    s_lshl_b32 s60, s60, 4
    s_add_u32 s60, s60, s18
    s_lshl_b32 s60, s60, 7
    s_add_u32 s60, s60, {FB_OFF}
    s_mul_i32 s21, s18, 5120
    s_waitcnt lgkmcnt(0)
    """)
    common_srds(a)
    def xread(stage, ks, tt):
        c, s = divmod(ks, 2)
        if stage == 0: ad, off = (XA, SLOT[c]) if SLOT[c] < 81920 else (XB, SLOT[c] - 81920)
        else: ad, off = (XB, c * 8192) if c < 5 else (XA, (c - 5) * 8192)
        return f"ds_read_b128 {vr(XF+16*(ks&1)+4*tt,4)}, v{ad+s} offset:{off+2048*tt}"
    def wread(ks, ct, u):
        c, s = divmod(ks, 2)
        ad, off = (WA, SLOT[c]) if SLOT[c] < 81920 else (WB, SLOT[c] - 81920)
        if c == 9: off -= 8192
        return f"ds_read_b64_tr_b16 {vr(WR+8*ks+4*ct+2*u,2)}, v{ad+ct} offset:{off+(32*s+4*u)*256}"
    def reads(stage, ks):
        if stage == 0:
            return [wread(ks,0,0), wread(ks,0,1), xread(0,ks,0), wread(ks,1,0), wread(ks,1,1), xread(0,ks,1), xread(0,ks,2), xread(0,ks,3)]
        return [xread(1,ks,tt) for tt in range(4)]
    def mid():
        a("s_barrier")
        for r in reads(1, 0): a(r)
    def gemm(isv, epi):
        t = Asm(); attn_setup(t, cfg, early=False)
        su = [l.strip() for l in t.lines if not l.strip().startswith(";")] if cfg.get("suin", 1) else []
        def filler(ks, n):
            while n and su:
                m = re.match(r"v_\w+ v\[?(\d+)", su[0])
                if m and int(m.group(1)) >= WR + 8 * ks: return
                a(su.pop(0)); n -= 1
        for i in range(2):
            a(f"v_add_u32 v{XB+i}, 81920, v{XA+i}")
            a(f"v_add_u32 v{WB+i}, 81920, v{WA+i}")
        a("s_barrier")
        stamp(a, cfg, 2)
        a(".p2align 3")
        for r in reads(0, 0): a(r)
        for stage in range(2):
            for ks in range(20):
                fl = stage == 1 and ks == SFLAG
                nxt = []
                bar = False
                if ks < 19:
                    nxt = reads(stage, ks + 1)
                    if ks % 2 == 1: bar = stage == 0 or ((ks + 1) // 2) in XBAR
                if fl and bar and (ks + 1) // 2 != NX0:
                    a("s_waitcnt lgkmcnt(0)"); a("s_barrier"); a("s_waitcnt vmcnt(0)"); a("s_barrier")
                elif fl and bar:
                    a("s_waitcnt vmcnt(0) lgkmcnt(0)"); a("s_barrier"); a("s_barrier"); a("s_nop 0")
                else:
                    a("s_waitcnt vmcnt(0) lgkmcnt(0)" if fl else "s_waitcnt lgkmcnt(0)")
                    a("s_barrier" if bar or fl else "s_nop 0")
                if fl: stamp(a, cfg, 4)
                if stage == 0 and ks == 13:
                    for i in range(2): a(f"v_add_u32 v{WB+i}, 8192, v{WB+i}")
                if stage == 1 and ks in (5, 13, 19): stamp(a, cfg, {5: 10, 13: 11, 19: 12}[ks], grp="p1")
                per = 2 if stage == 0 else 1
                for i in range(8):
                    tt, ct = i >> 1, (i & 1) ^ ((i >> 1) & 1)
                    acc = AC + 8 * tt + 4 * ct
                    x, w = vr(XF+16*(ks&1)+4*tt, 4), vr(WR+8*ks+4*ct, 4)
                    A, B = (x, w) if isv else (w, x)
                    c = "0" if ks == 0 else vr(acc, 4)
                    a(f"v_mfma_f32_16x16x32_bf16 {vr(acc,4)}, {A}, {B}, {c}")
                    if stage == 1 and ks >= cfg.get("su0", 5) and su and su[0].startswith("s_"): filler(ks, 1)
                    for r in nxt[per*i:per*i+per]: a(r)
                    if stage == 1 and ks >= cfg.get("su0", 5): filler(ks, 1 if nxt[i:i+1] else 2)
            if stage == 0:
                stamp(a, cfg, 3)
                a(f"v_add_u32 v{XA}, 122880, v{XA}")
                a(f"v_add_u32 v{XA+1}, 122880, v{XA+1}")
                epi(0)
                stamp(a, cfg, 8, grp="p1")
                if cfg.get("ackdiag"): a("s_waitcnt vmcnt(0)")
                if cfg.get("x0at", 99) > 7: mid()
                stamp(a, cfg, 9, grp="p1")
                a(".p2align 3")
            else:
                a("s_nop 1")
                epi(1)
                filler(20, 999)
    a("""
    s_cmp_lt_u32 s17, 10
    s_cbranch_scc0 L_qkv_v
    """)
    a.c("Q/K tiles: G = (cb%5)*32 + 8w + 4ct + g ; head = G/5 ; pos = G%5")
    a(f"""
    s_cmp_lt_u32 s17, 5
    s_cselect_b32 s25, 0, 81920
    s_cselect_b32 s12, {CSCALE}, 1.0
    s_cselect_b32 s23, 0, {KV_OFF}
    s_cselect_b32 s3, 0, 5
    s_add_u32 s24, s25, {HQ-2560}
    s_max_u32 s22, s25, 2560
    s_mov_b32 s13, s12
    s_add_u32 s21, s21, s23
    s_add_u32 s62, s22, s21
    s_sub_u32 s3, s17, s3
    s_lshl_b32 s3, s3, 2
    s_add_u32 s3, s3, s16
    s_lshl_b32 s3, s3, 3
    v_add_u32 v6, s3, v3
    v_lshlrev_b32 v4, 3, v2
    """)
    for ct in range(2):
        a(f"""
        v_add_u32 v7, {4*ct}, v6
        v_mul_u32_u24 v5, 52429, v7
        v_lshrrev_b32 v5, 18, v5
        v_lshl_add_u32 v7, v7, 9, v4
        v_mad_u32_u24 v{ST+ct}, v5, s24, v7
        """)
    late_qk, late_v = [], []
    def epi_qk(stage):
        for i in range(8):
            tt, ct = i >> 1, (i & 1) ^ ((i >> 1) & 1)
            acc = AC + 8 * tt + 4 * ct
            d = 80 + 2 * i
            a(f"v_pk_mul_f32 {vr(acc,2)}, {vr(acc,2)}, s[12:13]")
            a(f"v_pk_mul_f32 {vr(acc+2,2)}, {vr(acc+2,2)}, s[12:13]")
            a(f"v_cvt_pk_bf16_f32 v{d}, v{acc}, v{acc+1}")
            a(f"v_cvt_pk_bf16_f32 v{d+1}, v{acc+2}, v{acc+3}")
            st = f"buffer_store_dwordx2 {vr(d,2)}, v{ST+ct}, {WS}, s{62 if stage else 21} offen offset:{128*tt} sc1"
            if stage == 0: a(st)
            else: late_qk.append(st)
            if stage == 0 and i == cfg.get("x0at", 99): mid()
    gemm(False, epi_qk)
    a("s_mov_b32 s63, 1")
    a("s_branch L_qkv_fin")
    a("L_qkv_v:")
    a.c("V tiles: col = (cb-10)*128 + 32w + 16ct + n ; head = col/20 ; d = col%20")
    a(f"""
    s_sub_u32 s3, s17, 10
    s_lshl_b32 s3, s3, 2
    s_add_u32 s3, s3, s16
    s_lshl_b32 s3, s3, 5
    v_add_u32 v6, s3, v2
    s_add_u32 s21, s21, {KV_OFF+2560}
    s_add_u32 s62, s21, 81920
    v_mul_u32_u24 v4, 320, v3
    s_mov_b32 s24, {HKV - 320}
    """)
    for ct in range(2):
        a(f"""
        v_add_u32 v7, {16*ct}, v6
        v_mul_u32_u24 v5, 13108, v7
        v_lshrrev_b32 v5, 18, v5
        v_lshl_add_u32 v7, v7, 4, v4
        v_mad_u32_u24 v{ST+ct}, v5, s24, v7
        """)
    def epi_v(stage):
        a("s_nop 2")
        for P in range(2):
            for ct in range(2):
                d = 80 + 8 * P + 4 * ct
                for ab in range(2):
                    acc = AC + 8 * (2 * P + ab) + 4 * ct
                    a(f"v_cvt_pk_bf16_f32 v{d+2*ab}, v{acc}, v{acc+1}")
                    a(f"v_cvt_pk_bf16_f32 v{d+2*ab+1}, v{acc+2}, v{acc+3}")
                st = f"buffer_store_dwordx4 {vr(d,4)}, v{ST+ct}, {WS}, s{62 if stage else 21} offen offset:{1280*P} sc1"
                if stage == 0: a(st)
                else: late_v.append(st)
                if stage == 0 and 2 * P + ct == cfg.get("x0at", 99) // 2: mid()
    gemm(True, epi_v)
    a("s_mov_b32 s63, 2")
    a("L_qkv_fin:")
    stamp(a, cfg, 5)
    return late_qk, late_v

SA, SB = 178, 210
O0, O1 = 146, 162
QM0, QM1, QT = 242, 246, 250
KM, KT = 16, 24
VV, SENT, WOA = 96, 112, 116
VL16, VQ, VQT, VPOLL = 121, 122, 123, 124
VOM, VOT, VXW, VXR, VONE, VZ = 126, 127, 128, 129, 130, 131
IDX, VKE, VKO, VT, VV0, VV1 = 132, 133, 134, 135, 136, 137

P3 = 138
PK = 70
def p3_kh(a, cfg, d):
    a(f"s_lshr_b32 s{d}, s16, 2")
    if cfg.get("khswap"):
        a(f"""
        s_bfe_u32 s3, s2, 0x10005
        s_xor_b32 s{d}, s{d}, s3
        """)
def p3_setup(a, cfg):
    p3_kh(a, cfg, 30)
    a(f"""
    s_and_b32 s31, s16, 3
    s_mul_i32 s3, s30, 51200
    v_lshrrev_b32 v2, 5, v1
    v_bfe_u32 v3, v1, 4, 1
    v_bfe_u32 v14, v1, 2, 2
    v_mul_u32_u24 v15, 20, v2
    v_lshl_add_u32 v15, v3, 2, v15
    v_add_u32 v15, v15, v14
    v_mul_u32_u24 v15, 160, v15
    v_and_b32 v2, 3, v1
    v_lshl_add_u32 v2, v2, 3, s3
    v_add_u32 v{P3}, v15, v2
    v_lshrrev_b32 v3, 4, v1
    v_mul_u32_u24 v15, 20, v3
    v_add3_u32 v15, v15, 16, v14
    v_mul_u32_u24 v15, 160, v15
    v_add_u32 v{P3+1}, v15, v2
    s_mul_i32 s3, s31, 5120
    s_add_u32 s3, s3, 143360
    v_add_u32 v{P3+2}, s3, v{VL16}
    s_mul_i32 s3, s31, 3584
    s_add_u32 s3, s3, 102400
    v_and_b32 v2, 15, v1
    v_mul_u32_u24 v2, 176, v2
    v_lshl_add_u32 v2, v3, 3, v2
    v_add_u32 v{P3+3}, s3, v2
    s_and_b32 s40, s2, 7
    s_lshl_b32 s40, s40, 12
    s_add_u32 s40, s40, {F2_OFF}
    s_lshl_b32 s41, s17, 2
    s_add_u32 s41, s41, s31
    s_mul_i32 s41, s41, 20480
    v_lshrrev_b32 v2, 1, v1
    v_lshlrev_b32 v{P3+7}, 7, v2
    """)
    for i in range(5):
        a(f"""
        v_add_u32 v2, {64*i}, v1
        v_mul_u32_u24 v3, 6554, v2
        v_lshrrev_b32 v3, 16, v3
        v_mul_u32_u24 v14, {1280-160}, v3
        v_lshl_add_u32 v{WOA+i}, v2, 4, v14
        """)
        if i < 3:
            a(f"""
            v_add_u32 v14, v2, v3
            v_lshl_add_u32 v{P3+4+i}, v14, 4, s3
            """)

def attn_setup(a, cfg, early, keep5=False):
    late = 0 if early else 1
    a.c("attention ids: s17=head s18=q pair s19=key half s21=KV base of head")
    a(f"""
    s_and_b32 s17, s2, 7
    s_lshl_b32 s17, s17, 2
    s_bfe_u32 s3, s2, 0x20003
    s_add_u32 s17, s17, s3
    s_lshr_b32 s29, s2, 5
    s_lshl_b32 s18, s29, 2
    s_and_b32 s3, s16, 2
    s_add_u32 s18, s18, s3
    s_add_u32 s18, s18, {late}
    s_and_b32 s19, s16, 1
    s_mul_i32 s20, s19, 5120
    v_and_b32 v2, 31, v1
    v_lshrrev_b32 v3, 5, v1
    v_lshlrev_b32 v14, 3, v2
    v_lshl_add_u32 v{VQ}, v3, 9, v14
    v_add_u32 v{VKE}, s20, v{VQ}
    v_add_u32 v{VKO}, 256, v{VKE}
    v_lshlrev_b32 v14, 3, v1
    v_add_u32 v{VT}, s20, v14
    s_lshl_b32 s3, s19, 8
    v_xor_b32 v{VQT}, s3, v14
    v_mul_u32_u24 v15, 320, v3
    v_lshl_add_u32 v15, v2, 4, v15
    s_add_u32 s3, s20, 2560
    v_add_u32 v{VV0}, s3, v15
    v_add_u32 v{VV1}, 40960, v{VV0}
    v_lshlrev_b32 v{VL16}, 4, v1
    v_mov_b32 v{IDX}, 0xdddddddd
    s_mov_b32 s24, 0x000fffff
    s_mov_b32 s25, 0x000fffff
    v_cmp_eq_u32 vcc, 20, v2
    v_mov_b32 v15, 0x3f803f80
    s_mul_i32 s21, s17, {HKV}
    v_cndmask_b32 v{VV}, 0, v15, vcc
    s_add_u32 s21, s21, {KV_OFF}
    """)
    a(f"v_mov_b32 v{VV+1}, v{VV}")
    for i in range(1, 8): a(f"v_mov_b64 {vr(VV+2*i,2)}, {vr(VV,2)}")
    a.c("s22/s23: Q soffsets role0/role1, s26: Q pair base ; s27: first token block of this wave's K/V units ; s28: dma lds dest")
    a(f"""
    s_mul_i32 s26, s18, 2560
    s_mul_i32 s3, s17, {HQ}
    s_add_u32 s26, s26, s3
    s_lshl_b32 s3, s19, 8
    s_add_u32 s22, s26, s3
    s_xor_b32 s3, s3, 256
    s_add_u32 s23, s26, s3
    s_and_b32 s28, s16, 3
    s_mul_i32 s27, s29, {cfg.get("krot", 0)}
    s_add_u32 s27, s27, s28
    s_mul_i32 s28, s28, 5120
    s_add_u32 s28, s28, {late*81920}
    s_add_u32 s61, s21, {late*81920}
    """)
    a.c("O tile of this wave = 2*pair + (1^kh): s36/s37 store offsets, s38 workgroup flag, s39 wave flag")
    a(f"""
    s_lshl_b32 s30, s18, 1
    s_xor_b32 s31, s19, 1
    s_add_u32 s30, s30, s31
    s_mul_i32 s37, s30, 40960
    s_add_u32 s37, s37, {O_OFF}
    s_lshl_b32 s36, s17, 9
    s_add_u32 s36, s36, s37
    s_lshl_b32 s3, s17, 7
    s_add_u32 s37, s37, s3
    s_add_u32 s37, s37, 16384
    s_lshr_b32 s38, s2, 5
    s_lshl_b32 s38, s38, 12
    s_add_u32 s38, s38, s3
    s_add_u32 s38, s38, {F2_OFF}
    s_add_u32 s39, s38, {F3_OFF - F2_OFF}
    v_bfe_u32 v2, v1, 4, 1
    v_mul_u32_u24 v2, 20480, v2
    v_and_b32 v3, 15, v1
    v_lshl_add_u32 v{VOT}, v3, 3, v2
    v_lshl_add_u32 v2, v3, 4, v2
    v_lshrrev_b32 v3, 5, v1
    v_lshl_add_u32 v{VOM}, v3, 8, v2
    s_mul_i32 s3, s16, 3072
    s_add_u32 s3, s3, 102400
    v_add_u32 v{VXW}, s3, v{VL16}
    s_xor_b32 s3, s16, 1
    s_mul_i32 s3, s3, 3072
    s_add_u32 s3, s3, 102400
    v_add_u32 v{VXR}, s3, v{VL16}
    v_mov_b64 {vr(SENT,2)}, -1
    v_mov_b64 {vr(SENT+2,2)}, -1
    v_mov_b32 v{VONE}, 1
    v_mov_b32 v{VZ}, 0
    """)
    p3_setup(a, cfg)
    sh, sec = (7, 5) if early else (5, 20)
    a.c("poll addresses of the polling wave: K/V producers of all 16 token blocks, Q producers of both pairs")
    a(f"""
    s_mul_i32 s30, s17, 20
    s_add_u32 s31, s30, 19
    s_lshr_b32 s30, s30, {sh}
    s_lshr_b32 s31, s31, {sh}
    s_sub_u32 s31, s31, s30
    v_and_b32 v2, 1, v1
    v_mul_u32_u24 v2, s31, v2
    v_add_u32 v2, s30, v2
    v_lshrrev_b32 v14, 5, v1
    v_mul_u32_u24 v3, {sec}, v14
    v_add3_u32 v3, v2, v3, {sec}
    v_bfe_u32 v15, v1, 1, 4
    v_lshl_add_u32 v3, v3, 4, v15
    v_lshlrev_b32 v{VPOLL}, 7, v3
    v_bfe_u32 v2, v1, 4, 1
    v_mul_u32_u24 v2, s31, v2
    v_add_u32 v2, s30, v2
    s_lshr_b32 s3, s2, 5
    s_lshl_b32 s3, s3, 1
    v_lshl_add_u32 v2, v2, 4, v14
    v_add_u32 v2, s3, v2
    v_lshlrev_b32 v{VPOLL+1}, 7, v2
    s_mov_b32 s33, {FA_OFF if early else FB_OFF}
    """)
    for i in range(16): a(f"v_mov_b64 {vr(O0+2*i,2)}, 0")

def wait_stage(a, cfg, tag, wave):
    a(f"""
    s_mov_b32 s35, 0
    v_mov_b32 v7, 1
    s_cmp_eq_u32 s16, {wave}
    s_cbranch_scc0 L_gw{tag}
    """)
    paced_poll(a, cfg, f"L_poll1{tag}", [VPOLL, VPOLL+1], "s33")
    a(f"""
    ds_write_b32 v11, v7
    s_branch L_gw{tag}_ok
    L_gw{tag}:
    {"s_sleep " + str(cfg.get('gs' + tag, 1)) if cfg.get('gs' + tag, 1) else ""}
    ds_read_b32 v7, v11
    s_waitcnt lgkmcnt(0)
    v_readfirstlane_b32 s34, v7
    s_cmp_lg_u32 s34, 0
    """)
    spin_tail(a, f"L_gw{tag}", mult=16)

def kread(t):
    tl = t & 15
    o = 20 * (tl >> 1)
    return f"ds_read2st64_b64 {vr(KM+4*(t&1),4)}, v{VKO if t & 1 else VKE} offset0:{o} offset1:{o+2}"
def tread(b):
    o = 40 * (b & 3)
    return f"ds_read2st64_b64 {vr(KT+4*(b&1),4)}, v{VT} offset0:{o+4} offset1:{o+24}"
def vread(t, f):
    tl = t & 15
    ad = VV0 if tl < 8 else VV1
    return f"ds_read_b128 {vr(VV+8*(t&1)+4*f,4)}, v{ad} offset:{10240*((tl>>1)&3)+1280*(t&1)+640*f}"
def Tm(t, dst):
    b, T = divmod(t, 4)
    return f"v_mfma_f32_32x32x4_2b_bf16 {vr(dst,32)}, {vr(KT+4*(b&1)+2*(T>>1),2)}, {vr(QT,2)}, 0 cbsz:1 abid:{T&1}"
def Mm(t, dst, r):
    return f"v_mfma_f32_32x32x16_bf16 {vr(dst+16*r,16)}, {vr(KM+4*(t&1),4)}, {vr(QM1 if r else QM0,4)}, {vr(dst+16*r,16)}"
def Pm(o, t, f, s):
    return f"v_smfmac_f32_32x32x32_bf16 {vr(o,16)}, {vr(VV+8*(t&1)+4*f,4)}, {vr(s,8)}, v{IDX}"

def qloads(a):
    a(f"""
    buffer_load_dwordx2 {vr(QT,2)}, v{VQT}, {WS}, s26 offen offset:2048 sc1
    buffer_load_dwordx2 {vr(QM0,2)}, v{VQ}, {WS}, s22 offen sc1
    buffer_load_dwordx2 {vr(QM0+2,2)}, v{VQ}, {WS}, s22 offen offset:1024 sc1
    buffer_load_dwordx2 {vr(QM1,2)}, v{VQ}, {WS}, s23 offen sc1
    buffer_load_dwordx2 {vr(QM1+2,2)}, v{VQ}, {WS}, s23 offen offset:1024 sc1
    """)
def kv_dma(i, back=0):
    g = [f"""
        s_add_u32 s3, s27, {4*i}
        s_and_b32 s3, s3, 15
        s_mul_i32 s3, s3, 5120
        s_sub_u32 s3, s3, {back}
        s_add_u32 m0, s28, {(i*20480 - back) & 0xffffffff}
        s_add_u32 s29, s61, s3
        buffer_load_dwordx4 v{VL16}, {WS}, s29 offen sc1 lds"""]
    for j in range(1, 4):
        g.append(f"buffer_load_dwordx4 v{VL16}, {WS}, s29 offen offset:{1024*j} sc1 lds")
    g.append(f"""
        s_add_u32 m0, s28, {(i*20480+4096 - back) & 0xffffffff}
        s_add_u32 s29, s29, 4096
        buffer_load_dwordx4 v{VL16}, {WS}, s29 offen sc1 lds""")
    return g
def wo_dma(nper):
    g = []
    for p in range(nper):
        for i in range(5):
            pre = ""
            if i == 0:
                pre = f"""
                s_add_u32 s31, s30, {p*8*32*1280}
                """
            g.append(pre + f"""
                s_add_u32 m0, s32, {p*8*5120 + 1024*i}
                s_nop 0
                buffer_load_dwordx4 v{WOA+i}, {WO}, s31 offen lds
                s_nop 0""")
    return g

def attn_loop(a, cfg, early):
    tag = "e" if early else "l"
    a(f"s_setprio {3 if early else 2}")
    a(tread(0)); a(kread(0)); a(kread(1))
    a("s_mov_b64 exec, s[24:25]"); a(vread(0, 0)); a(vread(0, 1)); a("s_mov_b64 exec, -1")
    a.c("wo dma: s30 source, s32 lds dest")
    a(f"""
    s_lshr_b32 s3, s2, 5
    s_mul_i32 s30, s3, 160
    s_mul_i32 s3, s16, {32*1280}
    s_add_u32 s30, s30, s3
    s_mul_i32 s32, s16, 5120
    s_waitcnt lgkmcnt({0 if cfg.get('stamp') else 4})
    """)
    if cfg.get("lp", {}).get("pro"): a("s_memtime s[70:71]")
    a(Tm(0, SA)); a("s_nop 15"); a("s_nop 1"); a("s_waitcnt lgkmcnt(3)")
    a(Mm(0, SA, 0)); a(Mm(0, SA, 1)); a("s_nop 10")
    dma = {}
    be, bl = cfg.get("be", [18, 20, 26]), cfg.get("bl", [11, 20, 26])
    assert (be[0] == be[1]) == (bl[0] == bl[1])
    assert be[0] <= 18 and min(be[1], bl[1]) >= 15 and min(be[2], bl[2]) >= 25
    if early:
        B2, C1, C2 = be
        bars = {2: "vmcnt(0)", 6: None, 14: None, B2: None, C1: None, C2: None}
        prio = cfg.get("prio_e", {"14": 1, "20": 3, "25": 1, "26": 3, "29": 2, "31": 1})
    else:
        B2, C1, C2 = bl
        bars = {C1: None, C2: None}
        bars[B2] = "vmcnt(0)"
        b0 = cfg.get("bl0", 0)
        if b0: bars[b0] = None
        dma[b0] = kv_dma(2); dma[b0 + 1] = kv_dma(3)
        assert B2 >= b0 + 3
        prio = cfg.get("prio_l", {"19": 0, "20": 2, "25": 0, "26": 3, "29": 2, "30": 1, "31": 0})
    prio = {int(k): v for k, v in prio.items()}
    wo = wo_dma(2 if early else 3)
    for i in range(5): dma[C1 + i] = wo[2*i:2*i+2]
    for i in range(3): dma[C2 + i] = wo[10+2*i:12+2*i]
    if cfg.get("opt", 1):
        ts = cfg.get("tsent", [15, 6])[0 if early else 1]
        assert not dma.get(ts)
        dma[ts] = [f"buffer_store_dwordx4 {vr(SENT,4)}, v{VOM}, {WS}, s36 offen sc1",
            f"""s_mov_b32 exec_hi, 0
            buffer_store_dwordx2 {vr(SENT,2)}, v{VOT}, {WS}, s37 offen sc1
            s_mov_b32 exec_hi, -1"""]
    a(".p2align 3")
    for t in range(32):
        cur, nxt = (SA, SB) if t % 2 == 0 else (SB, SA)
        e = iter(range(32))
        def E(n):
            for _ in range(n):
                i = next(e); a(f"v_exp_f32 v{cur+i}, v{cur+i}")
        dq = list(dma.get(t, []))
        def D(n):
            for _ in range(n):
                if dq: a(dq.pop(0))
        many = len(dq) > 2
        a.c(f"step {t}")
        E(2)
        if t > 0: a(Pm(O1, t-1, 1, nxt+24))
        vm = bars.get(t)
        a(f"s_waitcnt {vm + ' ' if vm else ''}lgkmcnt(0)")
        n4 = 1
        lp = cfg.get("lp", {}).get(tag + str(t))
        if lp and lp[0]: a(f"s_memtime s[{64+2*lp[0]}:{65+2*lp[0]}]")
        if t in bars: a("s_barrier"); n4 += 1
        if lp and lp[1]: a(f"s_memtime s[{64+2*lp[1]}:{65+2*lp[1]}]")
        if t in prio: a(f"s_setprio {prio[t]}"); n4 += 1
        if n4 % 2: a("s_nop 0")
        if t == 14:
            for r in (VKE, VKO, VT, VV0): a(f"v_add_u32 v{r}, 81920, v{r}")
        if t == 16: a(f"v_add_u32 v{VV1}, 81920, v{VV1}")
        if t + 2 < 32: a(kread(t+2))
        if many: D(1)
        E(4)
        if t < 31: a(Tm(t+1, nxt))
        E(8)
        a(Pm(O0, t, 0, cur))
        one = early and t < cfg.get("vone", 16)
        if one: a("s_mov_b64 exec, s[24:25]"); a(vread(t+1, 0)); a(vread(t+1, 1)); a("s_mov_b64 exec, -1")
        elif t < 31: a("s_mov_b64 exec, s[24:25]"); a(vread(t+1, 0)); a("s_mov_b64 exec, -1")
        if many: D(1)
        E(4)
        a(Pm(O0, t, 1, cur+8))
        if t < 31 and not one: a("s_mov_b64 exec, s[24:25]"); a(vread(t+1, 1)); a("s_mov_b64 exec, -1")
        if many: D(1)
        E(4)
        if t < 31: a(Mm(t+1, nxt, 0))
        D(1)
        E(4)
        a(Pm(O1, t, 0, cur+16))
        if t % 4 == 2 and t // 4 < 7: a(tread(t//4+1))
        D(1)
        E(4)
        if t < 31: a(Mm(t+1, nxt, 1))
        else:
            a.c("hand the role-0 tile to the partner wave (other key half)")
            for i in (2, 0, 1): a(f"ds_write_b128 v{VXW}, {vr(O0+4*i,4)} offset:{1024*i}")
        E(2)
        assert not dq

def attn_epilogue(a, cfg):
    stamp(a, cfg, 8)
    if cfg.get("lp"): a("s_memtime s[88:89]")
    a(f"""
    s_setprio 0
    s_nop 0
    {Pm(O1, 31, 1, SB+24)}
    s_waitcnt vmcnt(0) lgkmcnt(0)
    s_barrier
    ds_read_b128 {vr(O0+8,4)}, v{VXR} offset:2048
    ds_read_b128 {vr(O0,4)}, v{VXR}
    ds_read_b128 {vr(O0+4,4)}, v{VXR} offset:1024
    """)
    if cfg.get("opt", 1) and cfg.get("notice", 1) == 2: notice(a, cfg, False)
    a("""
    s_nop 6
    s_waitcnt lgkmcnt(2)
    """)
    a(f"""
    v_pk_add_f32 {vr(O1+8,2)}, {vr(O1+8,2)}, {vr(O0+8,2)}
    v_pk_add_f32 {vr(O1+10,2)}, {vr(O1+10,2)}, {vr(O0+10,2)}
    v_mov_b32 v7, v{O1+8}
    v_mov_b32 v9, v{O1+8}
    s_mov_b32 s30, 0x21800000
    s_waitcnt lgkmcnt(1)
    v_permlane32_swap_b32 v7, v9
    v_pk_add_f32 {vr(O1,2)}, {vr(O1,2)}, {vr(O0,2)}
    v_pk_add_f32 {vr(O1+2,2)}, {vr(O1+2,2)}, {vr(O0+2,2)}
    s_mov_b32 s31, 0x5d800000
    s_waitcnt lgkmcnt(0)
    v_pk_add_f32 {vr(O1+4,2)}, {vr(O1+4,2)}, {vr(O0+4,2)}
    v_pk_add_f32 {vr(O1+6,2)}, {vr(O1+6,2)}, {vr(O0+6,2)}
    """)
    a.c("run-time check of the shift-free softmax: row sum in [2^-60, 2^60], finite accumulators; else redo with the true row max")
    a(f"""
    v_cmp_le_f32 s[32:33], s30, v9
    v_cmp_ge_f32 s[34:35], s31, v9
    v_pk_mul_f32 v[10:11], {vr(O1+8,2)}, 0
    """)
    for i in (10, 0, 2, 4, 6): a(f"v_pk_fma_f32 v[10:11], {vr(O1+i,2)}, 0, v[10:11]")
    a(f"""
    s_and_b64 s[32:33], s[32:33], s[34:35]
    v_cmp_o_f32 vcc, v10, v11
    v_rcp_f32 v8, v9
    s_and_b64 s[32:33], s[32:33], vcc
    s_cmp_eq_u64 s[32:33], -1
    s_cbranch_scc0 L_attn_slow
    L_attn_fin:
    """)
    for i in range(4): a(f"v_pk_mul_f32 {vr(O1+2*i,2)}, {vr(O1+2*i,2)}, v[8:9] op_sel_hi:[1,0]")
    for i in range(4): a(f"v_cvt_pk_bf16_f32 v{PK+i}, v{O1+2*i}, v{O1+2*i+1}")
    a(f"buffer_store_dwordx4 {vr(PK,4)}, v{VOM}, {WS}, s36 offen sc1")
    for i in range(4, 6): a(f"v_pk_mul_f32 {vr(O1+2*i,2)}, {vr(O1+2*i,2)}, v[8:9] op_sel_hi:[1,0]")
    for i in range(4, 6): a(f"v_cvt_pk_bf16_f32 v{PK+i}, v{O1+2*i}, v{O1+2*i+1}")
    a(f"""
    s_mov_b32 exec_hi, 0
    buffer_store_dwordx2 {vr(PK+4,2)}, v{VOT}, {WS}, s37 offen sc1
    s_mov_b32 exec_hi, -1
    """)
    stamp(a, cfg, 9)
    if cfg.get("opt", 1) and cfg.get("notice", 1) < 2: notice(a, cfg, cfg.get("notice", 1) == 0)

def notice(a, cfg, bar):
    a.c("early notice: readers check the tiles for the filler words written before and fall back to the acknowledged flags")
    if bar: a("s_barrier")
    a(f"""
    s_cmp_eq_u32 s16, {cfg.get("nw", 0)}
    s_cbranch_scc0 L_nonotice
    s_mov_b64 exec, 1
    buffer_store_dword v{VONE}, v{VZ}, {WS}, s38 offen sc1
    s_mov_b64 exec, -1
    L_nonotice:
    """)

def attn_slow(a):
    a("L_attn_slow:")
    a(f"""
    v_and_b32 v2, 31, v1
    v_lshlrev_b32 v14, 3, v2
    v_lshrrev_b32 v3, 5, v1
    v_mul_u32_u24 v3, 320, v3
    v_lshl_add_u32 v15, v2, 4, v3
    v_mov_b32 v10, 0xff800000
    s_mov_b32 s34, 0
    """)
    for i in range(16): a(f"v_mov_b32 v{O1+i}, 0")
    a(f"""
    L_slow_pass:
    s_mov_b32 s35, 0
    L_slow_tile:
    s_lshr_b32 s30, s35, 1
    s_mul_i32 s30, s30, 5120
    s_add_u32 s30, s30, s21
    s_and_b32 s3, s35, 1
    s_mul_i32 s31, s3, 1280
    s_add_u32 s31, s31, s30
    s_lshl_b32 s3, s3, 8
    s_add_u32 s30, s30, s3
    buffer_load_dwordx2 {vr(KT,2)}, v14, {WS}, s30 offen offset:2048 sc1
    buffer_load_dwordx2 {vr(KM,2)}, v{VQ}, {WS}, s30 offen sc1
    buffer_load_dwordx2 {vr(KM+2,2)}, v{VQ}, {WS}, s30 offen offset:1024 sc1
    s_mov_b64 exec, s[24:25]
    buffer_load_dwordx4 {vr(VV,4)}, v15, {WS}, s31 offen offset:2560 sc1
    buffer_load_dwordx4 {vr(VV+4,4)}, v15, {WS}, s31 offen offset:3200 sc1
    s_mov_b64 exec, -1
    s_waitcnt vmcnt(0)
    v_mfma_f32_32x32x4_2b_bf16 {vr(SA,32)}, {vr(KT,2)}, {vr(QT,2)}, 0
    s_nop 15
    s_nop 3
    v_mfma_f32_32x32x16_bf16 {vr(SA+16,16)}, {vr(KM,4)}, {vr(QM1,4)}, {vr(SA+16,16)}
    s_nop 15
    s_cmp_eq_u32 s34, 0
    s_cbranch_scc0 L_slow_pv
    """)
    for i in range(8): a(f"v_max3_f32 v10, v10, v{SA+16+2*i}, v{SA+17+2*i}")
    a("s_branch L_slow_next")
    a("L_slow_pv:")
    for i in range(16): a(f"v_sub_f32 v{SA+16+i}, v{SA+16+i}, v10")
    for i in range(16): a(f"v_exp_f32 v{SA+16+i}, v{SA+16+i}")
    a(f"""
    s_nop 3
    v_smfmac_f32_32x32x32_bf16 {vr(O1,16)}, {vr(VV,4)}, {vr(SA+16,8)}, v{IDX}
    v_smfmac_f32_32x32x32_bf16 {vr(O1,16)}, {vr(VV+4,4)}, {vr(SA+24,8)}, v{IDX}
    s_nop 15
    L_slow_next:
    s_add_u32 s35, s35, 1
    s_cmp_lt_u32 s35, 64
    s_cbranch_scc1 L_slow_tile
    s_cmp_eq_u32 s34, 0
    s_cbranch_scc0 L_slow_done
    v_mov_b32 v11, v10
    s_nop 1
    v_permlane32_swap_b32 v10, v11
    s_nop 1
    v_max_f32 v10, v10, v11
    s_mov_b32 s34, 1
    s_branch L_slow_pass
    L_slow_done:
    v_mov_b32 v7, v{O1+8}
    v_mov_b32 v9, v{O1+8}
    s_nop 1
    v_permlane32_swap_b32 v7, v9
    s_nop 1
    v_rcp_f32 v8, v9
    s_branch L_attn_fin
    """)

TAIL = []
def phase3(a, cfg):
    OF, AC, WF = 16, 56, 76
    VW, VWT, VPB, VSW, VSR, VL, VL8 = 6, 7, 8, 9, 10, 0, 4
    VOS = [13, 14, 15]
    VW2, VWT2 = 3, 5
    OPT = cfg.get("opt", 1)
    def reads(ks):
        hf, p = divmod(ks, 5)
        r = []
        for t in range(5):
            for u in range(2):
                if p < 4: ad, off = (VW2 if hf else VW), (40*p + 8*u)*160 + 32*t
                else: ad, off = (VWT2 if hf else VWT), 80*u*160 + 32*t
                r.append(f"ds_read_b64_tr_b16 {vr(WF+20*(ks%9)+4*t+2*u,2)}, v{ad} offset:{off}")
        return r
    def unpack():
        a(f"""
        s_bfe_u32 s30, s2, {0x10006 if cfg.get("khswap") else 0x10005}
        s_and_b32 s30, s30, {cfg.get("hswap", 1)}
        s_mul_i32 s31, s30, 25600
        s_sub_u32 s32, 25600, s31
        v_add_u32 v{VW}, s31, v{P3}
        v_add_u32 v{VWT}, s31, v{P3+1}
        v_add_u32 v{VW2}, s32, v{P3}
        v_add_u32 v{VWT2}, s32, v{P3+1}
        """)
        for i in range(2, 7): a(f"v_mov_b32 v{VW+i}, v{P3+i}")
        for i in range(3): a(f"v_mov_b32 v{VOS[i]}, v{WOA+i}")
        a(f"""
        v_mov_b32 v{VL}, v{VL16}
        v_lshlrev_b32 v{VL8}, 3, v1
        """)
        p3_kh(a, cfg, 26)
        a(f"""
        s_lshr_b32 s27, s2, 5
        s_mul_i32 s27, s27, 160
        s_add_u32 s27, s27, s41
        s_add_u32 s28, s41, {O_OFF}
        s_lshl_b32 s3, s26, 1
        s_add_u32 s3, s3, s30
        s_xor_b32 s29, s3, 1
        s_lshl_b32 s22, s3, 12
        s_add_u32 s22, s22, s28
        s_lshl_b32 s24, s29, 12
        s_add_u32 s24, s24, s28
        s_add_u32 s28, s28, 16384
        s_lshl_b32 s23, s3, 10
        s_add_u32 s23, s23, s28
        s_lshl_b32 s25, s29, 10
        s_add_u32 s25, s25, s28
        """)
    a.c("---- output projection: 64 tokens x 80 columns")
    if not OPT:
        a("""
        s_waitcnt vmcnt(0)
        s_barrier
        s_cmp_eq_u32 s16, 0
        s_cbranch_scc0 L_p3_nofl
        """)
        raise_flag(a, "s38")
        a("L_p3_nofl:")
    NPB, WIN = cfg.get("npb", 6), cfg.get("win", 5)
    LOADS = []
    for ks in range(10):
        hf, p = divmod(ks, 5)
        if p < 4: LOADS.append([f"buffer_load_dwordx4 {vr(OF+4*ks,4)}, v{VL}, {WS}, s{22+2*hf} offen offset:{1024*p} sc1"])
        else: LOADS.append([f"buffer_load_dwordx2 {vr(OF+4*ks+2*u,2)}, v{VL8}, {WS}, s{23+2*hf} offen offset:{512*u} sc1" for u in range(2)])
    PM = cfg.get("pm", 0)
    PW = cfg.get("pw", 1)
    a(f"""
    v_mov_b32 v2, v{P3+7}
    s_mov_b32 s35, 0
    """)
    if PM == 1:
        a(f"""
        s_cmp_eq_u32 s16, {PW}
        s_cbranch_scc0 L_p3_np
        buffer_load_dword v1, v2, {WS}, s40 offen sc1
        L_p3_np:
        """)
    unpack()
    if PM == 2:
        a(f"""
        s_cmp_eq_u32 s16, {PW}
        s_cbranch_scc1 L_poll2
        """)
    for ks in range(NPB):
        for r in reads(ks): a(r)
    a(f"""
    s_cmp_eq_u32 s16, {PW}
    s_cbranch_scc0 L_poll2_ok
    """)
    if PM == 1: a("s_branch L_poll2_chk")
    a(f"""
    L_poll2:
    buffer_load_dword v1, v2, {WS}, s40 offen sc1
    L_poll2_chk:
    s_waitcnt vmcnt(0)
    v_cmp_ne_u32 vcc, 0, v1
    s_nop 0
    s_cmp_eq_u64 vcc, -1
    """)
    spin_tail(a, "L_poll2")
    a("s_waitcnt vmcnt(0)")
    stamp(a, cfg, 10)
    a("s_barrier")
    stamp(a, cfg, 11)
    assert PM != 2
    def first(il, pre):
        rest = [r for ks in range(NPB, 9) for r in reads(ks)]
        for r in rest[:pre]: a(r)
        rest = rest[pre:]
        for g in LOADS[:WIN]:
            for l in g: a(l)
            for r in rest[:il]: a(r)
            rest = rest[il:]
        for r in rest: a(r)
    if cfg.get("seq"):
        a("""
        s_cmp_lt_u32 s16, 4
        s_cbranch_scc0 L_p3_y
        """)
        first(cfg.get("il", 3), 0)
        a("s_branch L_p3_go")
        a("L_p3_y:")
        first(0, 99)
    else:
        first(cfg.get("il", 3), 0)
    a("L_p3_go:")
    if cfg.get("p3d"): a("s_memtime s[68:69]")
    VMX = 1
    a(f"v_mov_b32 v{VMX}, 0")
    a("v_mov_b32 v2, 1")
    def mf(ks, extra=0, check=OPT):
        win = 10 if extra else WIN
        vm = sum(len(g) for g in LOADS[ks+1:ks+win])
        a(f"s_waitcnt vmcnt({vm})" + (" lgkmcnt(0)" if ks == 0 or (ks == 9 and (extra or cfg.get("kb", 9) == 10)) else ""))
        if ks + win < 10:
            for l in LOADS[ks + win]: a(l)
        if OPT and not extra and ks + win == 9 + (win == 10):
            a.c("every wave's stores were acknowledged before the barrier above: tell readers that fall back")
            a(f"""
            s_cmp_eq_u32 s16, 7
            s_cbranch_scc0 L_p3_noconf
            s_mov_b64 exec, 1
            buffer_store_dword v2, v{VL}, {WS}, s39 offen sc1
            s_mov_b64 exec, -1
            L_p3_noconf:
            """)
        if cfg.get("p3d") and check and ks in (0, 3, 7, 9): a("s_memtime s[%d:%d]" % {0: (70, 71), 3: (72, 73), 7: (74, 75), 9: (76, 77)}[ks])
        for t in range(5):
            c = "0" if ks == 0 else vr(AC+4*t, 4)
            a(f"v_mfma_f32_16x16x32_bf16 {vr(AC+4*t,4)}, {vr(WF+20*(ks%9)+4*t,4)}, {vr(OF+4*ks,4)}, {c}")
            if check and t < 2: a(f"v_max3_u32 v{VMX}, v{VMX}, v{OF+4*ks+2*t}, v{OF+4*ks+2*t+1}")
            if check and ks == 9 and t == 2: a(f"v_cmp_eq_u32 vcc, -1, v{VMX}")
        if ks == 0:
            for r in reads(9): a(r)
    def redo():
        a("L_redo:")
        if cfg.get("stamp"): a("s_waitcnt lgkmcnt(0)"); a("s_mov_b32 s68, -1")
        a(f"""
        s_add_u32 s33, s40, {F3_OFF - F2_OFF}
        v_bfe_u32 v2, v{VL}, 5, 5
        v_lshlrev_b32 v2, 7, v2
        """)
        poll(a, "L_poll3", 2, WS, "s33", dst=1)
        a("s_waitcnt lgkmcnt(0)")
        for r in reads(0) + reads(1): a(r)
        for g in LOADS:
            for l in g: a(l)
        for ks in range(10): mf(ks, 1, 0)
        a("""
        s_cmp_lt_u32 s16, 4
        s_cbranch_scc1 L_back_w
        """)
        for t in range(5): a(f"ds_read_b128 {vr(WF+20+4*t,4)}, v{VPB} offset:{1024*t}")
        a("s_branch L_back_f")
    TAIL.append(redo if OPT else (lambda: None))
    FORCE = "s_branch L_redo" if cfg.get("force_redo") else "s_cbranch_vccnz L_redo"
    KB = cfg.get("kb", 9)
    for ks in range(KB): mf(ks)
    a("""
    s_waitcnt lgkmcnt(0)
    s_cmp_lt_u32 s16, 4
    s_cbranch_scc0 L_out_fin
    """)
    for ks in range(KB, 10): mf(ks)
    if OPT: a(FORCE); a("L_back_w:")
    stamp(a, cfg, 12)
    a("s_nop 3")
    for t in range(5):
        a(f"ds_write_b128 v{VPB}, {vr(AC+4*t,4)} offset:{1024*t}")
        if t < 4: a("s_nop 0")
    a("""
    s_waitcnt lgkmcnt(0)
    s_barrier
    s_branch L_fin
    L_out_fin:
    s_barrier
    """)
    PB = WF + 20
    for t in range(5): a(f"ds_read_b128 {vr(PB+4*t,4)}, v{VPB} offset:{1024*t}")
    for ks in range(KB, 10): mf(ks)
    if OPT: a(FORCE); a("L_back_f:")
    stamp(a, cfg, 12)
    a("s_waitcnt lgkmcnt(0)")
    a("s_nop 2")
    for t in range(5):
        a(f"v_pk_add_f32 {vr(AC+4*t,2)}, {vr(AC+4*t,2)}, {vr(PB+4*t,2)}")
        a(f"v_pk_add_f32 {vr(AC+4*t+2,2)}, {vr(AC+4*t+2,2)}, {vr(PB+4*t+2,2)}")
        a(f"v_cvt_pk_bf16_f32 v{OF+2*t}, v{AC+4*t}, v{AC+4*t+1}")
        a(f"v_cvt_pk_bf16_f32 v{OF+2*t+1}, v{AC+4*t+2}, v{AC+4*t+3}")
        a(f"ds_write_b64 v{VSW}, {vr(OF+2*t,2)} offset:{32*t}")
    for i in range(3): a(f"ds_read_b128 {vr(PB+4*i,4)}, v{VSR+i}")
    OFL = cfg.get("outfl", "nt")
    for i in range(3):
        a(f"s_waitcnt lgkmcnt({2-i})")
        if i == 2: a("s_mov_b32 exec_hi, 0")
        a(f"buffer_store_dwordx4 {vr(PB+4*i,4)}, v{VOS[i]}, {OUT}, s27 offen {OFL}")
    a("L_fin:")

def gen(cfg):
    a = Asm()
    a(f".globl {NAME}")
    a(".p2align 12")
    a(f".fill {cfg.get('pad', 3328)//4}, 4, 0xbf800000")
    a(".p2align 8")
    a(f".type {NAME},@function")
    a(f"{NAME}:")
    a("""
    s_cmp_ge_u32 s2, 256
    s_cbranch_scc1 L_end
    """)
    stamp(a, cfg, 0, real=True); stamp(a, cfg, 1)
    a("""
    s_load_dwordx4 s[4:7], s[0:1], 0
    s_load_dwordx8 s[36:43], s[0:1], 16
    v_lshrrev_b32 v2, 6, v0
    v_and_b32 v1, 63, v0
    v_readfirstlane_b32 s16, v2
    """)
    if cfg.get("codepf", 1):
        a.c("wave 0 touches an 8 KB share of the kernel's own code so that instruction fetch hits L2")
        a(f"""
        s_getpc_b64 s[26:27]
        L_pc:
        s_bfe_u32 s3, s2, 0x30003
        s_lshl_b32 s3, s3, 13
        s_cmp_eq_u32 s16, 0
        s_cbranch_scc0 L_nopf
        v_lshl_add_u32 v3, v1, 7, s3
        v_min_u32 v3, L_code_end - L_pc - 4, v3
        global_load_dword v0, v3, s[26:27]
        L_nopf:
        """)
    a.c("tile: j = id&7, v = id>>3 ; cb(s17) = (v>>2) + 8*(j>>2) ; tb(s18) = (j&3)*4 + (v&3) ; cb 15: no tile")
    a("""
    s_lshr_b32 s17, s2, 5
    s_and_b32 s3, s2, 4
    s_lshl_b32 s3, s3, 1
    s_add_u32 s17, s17, s3
    s_bfe_u32 s3, s2, 0x20003
    s_and_b32 s18, s2, 3
    s_lshl_b32 s18, s18, 2
    s_add_u32 s18, s18, s3
    s_cmp_eq_u32 s17, 15
    s_cbranch_scc1 L_idle
    s_cmp_lt_u32 s16, 4
    s_cbranch_scc1 L_qkv_cons
    """)
    phase1_loader(a, cfg)
    a("L_idle:")
    if cfg.get("e2e"): a("s_memrealtime s[64:65]")
    a.c("workgroups without a GEMM tile: clear the hand-off flags, raise 'ready' in d_debug, pull second-stage x rows into L2")
    xr = cfg.get("xrot", XROT)
    a(f"""
    s_lshl_b32 s19, s18, 2
    s_mul_i32 s17, s18, {112*128}
    s_add_u32 s17, s17, {FB_OFF}
    s_lshl_b32 s20, s18, 4
    s_add_u32 s20, s20, s16
    s_mul_i32 s23, s20, {8*1280}
    s_add_u32 s20, s23, {64*1280}
    s_add_u32 s21, s20, 8192
    v_lshlrev_b32 v2, 7, v1
    v_min_u32 v3, {15*128}, v2
    v_mov_b32 v4, 0
    v_and_b32 v10, 15, v1
    v_lshlrev_b32 v10, 2, v10
    v_mov_b32 v11, {GO_ADDR}
    ds_write_b32 v11, v4
    """)
    PFC = cfg.get("pfc", [4])
    if PFC:
        a.c("lines of the k-chunks that end the two miss runs of this die: s24 = chunk offset of the die")
        a(f"""
        s_and_b32 s24, s2, 7
        s_lshl_b32 s24, s24, 2
        s_lshr_b32 s24, {sum(v << (4*i) for i, v in enumerate(xr))}, s24
        s_and_b32 s24, s24, 15
        s_lshl_b32 s25, s3, 2
        s_and_b32 s26, s16, 3
        s_add_u32 s25, s25, s26
        s_mul_i32 s25, s25, {4*3840}
        s_add_u32 s25, s25, 2048
        s_lshr_b32 s26, s16, 2
        s_mul_i32 s26, s26, 5
        s_add_u32 s24, s24, s26
        s_lshl_b32 s22, s18, 3
        s_and_b32 s26, s16, 3
        s_add_u32 s22, s22, s26
        s_mul_i32 s22, s22, {16*1280}
        v_lshrrev_b32 v5, 4, v1
        v_mul_u32_u24 v5, 3840, v5
        v_and_b32 v6, 15, v1
        v_min_u32 v8, 13, v6
        v_lshl_add_u32 v8, v8, 7, v5
        v_min_u32 v9, 15, v1
        v_mul_u32_u24 v9, 1280, v9
        """)
    a("s_waitcnt lgkmcnt(0)")
    common_srds(a)
    srd(a, 8, 4, 2048 * 1280)
    srd(a, 12, 6, 640 * 3840)
    def pf(c):
        a(f"""
        s_add_u32 s26, s24, {c}
        s_sub_u32 s27, s26, 10
        s_cselect_b32 s26, s26, s27
        s_mul_i32 s27, s26, {64*3840}
        s_add_u32 s27, s27, s25
        s_lshl_b32 s26, s26, 7
        s_add_u32 s26, s26, s22
        buffer_load_dword v94, v8, s[12:15], s27 offen
        buffer_load_dword v95, v9, s[8:11], s26 offen
        """)
    a(f"""
    s_cmp_eq_u32 s16, 0
    s_cbranch_scc0 L_idle_pf
    s_add_u32 s28, s17, 8192
    v_min_u32 v7, {47*128}, v2
    buffer_store_dword v4, v2, {WS}, s17 offen sc1
    buffer_store_dword v4, v7, {WS}, s28 offen sc1
    L_idle_pf:
    """)
    for c in PFC: pf(c)
    if not PFC: a(f"buffer_load_dword v92, v3, s[8:11], s21 offen")
    a(f"""
    s_cmp_eq_u32 s16, 0
    s_cbranch_scc0 L_idle_pf2
    v_mov_b32 v6, 1
    s_waitcnt vmcnt({2*len(PFC) if PFC else 1})
    s_mov_b64 exec, 1
    buffer_store_dword v6, v4, {DBG}, s19 offen sc1
    s_mov_b64 exec, -1
    L_idle_pf2:
    s_barrier
    buffer_load_dword v90, v2, s[8:11], s20 offen
    """)
    if PFC: a(f"buffer_load_dword v92, v3, s[8:11], s21 offen")
    if cfg.get("e2e"):
        srd(a, 96, 42, 1 << 20, add=STAMP_OFF + (2 << 20))
        a("""
        v_mov_b32 v93, s64
        s_mov_b64 exec, 1
        buffer_store_dword v93, v4, s[96:99], s19 offen
        s_mov_b64 exec, -1
        """)
    a("""
    s_cmp_eq_u32 s16, 0
    s_cbranch_scc0 L_rdy_i_ok
    """)
    poll(a, "L_rdy_i", 10, DBG, "0")
    a("""
    s_waitcnt vmcnt(0)
    s_barrier
    s_mov_b32 s63, 0
    s_mov_b32 s62, 0
    v_mov_b32 v12, 0
    v_mov_b32 v13, 0
    s_mov_b32 s60, 0
    s_cmp_lt_u32 s16, 4
    s_cbranch_scc1 L_late_setup
    """)
    attn_setup(a, cfg, early=True)
    a("s_branch L_early")
    a("L_qkv_cons:")
    late_qk, late_v = phase1_consumer(a, cfg)
    if cfg.get("suin", 1): a("s_branch L_late_have")
    a("L_late_setup:")
    attn_setup(a, cfg, early=False)
    a("L_late_have:")
    a(f"v_mov_b32 v11, {GO_ADDR + 81920}")
    a("v_mov_b32 v7, 0")
    a("s_barrier")
    a("""
    s_cmp_eq_u32 s63, 1
    s_cbranch_scc0 L_late_nqk
    """)
    for st in late_qk: a(st)
    a("""
    s_branch L_late_st
    L_late_nqk:
    s_cmp_eq_u32 s63, 2
    s_cbranch_scc0 L_late_st
    """)
    for st in late_v: a(st)
    a("""
    L_late_st:
    ds_write_b32 v11, v7
    s_barrier
    """)
    for g in kv_dma(2, back=81920): a(g)
    a("s_waitcnt vmcnt(5)")
    if cfg.get("u3first", 0):
        for g in kv_dma(3, back=81920): a(g)
        a(f"""
        s_cmp_eq_u32 s63, 0
        s_cbranch_scc1 L_late_nofl
        s_mov_b64 exec, 1
        buffer_store_dword v{VONE}, v{VZ}, {WS}, s60 offen sc1
        s_mov_b64 exec, -1
        s_waitcnt vmcnt(1) lgkmcnt(0)
        s_branch L_late_a3
        L_late_nofl:
        s_waitcnt vmcnt(0) lgkmcnt(0)
        L_late_a3:
        s_barrier
        """)
    else:
        a("""
        s_cmp_eq_u32 s63, 0
        s_cbranch_scc1 L_late_nofl
        """)
        raise_flag(a, "s60")
        a("L_late_nofl:")
        for g in kv_dma(3, back=81920): a(g)
        a("""
        s_waitcnt vmcnt(0) lgkmcnt(0)
        s_barrier
        """)
    wait_stage(a, cfg, "l", 0)
    stamp(a, cfg, 6)
    for g in kv_dma(0): a(g)
    qloads(a)
    a("s_waitcnt vmcnt(5) lgkmcnt(0)")
    stamp(a, cfg, 15)
    if not cfg.get("bl0"): a("s_barrier")
    for g in kv_dma(1): a(g)
    a("s_waitcnt vmcnt(5)")
    stamp(a, cfg, 7)
    attn_loop(a, cfg, early=False)
    a("s_branch L_epi")
    a("L_early:")
    wait_stage(a, cfg, "e", cfg.get("epoll", 5))
    stamp(a, cfg, 6)
    for g in kv_dma(0): a(g)
    qloads(a)
    if cfg.get("u1late", 1):
        a(f"s_waitcnt vmcnt({cfg.get('u1w', 5)})")
    for g in kv_dma(1): a(g)
    a("s_waitcnt vmcnt(5) lgkmcnt(0)")
    stamp(a, cfg, 5)
    a("s_barrier")
    stamp(a, cfg, 7)
    attn_loop(a, cfg, early=True)
    a("L_epi:")
    attn_epilogue(a, cfg)
    phase3(a, cfg)
    if cfg.get("stamp"): a("s_waitcnt vmcnt(0)")
    stamp(a, cfg, 13); stamp(a, cfg, 14, real=True)
    if "xsel" in cfg:
        a(f"""
        s_waitcnt lgkmcnt(0)
        s_and_b32 s90, s2, 7
        s_cmp_eq_u32 s90, {cfg["xsel"]}
        s_cselect_b32 s90, s64, 0
        """)
    if cfg.get("xcc"):
        a("""
        s_waitcnt lgkmcnt(0)
        s_getreg_b32 s90, hwreg(HW_REG_XCC_ID, 0, 4)
        s_sub_u32 s90, s90, s2
        s_and_b32 s90, s90, 7
        s_mul_i32 s90, s90, 200
        """)
    stamp_flush(a, cfg, 0, 16, 8, wsptr=42)
    a("L_end:")
    a("s_endpgm")
    a("L_code_end:")
    attn_slow(a)
    TAIL.pop()()
    head = open("standalone__softmax_full_mha__prompt.s.ref").read().split("; Override launch")[0]
    descs = descriptor(NAME, 256)
    if cfg.get("probe"):
        import k_probe
        if cfg.get("lat"):
            head += "; @launch kernel=lat_kernel grid=(1,1,1) block=(64,1,1) lds=0\n"
            descs += k_probe.gen_lat(a, cfg)
        head += f"; @launch kernel={NAME} grid=(256,1,1) block=(512,1,1) lds=163840\n; @launch kernel=probe_kernel grid=(1,1,1) block=(64,1,1) lds=0\n"
        descs += k_probe.gen_probe(a, cfg)
    elif cfg.get("e2e"):
        import k_probe
        head += "; @launch kernel=prev_kernel grid=(1,1,1) block=(64,1,1) lds=0\n"
        a(".p2align 12")
        descs += k_probe.gen_prev(a, cfg)
        head += f"; @launch kernel={NAME} grid=(256,1,1) block=(512,1,1) lds=163840\n; @launch kernel=next_kernel grid=(1,1,1) block=(64,1,1) lds=0\n"
        descs += k_probe.gen_next(a, cfg)
    elif cfg.get("list"):
        head += f"; @launch kernel={NAME} grid=(256,1,1) block=(512,1,1) lds=163840\n"
    else:
        head += "; @launch grid=(256,1,1) block=(512,1,1) lds=163840\n"
    return head + '.amdgcn_target "amdgcn-amd-amdhsa--gfx950"\n.text\n' + a.text() + '.section .rodata,"a"\n' + descs

if __name__ == "__main__":
    cfg = json.loads(sys.argv[2]) if len(sys.argv) > 2 else {}
    open(sys.argv[1], "w").write(gen(cfg))
```

```python
import sys, json, struct, re
from asmlib import *
NAME = "standalone__softmax_full_mha__prompt_kernel"
HQ = 81920
HKV = 163840
KV_OFF = 32 * HQ
O_OFF = KV_OFF + 32 * HKV
FB_OFF = O_OFF + 128 * 20480
FA_OFF = FB_OFF + 1024 * 128
F2_OFF = FA_OFF + 256 * 128
F3_OFF = F2_OFF + 256 * 128
WS_BYTES = F3_OFF + 256 * 128
SLOT = [0, 24576, 49152, 81920, 106496, 131072, 0, 24576, 49152, 139264]
CSCALE = struct.unpack("<I", struct.pack("<f", (20 ** -0.5) * 1.4426950408889634))[0]
WS, WO, OUT, DBG = "s[44:47]", "s[48:51]", "s[52:55]", "s[56:59]"
SPIN_MAX = 1 << 18

def spin_head(a, label):
    a(f"{label}:")
def spin_tail(a, label, mult=1):
    a(f"""
    s_cselect_b32 s35, {SPIN_MAX*mult}, s35
    s_add_u32 s35, s35, 1
    s_cmp_lt_u32 s35, {SPIN_MAX*mult}
    s_cbranch_scc1 {label}
    {label}_ok:
    """)

def poll(a, label, vaddr, rsrc, soff, dst=5):
    a(f"""
    s_mov_b32 s35, 0
    {label}:
    buffer_load_dword v{dst}, v{vaddr}, {rsrc}, {soff} offen sc1
    s_waitcnt vmcnt(0)
    v_cmp_ne_u32 vcc, 0, v{dst}
    s_nop 0
    s_cmp_eq_u64 vcc, -1
    """)
    spin_tail(a, label)

def paced_poll(a, cfg, label, vaddrs, soff):
    pace = cfg.get("pace" + label[-1], -1)
    n = len(vaddrs)
    dst = [5, 3][:n]
    if pace < 0:
        a(f"s_mov_b32 s35, 0\n{label}:")
        if pace < -1: a(f"s_sleep {-pace}")
        for d, v in zip(dst, vaddrs): a(f"buffer_load_dword v{d}, v{v}, {WS}, {soff} offen sc1")
        a(f"{label}_chk:")
        a("s_waitcnt vmcnt(0)")
    else:
        for d in dst: a(f"v_mov_b32 v{d}, 0")
        a(f"s_mov_b32 s35, 0\n{label}:")
        for d, v in zip(dst, vaddrs): a(f"buffer_load_dword v{d}, v{v}, {WS}, {soff} offen sc1")
        if pace: a(f"s_sleep {pace}")
        a(f"s_waitcnt vmcnt({n * cfg.get('pdepth', 4)})")
    if n == 2: a("v_and_b32 v2, v5, v3"); a("v_cmp_ne_u32 vcc, 0, v2")
    else: a("v_cmp_ne_u32 vcc, 0, v5")
    a("s_nop 0")
    a("s_cmp_eq_u64 vcc, -1")
    spin_tail(a, label, mult=4)

def raise_flag(a, soff):
    a(f"""
    v_mov_b32 v2, 0
    v_mov_b32 v3, 1
    s_mov_b64 exec, 1
    buffer_store_dword v3, v2, {WS}, {soff} offen sc1
    s_mov_b64 exec, -1
    """)

def page(a, cfg, key):
    off = cfg.get("pages", {}).get(key)
    if off is None: return
    if key == "v" and off:
        a(".p2align 8"); a(f".fill {(off - 256)//4}, 4, 0xbf800000"); return
    a(".p2align 12")
    if off: a(f".fill {off//4}, 4, 0xbf800000")

def common_srds(a):
    srd(a, 44, 42, WS_BYTES)
    srd(a, 48, 36, 640 * 1280)
    srd(a, 52, 38, 2048 * 1280)
    srd(a, 56, 40, 256)

XROT = [0, 1, 3, 4, 3, 4, 1, 2]
IDLE2 = True
GO_ADDR = 81920 - 16
def phase1_loader(a, cfg):
    a.c("---------------- loader waves (become the early attention waves)")
    rot = cfg.get("rot", 2)
    NX0 = cfg.get("nx0", 7)
    if rot == 2:
        a("""
        s_add_u32 s100, s3, s17
        s_and_b32 s100, s100, 1
        s_mul_i32 s100, s100, 5
        """)
    elif rot == 3:
        a("""
        s_add_u32 s100, s3, s17
        s_mul_i32 s101, s100, 43
        s_lshr_b32 s101, s101, 7
        s_mul_i32 s101, s101, 3
        s_sub_u32 s100, s100, s101
        s_mul_i32 s100, s100, 7
        s_lshr_b32 s100, s100, 1
        """)
    elif rot == 4:
        a("""
        s_add_u32 s100, s3, s17
        s_and_b32 s100, s100, 3
        s_mul_i32 s100, s100, 5
        s_lshr_b32 s100, s100, 1
        """)
    else:
        a("s_mov_b32 s100, 0")
    xr = cfg.get("xrot", XROT)
    if xr:
        a(f"""
        s_and_b32 s101, s2, 7
        s_lshl_b32 s101, s101, 2
        s_lshr_b32 s101, {sum(v << (4*i) for i, v in enumerate(xr))}, s101
        s_and_b32 s101, s101, 15
        s_add_u32 s100, s100, s101
        s_sub_u32 s101, s100, 10
        s_cselect_b32 s100, s100, s101
        """)
    a(f"""
    s_and_b32 s19, s16, 3
    s_lshl_b32 s96, s19, 4
    s_lshr_b32 s101, s19, 1
    s_lshl_b32 s101, s101, 5
    s_and_b32 s34, s19, 1
    s_lshl_b32 s34, s34, 2
    s_add_u32 s101, s101, s34
    s_cmp_lt_u32 s17, 10
    s_cselect_b32 s96, s96, s101
    s_cselect_b32 s101, 4, 8
    s_mul_i32 s101, s101, 1280
    s_lshl_b32 s34, s18, 7
    s_add_u32 s96, s96, s34
    s_mul_i32 s96, s96, 1280
    v_lshrrev_b32 v2, 5, v1
    v_mul_u32_u24 v2, s101, v2
    v_bfe_u32 v3, v1, 3, 2
    v_mul_u32_u24 v3, 1280, v3
    v_lshrrev_b32 v5, 4, v1
    v_and_b32 v4, 7, v1
    v_xor_b32 v4, v4, v5
    v_lshlrev_b32 v4, 4, v4
    v_add3_u32 v8, v2, v3, v4
    v_xor_b32 v4, 64, v4
    v_add3_u32 v9, v2, v3, v4
    s_lshl_b32 s101, s101, 1
    s_sub_u32 s101, s101, 1024
    v_add_u32 v9, s101, v9
    v_and_b32 v3, 15, v1
    v_lshlrev_b32 v6, 1, v5
    v_xor_b32 v3, v3, v6
    v_mul_u32_u24 v2, 3840, v5
    v_lshl_add_u32 v16, v3, 4, v2
    v_add_u32 v17, {4*3840-1024}, v16
    v_xor_b32 v3, 8, v3
    v_lshl_add_u32 v18, v3, 4, v2
    v_add_u32 v19, {3*(4*3840-1024)}, v18
    v_add_u32 v18, {2*(4*3840-1024)}, v18
    s_mul_i32 s97, s19, {16*3840}
    s_lshl_b32 s3, s17, 8
    s_add_u32 s97, s97, s3
    s_lshl_b32 s98, s19, 11
    s_lshl_b32 s99, s19, 12
    s_mov_b32 s10, {2048*1280}
    s_mov_b32 s11, 0x00020000
    s_mov_b32 s14, {640*3840}
    s_mov_b32 s15, 0x00020000
    """)
    stamp(a, cfg, 8, grp="st")
    a("s_waitcnt lgkmcnt(0)")
    stamp(a, cfg, 9, grp="st")
    a(f"""
    s_mov_b32 s8, s4
    s_mov_b32 s9, s5
    s_mov_b32 s12, s6
    s_mov_b32 s13, s7
    """)
    XF1, XF2, WF_ = cfg.get("xfl", ""), cfg.get("x2fl", ""), cfg.get("wfl", "")
    def adv():
        a("""
        s_add_u32 s100, s100, 1
        s_cmp_eq_u32 s100, 10
        s_cselect_b32 s100, 0, s100
        """)
    def issue_x(lds, XF):
        a(f"""
        s_lshl_b32 s101, s100, 7
        s_add_u32 m0, s98, {lds}
        s_add_u32 s101, s101, s96
        """)
        for j in range(2):
            a(f"buffer_load_dwordx4 v{8+j}, s[8:11], s101 offen offset:{1024*j} {XF} lds")
    def issue(c):
        slot = SLOT[c]
        issue_x(slot, XF1)
        a(f"""
        s_mul_i32 s34, s100, {64*3840}
        s_add_u32 m0, s99, {slot+8192}
        s_add_u32 s34, s34, s97
        """)
        for j in range(4):
            a(f"buffer_load_dwordx4 v{16+j}, s[12:15], s34 offen offset:{1024*j} {WF_} lds")
        adv()
    def issue2(c):
        if c == 0: a(f"s_add_u32 s96, s96, {64*1280}")
        issue_x(81920 + 8192*c, XF2)
        if c < 9: adv()
    NPRE = cfg.get("npre", 3)
    if cfg.get("ldprio"): a(f"s_setprio {cfg['ldprio']}")
    groups = [[("c", c)] for c in range(10)]
    q = list(range(NX0))
    while q: groups.append([("x", i) for i in q[:3]]); q = q[3:]
    while len(groups) > 10 + NPRE:
        g = groups.pop(); groups[-1] = groups[-1] + g
    pend = []
    def put(g):
        for kind, i in g:
            if kind == "c": issue(i); pend.append(((kind, i), 6))
            else: issue2(i); pend.append(((kind, i), 2))
    def wait_for(item):
        k = [p[0] for p in pend].index(item)
        del pend[:k+1]
        a(f"s_waitcnt vmcnt({sum(p[1] for p in pend)})")
    for i in range(NPRE):
        put(groups.pop(0))
        if i == 0: stamp(a, cfg, 10, grp="st")
    common_srds(a)
    a(f"""
    v_and_b32 v10, 15, v1
    v_lshlrev_b32 v10, 2, v10
    s_lshl_b32 s60, s17, 4
    s_add_u32 s60, s60, s18
    s_lshl_b32 s60, s60, 7
    s_add_u32 s60, s60, {FA_OFF}
    """)
    t = Asm(); attn_setup(t, cfg, early=True)
    su = [l.strip() for l in t.lines if not l.strip().startswith(";")]
    at = cfg.get("esu", [0, 1, 2, 3, 4])
    per = -(-len(su) // len(at))
    def slice_(c):
        if c in at:
            for l in su[:per]: a(l)
            del su[:per]
    slice_(-1)
    for c in range(10):
        wait_for(("c", c))
        if c == 0: stamp(a, cfg, 2)
        if c in (3, 6): stamp(a, cfg, {3: 11, 6: 12}[c], grp="st")
        a("s_barrier")
        if cfg.get("rdyearly") == c: a(f"buffer_load_dword v5, v10, {DBG}, 0 offen sc1"); pend.append((("r", 0), 1))
        if groups: put(groups.pop(0))
        slice_(c)
    if not cfg.get("rdyearly"): a(f"buffer_load_dword v5, v10, {DBG}, 0 offen sc1"); pend.append((("r", 0), 1))
    stamp(a, cfg, 3)
    wait_for(("x", 2))
    a("s_barrier")
    a(f"""
    v_mov_b32 v11, {GO_ADDR}
    v_mov_b32 v7, 0
    ds_write_b32 v11, v7
    s_waitcnt vmcnt(0)
    v_cmp_ne_u32 vcc, 0, v5
    s_waitcnt lgkmcnt(0)
    s_cmp_eq_u64 vcc, -1
    s_cbranch_scc1 L_rdy_l_ok
    """)
    poll(a, "L_rdy_l", 10, DBG, "0")
    if NX0 > 3: a("s_barrier")
    if not cfg.get("flfirst", 1):
        for q in range(NX0, 10): issue2(q)
    a("""
    s_barrier
    s_cmp_eq_u32 s16, 4
    s_cbranch_scc0 L_ld_nofl
    """)
    a(f"""
    s_mov_b64 exec, 1
    buffer_store_dword v{VONE}, v{VZ}, {WS}, s60 offen sc1
    s_mov_b64 exec, -1
    L_ld_nofl:
    """)
    stamp(a, cfg, 4)
    if cfg.get("flfirst", 1):
        for q in range(NX0, 10): issue2(q)
    NX1 = cfg.get("nx1", 10)
    def xbars(extra):
        if NX1 < 10:
            a(f"s_waitcnt vmcnt({2*(10-NX1) + extra})")
            a("s_barrier")
        a(f"s_waitcnt vmcnt({extra})")
        a("s_barrier")
    if cfg.get("prepoll", 0):
        a(f"""
        s_cmp_eq_u32 s16, {cfg.get("epoll", 5)}
        s_cbranch_scc0 L_ld_nopoll
        buffer_load_dword v5, v{VPOLL}, {WS}, s33 offen sc1
        buffer_load_dword v3, v{VPOLL+1}, {WS}, s33 offen sc1
        s_mov_b32 s35, 0
        v_mov_b32 v7, 1
        """)
        xbars(2)
        a("s_branch L_poll1e_chk")
        a("L_ld_nopoll:")
    xbars(0)
    a("s_branch L_early")

def phase1_consumer(a, cfg):
    a.c("---------------- consumer waves (become the late attention waves)")
    XA, WA, ST, XF, AC, WR = 8, 10, 12, 16, 48, 96
    XB, WB = 4, 6
    SFLAG = cfg.get("sflag", 6)
    NX0 = cfg.get("nx0", 7)
    XBAR = {3, NX0, cfg.get("nx1", 10)}
    assert (NX0 == 3 or SFLAG >= 5) and SFLAG <= 2 * NX0 - 1
    a(f"""
    v_and_b32 v2, 15, v1
    v_lshrrev_b32 v3, 4, v1
    v_bfe_u32 v4, v1, 1, 3
    v_xor_b32 v4, v4, v3
    v_lshlrev_b32 v4, 4, v4
    v_lshl_add_u32 v{XA}, v2, 7, v4
    v_xor_b32 v{XA+1}, 64, v{XA}
    v_bfe_u32 v4, v1, 2, 2
    v_lshl_add_u32 v5, v3, 3, v4
    v_and_b32 v6, 1, v3
    v_lshl_or_b32 v4, v6, 2, v4
    s_lshl_b32 s3, s16, 1
    v_xor_b32 v4, s3, v4
    v_lshlrev_b32 v4, 5, v4
    v_lshl_add_u32 v4, v5, 8, v4
    v_and_b32 v5, 3, v1
    v_lshl_add_u32 v4, v5, 3, v4
    v_add_u32 v{WA}, 8192, v4
    v_xor_b32 v{WA+1}, 32, v{WA}
    s_lshl_b32 s60, s17, 2
    s_add_u32 s60, s60, s16
    s_lshl_b32 s60, s60, 4
    s_add_u32 s60, s60, s18
    s_lshl_b32 s60, s60, 7
    s_add_u32 s60, s60, {FB_OFF}
    s_mul_i32 s21, s18, 5120
    s_waitcnt lgkmcnt(0)
    """)
    common_srds(a)
    def xread(stage, ks, tt):
        c, s = divmod(ks, 2)
        if stage == 0: ad, off = (XA, SLOT[c]) if SLOT[c] < 81920 else (XB, SLOT[c] - 81920)
        else: ad, off = (XB, c * 8192) if c < 5 else (XA, (c - 5) * 8192)
        return f"ds_read_b128 {vr(XF+16*(ks&1)+4*tt,4)}, v{ad+s} offset:{off+2048*tt}"
    def wread(ks, ct, u):
        c, s = divmod(ks, 2)
        ad, off = (WA, SLOT[c]) if SLOT[c] < 81920 else (WB, SLOT[c] - 81920)
        if c == 9: off -= 8192
        return f"ds_read_b64_tr_b16 {vr(WR+8*ks+4*ct+2*u,2)}, v{ad+ct} offset:{off+(32*s+4*u)*256}"
    def reads(stage, ks):
        if stage == 0:
            return [wread(ks,0,0), wread(ks,0,1), xread(0,ks,0), wread(ks,1,0), wread(ks,1,1), xread(0,ks,1), xread(0,ks,2), xread(0,ks,3)]
        return [xread(1,ks,tt) for tt in range(4)]
    def mid():
        a("s_barrier")
        for r in reads(1, 0): a(r)
    def gemm(isv, epi):
        t = Asm(); attn_setup(t, cfg, early=False)
        su = [l.strip() for l in t.lines if not l.strip().startswith(";")]
        def filler(ks, n):
            while n and su:
                m = re.match(r"v_\w+ v\[?(\d+)", su[0])
                if m and int(m.group(1)) >= WR + 8 * ks: return
                a(su.pop(0)); n -= 1
        for i in range(2):
            a(f"v_add_u32 v{XB+i}, 81920, v{XA+i}")
            a(f"v_add_u32 v{WB+i}, 81920, v{WA+i}")
        a("s_barrier")
        stamp(a, cfg, 2)
        a(".p2align 3")
        for r in reads(0, 0): a(r)
        for stage in range(2):
            for ks in range(20):
                fl = stage == 1 and ks == SFLAG
                nxt = []
                bar = False
                if ks < 19:
                    nxt = reads(stage, ks + 1)
                    if ks % 2 == 1: bar = stage == 0 or ((ks + 1) // 2) in XBAR
                if fl and bar and (ks + 1) // 2 != NX0:
                    a("s_waitcnt lgkmcnt(0)"); a("s_barrier"); a("s_waitcnt vmcnt(0)"); a("s_barrier")
                elif fl and bar:
                    a("s_waitcnt vmcnt(0) lgkmcnt(0)"); a("s_barrier"); a("s_barrier"); a("s_nop 0")
                else:
                    a("s_waitcnt vmcnt(0) lgkmcnt(0)" if fl else "s_waitcnt lgkmcnt(0)")
                    if bar or fl: a("s_barrier")
                    elif stage == 0 or ks < cfg.get("su0", 5): a("s_nop 0")
                if fl: stamp(a, cfg, 4)
                if stage == 0 and ks == 13:
                    for i in range(2): a(f"v_add_u32 v{WB+i}, 8192, v{WB+i}")
                if stage == 1 and ks in (5, 13, 19): stamp(a, cfg, {5: 10, 13: 11, 19: 12}[ks], grp="p1")
                per = 2 if stage == 0 else 1
                for i in range(8):
                    tt, ct = i >> 1, (i & 1) ^ ((i >> 1) & 1)
                    acc = AC + 8 * tt + 4 * ct
                    x, w = vr(XF+16*(ks&1)+4*tt, 4), vr(WR+8*ks+4*ct, 4)
                    A, B = (x, w) if isv else (w, x)
                    c = "0" if ks == 0 else vr(acc, 4)
                    a(f"v_mfma_f32_16x16x32_bf16 {vr(acc,4)}, {A}, {B}, {c}")
                    if stage == 1 and ks >= cfg.get("su0", 5) and su and su[0].startswith("s_"): filler(ks, 1)
                    for r in nxt[per*i:per*i+per]: a(r)
                    if stage == 1 and ks >= cfg.get("su0", 5): filler(ks, 1 if nxt[i:i+1] else 2)
            if stage == 0:
                stamp(a, cfg, 3)
                a(f"v_add_u32 v{XA}, 122880, v{XA}")
                a(f"v_add_u32 v{XA+1}, 122880, v{XA+1}")
                epi(0)
                stamp(a, cfg, 8, grp="p1")
                if cfg.get("ackdiag"): a("s_waitcnt vmcnt(0)")
                if cfg.get("x0at", 99) > 7: mid()
                stamp(a, cfg, 9, grp="p1")
                a(".p2align 3")
            else:
                a("s_nop 1")
                epi(1)
                filler(20, 999)
    a("""
    s_cmp_lt_u32 s17, 10
    s_cbranch_scc0 L_qkv_v
    """)
    a.c("Q/K tiles: G = (cb%5)*32 + 8w + 4ct + g ; head = G/5 ; pos = G%5")
    a(f"""
    s_cmp_lt_u32 s17, 5
    s_cselect_b32 s25, 0, 81920
    s_cselect_b32 s12, {CSCALE}, 1.0
    s_cselect_b32 s23, 0, {KV_OFF}
    s_cselect_b32 s3, 0, 5
    s_add_u32 s24, s25, {HQ-2560}
    s_max_u32 s22, s25, 2560
    s_mov_b32 s13, s12
    s_add_u32 s21, s21, s23
    s_add_u32 s62, s22, s21
    s_sub_u32 s3, s17, s3
    s_lshl_b32 s3, s3, 2
    s_add_u32 s3, s3, s16
    s_lshl_b32 s3, s3, 3
    v_add_u32 v6, s3, v3
    v_lshlrev_b32 v4, 3, v2
    """)
    for ct in range(2):
        a(f"""
        v_add_u32 v7, {4*ct}, v6
        v_mul_u32_u24 v5, 52429, v7
        v_lshrrev_b32 v5, 18, v5
        v_lshl_add_u32 v7, v7, 9, v4
        v_mad_u32_u24 v{ST+ct}, v5, s24, v7
        """)
    late_qk, late_v = [], []
    def epi_qk(stage):
        for i in range(8):
            tt, ct = i >> 1, (i & 1) ^ ((i >> 1) & 1)
            acc = AC + 8 * tt + 4 * ct
            d = 80 + 2 * i
            a(f"v_pk_mul_f32 {vr(acc,2)}, {vr(acc,2)}, s[12:13]")
            a(f"v_pk_mul_f32 {vr(acc+2,2)}, {vr(acc+2,2)}, s[12:13]")
            a(f"v_cvt_pk_bf16_f32 v{d}, v{acc}, v{acc+1}")
            a(f"v_cvt_pk_bf16_f32 v{d+1}, v{acc+2}, v{acc+3}")
            st = f"buffer_store_dwordx2 {vr(d,2)}, v{ST+ct}, {WS}, s{62 if stage else 21} offen offset:{128*tt} sc1"
            if stage == 0: a(st)
            else: late_qk.append(st)
            if stage == 0 and i == cfg.get("x0at", 99): mid()
    def tail(stores, name):
        stamp(a, cfg, 5)
        a("s_barrier")
        a(f"{name}:")
        for st in stores: a(st)
        a("s_mov_b32 s63, 1")
        a("s_branch L_late_st")
    gemm(False, epi_qk)
    tail(late_qk, "L_end_qk")
    page(a, cfg, "v")
    a("L_qkv_v:")
    a.c("V tiles: col = (cb-10)*128 + 32w + 16ct + n ; head = col/20 ; d = col%20")
    a(f"""
    s_sub_u32 s3, s17, 10
    s_lshl_b32 s3, s3, 2
    s_add_u32 s3, s3, s16
    s_lshl_b32 s3, s3, 5
    v_add_u32 v6, s3, v2
    s_add_u32 s21, s21, {KV_OFF+2560}
    s_add_u32 s62, s21, 81920
    v_mul_u32_u24 v4, 320, v3
    s_mov_b32 s24, {HKV - 320}
    """)
    for ct in range(2):
        a(f"""
        v_add_u32 v7, {16*ct}, v6
        v_mul_u32_u24 v5, 13108, v7
        v_lshrrev_b32 v5, 18, v5
        v_lshl_add_u32 v7, v7, 4, v4
        v_mad_u32_u24 v{ST+ct}, v5, s24, v7
        """)
    def epi_v(stage):
        a("s_nop 2")
        for P in range(2):
            for ct in range(2):
                d = 80 + 8 * P + 4 * ct
                for ab in range(2):
                    acc = AC + 8 * (2 * P + ab) + 4 * ct
                    a(f"v_cvt_pk_bf16_f32 v{d+2*ab}, v{acc}, v{acc+1}")
                    a(f"v_cvt_pk_bf16_f32 v{d+2*ab+1}, v{acc+2}, v{acc+3}")
                st = f"buffer_store_dwordx4 {vr(d,4)}, v{ST+ct}, {WS}, s{62 if stage else 21} offen offset:{1280*P} sc1"
                if stage == 0: a(st)
                else: late_v.append(st)
                if stage == 0 and 2 * P + ct == cfg.get("x0at", 99) // 2: mid()
    gemm(True, epi_v)
    tail(late_v, "L_end_v")

SA, SB = 178, 210
O0, O1 = 146, 162
QM0, QM1, QT = 242, 246, 250
KM, KT = 16, 24
VV, SENT, WOA = 96, 112, 116
VL16, VQ, VQT, VPOLL = 121, 122, 123, 124
VOM, VOT, VXW, VXR, VONE, VZ = 126, 127, 128, 129, 130, 131
IDX, VKE, VKO, VT, VV0, VV1 = 132, 133, 134, 135, 136, 137

P3 = 138
PK = 70
def p3_kh(a, cfg, d):
    a(f"s_lshr_b32 s{d}, s16, 2")
    if cfg.get("khswap"):
        a(f"""
        s_bfe_u32 s3, s2, 0x10005
        s_xor_b32 s{d}, s{d}, s3
        """)
def p3_setup(a, cfg):
    p3_kh(a, cfg, 30)
    a(f"""
    s_and_b32 s31, s16, 3
    s_mul_i32 s3, s30, 51200
    v_lshrrev_b32 v2, 5, v1
    v_bfe_u32 v3, v1, 4, 1
    v_bfe_u32 v14, v1, 2, 2
    v_mul_u32_u24 v15, 20, v2
    v_lshl_add_u32 v15, v3, 2, v15
    v_add_u32 v15, v15, v14
    v_mul_u32_u24 v15, 160, v15
    v_and_b32 v2, 3, v1
    v_lshl_add_u32 v2, v2, 3, s3
    v_add_u32 v{P3}, v15, v2
    v_lshrrev_b32 v3, 4, v1
    v_mul_u32_u24 v15, 20, v3
    v_add3_u32 v15, v15, 16, v14
    v_mul_u32_u24 v15, 160, v15
    v_add_u32 v{P3+1}, v15, v2
    s_mul_i32 s3, s31, 5120
    s_add_u32 s3, s3, 143360
    v_add_u32 v{P3+2}, s3, v{VL16}
    s_mul_i32 s3, s31, 3584
    s_add_u32 s3, s3, 102400
    v_and_b32 v2, 15, v1
    v_mul_u32_u24 v2, 176, v2
    v_lshl_add_u32 v2, v3, 3, v2
    v_add_u32 v{P3+3}, s3, v2
    s_and_b32 s40, s2, 7
    s_lshl_b32 s40, s40, 12
    s_add_u32 s40, s40, {F2_OFF}
    s_lshl_b32 s41, s17, 2
    s_add_u32 s41, s41, s31
    s_mul_i32 s41, s41, 20480
    v_lshrrev_b32 v2, 1, v1
    v_lshlrev_b32 v{P3+7}, 7, v2
    """)
    for i in range(5):
        a(f"""
        v_add_u32 v2, {64*i}, v1
        v_mul_u32_u24 v3, 6554, v2
        v_lshrrev_b32 v3, 16, v3
        v_mul_u32_u24 v14, {1280-160}, v3
        v_lshl_add_u32 v{WOA+i}, v2, 4, v14
        """)
        if i < 3:
            a(f"""
            v_add_u32 v14, v2, v3
            v_lshl_add_u32 v{P3+4+i}, v14, 4, s3
            """)

def attn_setup(a, cfg, early, keep5=False):
    late = 0 if early else 1
    a.c("attention ids: s17=head s18=q pair s19=key half s21=KV base of head")
    a(f"""
    s_and_b32 s17, s2, 7
    s_lshl_b32 s17, s17, 2
    s_bfe_u32 s3, s2, 0x20003
    s_add_u32 s17, s17, s3
    s_lshr_b32 s29, s2, 5
    s_lshl_b32 s18, s29, 2
    s_and_b32 s3, s16, 2
    s_add_u32 s18, s18, s3
    s_add_u32 s18, s18, {late}
    s_and_b32 s19, s16, 1
    s_mul_i32 s20, s19, 5120
    v_and_b32 v2, 31, v1
    v_lshrrev_b32 v3, 5, v1
    v_lshlrev_b32 v14, 3, v2
    v_lshl_add_u32 v{VQ}, v3, 9, v14
    v_add_u32 v{VKE}, s20, v{VQ}
    v_add_u32 v{VKO}, 256, v{VKE}
    v_lshlrev_b32 v14, 3, v1
    v_add_u32 v{VT}, s20, v14
    s_lshl_b32 s3, s19, 8
    v_xor_b32 v{VQT}, s3, v14
    v_mul_u32_u24 v15, 320, v3
    v_lshl_add_u32 v15, v2, 4, v15
    s_add_u32 s3, s20, 2560
    v_add_u32 v{VV0}, s3, v15
    v_add_u32 v{VV1}, 40960, v{VV0}
    v_lshlrev_b32 v{VL16}, 4, v1
    v_mov_b32 v{IDX}, 0xdddddddd
    s_mov_b32 s24, 0x000fffff
    s_mov_b32 s25, 0x000fffff
    v_cmp_eq_u32 vcc, 20, v2
    v_mov_b32 v15, 0x3f803f80
    s_mul_i32 s21, s17, {HKV}
    v_cndmask_b32 v{VV}, 0, v15, vcc
    s_add_u32 s21, s21, {KV_OFF}
    """)
    a(f"v_mov_b32 v{VV+1}, v{VV}")
    for i in range(1, 8): a(f"v_mov_b64 {vr(VV+2*i,2)}, {vr(VV,2)}")
    a.c("s22/s23: Q soffsets role0/role1, s26: Q pair base ; s27: first token block of this wave's K/V units ; s28: dma lds dest")
    a(f"""
    s_mul_i32 s26, s18, 2560
    s_mul_i32 s3, s17, {HQ}
    s_add_u32 s26, s26, s3
    s_lshl_b32 s3, s19, 8
    s_add_u32 s22, s26, s3
    s_xor_b32 s3, s3, 256
    s_add_u32 s23, s26, s3
    s_and_b32 s28, s16, 3
    s_mul_i32 s27, s29, {cfg.get("krot", 0)}
    s_add_u32 s27, s27, s28
    s_mul_i32 s28, s28, 5120
    s_add_u32 s28, s28, {late*81920}
    s_add_u32 s61, s21, {late*81920}
    """)
    a.c("O tile of this wave = 2*pair + (1^kh): s36/s37 store offsets, s38 workgroup flag, s39 wave flag")
    a(f"""
    s_lshl_b32 s30, s18, 1
    s_xor_b32 s31, s19, 1
    s_add_u32 s30, s30, s31
    s_mul_i32 s37, s30, 40960
    s_add_u32 s37, s37, {O_OFF}
    s_lshl_b32 s36, s17, 9
    s_add_u32 s36, s36, s37
    s_lshl_b32 s3, s17, 7
    s_add_u32 s37, s37, s3
    s_add_u32 s37, s37, 16384
    s_lshr_b32 s38, s2, 5
    s_lshl_b32 s38, s38, 12
    s_add_u32 s38, s38, s3
    s_add_u32 s38, s38, {F2_OFF}
    s_add_u32 s39, s38, {F3_OFF - F2_OFF}
    v_bfe_u32 v2, v1, 4, 1
    v_mul_u32_u24 v2, 20480, v2
    v_and_b32 v3, 15, v1
    v_lshl_add_u32 v{VOT}, v3, 3, v2
    v_lshl_add_u32 v2, v3, 4, v2
    v_lshrrev_b32 v3, 5, v1
    v_lshl_add_u32 v{VOM}, v3, 8, v2
    s_mul_i32 s3, s16, 3072
    s_add_u32 s3, s3, 102400
    v_add_u32 v{VXW}, s3, v{VL16}
    s_xor_b32 s3, s16, 1
    s_mul_i32 s3, s3, 3072
    s_add_u32 s3, s3, 102400
    v_add_u32 v{VXR}, s3, v{VL16}
    v_mov_b64 {vr(SENT,2)}, -1
    v_mov_b64 {vr(SENT+2,2)}, -1
    v_mov_b32 v{VONE}, 1
    v_mov_b32 v{VZ}, 0
    """)
    p3_setup(a, cfg)
    sh, sec = (7, 5) if early else (5, 20)
    a.c("poll addresses of the polling wave: K/V producers of all 16 token blocks, Q producers of both pairs")
    a(f"""
    s_mul_i32 s30, s17, 20
    s_add_u32 s31, s30, 19
    s_lshr_b32 s30, s30, {sh}
    s_lshr_b32 s31, s31, {sh}
    s_sub_u32 s31, s31, s30
    v_and_b32 v2, 1, v1
    v_mul_u32_u24 v2, s31, v2
    v_add_u32 v2, s30, v2
    v_lshrrev_b32 v14, 5, v1
    v_mul_u32_u24 v3, {sec}, v14
    v_add3_u32 v3, v2, v3, {sec}
    v_bfe_u32 v15, v1, 1, 4
    v_lshl_add_u32 v3, v3, 4, v15
    v_lshlrev_b32 v{VPOLL}, 7, v3
    v_bfe_u32 v2, v1, 4, 1
    v_mul_u32_u24 v2, s31, v2
    v_add_u32 v2, s30, v2
    s_lshr_b32 s3, s2, 5
    s_lshl_b32 s3, s3, 1
    v_lshl_add_u32 v2, v2, 4, v14
    v_add_u32 v2, s3, v2
    v_lshlrev_b32 v{VPOLL+1}, 7, v2
    s_mov_b32 s33, {FA_OFF if early else FB_OFF}
    """)
    for i in range(16): a(f"v_mov_b64 {vr(O0+2*i,2)}, 0")

def wait_stage(a, cfg, tag, wave):
    a(f"""
    s_mov_b32 s35, 0
    v_mov_b32 v7, 1
    s_cmp_eq_u32 s16, {wave}
    s_cbranch_scc0 L_gw{tag}
    """)
    paced_poll(a, cfg, f"L_poll1{tag}", [VPOLL, VPOLL+1], "s33")
    a(f"""
    ds_write_b32 v11, v7
    s_branch L_gw{tag}_ok
    L_gw{tag}:
    {"s_sleep " + str(cfg.get('gs' + tag, 1)) if cfg.get('gs' + tag, 1) else ""}
    ds_read_b32 v7, v11
    s_waitcnt lgkmcnt(0)
    v_readfirstlane_b32 s34, v7
    s_cmp_lg_u32 s34, 0
    """)
    spin_tail(a, f"L_gw{tag}", mult=16)

def kread(t):
    tl = t & 15
    o = 20 * (tl >> 1)
    return f"ds_read2st64_b64 {vr(KM+4*(t&1),4)}, v{VKO if t & 1 else VKE} offset0:{o} offset1:{o+2}"
def tread(b):
    o = 40 * (b & 3)
    return f"ds_read2st64_b64 {vr(KT+4*(b&1),4)}, v{VT} offset0:{o+4} offset1:{o+24}"
def vread(t, f):
    tl = t & 15
    ad = VV0 if tl < 8 else VV1
    return f"ds_read_b128 {vr(VV+8*(t&1)+4*f,4)}, v{ad} offset:{10240*((tl>>1)&3)+1280*(t&1)+640*f}"
def Tm(t, dst):
    b, T = divmod(t, 4)
    return f"v_mfma_f32_32x32x4_2b_bf16 {vr(dst,32)}, {vr(KT+4*(b&1)+2*(T>>1),2)}, {vr(QT,2)}, 0 cbsz:1 abid:{T&1}"
def Mm(t, dst, r):
    return f"v_mfma_f32_32x32x16_bf16 {vr(dst+16*r,16)}, {vr(KM+4*(t&1),4)}, {vr(QM1 if r else QM0,4)}, {vr(dst+16*r,16)}"
def Pm(o, t, f, s):
    return f"v_smfmac_f32_32x32x32_bf16 {vr(o,16)}, {vr(VV+8*(t&1)+4*f,4)}, {vr(s,8)}, v{IDX}"

def qloads(a):
    a(f"""
    buffer_load_dwordx2 {vr(QT,2)}, v{VQT}, {WS}, s26 offen offset:2048 sc1
    buffer_load_dwordx2 {vr(QM0,2)}, v{VQ}, {WS}, s22 offen sc1
    buffer_load_dwordx2 {vr(QM0+2,2)}, v{VQ}, {WS}, s22 offen offset:1024 sc1
    buffer_load_dwordx2 {vr(QM1,2)}, v{VQ}, {WS}, s23 offen sc1
    buffer_load_dwordx2 {vr(QM1+2,2)}, v{VQ}, {WS}, s23 offen offset:1024 sc1
    """)
def kv_dma(i, back=0):
    g = [f"""
        s_add_u32 s3, s27, {4*i}
        s_and_b32 s3, s3, 15
        s_mul_i32 s3, s3, 5120
        s_sub_u32 s3, s3, {back}
        s_add_u32 m0, s28, {(i*20480 - back) & 0xffffffff}
        s_add_u32 s29, s61, s3
        buffer_load_dwordx4 v{VL16}, {WS}, s29 offen sc1 lds"""]
    for j in range(1, 4):
        g.append(f"buffer_load_dwordx4 v{VL16}, {WS}, s29 offen offset:{1024*j} sc1 lds")
    g.append(f"""
        s_add_u32 m0, s28, {(i*20480+4096 - back) & 0xffffffff}
        s_add_u32 s29, s29, 4096
        buffer_load_dwordx4 v{VL16}, {WS}, s29 offen sc1 lds""")
    return g
def wo_dma(nper):
    g = []
    for p in range(nper):
        for i in range(5):
            pre = ""
            if i == 0:
                pre = f"""
                s_add_u32 s31, s30, {p*8*32*1280}
                """
            g.append(pre + f"""
                s_add_u32 m0, s32, {p*8*5120 + 1024*i}
                s_nop 0
                buffer_load_dwordx4 v{WOA+i}, {WO}, s31 offen lds
                s_nop 0""")
    return g

def attn_loop(a, cfg, early):
    tag = "e" if early else "l"
    direct = early and cfg.get("direct", 0)
    wo_ids = f"""
    s_lshr_b32 s3, s2, 5
    s_mul_i32 s30, s3, 160
    s_mul_i32 s3, s16, {32*1280}
    s_add_u32 s30, s30, s3
    s_mul_i32 s32, s16, 5120
    """
    if direct:
        a("s_mov_b64 exec, s[24:25]"); a(vread(0, 0)); a(vread(0, 1)); a("s_mov_b64 exec, -1")
        a(kread(1))
        a(f"ds_read_b64 {vr(KT+2,2)}, v{VT} offset:{24*512}")
    else:
        a(f"s_setprio {3 if early else 2}")
        a(tread(0)); a(kread(0)); a(kread(1))
        a("s_mov_b64 exec, s[24:25]"); a(vread(0, 0)); a(vread(0, 1)); a("s_mov_b64 exec, -1")
        a.c("wo dma: s30 source, s32 lds dest")
        a(wo_ids)
        a(f"s_waitcnt lgkmcnt({0 if cfg.get('stamp') else 4})")
        if cfg.get("lp", {}).get("pro"): a("s_memtime s[70:71]")
        a(Tm(0, SA)); a("s_nop 15"); a("s_nop 1"); a("s_waitcnt lgkmcnt(3)")
        a(Mm(0, SA, 0)); a(Mm(0, SA, 1)); a("s_nop 10")
    dma = {}
    TB = cfg.get("tb", 14) if early else 14
    be, bl = cfg.get("be", [18, 18, 26]), cfg.get("bl", [18, 18, 26])
    assert (be[0] == be[1]) == (bl[0] == bl[1])
    assert be[0] <= 18 and min(be[1], bl[1]) >= 15 and min(be[2], bl[2]) >= 25
    if early:
        B2, C1, C2 = be
        bars = {2: "vmcnt(0)", 6: None, TB: None, C1: None, C2: None}; bars[B2] = None
        if cfg.get("a4"): bars[cfg["a4"]] = None
        prio = cfg.get("prio_e", {str(TB): 1, "18": 3, "24": 1, "26": 3, "29": 2, "31": 1})
    else:
        B2, C1, C2 = bl
        bars = {C1: None, C2: None}
        bars[B2] = "vmcnt(0)"
        b0 = cfg.get("bl0", 0)
        if b0 or cfg.get("u1in", 1): bars[b0] = None
        sp = cfg.get("spread", 2)
        q = (kv_dma(1) if cfg.get("u1in", 1) else []) + kv_dma(2) + kv_dma(3); t0 = b0 + cfg.get("sp0", 0)
        while q: dma[t0] = q[:sp]; q = q[sp:]; t0 += 1
        assert t0 < B2
        assert B2 >= b0 + 3
        prio = cfg.get("prio_l", {"18": 2, "25": 0, "26": 3, "29": 2, "30": 1, "31": 0})
    prio = {int(k): v for k, v in prio.items()}
    wo = wo_dma(2 if early else 3)
    for i in range(5): dma[C1 + i] = wo[2*i:2*i+2]
    for i in range(3): dma[C2 + i] = wo[10+2*i:12+2*i]
    if cfg.get("opt", 1):
        ts = cfg.get("tsent", [16, 9])[0 if early else 1]
        assert not dma.get(ts)
        dma[ts] = [f"buffer_store_dwordx4 {vr(SENT,4)}, v{VOM}, {WS}, s36 offen sc1",
            f"""s_mov_b32 exec_hi, 0
            buffer_store_dwordx2 {vr(SENT,2)}, v{VOT}, {WS}, s37 offen sc1
            s_mov_b32 exec_hi, -1"""]
    nt = cfg.get("nt")
    if cfg.get("notice", 2) == 4 and nt[0] == tag:
        tn = Asm(); notice(tn, dict(cfg, nw=4 if early else 0), False)
        assert not dma.get(nt[1]) and nt[1] > C2
        dma[nt[1]] = ["" if i != nt[2] else "\n".join(tn.lines) for i in range(5)]
    a(".p2align 3")
    for t in range(32):
        cur, nxt = (SA, SB) if t % 2 == 0 else (SB, SA)
        e = iter(range(32))
        def E(n):
            for _ in range(n):
                i = next(e); a(f"v_exp_f32 v{cur+i}, v{cur+i}")
        dq = list(dma.get(t, []))
        def D(n):
            for _ in range(n):
                if dq: a(dq.pop(0))
        many = len(dq) > 2
        a.c(f"step {t}")
        E(2)
        if t > 0: a(Pm(O1, t-1, 1, nxt+24))
        vm = bars.get(t)
        if direct and t == 0: a("s_nop 0")
        else: a(f"s_waitcnt {vm + ' ' if vm else ''}lgkmcnt(0)")
        n4 = 1
        lp = cfg.get("lp", {}).get(tag + str(t))
        if lp and lp[0]: a(f"s_memtime s[{64+2*lp[0]}:{65+2*lp[0]}]")
        if t in bars: a("s_barrier"); n4 += 1
        if lp and lp[1]: a(f"s_memtime s[{64+2*lp[1]}:{65+2*lp[1]}]")
        if t in prio: a(f"s_setprio {prio[t]}"); n4 += 1
        if n4 % 2: a("s_nop 0")
        if t == 14:
            for r in (VKE, VKO, VT, VV0): a(f"v_add_u32 v{r}, 81920, v{r}")
        if t == 16: a(f"v_add_u32 v{VV1}, 81920, v{VV1}")
        if TB == 15 and t == 15: a(tread(4)); a(kread(16))
        if t + 2 < 32 and not (TB == 15 and t == 14): a(kread(t+2))
        if many: D(1)
        E(4)
        if TB == 15 and t == 15: a(f"s_waitcnt lgkmcnt({0 if cfg.get('lp') else 1})"); a("s_nop 0")
        if t < 31: a(Tm(t+1, nxt))
        E(8)
        if direct and t == 0: a(f"s_waitcnt lgkmcnt({0 if cfg.get('stamp') else 1})"); a("s_nop 0")
        a(Pm(O0, t, 0, cur))
        one = early and t < cfg.get("vone", 16)
        if one: a("s_mov_b64 exec, s[24:25]"); a(vread(t+1, 0)); a(vread(t+1, 1)); a("s_mov_b64 exec, -1")
        elif t < 31: a("s_mov_b64 exec, s[24:25]"); a(vread(t+1, 0)); a("s_mov_b64 exec, -1")
        if many: D(1)
        E(4)
        a(Pm(O0, t, 1, cur+8))
        if t < 31 and not one: a("s_mov_b64 exec, s[24:25]"); a(vread(t+1, 1)); a("s_mov_b64 exec, -1")
        if many: D(1)
        E(4)
        if t < 31: a(Mm(t+1, nxt, 0))
        D(1)
        E(4)
        a(Pm(O1, t, 0, cur+16))
        if t % 4 == 2 and t // 4 < 7 and not (TB == 15 and t == 14): a(tread(t//4+1))
        D(1)
        E(4)
        if t < 31: a(Mm(t+1, nxt, 1))
        else:
            a.c("hand the role-0 tile to the partner wave (other key half)")
            for i in (2, 0, 1): a(f"ds_write_b128 v{VXW}, {vr(O0+4*i,4)} offset:{1024*i}")
        E(2)
        assert not dq

def attn_epilogue(a, cfg):
    stamp(a, cfg, 8)
    if cfg.get("lp"): a("s_memtime s[88:89]")
    a(f"""
    s_setprio 0
    s_nop 0
    {Pm(O1, 31, 1, SB+24)}
    """)
    if cfg.get("notice", 2) == 3:
        a("s_waitcnt vmcnt(0)"); notice(a, cfg, False); a("s_waitcnt lgkmcnt(0)")
    elif cfg.get("notice", 2) == 4:
        a(f"""
        s_waitcnt vmcnt(1) lgkmcnt(0)
        s_cmp_eq_u32 s16, {4 if cfg["nt"][0] == "e" else 0}
        s_cbranch_scc1 L_epi_w
        s_waitcnt vmcnt(0)
        L_epi_w:
        """)
    else: a("s_waitcnt vmcnt(0) lgkmcnt(0)")
    a(f"""
    s_barrier
    ds_read_b128 {vr(O0+8,4)}, v{VXR} offset:2048
    ds_read_b128 {vr(O0,4)}, v{VXR}
    ds_read_b128 {vr(O0+4,4)}, v{VXR} offset:1024
    """)
    if cfg.get("opt", 1) and cfg.get("notice", 2) == 2: notice(a, cfg, False)
    a("""
    s_nop 6
    s_waitcnt lgkmcnt(2)
    """)
    a(f"""
    v_pk_add_f32 {vr(O1+8,2)}, {vr(O1+8,2)}, {vr(O0+8,2)}
    v_pk_add_f32 {vr(O1+10,2)}, {vr(O1+10,2)}, {vr(O0+10,2)}
    v_mov_b32 v7, v{O1+8}
    v_mov_b32 v9, v{O1+8}
    s_mov_b32 s30, 0x21800000
    s_waitcnt lgkmcnt(1)
    v_permlane32_swap_b32 v7, v9
    v_pk_add_f32 {vr(O1,2)}, {vr(O1,2)}, {vr(O0,2)}
    v_pk_add_f32 {vr(O1+2,2)}, {vr(O1+2,2)}, {vr(O0+2,2)}
    s_mov_b32 s31, 0x5d800000
    s_waitcnt lgkmcnt(0)
    v_pk_add_f32 {vr(O1+4,2)}, {vr(O1+4,2)}, {vr(O0+4,2)}
    v_pk_add_f32 {vr(O1+6,2)}, {vr(O1+6,2)}, {vr(O0+6,2)}
    """)
    a.c("run-time check of the shift-free softmax: row sum in [2^-60, 2^60], finite accumulators; else redo with the true row max")
    a(f"""
    v_cmp_le_f32 s[32:33], s30, v9
    v_cmp_ge_f32 s[34:35], s31, v9
    v_pk_mul_f32 v[10:11], {vr(O1+8,2)}, 0
    """)
    for i in (10, 0, 2, 4, 6): a(f"v_pk_fma_f32 v[10:11], {vr(O1+i,2)}, 0, v[10:11]")
    a(f"""
    s_and_b64 s[32:33], s[32:33], s[34:35]
    v_cmp_o_f32 vcc, v10, v11
    v_rcp_f32 v8, v9
    s_and_b64 s[32:33], s[32:33], vcc
    s_cmp_eq_u64 s[32:33], -1
    s_cbranch_scc0 L_attn_slow
    L_attn_fin:
    """)
    for i in range(4): a(f"v_pk_mul_f32 {vr(O1+2*i,2)}, {vr(O1+2*i,2)}, v[8:9] op_sel_hi:[1,0]")
    for i in range(4): a(f"v_cvt_pk_bf16_f32 v{PK+i}, v{O1+2*i}, v{O1+2*i+1}")
    a(f"buffer_store_dwordx4 {vr(PK,4)}, v{VOM}, {WS}, s36 offen sc1")
    for i in range(4, 6): a(f"v_pk_mul_f32 {vr(O1+2*i,2)}, {vr(O1+2*i,2)}, v[8:9] op_sel_hi:[1,0]")
    for i in range(4, 6): a(f"v_cvt_pk_bf16_f32 v{PK+i}, v{O1+2*i}, v{O1+2*i+1}")
    a(f"""
    s_mov_b32 exec_hi, 0
    buffer_store_dwordx2 {vr(PK+4,2)}, v{VOT}, {WS}, s37 offen sc1
    s_mov_b32 exec_hi, -1
    """)
    stamp(a, cfg, 9)
    if cfg.get("opt", 1) and cfg.get("notice", 2) < 2: notice(a, cfg, cfg.get("notice", 2) == 0)

def notice(a, cfg, bar):
    a.c("early notice: readers check the tiles for the filler words written before and fall back to the acknowledged flags")
    if bar: a("s_barrier")
    a(f"""
    s_cmp_eq_u32 s16, {cfg.get("nw", 4)}
    s_cbranch_scc0 L_nonotice
    s_mov_b64 exec, 1
    buffer_store_dword v{VONE}, v{VZ}, {WS}, s38 offen sc1
    s_mov_b64 exec, -1
    L_nonotice:
    """)

def attn_slow(a):
    a("L_attn_slow:")
    a(f"""
    v_and_b32 v2, 31, v1
    v_lshlrev_b32 v14, 3, v2
    v_lshrrev_b32 v3, 5, v1
    v_mul_u32_u24 v3, 320, v3
    v_lshl_add_u32 v15, v2, 4, v3
    v_mov_b32 v10, 0xff800000
    s_mov_b32 s34, 0
    """)
    for i in range(16): a(f"v_mov_b32 v{O1+i}, 0")
    a(f"""
    L_slow_pass:
    s_mov_b32 s35, 0
    L_slow_tile:
    s_lshr_b32 s30, s35, 1
    s_mul_i32 s30, s30, 5120
    s_add_u32 s30, s30, s21
    s_and_b32 s3, s35, 1
    s_mul_i32 s31, s3, 1280
    s_add_u32 s31, s31, s30
    s_lshl_b32 s3, s3, 8
    s_add_u32 s30, s30, s3
    buffer_load_dwordx2 {vr(KT,2)}, v14, {WS}, s30 offen offset:2048 sc1
    buffer_load_dwordx2 {vr(KM,2)}, v{VQ}, {WS}, s30 offen sc1
    buffer_load_dwordx2 {vr(KM+2,2)}, v{VQ}, {WS}, s30 offen offset:1024 sc1
    s_mov_b64 exec, s[24:25]
    buffer_load_dwordx4 {vr(VV,4)}, v15, {WS}, s31 offen offset:2560 sc1
    buffer_load_dwordx4 {vr(VV+4,4)}, v15, {WS}, s31 offen offset:3200 sc1
    s_mov_b64 exec, -1
    s_waitcnt vmcnt(0)
    v_mfma_f32_32x32x4_2b_bf16 {vr(SA,32)}, {vr(KT,2)}, {vr(QT,2)}, 0
    s_nop 15
    s_nop 3
    v_mfma_f32_32x32x16_bf16 {vr(SA+16,16)}, {vr(KM,4)}, {vr(QM1,4)}, {vr(SA+16,16)}
    s_nop 15
    s_cmp_eq_u32 s34, 0
    s_cbranch_scc0 L_slow_pv
    """)
    for i in range(8): a(f"v_max3_f32 v10, v10, v{SA+16+2*i}, v{SA+17+2*i}")
    a("s_branch L_slow_next")
    a("L_slow_pv:")
    for i in range(16): a(f"v_sub_f32 v{SA+16+i}, v{SA+16+i}, v10")
    for i in range(16): a(f"v_exp_f32 v{SA+16+i}, v{SA+16+i}")
    a(f"""
    s_nop 3
    v_smfmac_f32_32x32x32_bf16 {vr(O1,16)}, {vr(VV,4)}, {vr(SA+16,8)}, v{IDX}
    v_smfmac_f32_32x32x32_bf16 {vr(O1,16)}, {vr(VV+4,4)}, {vr(SA+24,8)}, v{IDX}
    s_nop 15
    L_slow_next:
    s_add_u32 s35, s35, 1
    s_cmp_lt_u32 s35, 64
    s_cbranch_scc1 L_slow_tile
    s_cmp_eq_u32 s34, 0
    s_cbranch_scc0 L_slow_done
    v_mov_b32 v11, v10
    s_nop 1
    v_permlane32_swap_b32 v10, v11
    s_nop 1
    v_max_f32 v10, v10, v11
    s_mov_b32 s34, 1
    s_branch L_slow_pass
    L_slow_done:
    v_mov_b32 v7, v{O1+8}
    v_mov_b32 v9, v{O1+8}
    s_nop 1
    v_permlane32_swap_b32 v7, v9
    s_nop 1
    v_rcp_f32 v8, v9
    s_branch L_attn_fin
    """)

TAIL = []
def phase3(a, cfg):
    OF, AC, WF = 16, 56, 76
    VW, VWT, VPB, VSW, VSR, VL, VL8 = 6, 7, 8, 9, 10, 0, 4
    VOS = [13, 14, 15]
    VW2, VWT2 = 3, 5
    OPT = cfg.get("opt", 1)
    def reads(ks):
        hf, p = divmod(ks, 5)
        r = []
        for t in range(5):
            for u in range(2):
                if p < 4: ad, off = (VW2 if hf else VW), (40*p + 8*u)*160 + 32*t
                else: ad, off = (VWT2 if hf else VWT), 80*u*160 + 32*t
                r.append(f"ds_read_b64_tr_b16 {vr(WF+20*(ks%9)+4*t+2*u,2)}, v{ad} offset:{off}")
        return r
    def unpack():
        a(f"""
        s_bfe_u32 s30, s2, {0x10006 if cfg.get("khswap") else 0x10005}
        s_and_b32 s30, s30, {cfg.get("hswap", 1)}
        s_mul_i32 s31, s30, 25600
        s_sub_u32 s32, 25600, s31
        v_add_u32 v{VW}, s31, v{P3}
        v_add_u32 v{VWT}, s31, v{P3+1}
        v_add_u32 v{VW2}, s32, v{P3}
        v_add_u32 v{VWT2}, s32, v{P3+1}
        """)
        for i in range(2, 7): a(f"v_mov_b32 v{VW+i}, v{P3+i}")
        for i in range(3): a(f"v_mov_b32 v{VOS[i]}, v{WOA+i}")
        a(f"""
        v_mov_b32 v{VL}, v{VL16}
        v_lshlrev_b32 v{VL8}, 3, v1
        """)
        p3_kh(a, cfg, 26)
        a(f"""
        s_lshr_b32 s27, s2, 5
        s_mul_i32 s27, s27, 160
        s_add_u32 s27, s27, s41
        s_add_u32 s28, s41, {O_OFF}
        s_lshl_b32 s3, s26, 1
        s_add_u32 s3, s3, s30
        s_xor_b32 s29, s3, 1
        s_lshl_b32 s22, s3, 12
        s_add_u32 s22, s22, s28
        s_lshl_b32 s24, s29, 12
        s_add_u32 s24, s24, s28
        s_add_u32 s28, s28, 16384
        s_lshl_b32 s23, s3, 10
        s_add_u32 s23, s23, s28
        s_lshl_b32 s25, s29, 10
        s_add_u32 s25, s25, s28
        """)
    a.c("---- output projection: 64 tokens x 80 columns")
    if not OPT:
        a("""
        s_waitcnt vmcnt(0)
        s_barrier
        s_cmp_eq_u32 s16, 0
        s_cbranch_scc0 L_p3_nofl
        """)
        raise_flag(a, "s38")
        a("L_p3_nofl:")
    NPB, WIN = cfg.get("npb", 5), cfg.get("win", 5)
    LOADS = []
    for ks in range(10):
        hf, p = divmod(ks, 5)
        if p < 4: LOADS.append([f"buffer_load_dwordx4 {vr(OF+4*ks,4)}, v{VL}, {WS}, s{22+2*hf} offen offset:{1024*p} sc1"])
        else: LOADS.append([f"buffer_load_dwordx2 {vr(OF+4*ks+2*u,2)}, v{VL8}, {WS}, s{23+2*hf} offen offset:{512*u} sc1" for u in range(2)])
    PM = cfg.get("pm", 0)
    PW = cfg.get("pw", 1)
    a(f"""
    v_mov_b32 v2, v{P3+7}
    s_mov_b32 s35, 0
    """)
    if PM == 1:
        a(f"""
        s_cmp_eq_u32 s16, {PW}
        s_cbranch_scc0 L_p3_np
        buffer_load_dword v1, v2, {WS}, s40 offen sc1
        L_p3_np:
        """)
    unpack()
    if PM == 2:
        a(f"""
        s_cmp_eq_u32 s16, {PW}
        s_cbranch_scc1 L_poll2
        """)
    NP0 = cfg.get("np0", NPB)
    for ks in range(NP0):
        for r in reads(ks): a(r)
    if NP0 < NPB:
        a(f"""
        s_cmp_eq_u32 s16, {PW}
        s_cbranch_scc0 L_p3_np
        buffer_load_dword v1, v2, {WS}, s40 offen sc1
        L_p3_np:
        """)
        for ks in range(NP0, NPB):
            for r in reads(ks): a(r)
    a(f"""
    s_cmp_eq_u32 s16, {PW}
    s_cbranch_scc0 L_poll2_ok
    """)
    if PM == 1 or NP0 < NPB: a("s_branch L_poll2_chk")
    a(f"""
    L_poll2:
    buffer_load_dword v1, v2, {WS}, s40 offen sc1
    L_poll2_chk:
    s_waitcnt vmcnt(0)
    v_cmp_ne_u32 vcc, 0, v1
    s_nop 0
    s_cmp_eq_u64 vcc, -1
    """)
    spin_tail(a, "L_poll2")
    a("s_waitcnt vmcnt(0)")
    stamp(a, cfg, 10)
    a("s_barrier")
    stamp(a, cfg, 11)
    assert PM != 2
    def first(il, pre):
        rest = [r for ks in range(NPB, 9) for r in reads(ks)]
        for r in rest[:pre]: a(r)
        rest = rest[pre:]
        for g in LOADS[:WIN]:
            for l in g: a(l)
            for r in rest[:il]: a(r)
            rest = rest[il:]
        for r in rest: a(r)
    if cfg.get("seq"):
        a("""
        s_cmp_lt_u32 s16, 4
        s_cbranch_scc0 L_p3_y
        """)
        first(cfg.get("il", 5), 0)
        a("s_branch L_p3_go")
        a("L_p3_y:")
        first(0, 99)
    else:
        first(cfg.get("il", 5), 0)
    a("L_p3_go:")
    if cfg.get("p3d"): a("s_memtime s[68:69]")
    VMX = 1
    a(f"v_mov_b32 v{VMX}, 0")
    a("v_mov_b32 v2, 1")
    def mf(ks, extra=0, check=OPT):
        win = 10 if extra else WIN
        vm = sum(len(g) for g in LOADS[ks+1:ks+win])
        a(f"s_waitcnt vmcnt({vm})" + (" lgkmcnt(0)" if ks == 0 or (ks == 9 and (extra or cfg.get("kb", 9) == 10)) else ""))
        if ks + win < 10:
            for l in LOADS[ks + win]: a(l)
        if OPT and not extra and ks + win == 9 + (win == 10):
            a.c("every wave's stores were acknowledged before the barrier above: tell readers that fall back")
            a(f"""
            s_cmp_eq_u32 s16, 7
            s_cbranch_scc0 L_p3_noconf
            s_mov_b64 exec, 1
            buffer_store_dword v2, v{VL}, {WS}, s39 offen sc1
            s_mov_b64 exec, -1
            L_p3_noconf:
            """)
        if cfg.get("p3d") and check and ks in (0, 3, 7, 9): a("s_memtime s[%d:%d]" % {0: (70, 71), 3: (72, 73), 7: (74, 75), 9: (76, 77)}[ks])
        for t in range(5):
            c = "0" if ks == 0 else vr(AC+4*t, 4)
            a(f"v_mfma_f32_16x16x32_bf16 {vr(AC+4*t,4)}, {vr(WF+20*(ks%9)+4*t,4)}, {vr(OF+4*ks,4)}, {c}")
            if check and t < 2: a(f"v_max3_u32 v{VMX}, v{VMX}, v{OF+4*ks+2*t}, v{OF+4*ks+2*t+1}")
            if check and ks == 9 and t == 2: a(f"v_cmp_eq_u32 vcc, -1, v{VMX}")
        if ks == 0:
            for r in reads(9): a(r)
    def redo():
        a("L_redo:")
        if cfg.get("stamp"): a("s_waitcnt lgkmcnt(0)"); a("s_mov_b32 s68, -1")
        a(f"""
        s_add_u32 s33, s40, {F3_OFF - F2_OFF}
        v_bfe_u32 v2, v{VL}, 5, 5
        v_lshlrev_b32 v2, 7, v2
        """)
        poll(a, "L_poll3", 2, WS, "s33", dst=1)
        a("s_waitcnt lgkmcnt(0)")
        for r in reads(0) + reads(1): a(r)
        for g in LOADS:
            for l in g: a(l)
        for ks in range(10): mf(ks, 1, 0)
        a("""
        s_cmp_lt_u32 s16, 4
        s_cbranch_scc1 L_back_w
        """)
        for t in range(5): a(f"ds_read_b128 {vr(WF+20+4*t,4)}, v{VPB} offset:{1024*t}")
        a("s_branch L_back_f")
    TAIL.append(redo if OPT else (lambda: None))
    FORCE = "s_branch L_redo" if cfg.get("force_redo") else "s_cbranch_vccnz L_redo"
    KB = cfg.get("kb", 9)
    for ks in range(KB): mf(ks)
    a("""
    s_waitcnt lgkmcnt(0)
    s_cmp_lt_u32 s16, 4
    s_cbranch_scc0 L_out_fin
    """)
    for ks in range(KB, 10): mf(ks)
    if OPT: a(FORCE); a("L_back_w:")
    stamp(a, cfg, 12)
    a("s_nop 3")
    for t in range(5):
        a(f"ds_write_b128 v{VPB}, {vr(AC+4*t,4)} offset:{1024*t}")
        if t < 4: a("s_nop 0")
    a("""
    s_waitcnt lgkmcnt(0)
    s_barrier
    s_branch L_fin
    L_out_fin:
    s_barrier
    """)
    PB = WF + 20
    for t in range(5): a(f"ds_read_b128 {vr(PB+4*t,4)}, v{VPB} offset:{1024*t}")
    for ks in range(KB, 10): mf(ks)
    if OPT: a(FORCE); a("L_back_f:")
    stamp(a, cfg, 12)
    a("s_waitcnt lgkmcnt(0)")
    a("s_nop 2")
    for t in range(5):
        a(f"v_pk_add_f32 {vr(AC+4*t,2)}, {vr(AC+4*t,2)}, {vr(PB+4*t,2)}")
        a(f"v_pk_add_f32 {vr(AC+4*t+2,2)}, {vr(AC+4*t+2,2)}, {vr(PB+4*t+2,2)}")
        a(f"v_cvt_pk_bf16_f32 v{OF+2*t}, v{AC+4*t}, v{AC+4*t+1}")
        a(f"v_cvt_pk_bf16_f32 v{OF+2*t+1}, v{AC+4*t+2}, v{AC+4*t+3}")
        a(f"ds_write_b64 v{VSW}, {vr(OF+2*t,2)} offset:{32*t}")
    for i in range(3): a(f"ds_read_b128 {vr(PB+4*i,4)}, v{VSR+i}")
    OFL = cfg.get("outfl", "nt")
    for i in range(3):
        a(f"s_waitcnt lgkmcnt({2-i})")
        if i == 2: a("s_mov_b32 exec_hi, 0")
        a(f"buffer_store_dwordx4 {vr(PB+4*i,4)}, v{VOS[i]}, {OUT}, s27 offen {OFL}")
    a("L_fin:")

def gen1(cfg):
    a = Asm()
    a(f".globl {NAME}")
    a(".p2align 12")
    a(f".fill {cfg.get('pad', 3328)//4}, 4, 0xbf800000")
    a(".p2align 8")
    a(f".type {NAME},@function")
    a(f"{NAME}:")
    a("""
    s_cmp_ge_u32 s2, 256
    s_cbranch_scc1 L_end
    """)
    stamp(a, cfg, 0, real=True); stamp(a, cfg, 1)
    a("""
    s_load_dwordx4 s[4:7], s[0:1], 0
    s_load_dwordx8 s[36:43], s[0:1], 16
    v_lshrrev_b32 v2, 6, v0
    v_and_b32 v1, 63, v0
    v_readfirstlane_b32 s16, v2
    """)
    if cfg.get("codepf", 1):
        a.c("wave 0 touches an 8 KB share of the kernel's own code so that instruction fetch hits L2")
        a(f"""
        s_getpc_b64 s[26:27]
        L_pc:
        s_bfe_u32 s3, s2, 0x30003
        s_lshl_b32 s3, s3, 13
        s_cmp_eq_u32 s16, 0
        s_cbranch_scc0 L_nopf
        v_lshl_add_u32 v3, v1, 7, s3
        v_min_u32 v3, L_code_end - L_pc - 4, v3
        global_load_dword v0, v3, s[26:27]
        L_nopf:
        """)
    a.c("tile: j = id&7, v = id>>3 ; cb(s17) = (v>>2) + 8*(j>>2) ; tb(s18) = (j&3)*4 + (v&3) ; cb 15: no tile")
    a("""
    s_lshr_b32 s17, s2, 5
    s_and_b32 s3, s2, 4
    s_lshl_b32 s3, s3, 1
    s_add_u32 s17, s17, s3
    s_bfe_u32 s3, s2, 0x20003
    s_and_b32 s18, s2, 3
    s_lshl_b32 s18, s18, 2
    s_add_u32 s18, s18, s3
    s_cmp_eq_u32 s17, 15
    s_cbranch_scc1 L_idle
    s_cmp_lt_u32 s16, 4
    s_cbranch_scc1 L_qkv_cons
    """)
    phase1_loader(a, cfg)
    a("L_idle:")
    if cfg.get("e2e"): a("s_memrealtime s[64:65]")
    a.c("workgroups without a GEMM tile: clear the hand-off flags, raise 'ready' in d_debug, pull second-stage x rows into L2")
    xr = cfg.get("xrot", XROT)
    a(f"""
    s_lshl_b32 s19, s18, 2
    s_mul_i32 s17, s18, {112*128}
    s_add_u32 s17, s17, {FB_OFF}
    s_lshl_b32 s20, s18, 4
    s_add_u32 s20, s20, s16
    s_mul_i32 s23, s20, {8*1280}
    s_add_u32 s20, s23, {64*1280}
    s_add_u32 s21, s20, 8192
    v_lshlrev_b32 v2, 7, v1
    v_min_u32 v3, {15*128}, v2
    v_mov_b32 v4, 0
    v_and_b32 v10, 15, v1
    v_lshlrev_b32 v10, 2, v10
    v_mov_b32 v11, {GO_ADDR}
    ds_write_b32 v11, v4
    """)
    PFC = cfg.get("pfc", [4])
    if PFC:
        a.c("lines of the k-chunks that end the two miss runs of this die: s24 = chunk offset of the die")
        a(f"""
        s_and_b32 s24, s2, 7
        s_lshl_b32 s24, s24, 2
        s_lshr_b32 s24, {sum(v << (4*i) for i, v in enumerate(xr))}, s24
        s_and_b32 s24, s24, 15
        s_lshl_b32 s25, s3, 2
        s_and_b32 s26, s16, 3
        s_add_u32 s25, s25, s26
        s_mul_i32 s25, s25, {4*3840}
        s_add_u32 s25, s25, 2048
        s_lshr_b32 s26, s16, 2
        s_mul_i32 s26, s26, 5
        s_add_u32 s24, s24, s26
        s_lshl_b32 s22, s18, 3
        s_and_b32 s26, s16, 3
        s_add_u32 s22, s22, s26
        s_mul_i32 s22, s22, {16*1280}
        v_lshrrev_b32 v5, 4, v1
        v_mul_u32_u24 v5, 3840, v5
        v_and_b32 v6, 15, v1
        v_min_u32 v8, 13, v6
        v_lshl_add_u32 v8, v8, 7, v5
        v_min_u32 v9, 15, v1
        v_mul_u32_u24 v9, 1280, v9
        """)
    a("s_waitcnt lgkmcnt(0)")
    common_srds(a)
    srd(a, 8, 4, 2048 * 1280)
    srd(a, 12, 6, 640 * 3840)
    def pf(c):
        a(f"""
        s_add_u32 s26, s24, {c}
        s_sub_u32 s27, s26, 10
        s_cselect_b32 s26, s26, s27
        s_mul_i32 s27, s26, {64*3840}
        s_add_u32 s27, s27, s25
        s_lshl_b32 s26, s26, 7
        s_add_u32 s26, s26, s22
        buffer_load_dword v94, v8, s[12:15], s27 offen
        buffer_load_dword v95, v9, s[8:11], s26 offen
        """)
    a(f"""
    s_cmp_eq_u32 s16, 0
    s_cbranch_scc0 L_idle_pf
    s_add_u32 s28, s17, 8192
    v_min_u32 v7, {47*128}, v2
    buffer_store_dword v4, v2, {WS}, s17 offen sc1
    buffer_store_dword v4, v7, {WS}, s28 offen sc1
    L_idle_pf:
    """)
    for c in PFC: pf(c)
    if not PFC: a(f"buffer_load_dword v92, v3, s[8:11], s21 offen")
    a(f"""
    s_cmp_eq_u32 s16, 0
    s_cbranch_scc0 L_idle_pf2
    v_mov_b32 v6, 1
    s_waitcnt vmcnt({2*len(PFC) if PFC else 1})
    s_mov_b64 exec, 1
    buffer_store_dword v6, v4, {DBG}, s19 offen sc1
    s_mov_b64 exec, -1
    L_idle_pf2:
    s_barrier
    buffer_load_dword v90, v2, s[8:11], s20 offen
    """)
    if PFC: a(f"buffer_load_dword v92, v3, s[8:11], s21 offen")
    if cfg.get("e2e"):
        srd(a, 96, 42, 1 << 20, add=STAMP_OFF + (2 << 20))
        a("""
        v_mov_b32 v93, s64
        s_mov_b64 exec, 1
        buffer_store_dword v93, v4, s[96:99], s19 offen
        s_mov_b64 exec, -1
        """)
    a("""
    s_cmp_eq_u32 s16, 0
    s_cbranch_scc0 L_rdy_i_ok
    """)
    poll(a, "L_rdy_i", 10, DBG, "0")
    a("""
    s_waitcnt vmcnt(0)
    s_barrier
    s_mov_b32 s63, 0
    s_cmp_lt_u32 s16, 4
    s_cbranch_scc1 L_late_setup
    """)
    attn_setup(a, cfg, early=True)
    a("s_branch L_early")
    a("L_late_setup:")
    attn_setup(a, cfg, early=False)
    a("s_barrier")
    a("s_branch L_late_st")
    page(a, cfg, "qk")
    a("L_qkv_cons:")
    phase1_consumer(a, cfg)
    page(a, cfg, "late")
    a(f"""
    L_late_st:
    v_mov_b32 v11, {GO_ADDR + 81920}
    ds_write_b32 v11, v{VZ}
    s_barrier
    """)
    if cfg.get("a4"):
        a(f"""
        s_waitcnt vmcnt(0)
        s_cmp_eq_u32 s63, 0
        s_cbranch_scc1 L_late_nofl
        s_mov_b64 exec, 1
        buffer_store_dword v{VONE}, v{VZ}, {WS}, s60 offen sc1
        s_mov_b64 exec, -1
        L_late_nofl:
        """)
        for g in kv_dma(2, back=81920): a(g)
        a("s_waitcnt vmcnt(4)")
        for g in kv_dma(3, back=81920): a(g)
        a("s_waitcnt vmcnt(5) lgkmcnt(0)")
        a("s_barrier")
        a("s_waitcnt vmcnt(0)")
        a("s_barrier")
    else:
        for g in kv_dma(2, back=81920): a(g)
        a("s_waitcnt vmcnt(5)")
    if cfg.get("a4"): pass
    elif cfg.get("u3first", 0):
        for g in kv_dma(3, back=81920): a(g)
        a(f"""
        s_cmp_eq_u32 s63, 0
        s_cbranch_scc1 L_late_nofl
        s_mov_b64 exec, 1
        buffer_store_dword v{VONE}, v{VZ}, {WS}, s60 offen sc1
        s_mov_b64 exec, -1
        s_waitcnt vmcnt(1) lgkmcnt(0)
        s_branch L_late_a3
        L_late_nofl:
        s_waitcnt vmcnt(0) lgkmcnt(0)
        L_late_a3:
        s_barrier
        """)
    else:
        a("""
        s_cmp_eq_u32 s63, 0
        s_cbranch_scc1 L_late_nofl
        """)
        raise_flag(a, "s60")
        a("L_late_nofl:")
        for g in kv_dma(3, back=81920): a(g)
        a("""
        s_waitcnt vmcnt(0) lgkmcnt(0)
        s_barrier
        """)
    wait_stage(a, cfg, "l", 0)
    stamp(a, cfg, 6)
    for g in kv_dma(0): a(g)
    qloads(a)
    a("s_waitcnt vmcnt(5) lgkmcnt(0)")
    stamp(a, cfg, 15)
    if cfg.get("u1in", 1):
        a("s_waitcnt vmcnt(0)")
    else:
        if not cfg.get("bl0"): a("s_barrier")
        for g in kv_dma(1): a(g)
        a("s_waitcnt vmcnt(5)")
    stamp(a, cfg, 7)
    attn_loop(a, cfg, early=False)
    a("s_branch L_epi")
    page(a, cfg, "early")
    a("L_early:")
    if cfg.get("direct", 0):
        assert cfg.get("krot", 0) == 0
        a(f"""
        v_lshlrev_b32 v6, 3, v1
        s_add_u32 s14, s61, s20
        s_lshr_b32 s3, s2, 5
        s_mul_i32 s30, s3, 160
        s_mul_i32 s3, s16, {32*1280}
        s_add_u32 s30, s30, s3
        s_mul_i32 s32, s16, 5120
        """)
    wait_stage(a, cfg, "e", cfg.get("epoll", 5))
    stamp(a, cfg, 6)
    if cfg.get("direct", 0):
        a.c("Q and the first key tile straight into registers: the first scores are ready when the LDS image is")
        a(f"""
        buffer_load_dwordx2 {vr(QT,2)}, v{VQT}, {WS}, s26 offen offset:2048 sc1
        buffer_load_dwordx2 {vr(KT,2)}, v6, {WS}, s14 offen offset:2048 sc1
        buffer_load_dwordx2 {vr(QM0,2)}, v{VQ}, {WS}, s22 offen sc1
        buffer_load_dwordx2 {vr(QM0+2,2)}, v{VQ}, {WS}, s22 offen offset:1024 sc1
        buffer_load_dwordx2 {vr(KM,2)}, v{VQ}, {WS}, s14 offen sc1
        buffer_load_dwordx2 {vr(KM+2,2)}, v{VQ}, {WS}, s14 offen offset:1024 sc1
        buffer_load_dwordx2 {vr(QM1,2)}, v{VQ}, {WS}, s23 offen sc1
        buffer_load_dwordx2 {vr(QM1+2,2)}, v{VQ}, {WS}, s23 offen offset:1024 sc1
        """)
        for g in kv_dma(0): a(g)
        a("s_setprio 3")
        a("s_waitcnt vmcnt(11)")
        a(Tm(0, SA)); a("s_nop 15"); a("s_nop 1"); a("s_waitcnt vmcnt(5)")
        a(Mm(0, SA, 0)); a(Mm(0, SA, 1))
        a(f"s_waitcnt vmcnt({cfg.get('u1w', 3)})")
        for g in kv_dma(1): a(g)
    else:
        for g in kv_dma(0): a(g)
        qloads(a)
        a(f"s_waitcnt vmcnt({cfg.get('u1w', 5)})")
        for g in kv_dma(1): a(g)
    a("s_waitcnt vmcnt(5) lgkmcnt(0)")
    stamp(a, cfg, 5)
    a("s_barrier")
    stamp(a, cfg, 7)
    attn_loop(a, cfg, early=True)
    a("L_epi:")
    attn_epilogue(a, cfg)
    phase3(a, cfg)
    if cfg.get("stamp"): a("s_waitcnt vmcnt(0)")
    stamp(a, cfg, 13); stamp(a, cfg, 14, real=True)
    if "xsel" in cfg:
        a(f"""
        s_waitcnt lgkmcnt(0)
        s_and_b32 s90, s2, 7
        s_cmp_eq_u32 s90, {cfg["xsel"]}
        s_cselect_b32 s90, s64, 0
        """)
    if cfg.get("xcc"):
        a("""
        s_waitcnt lgkmcnt(0)
        s_getreg_b32 s90, hwreg(HW_REG_XCC_ID, 0, 4)
        s_sub_u32 s90, s90, s2
        s_and_b32 s90, s90, 7
        s_mul_i32 s90, s90, 200
        """)
    stamp_flush(a, cfg, 0, 16, 8, wsptr=42)
    a("L_end:")
    a("s_endpgm")
    a("L_code_end:")
    attn_slow(a)
    TAIL.pop()()
    head = open("standalone__softmax_full_mha__prompt.s.ref").read().split("; Override launch")[0]
    descs = descriptor(NAME, 256)
    if cfg.get("probe"):
        import k_probe
        if cfg.get("lat"):
            head += "; @launch kernel=lat_kernel grid=(1,1,1) block=(64,1,1) lds=0\n"
            descs += k_probe.gen_lat(a, cfg)
        head += f"; @launch kernel={NAME} grid=(256,1,1) block=(512,1,1) lds=163840\n; @launch kernel=probe_kernel grid=(1,1,1) block=(64,1,1) lds=0\n"
        descs += k_probe.gen_probe(a, cfg)
    elif cfg.get("e2e"):
        import k_probe
        head += "; @launch kernel=prev_kernel grid=(1,1,1) block=(64,1,1) lds=0\n"
        a(".p2align 12")
        descs += k_probe.gen_prev(a, cfg)
        head += f"; @launch kernel={NAME} grid=(256,1,1) block=(512,1,1) lds=163840\n; @launch kernel=next_kernel grid=(1,1,1) block=(64,1,1) lds=0\n"
        descs += k_probe.gen_next(a, cfg)
    elif cfg.get("list"):
        head += f"; @launch kernel={NAME} grid=(256,1,1) block=(512,1,1) lds=163840\n"
    else:
        head += "; @launch grid=(256,1,1) block=(512,1,1) lds=163840\n"
    return head + '.amdgcn_target "amdgcn-amd-amdhsa--gfx950"\n.text\n' + a.text() + '.section .rodata,"a"\n' + descs

def gen(cfg):
    if not cfg.get("layout", 1): return gen1(cfg)
    import subprocess, tempfile, os
    d = tempfile.mkdtemp()
    c = dict(cfg, pages={"qk": 0, "v": 0, "late": 0, "early": cfg.get("eoff", 128)})
    open(d + "/a.s", "w").write(gen1(c))
    subprocess.run(["clang", "-x", "assembler", "-target", "amdgcn-amd-amdhsa", "-mcpu=gfx950", "-c", d + "/a.s", "-o", d + "/a.o"], check=True)
    o = subprocess.run(["llvm-objdump", "-t", d + "/a.o"], capture_output=True, text=True).stdout
    L = {m.group(2): int(m.group(1), 16) for m in re.finditer(r"^([0-9a-f]+) .* (L_\w+)$", o, re.M)}
    c["pages"]["qk"] = (-L["L_end_qk"]) % 4096 // 8 * 8
    c["pages"]["v"] = (-L["L_end_v"] - 64) % 4096 // 8 * 8
    return gen1(c)

if __name__ == "__main__":
    cfg = json.loads(sys.argv[2]) if len(sys.argv) > 2 else {}
    open(sys.argv[1], "w").write(gen(cfg))
```

```python
import sys, json, struct, re
from asmlib import *
NAME = "standalone__softmax_full_mha__prompt_kernel"
HQ = 81920
HKV = 163840
KV_OFF = 32 * HQ
O_OFF = KV_OFF + 32 * HKV
FB_OFF = O_OFF + 128 * 20480
FA_OFF = FB_OFF + 1024 * 128
F2_OFF = FA_OFF + 256 * 128
F3_OFF = F2_OFF + 256 * 128
F4_OFF = F3_OFF + 256 * 128
WS_BYTES = F4_OFF + 256 * 128
SLOT = [0, 24576, 49152, 81920, 106496, 131072, 0, 24576, 49152, 139264]
CSCALE = struct.unpack("<I", struct.pack("<f", (20 ** -0.5) * 1.4426950408889634))[0]
WS, WO, OUT, DBG = "s[44:47]", "s[48:51]", "s[52:55]", "s[56:59]"
SPIN_MAX = 1 << 18

def spin_head(a, label):
    a(f"{label}:")
def spin_tail(a, label, mult=1):
    a(f"""
    s_cselect_b32 s35, {SPIN_MAX*mult}, s35
    s_add_u32 s35, s35, 1
    s_cmp_lt_u32 s35, {SPIN_MAX*mult}
    s_cbranch_scc1 {label}
    {label}_ok:
    """)

def poll(a, label, vaddr, rsrc, soff, dst=5):
    a(f"""
    s_mov_b32 s35, 0
    {label}:
    buffer_load_dword v{dst}, v{vaddr}, {rsrc}, {soff} offen sc1
    s_waitcnt vmcnt(0)
    v_cmp_ne_u32 vcc, 0, v{dst}
    s_nop 0
    s_cmp_eq_u64 vcc, -1
    """)
    spin_tail(a, label)

def paced_poll(a, cfg, label, vaddrs, soff):
    pace = cfg.get("pace" + label[-1], -1)
    n = len(vaddrs)
    dst = [5, 3][:n]
    if pace < 0:
        a(f"s_mov_b32 s35, 0\n{label}:")
        if pace < -1: a(f"s_sleep {-pace}")
        for d, v in zip(dst, vaddrs): a(f"buffer_load_dword v{d}, v{v}, {WS}, {soff} offen sc1")
        a(f"{label}_chk:")
        a("s_waitcnt vmcnt(0)")
    else:
        for d in dst: a(f"v_mov_b32 v{d}, 0")
        a(f"s_mov_b32 s35, 0\n{label}:")
        for d, v in zip(dst, vaddrs): a(f"buffer_load_dword v{d}, v{v}, {WS}, {soff} offen sc1")
        if pace: a(f"s_sleep {pace}")
        a(f"s_waitcnt vmcnt({n * cfg.get('pdepth', 4)})")
    if n == 2: a("v_and_b32 v2, v5, v3"); a("v_cmp_ne_u32 vcc, 0, v2")
    else: a("v_cmp_ne_u32 vcc, 0, v5")
    a("s_nop 0")
    a("s_cmp_eq_u64 vcc, -1")
    spin_tail(a, label, mult=4)

def raise_flag(a, soff):
    a(f"""
    v_mov_b32 v2, 0
    v_mov_b32 v3, 1
    s_mov_b64 exec, 1
    buffer_store_dword v3, v2, {WS}, {soff} offen sc1
    s_mov_b64 exec, -1
    """)

def page(a, cfg, key):
    off = cfg.get("pages", {}).get(key)
    if off is None: return
    if key == "v" and off:
        a(".p2align 8"); a(f".fill {(off - 256)//4}, 4, 0xbf800000"); return
    a(".p2align 12")
    if off: a(f".fill {off//4}, 4, 0xbf800000")

def common_srds(a):
    srd(a, 44, 42, WS_BYTES)
    srd(a, 48, 36, 640 * 1280)
    srd(a, 52, 38, 2048 * 1280)
    srd(a, 56, 40, 256)

XROT = [0, 1, 3, 4, 3, 4, 1, 2]
IDLE2 = True
CNT_ADDR = 133120 - 16
GO_ADDR = 81920 - 16
def phase1_loader(a, cfg):
    a.c("---------------- loader waves (become the early attention waves)")
    rot = cfg.get("rot", 2)
    NX0 = cfg.get("nx0", 7)
    if rot == 2:
        a("""
        s_add_u32 s100, s3, s17
        s_and_b32 s100, s100, 1
        s_mul_i32 s100, s100, 5
        """)
    elif rot == 3:
        a("""
        s_add_u32 s100, s3, s17
        s_mul_i32 s101, s100, 43
        s_lshr_b32 s101, s101, 7
        s_mul_i32 s101, s101, 3
        s_sub_u32 s100, s100, s101
        s_mul_i32 s100, s100, 7
        s_lshr_b32 s100, s100, 1
        """)
    elif rot == 4:
        a("""
        s_add_u32 s100, s3, s17
        s_and_b32 s100, s100, 3
        s_mul_i32 s100, s100, 5
        s_lshr_b32 s100, s100, 1
        """)
    else:
        a("s_mov_b32 s100, 0")
    xr = cfg.get("xrot", XROT)
    if xr:
        a(f"""
        s_and_b32 s101, s2, 7
        s_lshl_b32 s101, s101, 2
        s_lshr_b32 s101, {sum(v << (4*i) for i, v in enumerate(xr))}, s101
        s_and_b32 s101, s101, 15
        s_add_u32 s100, s100, s101
        s_sub_u32 s101, s100, 10
        s_cselect_b32 s100, s100, s101
        """)
    a(f"""
    s_and_b32 s19, s16, 3
    s_lshl_b32 s96, s19, 4
    s_lshr_b32 s101, s19, 1
    s_lshl_b32 s101, s101, 5
    s_and_b32 s34, s19, 1
    s_lshl_b32 s34, s34, 2
    s_add_u32 s101, s101, s34
    s_cmp_lt_u32 s17, 10
    s_cselect_b32 s96, s96, s101
    s_cselect_b32 s101, 4, 8
    s_mul_i32 s101, s101, 1280
    s_lshl_b32 s34, s18, 7
    s_add_u32 s96, s96, s34
    s_mul_i32 s96, s96, 1280
    v_lshrrev_b32 v2, 5, v1
    v_mul_u32_u24 v2, s101, v2
    v_bfe_u32 v3, v1, 3, 2
    v_mul_u32_u24 v3, 1280, v3
    v_lshrrev_b32 v5, 4, v1
    v_and_b32 v4, 7, v1
    v_xor_b32 v4, v4, v5
    v_lshlrev_b32 v4, 4, v4
    v_add3_u32 v8, v2, v3, v4
    v_xor_b32 v4, 64, v4
    v_add3_u32 v9, v2, v3, v4
    s_lshl_b32 s101, s101, 1
    s_sub_u32 s101, s101, 1024
    v_add_u32 v9, s101, v9
    v_and_b32 v3, 15, v1
    v_lshlrev_b32 v6, 1, v5
    v_xor_b32 v3, v3, v6
    v_mul_u32_u24 v2, 3840, v5
    v_lshl_add_u32 v16, v3, 4, v2
    v_add_u32 v17, {4*3840-1024}, v16
    v_xor_b32 v3, 8, v3
    v_lshl_add_u32 v18, v3, 4, v2
    v_add_u32 v19, {3*(4*3840-1024)}, v18
    v_add_u32 v18, {2*(4*3840-1024)}, v18
    s_mul_i32 s97, s19, {16*3840}
    s_lshl_b32 s3, s17, 8
    s_add_u32 s97, s97, s3
    s_lshl_b32 s98, s19, 11
    s_lshl_b32 s99, s19, 12
    s_mov_b32 s10, {2048*1280}
    s_mov_b32 s11, 0x00020000
    s_mov_b32 s14, {640*3840}
    s_mov_b32 s15, 0x00020000
    """)
    stamp(a, cfg, 8, grp="st")
    a("s_waitcnt lgkmcnt(0)")
    stamp(a, cfg, 9, grp="st")
    a(f"""
    s_mov_b32 s8, s4
    s_mov_b32 s9, s5
    s_mov_b32 s12, s6
    s_mov_b32 s13, s7
    """)
    XF1, XF2, WF_ = cfg.get("xfl", ""), cfg.get("x2fl", ""), cfg.get("wfl", "")
    def adv():
        a("""
        s_add_u32 s100, s100, 1
        s_cmp_eq_u32 s100, 10
        s_cselect_b32 s100, 0, s100
        """)
    def issue_x(lds, XF):
        a(f"""
        s_lshl_b32 s101, s100, 7
        s_add_u32 m0, s98, {lds}
        s_add_u32 s101, s101, s96
        """)
        for j in range(2):
            a(f"buffer_load_dwordx4 v{8+j}, s[8:11], s101 offen offset:{1024*j} {XF} lds")
    def issue(c):
        slot = SLOT[c]
        issue_x(slot, XF1)
        a(f"""
        s_mul_i32 s34, s100, {64*3840}
        s_add_u32 m0, s99, {slot+8192}
        s_add_u32 s34, s34, s97
        """)
        for j in range(4):
            a(f"buffer_load_dwordx4 v{16+j}, s[12:15], s34 offen offset:{1024*j} {WF_} lds")
        adv()
    def issue2(c):
        if c == 0: a(f"s_add_u32 s96, s96, {64*1280}")
        issue_x(81920 + 8192*c, XF2)
        if c < 9: adv()
    NPRE = cfg.get("npre", 3)
    if cfg.get("ldprio"): a(f"s_setprio {cfg['ldprio']}")
    groups = [[("c", c)] for c in range(10)]
    q = list(range(NX0))
    while q: groups.append([("x", i) for i in q[:3]]); q = q[3:]
    while len(groups) > 10 + NPRE:
        g = groups.pop(); groups[-1] = groups[-1] + g
    pend = []
    def put(g):
        for kind, i in g:
            if kind == "c": issue(i); pend.append(((kind, i), 6))
            else: issue2(i); pend.append(((kind, i), 2))
    def wait_for(item):
        k = [p[0] for p in pend].index(item)
        del pend[:k+1]
        a(f"s_waitcnt vmcnt({sum(p[1] for p in pend)})")
    for i in range(NPRE):
        put(groups.pop(0))
        if i == 0: stamp(a, cfg, 10, grp="st")
    common_srds(a)
    a(f"""
    v_and_b32 v10, 15, v1
    v_lshlrev_b32 v10, 2, v10
    s_lshl_b32 s60, s17, 4
    s_add_u32 s60, s60, s18
    s_lshl_b32 s60, s60, 7
    s_add_u32 s60, s60, {FA_OFF}
    """)
    t = Asm(); attn_setup(t, cfg, early=True)
    su = [l.strip() for l in t.lines if not l.strip().startswith(";")]
    at = cfg.get("esu", [0, 1, 2, 3, 4])
    per = -(-len(su) // len(at))
    def slice_(c):
        if c in at:
            for l in su[:per]: a(l)
            del su[:per]
    slice_(-1)
    for c in range(10):
        wait_for(("c", c))
        if c == 0: stamp(a, cfg, 2)
        if c in (3, 6): stamp(a, cfg, {3: 11, 6: 12}[c], grp="st")
        a("s_barrier")
        if cfg.get("rdyearly") == c: a(f"buffer_load_dword v5, v10, {DBG}, 0 offen sc1"); pend.append((("r", 0), 1))
        if groups: put(groups.pop(0))
        slice_(c)
    if not cfg.get("rdyearly"): a(f"buffer_load_dword v5, v10, {DBG}, 0 offen sc1"); pend.append((("r", 0), 1))
    stamp(a, cfg, 3)
    wait_for(("x", 2))
    a("s_barrier")
    a(f"""
    v_mov_b32 v11, {GO_ADDR}
    v_mov_b32 v7, 0
    ds_write_b32 v11, v7
    s_waitcnt vmcnt(0)
    v_cmp_ne_u32 vcc, 0, v5
    s_waitcnt lgkmcnt(0)
    s_cmp_eq_u64 vcc, -1
    s_cbranch_scc1 L_rdy_l_ok
    """)
    poll(a, "L_rdy_l", 10, DBG, "0")
    if NX0 > 3: a("s_barrier")
    if not cfg.get("flfirst", 1):
        for q in range(NX0, 10): issue2(q)
    a("""
    s_barrier
    s_cmp_eq_u32 s16, 4
    s_cbranch_scc0 L_ld_nofl
    """)
    a(f"""
    s_mov_b64 exec, 1
    buffer_store_dword v{VONE}, v{VZ}, {WS}, s60 offen sc1
    s_mov_b64 exec, -1
    L_ld_nofl:
    """)
    stamp(a, cfg, 4)
    if cfg.get("flfirst", 1):
        for q in range(NX0, 10): issue2(q)
    NX1 = cfg.get("nx1", 10)
    def xbars(extra):
        if NX1 < 10:
            a(f"s_waitcnt vmcnt({2*(10-NX1) + extra})")
            a("s_barrier")
        a(f"s_waitcnt vmcnt({extra})")
        a("s_barrier")
    if cfg.get("prepoll", 0):
        a(f"""
        s_cmp_eq_u32 s16, {cfg.get("epoll", 5)}
        s_cbranch_scc0 L_ld_nopoll
        buffer_load_dword v5, v{VPOLL}, {WS}, s33 offen sc1
        buffer_load_dword v3, v{VPOLL+1}, {WS}, s33 offen sc1
        s_mov_b32 s35, 0
        v_mov_b32 v7, 1
        """)
        xbars(2)
        a("s_branch L_poll1e_chk")
        a("L_ld_nopoll:")
    xbars(0)
    a("s_branch L_early")

def phase1_consumer(a, cfg):
    a.c("---------------- consumer waves (become the late attention waves)")
    XA, WA, ST, XF, AC, WR = 8, 10, 12, 16, 48, 96
    XB, WB = 4, 6
    SFLAG = cfg.get("sflag", 6)
    NX0 = cfg.get("nx0", 7)
    XBAR = {3, NX0, cfg.get("nx1", 10)}
    assert (NX0 == 3 or SFLAG >= 5) and SFLAG <= 2 * NX0 - 1
    a(f"""
    v_and_b32 v2, 15, v1
    v_lshrrev_b32 v3, 4, v1
    v_bfe_u32 v4, v1, 1, 3
    v_xor_b32 v4, v4, v3
    v_lshlrev_b32 v4, 4, v4
    v_lshl_add_u32 v{XA}, v2, 7, v4
    v_xor_b32 v{XA+1}, 64, v{XA}
    v_bfe_u32 v4, v1, 2, 2
    v_lshl_add_u32 v5, v3, 3, v4
    v_and_b32 v6, 1, v3
    v_lshl_or_b32 v4, v6, 2, v4
    s_lshl_b32 s3, s16, 1
    v_xor_b32 v4, s3, v4
    v_lshlrev_b32 v4, 5, v4
    v_lshl_add_u32 v4, v5, 8, v4
    v_and_b32 v5, 3, v1
    v_lshl_add_u32 v4, v5, 3, v4
    v_add_u32 v{WA}, 8192, v4
    v_xor_b32 v{WA+1}, 32, v{WA}
    s_lshl_b32 s60, s17, 2
    s_add_u32 s60, s60, s16
    s_lshl_b32 s60, s60, 4
    s_add_u32 s60, s60, s18
    s_lshl_b32 s60, s60, 7
    s_add_u32 s60, s60, {FB_OFF}
    s_mul_i32 s21, s18, 5120
    s_waitcnt lgkmcnt(0)
    """)
    common_srds(a)
    def xread(stage, ks, tt):
        c, s = divmod(ks, 2)
        if stage == 0: ad, off = (XA, SLOT[c]) if SLOT[c] < 81920 else (XB, SLOT[c] - 81920)
        else: ad, off = (XB, c * 8192) if c < 5 else (XA, (c - 5) * 8192)
        return f"ds_read_b128 {vr(XF+16*(ks&1)+4*tt,4)}, v{ad+s} offset:{off+2048*tt}"
    def wread(ks, ct, u):
        c, s = divmod(ks, 2)
        ad, off = (WA, SLOT[c]) if SLOT[c] < 81920 else (WB, SLOT[c] - 81920)
        if c == 9: off -= 8192
        return f"ds_read_b64_tr_b16 {vr(WR+8*ks+4*ct+2*u,2)}, v{ad+ct} offset:{off+(32*s+4*u)*256}"
    def reads(stage, ks):
        if stage == 0:
            return [wread(ks,0,0), wread(ks,0,1), xread(0,ks,0), wread(ks,1,0), wread(ks,1,1), xread(0,ks,1), xread(0,ks,2), xread(0,ks,3)]
        return [xread(1,ks,tt) for tt in range(4)]
    def mid():
        a("s_barrier")
        for r in reads(1, 0): a(r)
    def gemm(isv, epi):
        t = Asm(); attn_setup(t, cfg, early=False)
        su = [l.strip() for l in t.lines if not l.strip().startswith(";")]
        def filler(ks, n):
            while n and su:
                m = re.match(r"v_\w+ v\[?(\d+)", su[0])
                if m and int(m.group(1)) >= WR + 8 * ks: return
                a(su.pop(0)); n -= 1
        for i in range(2):
            a(f"v_add_u32 v{XB+i}, 81920, v{XA+i}")
            a(f"v_add_u32 v{WB+i}, 81920, v{WA+i}")
        a("s_barrier")
        stamp(a, cfg, 2)
        a(".p2align 3")
        for r in reads(0, 0): a(r)
        for stage in range(2):
            for ks in range(20):
                fl = stage == 1 and ks == SFLAG
                nxt = []
                bar = False
                if ks < 19:
                    nxt = reads(stage, ks + 1)
                    if ks % 2 == 1: bar = stage == 0 or ((ks + 1) // 2) in XBAR
                if fl and bar and (ks + 1) // 2 != NX0:
                    a("s_waitcnt lgkmcnt(0)"); a("s_barrier"); a("s_waitcnt vmcnt(0)"); a("s_barrier")
                elif fl and bar:
                    a("s_waitcnt vmcnt(0) lgkmcnt(0)"); a("s_barrier"); a("s_barrier"); a("s_nop 0")
                else:
                    a("s_waitcnt vmcnt(0) lgkmcnt(0)" if fl else "s_waitcnt lgkmcnt(0)")
                    if bar or fl: a("s_barrier")
                    elif stage == 0 or ks < cfg.get("su0", 5): a("s_nop 0")
                if fl: stamp(a, cfg, 4)
                if stage == 0 and ks == 13:
                    for i in range(2): a(f"v_add_u32 v{WB+i}, 8192, v{WB+i}")
                if stage == 1 and ks in (5, 13, 19): stamp(a, cfg, {5: 10, 13: 11, 19: 12}[ks], grp="p1")
                per = 2 if stage == 0 else 1
                for i in range(8):
                    tt, ct = i >> 1, (i & 1) ^ ((i >> 1) & 1)
                    acc = AC + 8 * tt + 4 * ct
                    x, w = vr(XF+16*(ks&1)+4*tt, 4), vr(WR+8*ks+4*ct, 4)
                    A, B = (x, w) if isv else (w, x)
                    c = "0" if ks == 0 else vr(acc, 4)
                    a(f"v_mfma_f32_16x16x32_bf16 {vr(acc,4)}, {A}, {B}, {c}")
                    if stage == 1 and ks >= cfg.get("su0", 5) and su and su[0].startswith("s_"): filler(ks, 1)
                    for r in nxt[per*i:per*i+per]: a(r)
                    if stage == 1 and ks >= cfg.get("su0", 5): filler(ks, 1 if nxt[i:i+1] else 2)
            if stage == 0:
                stamp(a, cfg, 3)
                a(f"v_add_u32 v{XA}, 122880, v{XA}")
                a(f"v_add_u32 v{XA+1}, 122880, v{XA+1}")
                epi(0)
                stamp(a, cfg, 8, grp="p1")
                if cfg.get("ackdiag"): a("s_waitcnt vmcnt(0)")
                if cfg.get("x0at", 99) > 7: mid()
                stamp(a, cfg, 9, grp="p1")
                a(".p2align 3")
            else:
                a("s_nop 1")
                epi(1)
                filler(20, 999)
    a("""
    s_cmp_lt_u32 s17, 10
    s_cbranch_scc0 L_qkv_v
    """)
    a.c("Q/K tiles: G = (cb%5)*32 + 8w + 4ct + g ; head = G/5 ; pos = G%5")
    a(f"""
    s_cmp_lt_u32 s17, 5
    s_cselect_b32 s25, 0, 81920
    s_cselect_b32 s12, {CSCALE}, 1.0
    s_cselect_b32 s23, 0, {KV_OFF}
    s_cselect_b32 s3, 0, 5
    s_add_u32 s24, s25, {HQ-2560}
    s_max_u32 s22, s25, 2560
    s_mov_b32 s13, s12
    s_add_u32 s21, s21, s23
    s_add_u32 s62, s22, s21
    s_sub_u32 s3, s17, s3
    s_lshl_b32 s3, s3, 2
    s_add_u32 s3, s3, s16
    s_lshl_b32 s3, s3, 3
    v_add_u32 v6, s3, v3
    v_lshlrev_b32 v4, 3, v2
    """)
    for ct in range(2):
        a(f"""
        v_add_u32 v7, {4*ct}, v6
        v_mul_u32_u24 v5, 52429, v7
        v_lshrrev_b32 v5, 18, v5
        v_lshl_add_u32 v7, v7, 9, v4
        v_mad_u32_u24 v{ST+ct}, v5, s24, v7
        """)
    late_qk, late_v = [], []
    def epi_qk(stage):
        for i in range(8):
            tt, ct = i >> 1, (i & 1) ^ ((i >> 1) & 1)
            acc = AC + 8 * tt + 4 * ct
            d = 80 + 2 * i
            a(f"v_pk_mul_f32 {vr(acc,2)}, {vr(acc,2)}, s[12:13]")
            a(f"v_pk_mul_f32 {vr(acc+2,2)}, {vr(acc+2,2)}, s[12:13]")
            a(f"v_cvt_pk_bf16_f32 v{d}, v{acc}, v{acc+1}")
            a(f"v_cvt_pk_bf16_f32 v{d+1}, v{acc+2}, v{acc+3}")
            st = f"buffer_store_dwordx2 {vr(d,2)}, v{ST+ct}, {WS}, s{62 if stage else 21} offen offset:{128*tt} sc1"
            if stage == 0: a(st)
            else: late_qk.append(st)
            if stage == 0 and i == cfg.get("x0at", 99): mid()
    def tail(stores, name):
        stamp(a, cfg, 5)
        a("s_barrier")
        a(f"{name}:")
        for st in stores: a(st)
        a("s_mov_b32 s63, 1")
        a("s_branch L_late_st")
    gemm(False, epi_qk)
    tail(late_qk, "L_end_qk")
    page(a, cfg, "v")
    a("L_qkv_v:")
    a.c("V tiles: col = (cb-10)*128 + 32w + 16ct + n ; head = col/20 ; d = col%20")
    a(f"""
    s_sub_u32 s3, s17, 10
    s_lshl_b32 s3, s3, 2
    s_add_u32 s3, s3, s16
    s_lshl_b32 s3, s3, 5
    v_add_u32 v6, s3, v2
    s_add_u32 s21, s21, {KV_OFF+2560}
    s_add_u32 s62, s21, 81920
    v_mul_u32_u24 v4, 320, v3
    s_mov_b32 s24, {HKV - 320}
    """)
    for ct in range(2):
        a(f"""
        v_add_u32 v7, {16*ct}, v6
        v_mul_u32_u24 v5, 13108, v7
        v_lshrrev_b32 v5, 18, v5
        v_lshl_add_u32 v7, v7, 4, v4
        v_mad_u32_u24 v{ST+ct}, v5, s24, v7
        """)
    def epi_v(stage):
        a("s_nop 2")
        for P in range(2):
            for ct in range(2):
                d = 80 + 8 * P + 4 * ct
                for ab in range(2):
                    acc = AC + 8 * (2 * P + ab) + 4 * ct
                    a(f"v_cvt_pk_bf16_f32 v{d+2*ab}, v{acc}, v{acc+1}")
                    a(f"v_cvt_pk_bf16_f32 v{d+2*ab+1}, v{acc+2}, v{acc+3}")
                st = f"buffer_store_dwordx4 {vr(d,4)}, v{ST+ct}, {WS}, s{62 if stage else 21} offen offset:{1280*P} sc1"
                if stage == 0: a(st)
                else: late_v.append(st)
                if stage == 0 and 2 * P + ct == cfg.get("x0at", 99) // 2: mid()
    gemm(True, epi_v)
    tail(late_v, "L_end_v")

SA, SB = 178, 210
O0, O1 = 146, 162
QM0, QM1, QT = 242, 246, 250
KM, KT = 16, 24
VV, SENT, WOA = 96, 112, 116
VL16, VQ, VQT, VPOLL = 121, 122, 123, 124
VOM, VOT, VXW, VXR, VONE, VZ = 126, 127, 128, 129, 130, 131
IDX, VKE, VKO, VT, VV0, VV1 = 132, 133, 134, 135, 136, 137

P3 = 138
PK = 70
def p3_kh(a, cfg, d):
    a(f"s_lshr_b32 s{d}, s16, 2")
    if cfg.get("khswap"):
        a(f"""
        s_bfe_u32 s3, s2, 0x10005
        s_xor_b32 s{d}, s{d}, s3
        """)
def p3_setup(a, cfg):
    p3_kh(a, cfg, 30)
    a(f"""
    s_and_b32 s31, s16, 3
    s_mul_i32 s3, s30, 51200
    v_lshrrev_b32 v2, 5, v1
    v_bfe_u32 v3, v1, 4, 1
    v_bfe_u32 v14, v1, 2, 2
    v_mul_u32_u24 v15, 20, v2
    v_lshl_add_u32 v15, v3, 2, v15
    v_add_u32 v15, v15, v14
    v_mul_u32_u24 v15, 160, v15
    v_and_b32 v2, 3, v1
    v_lshl_add_u32 v2, v2, 3, s3
    v_add_u32 v{P3}, v15, v2
    v_lshrrev_b32 v3, 4, v1
    v_mul_u32_u24 v15, 20, v3
    v_add3_u32 v15, v15, 16, v14
    v_mul_u32_u24 v15, 160, v15
    v_add_u32 v{P3+1}, v15, v2
    s_mul_i32 s3, s31, 5120
    s_add_u32 s3, s3, 143360
    v_add_u32 v{P3+2}, s3, v{VL16}
    s_mul_i32 s3, s31, 3584
    s_add_u32 s3, s3, 102400
    v_and_b32 v2, 15, v1
    v_mul_u32_u24 v2, 176, v2
    v_lshl_add_u32 v2, v3, 3, v2
    v_add_u32 v{P3+3}, s3, v2
    s_and_b32 s40, s2, 7
    s_lshl_b32 s41, s40, 2
    s_bfe_u32 s30, s2, 0x20003
    s_add_u32 s41, s41, s30
    s_lshl_b32 s40, s40, 12
    s_add_u32 s40, s40, {F2_OFF}
    s_lshl_b32 s41, s41, 2
    s_add_u32 s41, s41, s31
    s_mul_i32 s41, s41, 20480
    v_lshrrev_b32 v2, 1, v1
    v_lshlrev_b32 v{P3+7}, 7, v2
    """)
    for i in range(5):
        a(f"""
        v_add_u32 v2, {64*i}, v1
        v_mul_u32_u24 v3, 6554, v2
        v_lshrrev_b32 v3, 16, v3
        v_mul_u32_u24 v14, {1280-160}, v3
        v_lshl_add_u32 v{WOA+i}, v2, 4, v14
        """)
        if i < 3:
            a(f"""
            v_add_u32 v14, v2, v3
            v_lshl_add_u32 v{P3+4+i}, v14, 4, s3
            """)

def attn_setup(a, cfg, early, keep5=False):
    late = 0 if early else 1
    a.c("attention ids: s17=head s18=q pair s19=key half s21=KV base of head")
    a(f"""
    s_and_b32 s17, s2, 7
    s_lshl_b32 s17, s17, 2
    s_lshr_b32 s17, 0x75643120, s17
    s_and_b32 s17, s17, 7
    s_lshl_b32 s17, s17, 2
    s_bfe_u32 s3, s2, 0x20003
    s_add_u32 s17, s17, s3
    s_lshr_b32 s29, s2, 5
    s_lshl_b32 s18, s29, 2
    s_and_b32 s3, s16, 2
    s_add_u32 s18, s18, s3
    s_add_u32 s18, s18, {late}
    s_and_b32 s19, s16, 1
    s_mul_i32 s20, s19, 5120
    v_and_b32 v2, 31, v1
    v_lshrrev_b32 v3, 5, v1
    v_lshlrev_b32 v14, 3, v2
    v_lshl_add_u32 v{VQ}, v3, 9, v14
    v_add_u32 v{VKE}, s20, v{VQ}
    v_add_u32 v{VKO}, 256, v{VKE}
    v_lshlrev_b32 v14, 3, v1
    v_add_u32 v{VT}, s20, v14
    s_lshl_b32 s3, s19, 8
    v_xor_b32 v{VQT}, s3, v14
    v_mul_u32_u24 v15, 320, v3
    v_lshl_add_u32 v15, v2, 4, v15
    s_add_u32 s3, s20, 2560
    v_add_u32 v{VV0}, s3, v15
    v_add_u32 v{VV1}, 40960, v{VV0}
    v_lshlrev_b32 v{VL16}, 4, v1
    v_mov_b32 v{IDX}, 0xdddddddd
    s_mov_b32 s24, 0x000fffff
    s_mov_b32 s25, 0x000fffff
    v_cmp_eq_u32 vcc, 20, v2
    v_mov_b32 v15, 0x3f803f80
    s_mul_i32 s21, s17, {HKV}
    v_cndmask_b32 v{VV}, 0, v15, vcc
    s_add_u32 s21, s21, {KV_OFF}
    """)
    a(f"v_mov_b32 v{VV+1}, v{VV}")
    for i in range(1, 8): a(f"v_mov_b64 {vr(VV+2*i,2)}, {vr(VV,2)}")
    a.c("s22/s23: Q soffsets role0/role1, s26: Q pair base ; s27: first token block of this wave's K/V units ; s28: dma lds dest")
    a(f"""
    s_mul_i32 s26, s18, 2560
    s_mul_i32 s3, s17, {HQ}
    s_add_u32 s26, s26, s3
    s_lshl_b32 s3, s19, 8
    s_add_u32 s22, s26, s3
    s_xor_b32 s3, s3, 256
    s_add_u32 s23, s26, s3
    s_and_b32 s28, s16, 3
    s_mul_i32 s27, s29, {cfg.get("krot", 0)}
    s_add_u32 s27, s27, s28
    s_mul_i32 s28, s28, 5120
    s_add_u32 s28, s28, {late*81920}
    s_add_u32 s61, s21, {late*81920}
    """)
    a.c("O tile of this wave = 2*pair + (1^kh): s36/s37 store offsets, s38 workgroup flag, s39 wave flag")
    a(f"""
    s_lshl_b32 s30, s18, 1
    s_xor_b32 s31, s19, 1
    s_add_u32 s30, s30, s31
    s_mul_i32 s37, s30, 40960
    s_add_u32 s37, s37, {O_OFF}
    s_lshl_b32 s36, s17, 9
    s_add_u32 s36, s36, s37
    s_lshl_b32 s3, s17, 7
    s_add_u32 s37, s37, s3
    s_add_u32 s37, s37, 16384
    s_lshr_b32 s38, s2, 5
    s_lshl_b32 s38, s38, 12
    s_add_u32 s38, s38, s3
    s_add_u32 s38, s38, {F2_OFF}
    s_add_u32 s39, s38, {F3_OFF - F2_OFF}
    v_bfe_u32 v2, v1, 4, 1
    v_mul_u32_u24 v2, 20480, v2
    v_and_b32 v3, 15, v1
    v_lshl_add_u32 v{VOT}, v3, 3, v2
    v_lshl_add_u32 v2, v3, 4, v2
    v_lshrrev_b32 v3, 5, v1
    v_lshl_add_u32 v{VOM}, v3, 8, v2
    s_mul_i32 s3, s16, 3072
    s_add_u32 s3, s3, 102400
    v_add_u32 v{VXW}, s3, v{VL16}
    s_xor_b32 s3, s16, 1
    s_mul_i32 s3, s3, 3072
    s_add_u32 s3, s3, 102400
    v_add_u32 v{VXR}, s3, v{VL16}
    v_mov_b64 {vr(SENT,2)}, -1
    v_mov_b64 {vr(SENT+2,2)}, -1
    v_mov_b32 v{VONE}, 1
    v_mov_b32 v{VZ}, 0
    """)
    p3_setup(a, cfg)
    sh, sec = (7, 5) if early else (5, 20)
    a.c("poll addresses of the polling wave: K/V producers of all 16 token blocks, Q producers of both pairs")
    a(f"""
    s_mul_i32 s30, s17, 20
    s_add_u32 s31, s30, 19
    s_lshr_b32 s30, s30, {sh}
    s_lshr_b32 s31, s31, {sh}
    s_sub_u32 s31, s31, s30
    v_and_b32 v2, 1, v1
    v_mul_u32_u24 v2, s31, v2
    v_add_u32 v2, s30, v2
    v_lshrrev_b32 v14, 5, v1
    v_mul_u32_u24 v3, {sec}, v14
    v_add3_u32 v3, v2, v3, {sec}
    v_bfe_u32 v15, v1, 1, 4
    v_lshl_add_u32 v3, v3, 4, v15
    v_lshlrev_b32 v{VPOLL}, 7, v3
    v_bfe_u32 v2, v1, 4, 1
    v_mul_u32_u24 v2, s31, v2
    v_add_u32 v2, s30, v2
    s_lshr_b32 s3, s2, 5
    s_lshl_b32 s3, s3, 1
    v_lshl_add_u32 v2, v2, 4, v14
    v_add_u32 v2, s3, v2
    v_lshlrev_b32 v{VPOLL+1}, 7, v2
    s_mov_b32 s33, {FA_OFF if early else FB_OFF}
    """)
    for i in range(16): a(f"v_mov_b64 {vr(O0+2*i,2)}, 0")

def wait_stage(a, cfg, tag, wave):
    a(f"""
    s_mov_b32 s35, 0
    v_mov_b32 v7, 1
    s_cmp_eq_u32 s16, {wave}
    s_cbranch_scc0 L_gw{tag}
    """)
    paced_poll(a, cfg, f"L_poll1{tag}", [VPOLL, VPOLL+1], "s33")
    a(f"""
    ds_write_b32 v11, v7
    s_branch L_gw{tag}_ok
    L_gw{tag}:
    {"s_sleep " + str(cfg.get('gs' + tag, 1)) if cfg.get('gs' + tag, 1) else ""}
    ds_read_b32 v7, v11
    s_waitcnt lgkmcnt(0)
    v_readfirstlane_b32 s34, v7
    s_cmp_lg_u32 s34, 0
    """)
    spin_tail(a, f"L_gw{tag}", mult=16)

def kread(t):
    tl = t & 15
    o = 20 * (tl >> 1)
    return f"ds_read2st64_b64 {vr(KM+4*(t&1),4)}, v{VKO if t & 1 else VKE} offset0:{o} offset1:{o+2}"
def tread(b):
    o = 40 * (b & 3)
    return f"ds_read2st64_b64 {vr(KT+4*(b&1),4)}, v{VT} offset0:{o+4} offset1:{o+24}"
def vread(t, f):
    tl = t & 15
    ad = VV0 if tl < 8 else VV1
    return f"ds_read_b128 {vr(VV+8*(t&1)+4*f,4)}, v{ad} offset:{10240*((tl>>1)&3)+1280*(t&1)+640*f}"
def Tm(t, dst):
    b, T = divmod(t, 4)
    return f"v_mfma_f32_32x32x4_2b_bf16 {vr(dst,32)}, {vr(KT+4*(b&1)+2*(T>>1),2)}, {vr(QT,2)}, 0 cbsz:1 abid:{T&1}"
def Mm(t, dst, r):
    return f"v_mfma_f32_32x32x16_bf16 {vr(dst+16*r,16)}, {vr(KM+4*(t&1),4)}, {vr(QM1 if r else QM0,4)}, {vr(dst+16*r,16)}"
def Pm(o, t, f, s):
    return f"v_smfmac_f32_32x32x32_bf16 {vr(o,16)}, {vr(VV+8*(t&1)+4*f,4)}, {vr(s,8)}, v{IDX}"

def qloads(a):
    a(f"""
    buffer_load_dwordx2 {vr(QT,2)}, v{VQT}, {WS}, s26 offen offset:2048 sc1
    buffer_load_dwordx2 {vr(QM0,2)}, v{VQ}, {WS}, s22 offen sc1
    buffer_load_dwordx2 {vr(QM0+2,2)}, v{VQ}, {WS}, s22 offen offset:1024 sc1
    buffer_load_dwordx2 {vr(QM1,2)}, v{VQ}, {WS}, s23 offen sc1
    buffer_load_dwordx2 {vr(QM1+2,2)}, v{VQ}, {WS}, s23 offen offset:1024 sc1
    """)
def kv_dma(i, back=0):
    g = [f"""
        s_add_u32 s3, s27, {4*i}
        s_and_b32 s3, s3, 15
        s_mul_i32 s3, s3, 5120
        s_sub_u32 s3, s3, {back}
        s_add_u32 m0, s28, {(i*20480 - back) & 0xffffffff}
        s_add_u32 s29, s61, s3
        buffer_load_dwordx4 v{VL16}, {WS}, s29 offen sc1 lds"""]
    for j in range(1, 4):
        g.append(f"buffer_load_dwordx4 v{VL16}, {WS}, s29 offen offset:{1024*j} sc1 lds")
    g.append(f"""
        s_add_u32 m0, s28, {(i*20480+4096 - back) & 0xffffffff}
        s_add_u32 s29, s29, 4096
        buffer_load_dwordx4 v{VL16}, {WS}, s29 offen sc1 lds""")
    return g
def wo_dma(nper):
    g = []
    for p in range(nper):
        for i in range(5):
            pre = ""
            if i == 0:
                pre = f"""
                s_add_u32 s31, s30, {p*8*32*1280}
                """
            g.append(pre + f"""
                s_add_u32 m0, s32, {p*8*5120 + 1024*i}
                s_nop 0
                buffer_load_dwordx4 v{WOA+i}, {WO}, s31 offen lds
                s_nop 0""")
    return g

def attn_loop(a, cfg, early):
    tag = "e" if early else "l"
    direct = early and cfg.get("direct", 0)
    wo_ids = f"""
    s_lshr_b32 s3, s2, 5
    s_mul_i32 s30, s3, 160
    s_mul_i32 s3, s16, {32*1280}
    s_add_u32 s30, s30, s3
    s_mul_i32 s32, s16, 5120
    """
    if direct:
        a("s_mov_b64 exec, s[24:25]"); a(vread(0, 0)); a(vread(0, 1)); a("s_mov_b64 exec, -1")
        a(kread(1))
        a(f"ds_read_b64 {vr(KT+2,2)}, v{VT} offset:{24*512}")
    else:
        a(f"s_setprio {3 if early else 2}")
        a(tread(0)); a(kread(0)); a(kread(1))
        a("s_mov_b64 exec, s[24:25]"); a(vread(0, 0)); a(vread(0, 1)); a("s_mov_b64 exec, -1")
        a.c("wo dma: s30 source, s32 lds dest")
        a(wo_ids)
        a(f"s_waitcnt lgkmcnt({0 if cfg.get('stamp') else 4})")
        if cfg.get("lp", {}).get("pro"): a("s_memtime s[70:71]")
        a(Tm(0, SA)); a("s_nop 15"); a("s_nop 1"); a("s_waitcnt lgkmcnt(3)")
        a(Mm(0, SA, 0)); a(Mm(0, SA, 1)); a("s_nop 10")
    dma = {}
    TB = cfg.get("tb", 14) if early else 14
    be, bl = cfg.get("be", [18, 18, 26]), cfg.get("bl", [18, 18, 26])
    assert (be[0] == be[1]) == (bl[0] == bl[1])
    assert be[0] <= 18 and min(be[1], bl[1]) >= 15 and min(be[2], bl[2]) >= 25
    if early:
        B2, C1, C2 = be
        bars = {2: "vmcnt(0)", 6: None, TB: None, C1: None, C2: None}; bars[B2] = "vmcnt(0)"; assert B2 == C1
        if cfg.get("a4"): bars[cfg["a4"]] = None
        prio = cfg.get("prio_e", {str(TB): 1, "18": 3, "24": 1, "26": 3, "29": 2, "31": 1})
    else:
        B2, C1, C2 = bl
        bars = {C1: None, C2: None}
        bars[B2] = "vmcnt(0)"
        b0 = cfg.get("bl0", 0)
        if b0 or cfg.get("u1in", 1): bars[b0] = None
        sp = cfg.get("spread", 2)
        q = (kv_dma(1) if cfg.get("u1in", 1) else []) + kv_dma(2) + kv_dma(3); t0 = b0 + cfg.get("sp0", 0)
        while q: dma[t0] = q[:sp]; q = q[sp:]; t0 += 1
        assert t0 < B2
        assert B2 >= b0 + 3
        prio = cfg.get("prio_l", {"18": 2, "25": 0, "26": 3, "29": 2, "30": 1, "31": 0})
    prio = {int(k): v for k, v in prio.items()}
    wo = wo_dma(2 if early else 3)
    for i in range(5): dma[C1 + i] = wo[2*i:2*i+2]
    for i in range(3): dma[C2 + i] = wo[10+2*i:12+2*i]
    if cfg.get("opt", 1):
        ts = cfg.get("tsent", [16, 9])[0 if early else 1]
        assert not dma.get(ts)
        dma[ts] = [f"buffer_store_dwordx4 {vr(SENT,4)}, v{VOM}, {WS}, s36 offen sc1",
            f"""s_mov_b32 exec_hi, 0
            buffer_store_dwordx2 {vr(SENT,2)}, v{VOT}, {WS}, s37 offen sc1
            s_mov_b32 exec_hi, -1"""]
    if early:
        def w4(body, lab): return f"s_cmp_eq_u32 s16, 4\ns_cbranch_scc0 {lab}\n{body}\n{lab}:"
        assert not dma.get(C1 + 5) and not dma.get(28)
        dma[C1 + 5] = [w4(f"""s_add_u32 s3, s38, {F4_OFF - F2_OFF}
            s_mov_b64 exec, 1
            buffer_store_dword v{VONE}, v{VZ}, {WS}, s3 offen sc1
            s_mov_b64 exec, -1""", "L_r_set")]
        assert not dma.get(27) and C2 <= 27
        dma[27] = [f"v_mov_b32 v11, {CNT_ADDR}\nds_write_b32 v11, v{VZ}"]
        dma[28] = [w4(f"""s_add_u32 s33, s40, {F4_OFF - F2_OFF}
            buffer_load_dword v5, v{P3+7}, {WS}, s33 offen sc1""", "L_r_get")]
    nt = cfg.get("nt", ["e", 31, 0])
    if cfg.get("notice", 9) == 4 and nt[0] == tag:
        tn = Asm(); notice(tn, dict(cfg, nw=4 if early else 0), False)
        assert not dma.get(nt[1]) and nt[1] > C2
        dma[nt[1]] = ["" if i != nt[2] else "\n".join(tn.lines) for i in range(5)]
    a(".p2align 3")
    for t in range(32):
        cur, nxt = (SA, SB) if t % 2 == 0 else (SB, SA)
        e = iter(range(32))
        def E(n):
            for _ in range(n):
                i = next(e); a(f"v_exp_f32 v{cur+i}, v{cur+i}")
        dq = list(dma.get(t, []))
        def D(n):
            for _ in range(n):
                if dq: a(dq.pop(0))
        many = len(dq) > 2
        a.c(f"step {t}")
        E(2)
        if t > 0: a(Pm(O1, t-1, 1, nxt+24))
        vm = bars.get(t)
        if direct and t == 0: a("s_nop 0")
        else: a(f"s_waitcnt {vm + ' ' if vm else ''}lgkmcnt(0)")
        n4 = 1
        lp = cfg.get("lp", {}).get(tag + str(t))
        if lp and lp[0]: a(f"s_memtime s[{64+2*lp[0]}:{65+2*lp[0]}]")
        if t in bars: a("s_barrier"); n4 += 1
        if lp and lp[1]: a(f"s_memtime s[{64+2*lp[1]}:{65+2*lp[1]}]")
        if t in prio: a(f"s_setprio {prio[t]}"); n4 += 1
        if n4 % 2: a("s_nop 0")
        if t == 14:
            for r in (VKE, VKO, VT, VV0): a(f"v_add_u32 v{r}, 81920, v{r}")
        if t == 16: a(f"v_add_u32 v{VV1}, 81920, v{VV1}")
        if TB == 15 and t == 15: a(tread(4)); a(kread(16))
        if t + 2 < 32 and not (TB == 15 and t == 14): a(kread(t+2))
        if many: D(1)
        E(4)
        if TB == 15 and t == 15: a(f"s_waitcnt lgkmcnt({0 if cfg.get('lp') else 1})"); a("s_nop 0")
        if t < 31: a(Tm(t+1, nxt))
        E(8)
        if direct and t == 0: a(f"s_waitcnt lgkmcnt({0 if cfg.get('stamp') else 1})"); a("s_nop 0")
        a(Pm(O0, t, 0, cur))
        one = early and t < cfg.get("vone", 16)
        if one: a("s_mov_b64 exec, s[24:25]"); a(vread(t+1, 0)); a(vread(t+1, 1)); a("s_mov_b64 exec, -1")
        elif t < 31: a("s_mov_b64 exec, s[24:25]"); a(vread(t+1, 0)); a("s_mov_b64 exec, -1")
        if many: D(1)
        E(4)
        a(Pm(O0, t, 1, cur+8))
        if t < 31 and not one: a("s_mov_b64 exec, s[24:25]"); a(vread(t+1, 1)); a("s_mov_b64 exec, -1")
        if many: D(1)
        E(4)
        if t < 31: a(Mm(t+1, nxt, 0))
        D(1)
        E(4)
        a(Pm(O1, t, 0, cur+16))
        if t % 4 == 2 and t // 4 < 7 and not (TB == 15 and t == 14): a(tread(t//4+1))
        D(1)
        E(4)
        if t < 31: a(Mm(t+1, nxt, 1))
        else:
            a.c("hand the role-0 tile to the partner wave (other key half)")
            for i in (2, 0, 1): a(f"ds_write_b128 v{VXW}, {vr(O0+4*i,4)} offset:{1024*i}")
        E(2)
        assert not dq

def attn_epilogue(a, cfg):
    stamp(a, cfg, 8)
    if cfg.get("lp"): a("s_memtime s[88:89]")
    a(f"""
    s_setprio 0
    s_nop 0
    {Pm(O1, 31, 1, SB+24)}
    """)
    if cfg.get("notice", 9) == 3:
        a("s_waitcnt vmcnt(0)"); notice(a, cfg, False); a("s_waitcnt lgkmcnt(0)")
    elif cfg.get("notice", 9) == 4:
        a(f"""
        s_waitcnt vmcnt(1) lgkmcnt(0)
        s_cmp_eq_u32 s16, {4 if cfg.get("nt", ["e", 31, 0])[0] == "e" else 0}
        s_cbranch_scc1 L_epi_w
        s_waitcnt vmcnt(0)
        L_epi_w:
        """)
    else: a("s_waitcnt vmcnt(0) lgkmcnt(0)")
    a(f"""
    s_barrier
    ds_read_b128 {vr(O0+8,4)}, v{VXR} offset:2048
    ds_read_b128 {vr(O0,4)}, v{VXR}
    ds_read_b128 {vr(O0+4,4)}, v{VXR} offset:1024
    """)
    if cfg.get("opt", 1) and cfg.get("notice", 9) == 2: notice(a, cfg, False)
    a("""
    s_nop 6
    s_waitcnt lgkmcnt(2)
    """)
    a(f"""
    v_pk_add_f32 {vr(O1+8,2)}, {vr(O1+8,2)}, {vr(O0+8,2)}
    v_pk_add_f32 {vr(O1+10,2)}, {vr(O1+10,2)}, {vr(O0+10,2)}
    v_mov_b32 v7, v{O1+8}
    v_mov_b32 v9, v{O1+8}
    s_mov_b32 s30, 0x21800000
    s_waitcnt lgkmcnt(1)
    v_permlane32_swap_b32 v7, v9
    v_pk_add_f32 {vr(O1,2)}, {vr(O1,2)}, {vr(O0,2)}
    v_pk_add_f32 {vr(O1+2,2)}, {vr(O1+2,2)}, {vr(O0+2,2)}
    s_mov_b32 s31, 0x5d800000
    s_waitcnt lgkmcnt(0)
    v_pk_add_f32 {vr(O1+4,2)}, {vr(O1+4,2)}, {vr(O0+4,2)}
    v_pk_add_f32 {vr(O1+6,2)}, {vr(O1+6,2)}, {vr(O0+6,2)}
    """)
    a.c("run-time check of the shift-free softmax: row sum in [2^-60, 2^60], finite accumulators; else redo with the true row max")
    a(f"""
    v_cmp_le_f32 s[32:33], s30, v9
    v_cmp_ge_f32 s[34:35], s31, v9
    v_pk_mul_f32 v[10:11], {vr(O1+8,2)}, 0
    """)
    for i in (10, 0, 2, 4, 6): a(f"v_pk_fma_f32 v[10:11], {vr(O1+i,2)}, 0, v[10:11]")
    a(f"""
    s_and_b64 s[32:33], s[32:33], s[34:35]
    v_cmp_o_f32 vcc, v10, v11
    v_rcp_f32 v8, v9
    s_and_b64 s[32:33], s[32:33], vcc
    s_cmp_eq_u64 s[32:33], -1
    s_cbranch_scc0 L_attn_slow
    L_attn_fin:
    """)
    for i in range(4): a(f"v_pk_mul_f32 {vr(O1+2*i,2)}, {vr(O1+2*i,2)}, v[8:9] op_sel_hi:[1,0]")
    for i in range(4): a(f"v_cvt_pk_bf16_f32 v{PK+i}, v{O1+2*i}, v{O1+2*i+1}")
    a(f"buffer_store_dwordx4 {vr(PK,4)}, v{VOM}, {WS}, s36 offen sc1")
    for i in range(4, 6): a(f"v_pk_mul_f32 {vr(O1+2*i,2)}, {vr(O1+2*i,2)}, v[8:9] op_sel_hi:[1,0]")
    for i in range(4, 6): a(f"v_cvt_pk_bf16_f32 v{PK+i}, v{O1+2*i}, v{O1+2*i+1}")
    a(f"""
    s_mov_b32 exec_hi, 0
    buffer_store_dwordx2 {vr(PK+4,2)}, v{VOT}, {WS}, s37 offen sc1
    s_mov_b32 exec_hi, -1
    """)
    stamp(a, cfg, 9)
    if cfg.get("opt", 1) and cfg.get("notice", 9) < 2: notice(a, cfg, cfg.get("notice", 9) == 0)

def notice(a, cfg, bar):
    a.c("early notice: readers check the tiles for the filler words written before and fall back to the acknowledged flags")
    if bar: a("s_barrier")
    a(f"""
    s_cmp_eq_u32 s16, {cfg.get("nw", 4)}
    s_cbranch_scc0 L_nonotice
    s_mov_b64 exec, 1
    buffer_store_dword v{VONE}, v{VZ}, {WS}, s38 offen sc1
    s_mov_b64 exec, -1
    L_nonotice:
    """)

def attn_slow(a):
    a("L_attn_slow:")
    a(f"""
    v_and_b32 v2, 31, v1
    v_lshlrev_b32 v14, 3, v2
    v_lshrrev_b32 v3, 5, v1
    v_mul_u32_u24 v3, 320, v3
    v_lshl_add_u32 v15, v2, 4, v3
    v_mov_b32 v10, 0xff800000
    s_mov_b32 s34, 0
    """)
    for i in range(16): a(f"v_mov_b32 v{O1+i}, 0")
    a(f"""
    L_slow_pass:
    s_mov_b32 s35, 0
    L_slow_tile:
    s_lshr_b32 s30, s35, 1
    s_mul_i32 s30, s30, 5120
    s_add_u32 s30, s30, s21
    s_and_b32 s3, s35, 1
    s_mul_i32 s31, s3, 1280
    s_add_u32 s31, s31, s30
    s_lshl_b32 s3, s3, 8
    s_add_u32 s30, s30, s3
    buffer_load_dwordx2 {vr(KT,2)}, v14, {WS}, s30 offen offset:2048 sc1
    buffer_load_dwordx2 {vr(KM,2)}, v{VQ}, {WS}, s30 offen sc1
    buffer_load_dwordx2 {vr(KM+2,2)}, v{VQ}, {WS}, s30 offen offset:1024 sc1
    s_mov_b64 exec, s[24:25]
    buffer_load_dwordx4 {vr(VV,4)}, v15, {WS}, s31 offen offset:2560 sc1
    buffer_load_dwordx4 {vr(VV+4,4)}, v15, {WS}, s31 offen offset:3200 sc1
    s_mov_b64 exec, -1
    s_waitcnt vmcnt(0)
    v_mfma_f32_32x32x4_2b_bf16 {vr(SA,32)}, {vr(KT,2)}, {vr(QT,2)}, 0
    s_nop 15
    s_nop 3
    v_mfma_f32_32x32x16_bf16 {vr(SA+16,16)}, {vr(KM,4)}, {vr(QM1,4)}, {vr(SA+16,16)}
    s_nop 15
    s_cmp_eq_u32 s34, 0
    s_cbranch_scc0 L_slow_pv
    """)
    for i in range(8): a(f"v_max3_f32 v10, v10, v{SA+16+2*i}, v{SA+17+2*i}")
    a("s_branch L_slow_next")
    a("L_slow_pv:")
    for i in range(16): a(f"v_sub_f32 v{SA+16+i}, v{SA+16+i}, v10")
    for i in range(16): a(f"v_exp_f32 v{SA+16+i}, v{SA+16+i}")
    a(f"""
    s_nop 3
    v_smfmac_f32_32x32x32_bf16 {vr(O1,16)}, {vr(VV,4)}, {vr(SA+16,8)}, v{IDX}
    v_smfmac_f32_32x32x32_bf16 {vr(O1,16)}, {vr(VV+4,4)}, {vr(SA+24,8)}, v{IDX}
    s_nop 15
    L_slow_next:
    s_add_u32 s35, s35, 1
    s_cmp_lt_u32 s35, 64
    s_cbranch_scc1 L_slow_tile
    s_cmp_eq_u32 s34, 0
    s_cbranch_scc0 L_slow_done
    v_mov_b32 v11, v10
    s_nop 1
    v_permlane32_swap_b32 v10, v11
    s_nop 1
    v_max_f32 v10, v10, v11
    s_mov_b32 s34, 1
    s_branch L_slow_pass
    L_slow_done:
    v_mov_b32 v7, v{O1+8}
    v_mov_b32 v9, v{O1+8}
    s_nop 1
    v_permlane32_swap_b32 v7, v9
    s_nop 1
    v_rcp_f32 v8, v9
    s_branch L_attn_fin
    """)

TAIL = []
def phase3(a, cfg):
    OF, AC, WF = 16, 56, 76
    VW, VWT, VPB, VSW, VSR, VL, VL8 = 6, 7, 8, 9, 10, 0, 4
    VOS = [13, 14, 15]
    VW2, VWT2 = 3, 5
    OPT = cfg.get("opt", 1)
    def reads(ks):
        hf, p = divmod(ks, 5)
        r = []
        for t in range(5):
            for u in range(2):
                if p < 4: ad, off = (VW2 if hf else VW), (40*p + 8*u)*160 + 32*t
                else: ad, off = (VWT2 if hf else VWT), 80*u*160 + 32*t
                r.append(f"ds_read_b64_tr_b16 {vr(WF+20*(ks%9)+4*t+2*u,2)}, v{ad} offset:{off}")
        return r
    def unpack():
        a(f"""
        s_getreg_b32 s30, hwreg(HW_REG_XCC_ID, 0, 1)
        s_xor_b32 s30, s30, s2
        s_xor_b32 s30, s30, {cfg.get("hinv", 0)}
        s_and_b32 s30, s30, 1
        s_mul_i32 s31, s30, 25600
        s_sub_u32 s32, 25600, s31
        v_add_u32 v{VW}, s31, v{P3}
        v_add_u32 v{VWT}, s31, v{P3+1}
        v_add_u32 v{VW2}, s32, v{P3}
        v_add_u32 v{VWT2}, s32, v{P3+1}
        """)
        for i in range(2, 7): a(f"v_mov_b32 v{VW+i}, v{P3+i}")
        for i in range(3): a(f"v_mov_b32 v{VOS[i]}, v{WOA+i}")
        a(f"""
        v_mov_b32 v{VL}, v{VL16}
        v_lshlrev_b32 v{VL8}, 3, v1
        """)
        p3_kh(a, cfg, 26)
        a(f"""
        s_lshr_b32 s27, s2, 5
        s_mul_i32 s27, s27, 160
        s_add_u32 s27, s27, s41
        s_add_u32 s28, s41, {O_OFF}
        s_lshl_b32 s3, s26, 1
        s_add_u32 s3, s3, s30
        s_xor_b32 s29, s3, 1
        s_lshl_b32 s22, s3, 12
        s_add_u32 s22, s22, s28
        s_lshl_b32 s24, s29, 12
        s_add_u32 s24, s24, s28
        s_add_u32 s28, s28, 16384
        s_lshl_b32 s23, s3, 10
        s_add_u32 s23, s23, s28
        s_lshl_b32 s25, s29, 10
        s_add_u32 s25, s25, s28
        """)
    a.c("---- output projection: 64 tokens x 80 columns")
    if not OPT:
        a("""
        s_waitcnt vmcnt(0)
        s_barrier
        s_cmp_eq_u32 s16, 0
        s_cbranch_scc0 L_p3_nofl
        """)
        raise_flag(a, "s38")
        a("L_p3_nofl:")
    NPB, WIN = cfg.get("npb", 8), cfg.get("win", 5)
    LOADS = []
    for ks in range(10):
        hf, p = divmod(ks, 5)
        if p < 4: LOADS.append([f"buffer_load_dwordx4 {vr(OF+4*ks,4)}, v{VL}, {WS}, s{22+2*hf} offen offset:{1024*p} sc1"])
        else: LOADS.append([f"buffer_load_dwordx2 {vr(OF+4*ks+2*u,2)}, v{VL8}, {WS}, s{23+2*hf} offen offset:{512*u} sc1" for u in range(2)])
    assert WIN == 5
    PW = cfg.get("pw", 7)
    a(f"v_mov_b32 v2, v{P3+7}")
    unpack()
    a.c("all stores are issued: read the first half of the heads (dies that usually finish first); filler words tell what has not arrived")
    def front(pre, il, mid=None):
        rest = [r for ks in range(NPB) for r in reads(ks)]
        for r in rest[:pre]: a(r)
        rest = rest[pre:]
        if mid: mid()
        for g in LOADS[:5]:
            for l in g: a(l)
            for r in rest[:il]: a(r)
            rest = rest[il:]
        for r in rest: a(r)
        a(f"""
        v_mov_b32 v1, 1
        v_mov_b32 v{AC}, {CNT_ADDR}
        s_waitcnt vmcnt(6)
        s_mov_b64 exec, 1
        ds_add_u32 v{AC}, v1
        s_mov_b64 exec, -1
        s_waitcnt lgkmcnt(0)
        """)
        stamp(a, cfg, 10)
        if cfg.get("p3d"): a("s_memtime s[68:69]")
    later = [reads(ks) for ks in range(NPB, 9)]
    a(f"""
    s_getreg_b32 s3, hwreg(HW_REG_XCC_ID, 0, 1)
    s_mov_b32 s28, 0
    s_cmp_eq_u32 s3, {cfg.get("hinv", 0)}
    s_barrier
    {"s_branch" if cfg.get("force_two") else "s_cbranch_scc1"} L_p3_two
    """)
    front(cfg.get("pre", 10), cfg.get("il", 8))
    VMX = 1
    KB = cfg.get("kb", 9)
    stubs = []
    def conf7(lab):
        a("s_cmp_eq_u32 s16, 7"); a(f"s_cbranch_scc0 {lab}"); a("s_call_b64 s[32:33], L_confirm"); a(f"{lab}:")
    def chk(ks):
        r = OF + 4 * ks
        return [f"v_max3_u32 v{VMX}, v{r}, v{r+1}, v{r+2}", f"v_max_u32 v{VMX}, v{VMX}, v{r+3}", f"v_cmp_eq_u32 vcc, -1, v{VMX}"]
    def arrive(ks, slide):
        hi = min(ks + 5, 10) if slide else 5
        vm = sum(len(g) for g in LOADS[ks+1:hi])
        a(f"s_waitcnt vmcnt({vm})" + (" lgkmcnt(0)" if ks in (max(NPB, 4), 8) else ""))
        if slide and ks < 5:
            for l in LOADS[ks + 5]: a(l)
    def mf(ks, tag="", slide=True, head=False, nxt=True):
        if head:
            arrive(ks, slide)
            for x in chk(ks): a(x)
        if cfg.get("p3d") and ks in (0, 3, 7, 9): a("s_memtime s[%d:%d]" % {0: (70, 71), 3: (72, 73), 7: (74, 75), 9: (76, 77)}[ks])
        lab = f"L_ck{ks}{tag}"
        a(f"""
        {"s_branch" if cfg.get("force_redo") else "s_cbranch_vccnz"} {lab}_again
        {lab}_ok:
        """)
        stubs.append((lab, ks, 5 if ks < 5 else 10))
        rd = []
        if ks < 3:
            allr = [x for g in later for x in g]
            n = -(-len(allr) // 3)
            rd = allr[n*ks:n*ks+n]
        if ks == 3: rd = reads(9)
        per = -(-len(rd) // 3)
        cn = chk(ks + 1) if nxt and ks < 9 else None
        for t in range(5):
            c = "0" if ks == 0 else vr(AC+4*t, 4)
            a(f"v_mfma_f32_16x16x32_bf16 {vr(AC+4*t,4)}, {vr(WF+20*(ks%9)+4*t,4)}, {vr(OF+4*ks,4)}, {c}")
            for x in rd[per*t:per*t+per]: a(x)
            if cn and t == 2: arrive(ks + 1, slide); a(cn[0])
            if cn and t == 3: a(cn[1]); a(cn[2])
    assert NPB >= 4
    def redo():
        NTRY = cfg.get("ntry", 12)
        for lab, ks, hi in stubs:
            a(f"{lab}_again:")
            if cfg.get("stamp"): a("s_waitcnt lgkmcnt(0)"); a("s_mov_b32 s68, -1")
            a(f"""
            s_add_u32 s28, s28, 1
            s_cmp_eq_u32 s28, {NTRY}
            s_cbranch_scc0 {lab}_ld
            s_call_b64 s[30:31], L_confirmed
            {lab}_ld:
            """)
            hf, p = divmod(ks, 5)
            ids = range(ks, hi) if not cfg.get("grl", 1) else sorted(set(range(ks, 5*hf + min(p | 1, 4) + 1)) | {5*hf + 4})
            for i in ids:
                for l in LOADS[i]: a(l)
            a(f"""
            s_waitcnt vmcnt(0)
            s_cmp_ge_u32 s28, {NTRY}
            s_cbranch_scc1 {lab}_ok
            """)
            for x in chk(ks): a(x)
            a(f"""
            {"s_branch" if cfg.get("force_redo") else "s_cbranch_vccnz"} {lab}_again
            s_branch {lab}_ok
            """)
        a.c("once all eight waves have seen their stores acknowledged, say so; then wait until every producer has said so")
        a(f"""
        L_confirmed:
        s_mov_b32 s35, 0
        L_cnt:
        v_mov_b32 v1, {CNT_ADDR}
        ds_read_b32 v1, v1
        s_waitcnt lgkmcnt(0)
        v_readfirstlane_b32 s34, v1
        s_cmp_eq_u32 s34, 8
        """)
        spin_tail(a, "L_cnt", mult=16)
        a(f"""
        s_mov_b64 exec, 1
        buffer_store_dword v1, v{VL}, {WS}, s39 offen sc1
        s_mov_b64 exec, -1
        s_add_u32 s34, s40, {F3_OFF - F2_OFF}
        s_waitcnt vmcnt(0)
        """)
        poll(a, "L_poll3", 2, WS, "s34", dst=1)
        a("s_setpc_b64 s[30:31]")
    def path2():
        pw2 = cfg.get("pw2", 1)
        a("L_p3_two:")
        EV = cfg.get("ev", 2)
        if EV == 1:
            a.c("a die that usually finishes early waits for notices before it starts reading")
            a(f"""
            s_cmp_eq_u32 s16, 1
            s_cbranch_scc0 L_gate_n0
            buffer_load_dword v1, v2, {WS}, s40 offen sc1
            L_gate_n0:
            """)
            def gate():
                a(f"""
                s_cmp_eq_u32 s16, 1
                s_cbranch_scc0 L_gpoll_ok
                s_lshl_b32 s3, s30, 4
                s_lshr_b32 s20, {0 if cfg.get("gall") else 0xffff0000}, s3
                s_mov_b32 s21, s20
                s_mov_b32 s35, 0
                s_branch L_gpoll_chk
                L_gpoll:
                buffer_load_dword v1, v2, {WS}, s40 offen sc1
                L_gpoll_chk:
                s_waitcnt vmcnt(0)
                v_cmp_ne_u32 vcc, 0, v1
                s_nop 0
                s_or_b64 vcc, vcc, s[20:21]
                s_cmp_eq_u64 vcc, -1
                """)
                spin_tail(a, "L_gpoll")
                a("s_barrier")
            front(cfg.get("pre2", 55), 5, gate)
        else:
            front(cfg.get("pre2", 55), 5)
        if EV:
            a("s_branch L_p3_one")
            return
        a(f"""
        s_cmp_eq_u32 s16, {pw2}
        s_cbranch_scc0 L_p3_two1
        buffer_load_dword v{OF+20}, v2, {WS}, s40 offen sc1
        L_p3_two1:
        """)
        for ks in range(5): mf(ks, "b", slide=False, head=ks == 0, nxt=ks < 4)
        a(f"""
        s_cmp_eq_u32 s16, {pw2}
        s_cbranch_scc0 L_poll2_ok
        v_cmp_ne_u32 vcc, 0, v{OF+20}
        s_nop 0
        s_cmp_eq_u64 vcc, -1
        s_cbranch_scc1 L_poll2_ok
        """)
        poll(a, "L_poll2", 2, WS, "s40", dst=1)
        a("s_barrier")
        stamp(a, cfg, 11)
        for g in LOADS[5:]:
            for l in g: a(l)
            if cfg.get("gap", -1) >= 0: a(f"s_nop {cfg.get('gap', 7)}")
        arrive(5, True)
        for x in chk(5): a(x)
        a("s_branch L_p3_join")
    TAIL.append(lambda: (path2(), redo()))
    a("L_p3_one:")
    stamp(a, cfg, 11)
    for ks in range(5): mf(ks, head=ks == 0)
    a("L_p3_join:")
    for ks in range(5, KB): mf(ks)
    a("""
    s_waitcnt lgkmcnt(0)
    s_cmp_lt_u32 s16, 4
    s_cbranch_scc0 L_out_fin
    """)
    for ks in range(KB, 10): mf(ks, "w")
    stamp(a, cfg, 12)
    a("s_nop 3")
    for t in range(5):
        a(f"ds_write_b128 v{VPB}, {vr(AC+4*t,4)} offset:{1024*t}")
        if t < 4: a("s_nop 0")
    a("""
    v_mov_b32 v1, 1
    s_waitcnt lgkmcnt(0)
    s_barrier
    s_cmp_eq_u32 s16, 0
    s_cbranch_scc0 L_fin
    """)
    a.c("every wave has seen its O stores acknowledged: tell readers that fall back")
    a(f"""
    s_mov_b64 exec, 1
    buffer_store_dword v1, v{VL}, {WS}, s39 offen sc1
    s_branch L_fin
    L_out_fin:
    s_barrier
    """)
    PB = WF + 20
    for t in range(5): a(f"ds_read_b128 {vr(PB+4*t,4)}, v{VPB} offset:{1024*t}")
    for ks in range(KB, 10): mf(ks, "f")
    stamp(a, cfg, 12)
    a("s_waitcnt lgkmcnt(0)")
    a("s_nop 2")
    for t in range(5):
        a(f"v_pk_add_f32 {vr(AC+4*t,2)}, {vr(AC+4*t,2)}, {vr(PB+4*t,2)}")
        a(f"v_pk_add_f32 {vr(AC+4*t+2,2)}, {vr(AC+4*t+2,2)}, {vr(PB+4*t+2,2)}")
        a(f"v_cvt_pk_bf16_f32 v{OF+2*t}, v{AC+4*t}, v{AC+4*t+1}")
        a(f"v_cvt_pk_bf16_f32 v{OF+2*t+1}, v{AC+4*t+2}, v{AC+4*t+3}")
        a(f"ds_write_b64 v{VSW}, {vr(OF+2*t,2)} offset:{32*t}")
    for i in range(3): a(f"ds_read_b128 {vr(PB+4*i,4)}, v{VSR+i}")
    OFL = cfg.get("outfl", "nt")
    for i in range(3):
        a(f"s_waitcnt lgkmcnt({2-i})")
        if i == 2: a("s_mov_b32 exec_hi, 0")
        a(f"buffer_store_dwordx4 {vr(PB+4*i,4)}, v{VOS[i]}, {OUT}, s27 offen {OFL}")
    a("L_fin:")

def gen1(cfg):
    a = Asm()
    a(f".globl {NAME}")
    a(".p2align 12")
    a(f".fill {cfg.get('pad', 3328)//4}, 4, 0xbf800000")
    a(".p2align 8")
    a(f".type {NAME},@function")
    a(f"{NAME}:")
    a("""
    s_cmp_ge_u32 s2, 256
    s_cbranch_scc1 L_end
    """)
    stamp(a, cfg, 0, real=True); stamp(a, cfg, 1)
    a("""
    s_load_dwordx4 s[4:7], s[0:1], 0
    s_load_dwordx8 s[36:43], s[0:1], 16
    v_lshrrev_b32 v2, 6, v0
    v_and_b32 v1, 63, v0
    v_readfirstlane_b32 s16, v2
    """)
    if cfg.get("codepf", 1):
        a.c("wave 0 touches an 8 KB share of the kernel's own code so that instruction fetch hits L2")
        a(f"""
        s_getpc_b64 s[26:27]
        L_pc:
        s_bfe_u32 s3, s2, 0x30003
        s_lshl_b32 s3, s3, 13
        s_cmp_eq_u32 s16, 0
        s_cbranch_scc0 L_nopf
        v_lshl_add_u32 v3, v1, 7, s3
        v_min_u32 v3, L_code_end - L_pc - 4, v3
        global_load_dword v0, v3, s[26:27]
        L_nopf:
        """)
    a.c("tile: j = id&7, v = id>>3 ; cb(s17) = (v>>2) + 8*(j>>2) ; tb(s18) = (j&3)*4 + (v&3) ; cb 15: no tile")
    a("""
    s_lshr_b32 s17, s2, 5
    s_and_b32 s3, s2, 4
    s_lshl_b32 s3, s3, 1
    s_add_u32 s17, s17, s3
    s_bfe_u32 s3, s2, 0x20003
    s_and_b32 s18, s2, 3
    s_lshl_b32 s18, s18, 2
    s_add_u32 s18, s18, s3
    s_cmp_eq_u32 s17, 15
    s_cbranch_scc1 L_idle
    s_cmp_lt_u32 s16, 4
    s_cbranch_scc1 L_qkv_cons
    """)
    phase1_loader(a, cfg)
    a("L_idle:")
    if cfg.get("e2e"): a("s_memrealtime s[64:65]")
    a.c("workgroups without a GEMM tile: clear the hand-off flags, raise 'ready' in d_debug, pull second-stage x rows into L2")
    xr = cfg.get("xrot", XROT)
    a(f"""
    s_lshl_b32 s19, s18, 2
    s_mul_i32 s17, s18, {128*128}
    s_add_u32 s17, s17, {FB_OFF}
    s_lshl_b32 s20, s18, 4
    s_add_u32 s20, s20, s16
    s_mul_i32 s23, s20, {8*1280}
    s_add_u32 s20, s23, {64*1280}
    s_add_u32 s21, s20, 8192
    v_lshlrev_b32 v2, 7, v1
    v_min_u32 v3, {15*128}, v2
    v_mov_b32 v4, 0
    v_and_b32 v10, 15, v1
    v_lshlrev_b32 v10, 2, v10
    v_mov_b32 v11, {GO_ADDR}
    ds_write_b32 v11, v4
    """)
    PFC = cfg.get("pfc", [4])
    if PFC:
        a.c("lines of the k-chunks that end the two miss runs of this die: s24 = chunk offset of the die")
        a(f"""
        s_and_b32 s24, s2, 7
        s_lshl_b32 s24, s24, 2
        s_lshr_b32 s24, {sum(v << (4*i) for i, v in enumerate(xr))}, s24
        s_and_b32 s24, s24, 15
        s_lshl_b32 s25, s3, 2
        s_and_b32 s26, s16, 3
        s_add_u32 s25, s25, s26
        s_mul_i32 s25, s25, {4*3840}
        s_add_u32 s25, s25, 2048
        s_lshr_b32 s26, s16, 2
        s_mul_i32 s26, s26, 5
        s_add_u32 s24, s24, s26
        s_lshl_b32 s22, s18, 3
        s_and_b32 s26, s16, 3
        s_add_u32 s22, s22, s26
        s_mul_i32 s22, s22, {16*1280}
        v_lshrrev_b32 v5, 4, v1
        v_mul_u32_u24 v5, 3840, v5
        v_and_b32 v6, 15, v1
        v_min_u32 v8, 13, v6
        v_lshl_add_u32 v8, v8, 7, v5
        v_min_u32 v9, 15, v1
        v_mul_u32_u24 v9, 1280, v9
        """)
    a("s_waitcnt lgkmcnt(0)")
    common_srds(a)
    srd(a, 8, 4, 2048 * 1280)
    srd(a, 12, 6, 640 * 3840)
    def pf(c):
        a(f"""
        s_add_u32 s26, s24, {c}
        s_sub_u32 s27, s26, 10
        s_cselect_b32 s26, s26, s27
        s_mul_i32 s27, s26, {64*3840}
        s_add_u32 s27, s27, s25
        s_lshl_b32 s26, s26, 7
        s_add_u32 s26, s26, s22
        buffer_load_dword v94, v8, s[12:15], s27 offen
        buffer_load_dword v95, v9, s[8:11], s26 offen
        """)
    a(f"""
    s_cmp_eq_u32 s16, 0
    s_cbranch_scc0 L_idle_pf
    s_add_u32 s28, s17, 8192
    buffer_store_dword v4, v2, {WS}, s17 offen sc1
    buffer_store_dword v4, v2, {WS}, s28 offen sc1
    L_idle_pf:
    """)
    for c in PFC: pf(c)
    if not PFC: a(f"buffer_load_dword v92, v3, s[8:11], s21 offen")
    a(f"""
    s_cmp_eq_u32 s16, 0
    s_cbranch_scc0 L_idle_pf2
    v_mov_b32 v6, 1
    s_waitcnt vmcnt({2*len(PFC) if PFC else 1})
    s_mov_b64 exec, 1
    buffer_store_dword v6, v4, {DBG}, s19 offen sc1
    s_mov_b64 exec, -1
    L_idle_pf2:
    s_barrier
    buffer_load_dword v90, v2, s[8:11], s20 offen
    """)
    if PFC: a(f"buffer_load_dword v92, v3, s[8:11], s21 offen")
    if cfg.get("e2e"):
        srd(a, 96, 42, 1 << 20, add=STAMP_OFF + (2 << 20))
        a("""
        v_mov_b32 v93, s64
        s_mov_b64 exec, 1
        buffer_store_dword v93, v4, s[96:99], s19 offen
        s_mov_b64 exec, -1
        """)
    a("""
    s_cmp_eq_u32 s16, 0
    s_cbranch_scc0 L_rdy_i_ok
    """)
    poll(a, "L_rdy_i", 10, DBG, "0")
    a("""
    s_waitcnt vmcnt(0)
    s_barrier
    s_mov_b32 s63, 0
    s_cmp_lt_u32 s16, 4
    s_cbranch_scc1 L_late_setup
    """)
    attn_setup(a, cfg, early=True)
    a("s_branch L_early")
    a("L_late_setup:")
    attn_setup(a, cfg, early=False)
    a("s_barrier")
    a("s_branch L_late_st")
    page(a, cfg, "qk")
    a("L_qkv_cons:")
    phase1_consumer(a, cfg)
    page(a, cfg, "late")
    a(f"""
    L_late_st:
    v_mov_b32 v11, {GO_ADDR + 81920}
    ds_write_b32 v11, v{VZ}
    s_barrier
    """)
    if cfg.get("a4"):
        a(f"""
        s_waitcnt vmcnt(0)
        s_cmp_eq_u32 s63, 0
        s_cbranch_scc1 L_late_nofl
        s_mov_b64 exec, 1
        buffer_store_dword v{VONE}, v{VZ}, {WS}, s60 offen sc1
        s_mov_b64 exec, -1
        L_late_nofl:
        """)
        for g in kv_dma(2, back=81920): a(g)
        a("s_waitcnt vmcnt(4)")
        for g in kv_dma(3, back=81920): a(g)
        a("s_waitcnt vmcnt(5) lgkmcnt(0)")
        a("s_barrier")
        a("s_waitcnt vmcnt(0)")
        a("s_barrier")
    else:
        for g in kv_dma(2, back=81920): a(g)
        a("s_waitcnt vmcnt(5)")
    if cfg.get("a4"): pass
    elif cfg.get("u3first", 0):
        for g in kv_dma(3, back=81920): a(g)
        a(f"""
        s_cmp_eq_u32 s63, 0
        s_cbranch_scc1 L_late_nofl
        s_mov_b64 exec, 1
        buffer_store_dword v{VONE}, v{VZ}, {WS}, s60 offen sc1
        s_mov_b64 exec, -1
        s_waitcnt vmcnt(1) lgkmcnt(0)
        s_branch L_late_a3
        L_late_nofl:
        s_waitcnt vmcnt(0) lgkmcnt(0)
        L_late_a3:
        s_barrier
        """)
    else:
        a("""
        s_cmp_eq_u32 s63, 0
        s_cbranch_scc1 L_late_nofl
        """)
        raise_flag(a, "s60")
        a("L_late_nofl:")
        for g in kv_dma(3, back=81920): a(g)
        a("""
        s_waitcnt vmcnt(0) lgkmcnt(0)
        s_barrier
        """)
    wait_stage(a, cfg, "l", 0)
    stamp(a, cfg, 6)
    for g in kv_dma(0): a(g)
    qloads(a)
    a("s_waitcnt vmcnt(5) lgkmcnt(0)")
    stamp(a, cfg, 15)
    if cfg.get("u1in", 1):
        a("s_waitcnt vmcnt(0)")
    else:
        if not cfg.get("bl0"): a("s_barrier")
        for g in kv_dma(1): a(g)
        a("s_waitcnt vmcnt(5)")
    stamp(a, cfg, 7)
    attn_loop(a, cfg, early=False)
    a("s_branch L_epi")
    page(a, cfg, "early")
    a("L_early:")
    if cfg.get("direct", 0):
        assert cfg.get("krot", 0) == 0
        a(f"""
        v_lshlrev_b32 v6, 3, v1
        s_add_u32 s14, s61, s20
        s_lshr_b32 s3, s2, 5
        s_mul_i32 s30, s3, 160
        s_mul_i32 s3, s16, {32*1280}
        s_add_u32 s30, s30, s3
        s_mul_i32 s32, s16, 5120
        """)
    wait_stage(a, cfg, "e", cfg.get("epoll", 5))
    stamp(a, cfg, 6)
    if cfg.get("direct", 0):
        a.c("Q and the first key tile straight into registers: the first scores are ready when the LDS image is")
        a(f"""
        buffer_load_dwordx2 {vr(QT,2)}, v{VQT}, {WS}, s26 offen offset:2048 sc1
        buffer_load_dwordx2 {vr(KT,2)}, v6, {WS}, s14 offen offset:2048 sc1
        buffer_load_dwordx2 {vr(QM0,2)}, v{VQ}, {WS}, s22 offen sc1
        buffer_load_dwordx2 {vr(QM0+2,2)}, v{VQ}, {WS}, s22 offen offset:1024 sc1
        buffer_load_dwordx2 {vr(KM,2)}, v{VQ}, {WS}, s14 offen sc1
        buffer_load_dwordx2 {vr(KM+2,2)}, v{VQ}, {WS}, s14 offen offset:1024 sc1
        buffer_load_dwordx2 {vr(QM1,2)}, v{VQ}, {WS}, s23 offen sc1
        buffer_load_dwordx2 {vr(QM1+2,2)}, v{VQ}, {WS}, s23 offen offset:1024 sc1
        """)
        for g in kv_dma(0): a(g)
        a("s_setprio 3")
        a("s_waitcnt vmcnt(11)")
        a(Tm(0, SA)); a("s_nop 15"); a("s_nop 1"); a("s_waitcnt vmcnt(5)")
        a(Mm(0, SA, 0)); a(Mm(0, SA, 1))
        a(f"s_waitcnt vmcnt({cfg.get('u1w', 3)})")
        for g in kv_dma(1): a(g)
    else:
        for g in kv_dma(0): a(g)
        qloads(a)
        a(f"s_waitcnt vmcnt({cfg.get('u1w', 5)})")
        for g in kv_dma(1): a(g)
    a("s_waitcnt vmcnt(5) lgkmcnt(0)")
    stamp(a, cfg, 5)
    a("s_barrier")
    stamp(a, cfg, 7)
    attn_loop(a, cfg, early=True)
    a.c("the filler words of every tile this workgroup will read are in place")
    a("""
    s_cmp_eq_u32 s16, 4
    s_cbranch_scc0 L_epi
    """)
    a(f"s_waitcnt vmcnt({1 if cfg.get('notice', 9) == 4 else 0})")
    a("""
    v_cmp_ne_u32 vcc, 0, v5
    s_nop 0
    s_cmp_eq_u64 vcc, -1
    s_cbranch_scc0 L_r_wait
    """)
    a("L_epi:")
    attn_epilogue(a, cfg)
    phase3(a, cfg)
    if cfg.get("stamp"): a("s_waitcnt vmcnt(0)")
    stamp(a, cfg, 13); stamp(a, cfg, 14, real=True)
    if "xsel" in cfg:
        a(f"""
        s_waitcnt lgkmcnt(0)
        s_and_b32 s90, s2, 7
        s_cmp_eq_u32 s90, {cfg["xsel"]}
        s_cselect_b32 s90, s64, 0
        """)
    if cfg.get("xcc"):
        a("""
        s_waitcnt lgkmcnt(0)
        s_getreg_b32 s90, hwreg(HW_REG_XCC_ID, 0, 4)
        s_sub_u32 s90, s90, s2
        s_and_b32 s90, s90, 7
        s_mul_i32 s90, s90, 200
        """)
    stamp_flush(a, cfg, 0, 16, 8, wsptr=42)
    a("L_end:")
    a("s_endpgm")
    TAIL.pop()()
    a("L_code_end:")
    a("L_r_wait:")
    poll(a, "L_r_spin", P3+7, WS, "s33")
    a("s_branch L_epi")
    attn_slow(a)
    head = open("standalone__softmax_full_mha__prompt.s.ref").read().split("; Override launch")[0]
    descs = descriptor(NAME, 256)
    if cfg.get("probe"):
        import k_probe
        if cfg.get("lat"):
            head += "; @launch kernel=lat_kernel grid=(1,1,1) block=(64,1,1) lds=0\n"
            descs += k_probe.gen_lat(a, cfg)
        head += f"; @launch kernel={NAME} grid=(256,1,1) block=(512,1,1) lds=163840\n; @launch kernel=probe_kernel grid=(1,1,1) block=(64,1,1) lds=0\n"
        descs += k_probe.gen_probe(a, cfg)
    elif cfg.get("e2e"):
        import k_probe
        head += "; @launch kernel=prev_kernel grid=(1,1,1) block=(64,1,1) lds=0\n"
        a(".p2align 12")
        descs += k_probe.gen_prev(a, cfg)
        head += f"; @launch kernel={NAME} grid=(256,1,1) block=(512,1,1) lds=163840\n; @launch kernel=next_kernel grid=(1,1,1) block=(64,1,1) lds=0\n"
        descs += k_probe.gen_next(a, cfg)
    elif cfg.get("list"):
        head += f"; @launch kernel={NAME} grid=(256,1,1) block=(512,1,1) lds=163840\n"
    else:
        head += "; @launch grid=(256,1,1) block=(512,1,1) lds=163840\n"
    return head + '.amdgcn_target "amdgcn-amd-amdhsa--gfx950"\n.text\n' + a.text() + '.section .rodata,"a"\n' + descs

def gen(cfg):
    if not cfg.get("layout", 1): return gen1(cfg)
    import subprocess, tempfile, os
    d = tempfile.mkdtemp()
    c = dict(cfg, pages={"qk": 0, "v": 0, "late": 0, "early": cfg.get("eoff", 128)})
    open(d + "/a.s", "w").write(gen1(c))
    subprocess.run(["clang", "-x", "assembler", "-target", "amdgcn-amd-amdhsa", "-mcpu=gfx950", "-c", d + "/a.s", "-o", d + "/a.o"], check=True)
    o = subprocess.run(["llvm-objdump", "-t", d + "/a.o"], capture_output=True, text=True).stdout
    L = {m.group(2): int(m.group(1), 16) for m in re.finditer(r"^([0-9a-f]+) .* (L_\w+)$", o, re.M)}
    c["pages"]["qk"] = (-L["L_end_qk"]) % 4096 // 8 * 8
    c["pages"]["v"] = (-L["L_end_v"] - 64) % 4096 // 8 * 8
    return gen1(c)

if __name__ == "__main__":
    cfg = json.loads(sys.argv[2]) if len(sys.argv) > 2 else {}
    open(sys.argv[1], "w").write(gen(cfg))
```

```python
import sys, json, struct, re
from asmlib import *
NAME = "standalone__softmax_full_mha__prompt_kernel"
HQ = 81920
HKV = 163840
KV_OFF = 32 * HQ
O_OFF = KV_OFF + 32 * HKV
FB_OFF = O_OFF + 128 * 20480
FA_OFF = FB_OFF + 1024 * 128
F2_OFF = FA_OFF + 256 * 128
F3_OFF = F2_OFF + 256 * 128
F4_OFF = F3_OFF + 256 * 128
WS_BYTES = F4_OFF + 256 * 128
SLOT = [0, 24576, 49152, 81920, 106496, 131072, 0, 24576, 49152, 139264]
CSCALE = struct.unpack("<I", struct.pack("<f", (20 ** -0.5) * 1.4426950408889634))[0]
WS, WO, OUT, DBG = "s[44:47]", "s[48:51]", "s[52:55]", "s[56:59]"
SPIN_MAX = 1 << 18

def spin_head(a, label):
    a(f"{label}:")
def spin_tail(a, label, mult=1):
    a(f"""
    s_cselect_b32 s35, {SPIN_MAX*mult}, s35
    s_add_u32 s35, s35, 1
    s_cmp_lt_u32 s35, {SPIN_MAX*mult}
    s_cbranch_scc1 {label}
    {label}_ok:
    """)

def poll(a, label, vaddr, rsrc, soff, dst=5):
    a(f"""
    s_mov_b32 s35, 0
    {label}:
    buffer_load_dword v{dst}, v{vaddr}, {rsrc}, {soff} offen sc1
    s_waitcnt vmcnt(0)
    v_cmp_ne_u32 vcc, 0, v{dst}
    s_nop 0
    s_cmp_eq_u64 vcc, -1
    """)
    spin_tail(a, label)

def paced_poll(a, cfg, label, vaddrs, soff):
    pace = cfg.get("pace" + label[-1], -1)
    n = len(vaddrs)
    dst = [5, 3][:n]
    if pace < 0:
        a(f"s_mov_b32 s35, 0\n{label}:")
        if pace < -1: a(f"s_sleep {-pace}")
        for d, v in zip(dst, vaddrs): a(f"buffer_load_dword v{d}, v{v}, {WS}, {soff} offen sc1")
        a(f"{label}_chk:")
        a("s_waitcnt vmcnt(0)")
    else:
        for d in dst: a(f"v_mov_b32 v{d}, 0")
        a(f"s_mov_b32 s35, 0\n{label}:")
        for d, v in zip(dst, vaddrs): a(f"buffer_load_dword v{d}, v{v}, {WS}, {soff} offen sc1")
        if pace: a(f"s_sleep {pace}")
        a(f"s_waitcnt vmcnt({n * cfg.get('pdepth', 4)})")
    if n == 2: a("v_and_b32 v2, v5, v3"); a("v_cmp_ne_u32 vcc, 0, v2")
    else: a("v_cmp_ne_u32 vcc, 0, v5")
    a("s_nop 0")
    a("s_cmp_eq_u64 vcc, -1")
    spin_tail(a, label, mult=4)

def raise_flag(a, soff):
    a(f"""
    v_mov_b32 v2, 0
    v_mov_b32 v3, 1
    s_mov_b64 exec, 1
    buffer_store_dword v3, v2, {WS}, {soff} offen sc1
    s_mov_b64 exec, -1
    """)

def page(a, cfg, key):
    off = cfg.get("pages", {}).get(key)
    if off is None: return
    if key == "v" and off:
        a(".p2align 8"); a(f".fill {(off - 256)//4}, 4, 0xbf800000"); return
    a(".p2align 12")
    if off: a(f".fill {off//4}, 4, 0xbf800000")

def common_srds(a):
    srd(a, 44, 42, WS_BYTES)
    srd(a, 48, 36, 640 * 1280)
    srd(a, 52, 38, 2048 * 1280)
    srd(a, 56, 40, 256)

XROT = [0, 1, 3, 4, 3, 4, 1, 2]
IDLE2 = True
CNT_ADDR = 133120 - 16
GO_ADDR = 81920 - 16
def phase1_loader(a, cfg):
    a.c("---------------- loader waves (become the early attention waves)")
    rot = cfg.get("rot", 2)
    NX0 = cfg.get("nx0", 7)
    if rot == 2:
        a("""
        s_add_u32 s100, s3, s17
        s_and_b32 s100, s100, 1
        s_mul_i32 s100, s100, 5
        """)
    elif rot == 3:
        a("""
        s_add_u32 s100, s3, s17
        s_mul_i32 s101, s100, 43
        s_lshr_b32 s101, s101, 7
        s_mul_i32 s101, s101, 3
        s_sub_u32 s100, s100, s101
        s_mul_i32 s100, s100, 7
        s_lshr_b32 s100, s100, 1
        """)
    elif rot == 4:
        a("""
        s_add_u32 s100, s3, s17
        s_and_b32 s100, s100, 3
        s_mul_i32 s100, s100, 5
        s_lshr_b32 s100, s100, 1
        """)
    else:
        a("s_mov_b32 s100, 0")
    xr = cfg.get("xrot", XROT)
    if xr:
        a(f"""
        s_and_b32 s101, s2, 7
        s_lshl_b32 s101, s101, 2
        s_lshr_b32 s101, {sum(v << (4*i) for i, v in enumerate(xr))}, s101
        s_and_b32 s101, s101, 15
        s_add_u32 s100, s100, s101
        s_sub_u32 s101, s100, 10
        s_cselect_b32 s100, s100, s101
        """)
    a(f"""
    s_and_b32 s19, s16, 3
    s_lshl_b32 s96, s19, 4
    s_lshr_b32 s101, s19, 1
    s_lshl_b32 s101, s101, 5
    s_and_b32 s34, s19, 1
    s_lshl_b32 s34, s34, 2
    s_add_u32 s101, s101, s34
    s_cmp_lt_u32 s17, 10
    s_cselect_b32 s96, s96, s101
    s_cselect_b32 s101, 4, 8
    s_mul_i32 s101, s101, 1280
    s_lshl_b32 s34, s18, 7
    s_add_u32 s96, s96, s34
    s_mul_i32 s96, s96, 1280
    v_lshrrev_b32 v2, 5, v1
    v_mul_u32_u24 v2, s101, v2
    v_bfe_u32 v3, v1, 3, 2
    v_mul_u32_u24 v3, 1280, v3
    v_lshrrev_b32 v5, 4, v1
    v_and_b32 v4, 7, v1
    v_xor_b32 v4, v4, v5
    v_lshlrev_b32 v4, 4, v4
    v_add3_u32 v8, v2, v3, v4
    v_xor_b32 v4, 64, v4
    v_add3_u32 v9, v2, v3, v4
    s_lshl_b32 s101, s101, 1
    s_sub_u32 s101, s101, 1024
    v_add_u32 v9, s101, v9
    v_and_b32 v3, 15, v1
    v_lshlrev_b32 v6, 1, v5
    v_xor_b32 v3, v3, v6
    v_mul_u32_u24 v2, 3840, v5
    v_lshl_add_u32 v16, v3, 4, v2
    v_add_u32 v17, {4*3840-1024}, v16
    v_xor_b32 v3, 8, v3
    v_lshl_add_u32 v18, v3, 4, v2
    v_add_u32 v19, {3*(4*3840-1024)}, v18
    v_add_u32 v18, {2*(4*3840-1024)}, v18
    s_mul_i32 s97, s19, {16*3840}
    s_lshl_b32 s3, s17, 8
    s_add_u32 s97, s97, s3
    s_lshl_b32 s98, s19, 11
    s_lshl_b32 s99, s19, 12
    s_mov_b32 s10, {2048*1280}
    s_mov_b32 s11, 0x00020000
    s_mov_b32 s14, {640*3840}
    s_mov_b32 s15, 0x00020000
    """)
    stamp(a, cfg, 8, grp="st")
    a("s_waitcnt lgkmcnt(0)")
    stamp(a, cfg, 9, grp="st")
    a(f"""
    s_mov_b32 s8, s4
    s_mov_b32 s9, s5
    s_mov_b32 s12, s6
    s_mov_b32 s13, s7
    """)
    XF1, XF2, WF_ = cfg.get("xfl", ""), cfg.get("x2fl", ""), cfg.get("wfl", "")
    def adv():
        a("""
        s_add_u32 s100, s100, 1
        s_cmp_eq_u32 s100, 10
        s_cselect_b32 s100, 0, s100
        """)
    def issue_x(lds, XF):
        a(f"""
        s_lshl_b32 s101, s100, 7
        s_add_u32 m0, s98, {lds}
        s_add_u32 s101, s101, s96
        """)
        for j in range(2):
            a(f"buffer_load_dwordx4 v{8+j}, s[8:11], s101 offen offset:{1024*j} {XF} lds")
    def issue(c):
        slot = SLOT[c]
        issue_x(slot, XF1)
        a(f"""
        s_mul_i32 s34, s100, {64*3840}
        s_add_u32 m0, s99, {slot+8192}
        s_add_u32 s34, s34, s97
        """)
        for j in range(4):
            a(f"buffer_load_dwordx4 v{16+j}, s[12:15], s34 offen offset:{1024*j} {WF_} lds")
        adv()
    def issue2(c):
        if c == 0: a(f"s_add_u32 s96, s96, {64*1280}")
        issue_x(81920 + 8192*c, XF2)
        if c < 9: adv()
    NPRE = cfg.get("npre", 3)
    if cfg.get("ldprio"): a(f"s_setprio {cfg['ldprio']}")
    groups = [[("c", c)] for c in range(10)]
    q = list(range(NX0))
    while q: groups.append([("x", i) for i in q[:3]]); q = q[3:]
    while len(groups) > 10 + NPRE:
        g = groups.pop(); groups[-1] = groups[-1] + g
    pend = []
    def put(g):
        for kind, i in g:
            if kind == "c": issue(i); pend.append(((kind, i), 6))
            else: issue2(i); pend.append(((kind, i), 2))
    def wait_for(item):
        k = [p[0] for p in pend].index(item)
        del pend[:k+1]
        a(f"s_waitcnt vmcnt({sum(p[1] for p in pend)})")
    for i in range(NPRE):
        put(groups.pop(0))
        if i == 0: stamp(a, cfg, 10, grp="st")
    common_srds(a)
    a(f"""
    v_and_b32 v10, 15, v1
    v_lshlrev_b32 v10, 2, v10
    s_lshl_b32 s60, s17, 4
    s_add_u32 s60, s60, s18
    s_lshl_b32 s60, s60, 7
    s_add_u32 s60, s60, {FA_OFF}
    """)
    t = Asm(); attn_setup(t, cfg, early=True)
    su = [l.strip() for l in t.lines if not l.strip().startswith(";")]
    at = cfg.get("esu", [0, 1, 2, 3, 4])
    per = -(-len(su) // len(at))
    def slice_(c):
        if c in at:
            for l in su[:per]: a(l)
            del su[:per]
    slice_(-1)
    for c in range(10):
        wait_for(("c", c))
        if c == 0: stamp(a, cfg, 2)
        if c in (3, 6): stamp(a, cfg, {3: 11, 6: 12}[c], grp="st")
        a("s_barrier")
        if cfg.get("rdyearly") == c: a(f"buffer_load_dword v5, v10, {DBG}, 0 offen sc1"); pend.append((("r", 0), 1))
        if groups: put(groups.pop(0))
        slice_(c)
    if not cfg.get("rdyearly"): a(f"buffer_load_dword v5, v10, {DBG}, 0 offen sc1"); pend.append((("r", 0), 1))
    stamp(a, cfg, 3)
    wait_for(("x", 2))
    a("s_barrier")
    a(f"""
    v_mov_b32 v11, {GO_ADDR}
    v_mov_b32 v7, 0
    ds_write_b32 v11, v7
    s_waitcnt vmcnt(0)
    v_cmp_ne_u32 vcc, 0, v5
    s_waitcnt lgkmcnt(0)
    s_cmp_eq_u64 vcc, -1
    s_cbranch_scc1 L_rdy_l_ok
    """)
    poll(a, "L_rdy_l", 10, DBG, "0")
    if NX0 > 3: a("s_barrier")
    if not cfg.get("flfirst", 1):
        for q in range(NX0, 10): issue2(q)
    a("""
    s_barrier
    s_cmp_eq_u32 s16, 4
    s_cbranch_scc0 L_ld_nofl
    """)
    a(f"""
    s_mov_b64 exec, 1
    buffer_store_dword v{VONE}, v{VZ}, {WS}, s60 offen sc1
    s_mov_b64 exec, -1
    L_ld_nofl:
    """)
    stamp(a, cfg, 4)
    if cfg.get("flfirst", 1):
        for q in range(NX0, 10): issue2(q)
    NX1 = cfg.get("nx1", 10)
    def xbars(extra):
        if NX1 < 10:
            a(f"s_waitcnt vmcnt({2*(10-NX1) + extra})")
            a("s_barrier")
        a(f"s_waitcnt vmcnt({extra})")
        a("s_barrier")
    if cfg.get("prepoll", 0):
        a(f"""
        s_cmp_eq_u32 s16, {cfg.get("epoll", 5)}
        s_cbranch_scc0 L_ld_nopoll
        buffer_load_dword v5, v{VPOLL}, {WS}, s33 offen sc1
        buffer_load_dword v3, v{VPOLL+1}, {WS}, s33 offen sc1
        s_mov_b32 s35, 0
        v_mov_b32 v7, 1
        """)
        xbars(2)
        a("s_branch L_poll1e_chk")
        a("L_ld_nopoll:")
    xbars(0)
    a("s_branch L_early")

def phase1_consumer(a, cfg):
    a.c("---------------- consumer waves (become the late attention waves)")
    XA, WA, ST, XF, AC, WR = 8, 10, 12, 16, 48, 96
    XB, WB = 4, 6
    SFLAG = cfg.get("sflag", 6)
    NX0 = cfg.get("nx0", 7)
    XBAR = {3, NX0, cfg.get("nx1", 10)}
    assert (NX0 == 3 or SFLAG >= 5) and SFLAG <= 2 * NX0 - 1
    a(f"""
    v_and_b32 v2, 15, v1
    v_lshrrev_b32 v3, 4, v1
    v_bfe_u32 v4, v1, 1, 3
    v_xor_b32 v4, v4, v3
    v_lshlrev_b32 v4, 4, v4
    v_lshl_add_u32 v{XA}, v2, 7, v4
    v_xor_b32 v{XA+1}, 64, v{XA}
    v_bfe_u32 v4, v1, 2, 2
    v_lshl_add_u32 v5, v3, 3, v4
    v_and_b32 v6, 1, v3
    v_lshl_or_b32 v4, v6, 2, v4
    s_lshl_b32 s3, s16, 1
    v_xor_b32 v4, s3, v4
    v_lshlrev_b32 v4, 5, v4
    v_lshl_add_u32 v4, v5, 8, v4
    v_and_b32 v5, 3, v1
    v_lshl_add_u32 v4, v5, 3, v4
    v_add_u32 v{WA}, 8192, v4
    v_xor_b32 v{WA+1}, 32, v{WA}
    s_lshl_b32 s60, s17, 2
    s_add_u32 s60, s60, s16
    s_lshl_b32 s60, s60, 4
    s_add_u32 s60, s60, s18
    s_lshl_b32 s60, s60, 7
    s_add_u32 s60, s60, {FB_OFF}
    s_mul_i32 s21, s18, 5120
    s_waitcnt lgkmcnt(0)
    """)
    common_srds(a)
    def xread(stage, ks, tt):
        c, s = divmod(ks, 2)
        if stage == 0: ad, off = (XA, SLOT[c]) if SLOT[c] < 81920 else (XB, SLOT[c] - 81920)
        else: ad, off = (XB, c * 8192) if c < 5 else (XA, (c - 5) * 8192)
        return f"ds_read_b128 {vr(XF+16*(ks&1)+4*tt,4)}, v{ad+s} offset:{off+2048*tt}"
    def wread(ks, ct, u):
        c, s = divmod(ks, 2)
        ad, off = (WA, SLOT[c]) if SLOT[c] < 81920 else (WB, SLOT[c] - 81920)
        if c == 9: off -= 8192
        return f"ds_read_b64_tr_b16 {vr(WR+8*ks+4*ct+2*u,2)}, v{ad+ct} offset:{off+(32*s+4*u)*256}"
    def reads(stage, ks):
        if stage == 0:
            return [wread(ks,0,0), wread(ks,0,1), xread(0,ks,0), wread(ks,1,0), wread(ks,1,1), xread(0,ks,1), xread(0,ks,2), xread(0,ks,3)]
        return [xread(1,ks,tt) for tt in range(4)]
    def mid():
        a("s_barrier")
        for r in reads(1, 0): a(r)
    def gemm(isv, epi):
        t = Asm(); attn_setup(t, cfg, early=False)
        su = [l.strip() for l in t.lines if not l.strip().startswith(";")]
        def filler(ks, n):
            while n and su:
                m = re.match(r"v_\w+ v\[?(\d+)", su[0])
                if m and int(m.group(1)) >= WR + 8 * ks: return
                a(su.pop(0)); n -= 1
        for i in range(2):
            a(f"v_add_u32 v{XB+i}, 81920, v{XA+i}")
            a(f"v_add_u32 v{WB+i}, 81920, v{WA+i}")
        a("s_barrier")
        stamp(a, cfg, 2)
        a(".p2align 3")
        for r in reads(0, 0): a(r)
        for stage in range(2):
            for ks in range(20):
                fl = stage == 1 and ks == SFLAG
                nxt = []
                bar = False
                if ks < 19:
                    nxt = reads(stage, ks + 1)
                    if ks % 2 == 1: bar = stage == 0 or ((ks + 1) // 2) in XBAR
                if fl and bar and (ks + 1) // 2 != NX0:
                    a("s_waitcnt lgkmcnt(0)"); a("s_barrier"); a("s_waitcnt vmcnt(0)"); a("s_barrier")
                elif fl and bar:
                    a("s_waitcnt vmcnt(0) lgkmcnt(0)"); a("s_barrier"); a("s_barrier"); a("s_nop 0")
                else:
                    a("s_waitcnt vmcnt(0) lgkmcnt(0)" if fl else "s_waitcnt lgkmcnt(0)")
                    if bar or fl: a("s_barrier")
                    elif stage == 0 or ks < cfg.get("su0", 5): a("s_nop 0")
                if fl: stamp(a, cfg, 4)
                if stage == 0 and ks == 13:
                    for i in range(2): a(f"v_add_u32 v{WB+i}, 8192, v{WB+i}")
                if stage == 1 and ks in (5, 13, 19): stamp(a, cfg, {5: 10, 13: 11, 19: 12}[ks], grp="p1")
                per = 2 if stage == 0 else 1
                for i in range(8):
                    tt, ct = i >> 1, (i & 1) ^ ((i >> 1) & 1)
                    acc = AC + 8 * tt + 4 * ct
                    x, w = vr(XF+16*(ks&1)+4*tt, 4), vr(WR+8*ks+4*ct, 4)
                    A, B = (x, w) if isv else (w, x)
                    c = "0" if ks == 0 else vr(acc, 4)
                    a(f"v_mfma_f32_16x16x32_bf16 {vr(acc,4)}, {A}, {B}, {c}")
                    if stage == 1 and ks >= cfg.get("su0", 5) and su and su[0].startswith("s_"): filler(ks, 1)
                    for r in nxt[per*i:per*i+per]: a(r)
                    if stage == 1 and ks >= cfg.get("su0", 5): filler(ks, 1 if nxt[i:i+1] else 2)
            if stage == 0:
                stamp(a, cfg, 3)
                a(f"v_add_u32 v{XA}, 122880, v{XA}")
                a(f"v_add_u32 v{XA+1}, 122880, v{XA+1}")
                epi(0)
                stamp(a, cfg, 8, grp="p1")
                if cfg.get("ackdiag"): a("s_waitcnt vmcnt(0)")
                if cfg.get("x0at", 99) > 7: mid()
                stamp(a, cfg, 9, grp="p1")
                a(".p2align 3")
            else:
                a("s_nop 1")
                epi(1)
                filler(20, 999)
    a("""
    s_cmp_lt_u32 s17, 10
    s_cbranch_scc0 L_qkv_v
    """)
    a.c("Q/K tiles: G = (cb%5)*32 + 8w + 4ct + g ; head = G/5 ; pos = G%5")
    a(f"""
    s_cmp_lt_u32 s17, 5
    s_cselect_b32 s25, 0, 81920
    s_cselect_b32 s12, {CSCALE}, 1.0
    s_cselect_b32 s23, 0, {KV_OFF}
    s_cselect_b32 s3, 0, 5
    s_add_u32 s24, s25, {HQ-2560}
    s_max_u32 s22, s25, 2560
    s_mov_b32 s13, s12
    s_add_u32 s21, s21, s23
    s_add_u32 s62, s22, s21
    s_sub_u32 s3, s17, s3
    s_lshl_b32 s3, s3, 2
    s_add_u32 s3, s3, s16
    s_lshl_b32 s3, s3, 3
    v_add_u32 v6, s3, v3
    v_lshlrev_b32 v4, 3, v2
    """)
    for ct in range(2):
        a(f"""
        v_add_u32 v7, {4*ct}, v6
        v_mul_u32_u24 v5, 52429, v7
        v_lshrrev_b32 v5, 18, v5
        v_lshl_add_u32 v7, v7, 9, v4
        v_mad_u32_u24 v{ST+ct}, v5, s24, v7
        """)
    late_qk, late_v = [], []
    def epi_qk(stage):
        for i in range(8):
            tt, ct = i >> 1, (i & 1) ^ ((i >> 1) & 1)
            acc = AC + 8 * tt + 4 * ct
            d = 80 + 2 * i
            a(f"v_pk_mul_f32 {vr(acc,2)}, {vr(acc,2)}, s[12:13]")
            a(f"v_pk_mul_f32 {vr(acc+2,2)}, {vr(acc+2,2)}, s[12:13]")
            a(f"v_cvt_pk_bf16_f32 v{d}, v{acc}, v{acc+1}")
            a(f"v_cvt_pk_bf16_f32 v{d+1}, v{acc+2}, v{acc+3}")
            st = f"buffer_store_dwordx2 {vr(d,2)}, v{ST+ct}, {WS}, s{62 if stage else 21} offen offset:{128*tt} sc1"
            if stage == 0: a(st)
            else: late_qk.append(st)
            if stage == 0 and i == cfg.get("x0at", 99): mid()
    def tail(stores, name):
        stamp(a, cfg, 5)
        a("s_barrier")
        a(f"{name}:")
        for st in stores: a(st)
        a("s_mov_b32 s63, 1")
        a("s_branch L_late_st")
    gemm(False, epi_qk)
    tail(late_qk, "L_end_qk")
    page(a, cfg, "v")
    a("L_qkv_v:")
    a.c("V tiles: col = (cb-10)*128 + 32w + 16ct + n ; head = col/20 ; d = col%20")
    a(f"""
    s_sub_u32 s3, s17, 10
    s_lshl_b32 s3, s3, 2
    s_add_u32 s3, s3, s16
    s_lshl_b32 s3, s3, 5
    v_add_u32 v6, s3, v2
    s_add_u32 s21, s21, {KV_OFF+2560}
    s_add_u32 s62, s21, 81920
    v_mul_u32_u24 v4, 320, v3
    s_mov_b32 s24, {HKV - 320}
    """)
    for ct in range(2):
        a(f"""
        v_add_u32 v7, {16*ct}, v6
        v_mul_u32_u24 v5, 13108, v7
        v_lshrrev_b32 v5, 18, v5
        v_lshl_add_u32 v7, v7, 4, v4
        v_mad_u32_u24 v{ST+ct}, v5, s24, v7
        """)
    def epi_v(stage):
        a("s_nop 2")
        for P in range(2):
            for ct in range(2):
                d = 80 + 8 * P + 4 * ct
                for ab in range(2):
                    acc = AC + 8 * (2 * P + ab) + 4 * ct
                    a(f"v_cvt_pk_bf16_f32 v{d+2*ab}, v{acc}, v{acc+1}")
                    a(f"v_cvt_pk_bf16_f32 v{d+2*ab+1}, v{acc+2}, v{acc+3}")
                st = f"buffer_store_dwordx4 {vr(d,4)}, v{ST+ct}, {WS}, s{62 if stage else 21} offen offset:{1280*P} sc1"
                if stage == 0: a(st)
                else: late_v.append(st)
                if stage == 0 and 2 * P + ct == cfg.get("x0at", 99) // 2: mid()
    gemm(True, epi_v)
    tail(late_v, "L_end_v")

SA, SB = 178, 210
O0, O1 = 146, 162
QM0, QM1, QT = 242, 246, 250
KM, KT = 16, 24
VV, SENT, WOA = 96, 112, 116
VL16, VQ, VQT, VPOLL = 121, 122, 123, 124
VOM, VOT, VXW, VXR, VONE, VZ = 126, 127, 128, 129, 130, 131
IDX, VKE, VKO, VT, VV0, VV1 = 132, 133, 134, 135, 136, 137

P3 = 138
PK = 70
def p3_kh(a, cfg, d):
    a(f"s_lshr_b32 s{d}, s16, 2")
    if cfg.get("khswap"):
        a(f"""
        s_bfe_u32 s3, s2, 0x10005
        s_xor_b32 s{d}, s{d}, s3
        """)
def p3_setup(a, cfg):
    p3_kh(a, cfg, 30)
    a(f"""
    s_and_b32 s31, s16, 3
    s_mul_i32 s3, s30, 51200
    v_lshrrev_b32 v2, 5, v1
    v_bfe_u32 v3, v1, 4, 1
    v_bfe_u32 v14, v1, 2, 2
    v_mul_u32_u24 v15, 20, v2
    v_lshl_add_u32 v15, v3, 2, v15
    v_add_u32 v15, v15, v14
    v_mul_u32_u24 v15, 160, v15
    v_and_b32 v2, 3, v1
    v_lshl_add_u32 v2, v2, 3, s3
    v_add_u32 v{P3}, v15, v2
    v_lshrrev_b32 v3, 4, v1
    v_mul_u32_u24 v15, 20, v3
    v_add3_u32 v15, v15, 16, v14
    v_mul_u32_u24 v15, 160, v15
    v_add_u32 v{P3+1}, v15, v2
    s_mul_i32 s3, s31, 5120
    s_add_u32 s3, s3, 143360
    v_add_u32 v{P3+2}, s3, v{VL16}
    s_mul_i32 s3, s31, 3584
    s_add_u32 s3, s3, 102400
    v_and_b32 v2, 15, v1
    v_mul_u32_u24 v2, 176, v2
    v_lshl_add_u32 v2, v3, 3, v2
    v_add_u32 v{P3+3}, s3, v2
    s_and_b32 s40, s2, 7
    s_lshl_b32 s41, s40, 2
    s_bfe_u32 s30, s2, 0x20003
    s_add_u32 s41, s41, s30
    s_lshl_b32 s40, s40, 12
    s_add_u32 s40, s40, {F2_OFF}
    s_lshl_b32 s41, s41, 2
    s_add_u32 s41, s41, s31
    s_mul_i32 s41, s41, 20480
    v_lshrrev_b32 v2, 1, v1
    v_lshlrev_b32 v{P3+7}, 7, v2
    """)
    for i in range(5):
        a(f"""
        v_add_u32 v2, {64*i}, v1
        v_mul_u32_u24 v3, 6554, v2
        v_lshrrev_b32 v3, 16, v3
        v_mul_u32_u24 v14, {1280-160}, v3
        v_lshl_add_u32 v{WOA+i}, v2, 4, v14
        """)
        if i < 3:
            a(f"""
            v_add_u32 v14, v2, v3
            v_lshl_add_u32 v{P3+4+i}, v14, 4, s3
            """)

def attn_setup(a, cfg, early, keep5=False):
    late = 0 if early else 1
    a.c("attention ids: s17=head s18=q pair s19=key half s21=KV base of head")
    a(f"""
    s_and_b32 s17, s2, 7
    s_lshl_b32 s17, s17, 2
    s_lshr_b32 s17, 0x75643120, s17
    s_and_b32 s17, s17, 7
    s_lshl_b32 s17, s17, 2
    s_bfe_u32 s3, s2, 0x20003
    s_add_u32 s17, s17, s3
    s_lshr_b32 s29, s2, 5
    s_lshl_b32 s18, s29, 2
    s_and_b32 s3, s16, 2
    s_add_u32 s18, s18, s3
    s_add_u32 s18, s18, {late}
    s_and_b32 s19, s16, 1
    s_mul_i32 s20, s19, 5120
    v_and_b32 v2, 31, v1
    v_lshrrev_b32 v3, 5, v1
    v_lshlrev_b32 v14, 3, v2
    v_lshl_add_u32 v{VQ}, v3, 9, v14
    v_add_u32 v{VKE}, s20, v{VQ}
    v_add_u32 v{VKO}, 256, v{VKE}
    v_lshlrev_b32 v14, 3, v1
    v_add_u32 v{VT}, s20, v14
    s_lshl_b32 s3, s19, 8
    v_xor_b32 v{VQT}, s3, v14
    v_mul_u32_u24 v15, 320, v3
    v_lshl_add_u32 v15, v2, 4, v15
    s_add_u32 s3, s20, 2560
    v_add_u32 v{VV0}, s3, v15
    v_add_u32 v{VV1}, 40960, v{VV0}
    v_lshlrev_b32 v{VL16}, 4, v1
    v_mov_b32 v{IDX}, 0xdddddddd
    s_mov_b32 s24, 0x000fffff
    s_mov_b32 s25, 0x000fffff
    v_cmp_eq_u32 vcc, 20, v2
    v_mov_b32 v15, 0x3f803f80
    s_mul_i32 s21, s17, {HKV}
    v_cndmask_b32 v{VV}, 0, v15, vcc
    s_add_u32 s21, s21, {KV_OFF}
    """)
    a(f"v_mov_b32 v{VV+1}, v{VV}")
    for i in range(1, 8): a(f"v_mov_b64 {vr(VV+2*i,2)}, {vr(VV,2)}")
    a.c("s22/s23: Q soffsets role0/role1, s26: Q pair base ; s27: first token block of this wave's K/V units ; s28: dma lds dest")
    a(f"""
    s_mul_i32 s26, s18, 2560
    s_mul_i32 s3, s17, {HQ}
    s_add_u32 s26, s26, s3
    s_lshl_b32 s3, s19, 8
    s_add_u32 s22, s26, s3
    s_xor_b32 s3, s3, 256
    s_add_u32 s23, s26, s3
    s_and_b32 s28, s16, 3
    s_mul_i32 s27, s29, {cfg.get("krot", 0)}
    s_add_u32 s27, s27, s28
    s_mul_i32 s28, s28, 5120
    s_add_u32 s28, s28, {late*81920}
    s_add_u32 s61, s21, {late*81920}
    """)
    a.c("O tile of this wave = 2*pair + (1^kh): s36/s37 store offsets, s38 workgroup flag, s39 wave flag")
    a(f"""
    s_lshl_b32 s30, s18, 1
    s_xor_b32 s31, s19, 1
    s_add_u32 s30, s30, s31
    s_mul_i32 s37, s30, 40960
    s_add_u32 s37, s37, {O_OFF}
    s_lshl_b32 s36, s17, 9
    s_add_u32 s36, s36, s37
    s_lshl_b32 s3, s17, 7
    s_add_u32 s37, s37, s3
    s_add_u32 s37, s37, 16384
    s_lshr_b32 s38, s2, 5
    s_lshl_b32 s38, s38, 12
    s_add_u32 s38, s38, s3
    s_add_u32 s38, s38, {F2_OFF}
    s_add_u32 s39, s38, {F3_OFF - F2_OFF}
    v_bfe_u32 v2, v1, 4, 1
    v_mul_u32_u24 v2, 20480, v2
    v_and_b32 v3, 15, v1
    v_lshl_add_u32 v{VOT}, v3, 3, v2
    v_lshl_add_u32 v2, v3, 4, v2
    v_lshrrev_b32 v3, 5, v1
    v_lshl_add_u32 v{VOM}, v3, 8, v2
    s_mul_i32 s3, s16, 3072
    s_add_u32 s3, s3, 102400
    v_add_u32 v{VXW}, s3, v{VL16}
    s_xor_b32 s3, s16, 1
    s_mul_i32 s3, s3, 3072
    s_add_u32 s3, s3, 102400
    v_add_u32 v{VXR}, s3, v{VL16}
    v_mov_b64 {vr(SENT,2)}, -1
    v_mov_b64 {vr(SENT+2,2)}, -1
    v_mov_b32 v{VONE}, 1
    v_mov_b32 v{VZ}, 0
    """)
    p3_setup(a, cfg)
    sh, sec = (7, 5) if early else (5, 20)
    a.c("poll addresses of the polling wave: K/V producers of all 16 token blocks, Q producers of both pairs")
    a(f"""
    s_mul_i32 s30, s17, 20
    s_add_u32 s31, s30, 19
    s_lshr_b32 s30, s30, {sh}
    s_lshr_b32 s31, s31, {sh}
    s_sub_u32 s31, s31, s30
    v_and_b32 v2, 1, v1
    v_mul_u32_u24 v2, s31, v2
    v_add_u32 v2, s30, v2
    v_lshrrev_b32 v14, 5, v1
    v_mul_u32_u24 v3, {sec}, v14
    v_add3_u32 v3, v2, v3, {sec}
    v_bfe_u32 v15, v1, 1, 4
    v_lshl_add_u32 v3, v3, 4, v15
    v_lshlrev_b32 v{VPOLL}, 7, v3
    v_bfe_u32 v2, v1, 4, 1
    v_mul_u32_u24 v2, s31, v2
    v_add_u32 v2, s30, v2
    s_lshr_b32 s3, s2, 5
    s_lshl_b32 s3, s3, 1
    v_lshl_add_u32 v2, v2, 4, v14
    v_add_u32 v2, s3, v2
    v_lshlrev_b32 v{VPOLL+1}, 7, v2
    s_mov_b32 s33, {FA_OFF if early else FB_OFF}
    """)
    for i in range(16): a(f"v_mov_b64 {vr(O0+2*i,2)}, 0")

def wait_stage(a, cfg, tag, wave):
    a(f"""
    s_mov_b32 s35, 0
    v_mov_b32 v7, 1
    s_cmp_eq_u32 s16, {wave}
    s_cbranch_scc0 L_gw{tag}
    """)
    paced_poll(a, cfg, f"L_poll1{tag}", [VPOLL, VPOLL+1], "s33")
    a(f"""
    ds_write_b32 v11, v7
    s_branch L_gw{tag}_ok
    L_gw{tag}:
    {"s_sleep " + str(cfg.get('gs' + tag, 1)) if cfg.get('gs' + tag, 1) else ""}
    ds_read_b32 v7, v11
    s_waitcnt lgkmcnt(0)
    v_readfirstlane_b32 s34, v7
    s_cmp_lg_u32 s34, 0
    """)
    spin_tail(a, f"L_gw{tag}", mult=16)

def kread(t):
    tl = t & 15
    o = 20 * (tl >> 1)
    return f"ds_read2st64_b64 {vr(KM+4*(t&1),4)}, v{VKO if t & 1 else VKE} offset0:{o} offset1:{o+2}"
def tread(b):
    o = 40 * (b & 3)
    return f"ds_read2st64_b64 {vr(KT+4*(b&1),4)}, v{VT} offset0:{o+4} offset1:{o+24}"
def vread(t, f):
    tl = t & 15
    ad = VV0 if tl < 8 else VV1
    return f"ds_read_b128 {vr(VV+8*(t&1)+4*f,4)}, v{ad} offset:{10240*((tl>>1)&3)+1280*(t&1)+640*f}"
def Tm(t, dst):
    b, T = divmod(t, 4)
    return f"v_mfma_f32_32x32x4_2b_bf16 {vr(dst,32)}, {vr(KT+4*(b&1)+2*(T>>1),2)}, {vr(QT,2)}, 0 cbsz:1 abid:{T&1}"
def Mm(t, dst, r):
    return f"v_mfma_f32_32x32x16_bf16 {vr(dst+16*r,16)}, {vr(KM+4*(t&1),4)}, {vr(QM1 if r else QM0,4)}, {vr(dst+16*r,16)}"
def Pm(o, t, f, s):
    return f"v_smfmac_f32_32x32x32_bf16 {vr(o,16)}, {vr(VV+8*(t&1)+4*f,4)}, {vr(s,8)}, v{IDX}"

def qloads(a):
    a(f"""
    buffer_load_dwordx2 {vr(QT,2)}, v{VQT}, {WS}, s26 offen offset:2048 sc1
    buffer_load_dwordx2 {vr(QM0,2)}, v{VQ}, {WS}, s22 offen sc1
    buffer_load_dwordx2 {vr(QM0+2,2)}, v{VQ}, {WS}, s22 offen offset:1024 sc1
    buffer_load_dwordx2 {vr(QM1,2)}, v{VQ}, {WS}, s23 offen sc1
    buffer_load_dwordx2 {vr(QM1+2,2)}, v{VQ}, {WS}, s23 offen offset:1024 sc1
    """)
def kv_dma(i, back=0):
    g = [f"""
        s_add_u32 s3, s27, {4*i}
        s_and_b32 s3, s3, 15
        s_mul_i32 s3, s3, 5120
        s_sub_u32 s3, s3, {back}
        s_add_u32 m0, s28, {(i*20480 - back) & 0xffffffff}
        s_add_u32 s29, s61, s3
        buffer_load_dwordx4 v{VL16}, {WS}, s29 offen sc1 lds"""]
    for j in range(1, 4):
        g.append(f"buffer_load_dwordx4 v{VL16}, {WS}, s29 offen offset:{1024*j} sc1 lds")
    g.append(f"""
        s_add_u32 m0, s28, {(i*20480+4096 - back) & 0xffffffff}
        s_add_u32 s29, s29, 4096
        buffer_load_dwordx4 v{VL16}, {WS}, s29 offen sc1 lds""")
    return g
def wo_dma(nper):
    g = []
    for p in range(nper):
        for i in range(5):
            pre = ""
            if i == 0:
                pre = f"""
                s_add_u32 s31, s30, {p*8*32*1280}
                """
            g.append(pre + f"""
                s_add_u32 m0, s32, {p*8*5120 + 1024*i}
                s_nop 0
                buffer_load_dwordx4 v{WOA+i}, {WO}, s31 offen lds
                s_nop 0""")
    return g

def attn_loop(a, cfg, early):
    tag = "e" if early else "l"
    direct = early and cfg.get("direct", 0)
    wo_ids = f"""
    s_lshr_b32 s3, s2, 5
    s_mul_i32 s30, s3, 160
    s_mul_i32 s3, s16, {32*1280}
    s_add_u32 s30, s30, s3
    s_mul_i32 s32, s16, 5120
    """
    if direct:
        a("s_mov_b64 exec, s[24:25]"); a(vread(0, 0)); a(vread(0, 1)); a("s_mov_b64 exec, -1")
        a(kread(1))
        a(f"ds_read_b64 {vr(KT+2,2)}, v{VT} offset:{24*512}")
    else:
        a(f"s_setprio {3 if early else 2}")
        a(tread(0)); a(kread(0)); a(kread(1))
        a("s_mov_b64 exec, s[24:25]"); a(vread(0, 0)); a(vread(0, 1)); a("s_mov_b64 exec, -1")
        a.c("wo dma: s30 source, s32 lds dest")
        a(wo_ids)
        a(f"s_waitcnt lgkmcnt({0 if cfg.get('stamp') else 4})")
        if cfg.get("lp", {}).get("pro"): a("s_memtime s[70:71]")
        a(Tm(0, SA)); a("s_nop 15"); a("s_nop 1"); a("s_waitcnt lgkmcnt(3)")
        a(Mm(0, SA, 0)); a(Mm(0, SA, 1)); a("s_nop 10")
    dma = {}
    TB = cfg.get("tb", 14) if early else 14
    be, bl = cfg.get("be", [18, 18, 26]), cfg.get("bl", [18, 18, 26])
    assert (be[0] == be[1]) == (bl[0] == bl[1])
    assert be[0] <= 18 and min(be[1], bl[1]) >= 15 and min(be[2], bl[2]) >= 25
    if early:
        B2, C1, C2 = be
        bars = {2: "vmcnt(0)", 6: None, TB: None, C1: None, C2: None}; bars[B2] = "vmcnt(0)"; assert B2 == C1
        if cfg.get("a4"): bars[cfg["a4"]] = None
        prio = cfg.get("prio_e", {str(TB): 1, "18": 3, "24": 1, "26": 3, "29": 2, "31": 1})
    else:
        B2, C1, C2 = bl
        bars = {C1: None, C2: None}
        bars[B2] = "vmcnt(0)"
        b0 = cfg.get("bl0", 0)
        if b0 or cfg.get("u1in", 1): bars[b0] = None
        sp = cfg.get("spread", 2)
        q = (kv_dma(1) if cfg.get("u1in", 1) else []) + kv_dma(2) + kv_dma(3); t0 = b0 + cfg.get("sp0", 0)
        while q: dma[t0] = q[:sp]; q = q[sp:]; t0 += 1
        assert t0 < B2
        assert B2 >= b0 + 3
        prio = cfg.get("prio_l", {"18": 2, "25": 0, "26": 3, "29": 2, "30": 1, "31": 0})
    prio = {int(k): v for k, v in prio.items()}
    wo = wo_dma(2 if early else 3)
    for i in range(5): dma[C1 + i] = wo[2*i:2*i+2]
    for i in range(3): dma[C2 + i] = wo[10+2*i:12+2*i]
    if cfg.get("opt", 1):
        ts = cfg.get("tsent", [16, 9])[0 if early else 1]
        assert not dma.get(ts)
        dma[ts] = [f"buffer_store_dwordx4 {vr(SENT,4)}, v{VOM}, {WS}, s36 offen sc1",
            f"""s_mov_b32 exec_hi, 0
            buffer_store_dwordx2 {vr(SENT,2)}, v{VOT}, {WS}, s37 offen sc1
            s_mov_b32 exec_hi, -1"""]
    if early:
        def w4(body, lab): return f"s_cmp_eq_u32 s16, 4\ns_cbranch_scc0 {lab}\n{body}\n{lab}:"
        assert not dma.get(C1 + 5) and not dma.get(28)
        dma[C1 + 5] = [w4(f"""s_add_u32 s3, s38, {F4_OFF - F2_OFF}
            s_mov_b64 exec, 1
            buffer_store_dword v{VONE}, v{VZ}, {WS}, s3 offen sc1
            s_mov_b64 exec, -1""", "L_r_set")]
        assert not dma.get(27) and C2 <= 27
        dma[27] = [f"v_mov_b32 v11, {CNT_ADDR}\nds_write_b32 v11, v{VZ}"]
        dma[28] = [w4(f"""s_add_u32 s33, s40, {F4_OFF - F2_OFF}
            buffer_load_dword v5, v{P3+7}, {WS}, s33 offen sc1""", "L_r_get")]
    nt = cfg.get("nt", ["e", 31, 0])
    if cfg.get("notice", 9) == 4 and nt[0] == tag:
        tn = Asm(); notice(tn, dict(cfg, nw=4 if early else 0), False)
        assert not dma.get(nt[1]) and nt[1] > C2
        dma[nt[1]] = ["" if i != nt[2] else "\n".join(tn.lines) for i in range(5)]
    a(".p2align 3")
    for t in range(32):
        cur, nxt = (SA, SB) if t % 2 == 0 else (SB, SA)
        e = iter(range(32))
        def E(n):
            for _ in range(n):
                i = next(e); a(f"v_exp_f32 v{cur+i}, v{cur+i}")
        dq = list(dma.get(t, []))
        def D(n):
            for _ in range(n):
                if dq: a(dq.pop(0))
        many = len(dq) > 2
        a.c(f"step {t}")
        E(2)
        if t > 0: a(Pm(O1, t-1, 1, nxt+24))
        vm = bars.get(t)
        if direct and t == 0: a("s_nop 0")
        else: a(f"s_waitcnt {vm + ' ' if vm else ''}lgkmcnt(0)")
        n4 = 1
        lp = cfg.get("lp", {}).get(tag + str(t))
        if lp and lp[0]: a(f"s_memtime s[{64+2*lp[0]}:{65+2*lp[0]}]")
        if t in bars: a("s_barrier"); n4 += 1
        if lp and lp[1]: a(f"s_memtime s[{64+2*lp[1]}:{65+2*lp[1]}]")
        if t in prio: a(f"s_setprio {prio[t]}"); n4 += 1
        if n4 % 2: a("s_nop 0")
        if t == 14:
            for r in (VKE, VKO, VT, VV0): a(f"v_add_u32 v{r}, 81920, v{r}")
        if t == 16: a(f"v_add_u32 v{VV1}, 81920, v{VV1}")
        if TB == 15 and t == 15: a(tread(4)); a(kread(16))
        if t + 2 < 32 and not (TB == 15 and t == 14): a(kread(t+2))
        if many: D(1)
        E(4)
        if TB == 15 and t == 15: a(f"s_waitcnt lgkmcnt({0 if cfg.get('lp') else 1})"); a("s_nop 0")
        if t < 31: a(Tm(t+1, nxt))
        E(8)
        if direct and t == 0: a(f"s_waitcnt lgkmcnt({0 if cfg.get('stamp') else 1})"); a("s_nop 0")
        a(Pm(O0, t, 0, cur))
        one = early and t < cfg.get("vone", 16)
        if one: a("s_mov_b64 exec, s[24:25]"); a(vread(t+1, 0)); a(vread(t+1, 1)); a("s_mov_b64 exec, -1")
        elif t < 31: a("s_mov_b64 exec, s[24:25]"); a(vread(t+1, 0)); a("s_mov_b64 exec, -1")
        if many: D(1)
        E(4)
        a(Pm(O0, t, 1, cur+8))
        if t < 31 and not one: a("s_mov_b64 exec, s[24:25]"); a(vread(t+1, 1)); a("s_mov_b64 exec, -1")
        if many: D(1)
        E(4)
        if t < 31: a(Mm(t+1, nxt, 0))
        D(1)
        E(4)
        a(Pm(O1, t, 0, cur+16))
        if t % 4 == 2 and t // 4 < 7 and not (TB == 15 and t == 14): a(tread(t//4+1))
        D(1)
        E(4)
        if t < 31: a(Mm(t+1, nxt, 1))
        else:
            a.c("hand the role-0 tile to the partner wave (other key half)")
            for i in (2, 0, 1): a(f"ds_write_b128 v{VXW}, {vr(O0+4*i,4)} offset:{1024*i}")
        E(2)
        assert not dq

def attn_epilogue(a, cfg):
    stamp(a, cfg, 8)
    if cfg.get("lp"): a("s_memtime s[88:89]")
    a(f"""
    s_setprio 0
    s_nop 0
    {Pm(O1, 31, 1, SB+24)}
    """)
    if cfg.get("notice", 9) == 3:
        a("s_waitcnt vmcnt(0)"); notice(a, cfg, False); a("s_waitcnt lgkmcnt(0)")
    elif cfg.get("notice", 9) == 4:
        a(f"""
        s_waitcnt vmcnt(1) lgkmcnt(0)
        s_cmp_eq_u32 s16, {4 if cfg.get("nt", ["e", 31, 0])[0] == "e" else 0}
        s_cbranch_scc1 L_epi_w
        s_waitcnt vmcnt(0)
        L_epi_w:
        """)
    else: a("s_waitcnt vmcnt(0) lgkmcnt(0)")
    a(f"""
    s_barrier
    ds_read_b128 {vr(O0+8,4)}, v{VXR} offset:2048
    ds_read_b128 {vr(O0,4)}, v{VXR}
    ds_read_b128 {vr(O0+4,4)}, v{VXR} offset:1024
    """)
    if cfg.get("opt", 1) and cfg.get("notice", 9) == 2: notice(a, cfg, False)
    a("""
    s_nop 6
    s_waitcnt lgkmcnt(2)
    """)
    a(f"""
    v_pk_add_f32 {vr(O1+8,2)}, {vr(O1+8,2)}, {vr(O0+8,2)}
    v_pk_add_f32 {vr(O1+10,2)}, {vr(O1+10,2)}, {vr(O0+10,2)}
    v_mov_b32 v7, v{O1+8}
    v_mov_b32 v9, v{O1+8}
    s_mov_b32 s30, 0x21800000
    s_waitcnt lgkmcnt(1)
    v_permlane32_swap_b32 v7, v9
    v_pk_add_f32 {vr(O1,2)}, {vr(O1,2)}, {vr(O0,2)}
    v_pk_add_f32 {vr(O1+2,2)}, {vr(O1+2,2)}, {vr(O0+2,2)}
    s_mov_b32 s31, 0x5d800000
    s_waitcnt lgkmcnt(0)
    v_pk_add_f32 {vr(O1+4,2)}, {vr(O1+4,2)}, {vr(O0+4,2)}
    v_pk_add_f32 {vr(O1+6,2)}, {vr(O1+6,2)}, {vr(O0+6,2)}
    """)
    a.c("run-time check of the shift-free softmax: row sum in [2^-60, 2^60], finite accumulators; else redo with the true row max")
    a(f"""
    v_cmp_le_f32 s[32:33], s30, v9
    v_cmp_ge_f32 s[34:35], s31, v9
    v_pk_mul_f32 v[10:11], {vr(O1+8,2)}, 0
    """)
    for i in (10, 0, 2, 4, 6): a(f"v_pk_fma_f32 v[10:11], {vr(O1+i,2)}, 0, v[10:11]")
    a(f"""
    s_and_b64 s[32:33], s[32:33], s[34:35]
    v_cmp_o_f32 vcc, v10, v11
    v_rcp_f32 v8, v9
    s_and_b64 s[32:33], s[32:33], vcc
    s_cmp_eq_u64 s[32:33], -1
    s_cbranch_scc0 L_attn_slow
    L_attn_fin:
    """)
    for i in range(4): a(f"v_pk_mul_f32 {vr(O1+2*i,2)}, {vr(O1+2*i,2)}, v[8:9] op_sel_hi:[1,0]")
    for i in range(4): a(f"v_cvt_pk_bf16_f32 v{PK+i}, v{O1+2*i}, v{O1+2*i+1}")
    a(f"buffer_store_dwordx4 {vr(PK,4)}, v{VOM}, {WS}, s36 offen sc1")
    for i in range(4, 6): a(f"v_pk_mul_f32 {vr(O1+2*i,2)}, {vr(O1+2*i,2)}, v[8:9] op_sel_hi:[1,0]")
    for i in range(4, 6): a(f"v_cvt_pk_bf16_f32 v{PK+i}, v{O1+2*i}, v{O1+2*i+1}")
    a(f"""
    s_mov_b32 exec_hi, 0
    buffer_store_dwordx2 {vr(PK+4,2)}, v{VOT}, {WS}, s37 offen sc1
    s_mov_b32 exec_hi, -1
    """)
    stamp(a, cfg, 9)
    if cfg.get("opt", 1) and cfg.get("notice", 9) < 2: notice(a, cfg, cfg.get("notice", 9) == 0)

def notice(a, cfg, bar):
    a.c("early notice: readers check the tiles for the filler words written before and fall back to the acknowledged flags")
    if bar: a("s_barrier")
    a(f"""
    s_cmp_eq_u32 s16, {cfg.get("nw", 4)}
    s_cbranch_scc0 L_nonotice
    s_mov_b64 exec, 1
    buffer_store_dword v{VONE}, v{VZ}, {WS}, s38 offen sc1
    s_mov_b64 exec, -1
    L_nonotice:
    """)

def attn_slow(a):
    a("L_attn_slow:")
    a(f"""
    v_and_b32 v2, 31, v1
    v_lshlrev_b32 v14, 3, v2
    v_lshrrev_b32 v3, 5, v1
    v_mul_u32_u24 v3, 320, v3
    v_lshl_add_u32 v15, v2, 4, v3
    v_mov_b32 v10, 0xff800000
    s_mov_b32 s34, 0
    """)
    for i in range(16): a(f"v_mov_b32 v{O1+i}, 0")
    a(f"""
    L_slow_pass:
    s_mov_b32 s35, 0
    L_slow_tile:
    s_lshr_b32 s30, s35, 1
    s_mul_i32 s30, s30, 5120
    s_add_u32 s30, s30, s21
    s_and_b32 s3, s35, 1
    s_mul_i32 s31, s3, 1280
    s_add_u32 s31, s31, s30
    s_lshl_b32 s3, s3, 8
    s_add_u32 s30, s30, s3
    buffer_load_dwordx2 {vr(KT,2)}, v14, {WS}, s30 offen offset:2048 sc1
    buffer_load_dwordx2 {vr(KM,2)}, v{VQ}, {WS}, s30 offen sc1
    buffer_load_dwordx2 {vr(KM+2,2)}, v{VQ}, {WS}, s30 offen offset:1024 sc1
    s_mov_b64 exec, s[24:25]
    buffer_load_dwordx4 {vr(VV,4)}, v15, {WS}, s31 offen offset:2560 sc1
    buffer_load_dwordx4 {vr(VV+4,4)}, v15, {WS}, s31 offen offset:3200 sc1
    s_mov_b64 exec, -1
    s_waitcnt vmcnt(0)
    v_mfma_f32_32x32x4_2b_bf16 {vr(SA,32)}, {vr(KT,2)}, {vr(QT,2)}, 0
    s_nop 15
    s_nop 3
    v_mfma_f32_32x32x16_bf16 {vr(SA+16,16)}, {vr(KM,4)}, {vr(QM1,4)}, {vr(SA+16,16)}
    s_nop 15
    s_cmp_eq_u32 s34, 0
    s_cbranch_scc0 L_slow_pv
    """)
    for i in range(8): a(f"v_max3_f32 v10, v10, v{SA+16+2*i}, v{SA+17+2*i}")
    a("s_branch L_slow_next")
    a("L_slow_pv:")
    for i in range(16): a(f"v_sub_f32 v{SA+16+i}, v{SA+16+i}, v10")
    for i in range(16): a(f"v_exp_f32 v{SA+16+i}, v{SA+16+i}")
    a(f"""
    s_nop 3
    v_smfmac_f32_32x32x32_bf16 {vr(O1,16)}, {vr(VV,4)}, {vr(SA+16,8)}, v{IDX}
    v_smfmac_f32_32x32x32_bf16 {vr(O1,16)}, {vr(VV+4,4)}, {vr(SA+24,8)}, v{IDX}
    s_nop 15
    L_slow_next:
    s_add_u32 s35, s35, 1
    s_cmp_lt_u32 s35, 64
    s_cbranch_scc1 L_slow_tile
    s_cmp_eq_u32 s34, 0
    s_cbranch_scc0 L_slow_done
    v_mov_b32 v11, v10
    s_nop 1
    v_permlane32_swap_b32 v10, v11
    s_nop 1
    v_max_f32 v10, v10, v11
    s_mov_b32 s34, 1
    s_branch L_slow_pass
    L_slow_done:
    v_mov_b32 v7, v{O1+8}
    v_mov_b32 v9, v{O1+8}
    s_nop 1
    v_permlane32_swap_b32 v7, v9
    s_nop 1
    v_rcp_f32 v8, v9
    s_branch L_attn_fin
    """)

TAIL = []
def phase3(a, cfg):
    OF, AC, WF = 16, 56, 76
    VW, VWT, VPB, VSW, VSR, VL, VL8 = 6, 7, 8, 9, 10, 0, 4
    VOS = [13, 14, 15]
    VW2, VWT2 = 3, 5
    OPT = cfg.get("opt", 1)
    def reads(ks):
        hf, p = divmod(ks, 5)
        r = []
        for t in range(5):
            for u in range(2):
                if p < 4: ad, off = (VW2 if hf else VW), (40*p + 8*u)*160 + 32*t
                else: ad, off = (VWT2 if hf else VWT), 80*u*160 + 32*t
                r.append(f"ds_read_b64_tr_b16 {vr(WF+20*(ks%9)+4*t+2*u,2)}, v{ad} offset:{off}")
        return r
    def unpack():
        a(f"""
        s_getreg_b32 s30, hwreg(HW_REG_XCC_ID, 0, 1)
        s_xor_b32 s30, s30, s2
        s_xor_b32 s30, s30, {cfg.get("hinv", 0)}
        s_and_b32 s30, s30, 1
        s_mul_i32 s31, s30, 25600
        s_sub_u32 s32, 25600, s31
        v_add_u32 v{VW}, s31, v{P3}
        v_add_u32 v{VWT}, s31, v{P3+1}
        v_add_u32 v{VW2}, s32, v{P3}
        v_add_u32 v{VWT2}, s32, v{P3+1}
        """)
        for i in range(2, 7): a(f"v_mov_b32 v{VW+i}, v{P3+i}")
        for i in range(3): a(f"v_mov_b32 v{VOS[i]}, v{WOA+i}")
        a(f"""
        v_mov_b32 v{VL}, v{VL16}
        v_lshlrev_b32 v{VL8}, 3, v1
        """)
        p3_kh(a, cfg, 26)
        a(f"""
        s_lshr_b32 s27, s2, 5
        s_mul_i32 s27, s27, 160
        s_add_u32 s27, s27, s41
        s_add_u32 s28, s41, {O_OFF}
        s_lshl_b32 s3, s26, 1
        s_add_u32 s3, s3, s30
        s_xor_b32 s29, s3, 1
        s_lshl_b32 s22, s3, 12
        s_add_u32 s22, s22, s28
        s_lshl_b32 s24, s29, 12
        s_add_u32 s24, s24, s28
        s_add_u32 s28, s28, 16384
        s_lshl_b32 s23, s3, 10
        s_add_u32 s23, s23, s28
        s_lshl_b32 s25, s29, 10
        s_add_u32 s25, s25, s28
        """)
    a.c("---- output projection: 64 tokens x 80 columns")
    if not OPT:
        a("""
        s_waitcnt vmcnt(0)
        s_barrier
        s_cmp_eq_u32 s16, 0
        s_cbranch_scc0 L_p3_nofl
        """)
        raise_flag(a, "s38")
        a("L_p3_nofl:")
    NPB, WIN = cfg.get("npb", 8), cfg.get("win", 5)
    LOADS = []
    for ks in range(10):
        hf, p = divmod(ks, 5)
        if p < 4: LOADS.append([f"buffer_load_dwordx4 {vr(OF+4*ks,4)}, v{VL}, {WS}, s{22+2*hf} offen offset:{1024*p} sc1"])
        else: LOADS.append([f"buffer_load_dwordx2 {vr(OF+4*ks+2*u,2)}, v{VL8}, {WS}, s{23+2*hf} offen offset:{512*u} sc1" for u in range(2)])
    assert WIN == 5
    PW = cfg.get("pw", 7)
    a(f"v_mov_b32 v2, v{P3+7}")
    unpack()
    a.c("all stores are issued: read the first half of the heads (dies that usually finish first); filler words tell what has not arrived")
    def front(pre, il, mid=None):
        rest = [r for ks in range(NPB) for r in reads(ks)]
        for r in rest[:pre]: a(r)
        rest = rest[pre:]
        if mid: mid()
        for g in LOADS[:5]:
            for l in g: a(l)
            for r in rest[:il]: a(r)
            rest = rest[il:]
        for r in rest: a(r)
        a(f"""
        v_mov_b32 v1, 1
        v_mov_b32 v{AC}, {CNT_ADDR}
        s_waitcnt vmcnt(6)
        s_mov_b64 exec, 1
        ds_add_u32 v{AC}, v1
        s_mov_b64 exec, -1
        s_waitcnt lgkmcnt(0)
        """)
        stamp(a, cfg, 10)
        if cfg.get("p3d"): a("s_memtime s[68:69]")
    later = [reads(ks) for ks in range(NPB, 9)]
    a(f"""
    s_getreg_b32 s3, hwreg(HW_REG_XCC_ID, 0, 1)
    s_mov_b32 s28, 0
    s_cmp_eq_u32 s3, {cfg.get("hinv", 0)}
    s_barrier
    {"s_branch" if cfg.get("force_two") else "s_cbranch_scc1"} L_p3_two
    """)
    front(cfg.get("pre", 10), cfg.get("il", 8))
    VMX = 1
    KB = cfg.get("kb", 9)
    stubs = []
    def conf7(lab):
        a("s_cmp_eq_u32 s16, 7"); a(f"s_cbranch_scc0 {lab}"); a("s_call_b64 s[32:33], L_confirm"); a(f"{lab}:")
    DUAL = cfg.get("dual", 1)
    def both(t):
        if DUAL:
            a(f"v_pk_add_f32 {vr(AC+4*t,2)}, {vr(AC+4*t,2)}, {vr(OF+4*t,2)}")
            a(f"v_pk_add_f32 {vr(AC+4*t+2,2)}, {vr(AC+4*t+2,2)}, {vr(OF+4*t+2,2)}")
    def chk(ks):
        r = OF + 4 * ks
        return [f"v_max3_u32 v{VMX}, v{r}, v{r+1}, v{r+2}", f"v_max_u32 v{VMX}, v{VMX}, v{r+3}", f"v_cmp_eq_u32 vcc, -1, v{VMX}"]
    def arrive(ks, slide):
        hi = min(ks + 5, 10) if slide else 5
        vm = sum(len(g) for g in LOADS[ks+1:hi])
        a(f"s_waitcnt vmcnt({vm})" + (" lgkmcnt(0)" if ks in (max(NPB, 4), 8) else ""))
        if slide and ks < 5:
            for l in LOADS[ks + 5]: a(l)
    def mf(ks, tag="", slide=True, head=False, nxt=True):
        if head:
            arrive(ks, slide)
            for x in chk(ks): a(x)
        if cfg.get("p3d") and ks in (0, 3, 7, 9): a("s_memtime s[%d:%d]" % {0: (70, 71), 3: (72, 73), 7: (74, 75), 9: (76, 77)}[ks])
        lab = f"L_ck{ks}{tag}"
        a(f"""
        {"s_branch" if cfg.get("force_redo") else "s_cbranch_vccnz"} {lab}_again
        {lab}_ok:
        """)
        stubs.append((lab, ks, 5 if ks < 5 else 10))
        rd = []
        if ks < 3:
            allr = [x for g in later for x in g]
            n = -(-len(allr) // 3)
            rd = allr[n*ks:n*ks+n]
        if ks == 3: rd = reads(9)
        per = -(-len(rd) // 3)
        cn = chk(ks + 1) if nxt and ks < 9 else None
        for t in range(5):
            acc = (OF if DUAL and ks >= 5 else AC) + 4*t
            c = "0" if ks == 0 or (DUAL and ks == 5) else vr(acc, 4)
            a(f"v_mfma_f32_16x16x32_bf16 {vr(acc,4)}, {vr(WF+20*(ks%9)+4*t,4)}, {vr(OF+4*ks,4)}, {c}")
            for x in rd[per*t:per*t+per]: a(x)
            if cn and t == 2: arrive(ks + 1, slide); a(cn[0])
            if cn and t == 3: a(cn[1]); a(cn[2])
    assert NPB >= 4
    def redo():
        NTRY = cfg.get("ntry", 12)
        for lab, ks, hi in stubs:
            a(f"{lab}_again:")
            if cfg.get("stamp"): a("s_waitcnt lgkmcnt(0)"); a("s_mov_b32 s68, -1")
            a(f"""
            s_add_u32 s28, s28, 1
            s_cmp_eq_u32 s28, {NTRY}
            s_cbranch_scc0 {lab}_ld
            s_call_b64 s[30:31], L_confirmed
            {lab}_ld:
            """)
            if cfg.get("rsl"): a(f"s_sleep {cfg['rsl']}")
            hf, p = divmod(ks, 5)
            ids = range(ks, hi) if not cfg.get("grl", 1) else sorted(set(range(ks, 5*hf + min(p | 1, 4) + 1)) | {5*hf + 4})
            for i in ids:
                for l in LOADS[i]: a(l)
            a(f"""
            s_waitcnt vmcnt(0)
            s_cmp_ge_u32 s28, {NTRY}
            s_cbranch_scc1 {lab}_ok
            """)
            for x in chk(ks): a(x)
            a(f"""
            {"s_branch" if cfg.get("force_redo") else "s_cbranch_vccnz"} {lab}_again
            s_branch {lab}_ok
            """)
        a.c("once all eight waves have seen their stores acknowledged, say so; then wait until every producer has said so")
        a(f"""
        L_confirmed:
        s_mov_b32 s35, 0
        L_cnt:
        v_mov_b32 v1, {CNT_ADDR}
        ds_read_b32 v1, v1
        s_waitcnt lgkmcnt(0)
        v_readfirstlane_b32 s34, v1
        s_cmp_eq_u32 s34, 8
        """)
        spin_tail(a, "L_cnt", mult=16)
        a(f"""
        s_mov_b64 exec, 1
        buffer_store_dword v1, v{VL}, {WS}, s39 offen sc1
        s_mov_b64 exec, -1
        s_add_u32 s34, s40, {F3_OFF - F2_OFF}
        s_waitcnt vmcnt(0)
        """)
        poll(a, "L_poll3", 2, WS, "s34", dst=1)
        a("s_setpc_b64 s[30:31]")
    def path2():
        pw2 = cfg.get("pw2", 1)
        a("L_p3_two:")
        EV = cfg.get("ev", 2)
        if EV == 1:
            a.c("a die that usually finishes early waits for notices before it starts reading")
            a(f"""
            s_cmp_eq_u32 s16, 1
            s_cbranch_scc0 L_gate_n0
            buffer_load_dword v1, v2, {WS}, s40 offen sc1
            L_gate_n0:
            """)
            def gate():
                a(f"""
                s_cmp_eq_u32 s16, 1
                s_cbranch_scc0 L_gpoll_ok
                s_lshl_b32 s3, s30, 4
                s_lshr_b32 s20, {0 if cfg.get("gall") else 0xffff0000}, s3
                s_mov_b32 s21, s20
                s_mov_b32 s35, 0
                s_branch L_gpoll_chk
                L_gpoll:
                buffer_load_dword v1, v2, {WS}, s40 offen sc1
                L_gpoll_chk:
                s_waitcnt vmcnt(0)
                v_cmp_ne_u32 vcc, 0, v1
                s_nop 0
                s_or_b64 vcc, vcc, s[20:21]
                s_cmp_eq_u64 vcc, -1
                """)
                spin_tail(a, "L_gpoll")
                a("s_barrier")
            front(cfg.get("pre2", 55), 5, gate)
        else:
            front(cfg.get("pre2", 55), 5)
        if EV >= 3:
            for ks in range(5): mf(ks, "b", slide=False, head=ks == 0, nxt=ks < 4)
            if EV == 4: a("s_barrier")
            for g in LOADS[5:]:
                for l in g: a(l)
            arrive(5, True)
            for x in chk(5): a(x)
            a("s_branch L_p3_join")
            return
        if EV:
            a("s_branch L_p3_one")
            return
        a(f"""
        s_cmp_eq_u32 s16, {pw2}
        s_cbranch_scc0 L_p3_two1
        buffer_load_dword v{OF+20}, v2, {WS}, s40 offen sc1
        L_p3_two1:
        """)
        for ks in range(5): mf(ks, "b", slide=False, head=ks == 0, nxt=ks < 4)
        a(f"""
        s_cmp_eq_u32 s16, {pw2}
        s_cbranch_scc0 L_poll2_ok
        v_cmp_ne_u32 vcc, 0, v{OF+20}
        s_nop 0
        s_cmp_eq_u64 vcc, -1
        s_cbranch_scc1 L_poll2_ok
        """)
        poll(a, "L_poll2", 2, WS, "s40", dst=1)
        a("s_barrier")
        stamp(a, cfg, 11)
        for g in LOADS[5:]:
            for l in g: a(l)
            if cfg.get("gap", -1) >= 0: a(f"s_nop {cfg.get('gap', 7)}")
        arrive(5, True)
        for x in chk(5): a(x)
        a("s_branch L_p3_join")
    TAIL.append(lambda: (path2(), redo()))
    a("L_p3_one:")
    stamp(a, cfg, 11)
    for ks in range(5): mf(ks, head=ks == 0)
    a("L_p3_join:")
    for ks in range(5, KB): mf(ks)
    a("""
    s_waitcnt lgkmcnt(0)
    s_cmp_lt_u32 s16, 4
    s_cbranch_scc0 L_out_fin
    """)
    for ks in range(KB, 10): mf(ks, "w")
    stamp(a, cfg, 12)
    a("s_nop 3")
    for t in range(5):
        both(t)
        a(f"ds_write_b128 v{VPB}, {vr(AC+4*t,4)} offset:{1024*t}")
        if t < 4 and not DUAL: a("s_nop 0")
    a("""
    v_mov_b32 v1, 1
    s_waitcnt lgkmcnt(0)
    s_barrier
    s_cmp_eq_u32 s16, 0
    s_cbranch_scc0 L_fin
    """)
    a.c("every wave has seen its O stores acknowledged: tell readers that fall back")
    a(f"""
    s_mov_b64 exec, 1
    buffer_store_dword v1, v{VL}, {WS}, s39 offen sc1
    s_branch L_fin
    L_out_fin:
    s_barrier
    """)
    PB = WF + 20
    for t in range(5): a(f"ds_read_b128 {vr(PB+4*t,4)}, v{VPB} offset:{1024*t}")
    for ks in range(KB, 10): mf(ks, "f")
    stamp(a, cfg, 12)
    a("s_waitcnt lgkmcnt(0)")
    a("s_nop 2")
    for t in range(5):
        both(t)
        a(f"v_pk_add_f32 {vr(AC+4*t,2)}, {vr(AC+4*t,2)}, {vr(PB+4*t,2)}")
        a(f"v_pk_add_f32 {vr(AC+4*t+2,2)}, {vr(AC+4*t+2,2)}, {vr(PB+4*t+2,2)}")
        a(f"v_cvt_pk_bf16_f32 v{OF+20+2*t}, v{AC+4*t}, v{AC+4*t+1}")
        a(f"v_cvt_pk_bf16_f32 v{OF+21+2*t}, v{AC+4*t+2}, v{AC+4*t+3}")
        a(f"ds_write_b64 v{VSW}, {vr(OF+20+2*t,2)} offset:{32*t}")
    for i in range(3): a(f"ds_read_b128 {vr(PB+4*i,4)}, v{VSR+i}")
    OFL = cfg.get("outfl", "")
    for i in range(3):
        a(f"s_waitcnt lgkmcnt({2-i})")
        if i == 2: a("s_mov_b32 exec_hi, 0")
        a(f"buffer_store_dwordx4 {vr(PB+4*i,4)}, v{VOS[i]}, {OUT}, s27 offen {OFL}")
    a("L_fin:")

def gen1(cfg):
    a = Asm()
    a(f".globl {NAME}")
    a(".p2align 12")
    a(f".fill {cfg.get('pad', 3328)//4}, 4, 0xbf800000")
    a(".p2align 8")
    a(f".type {NAME},@function")
    a(f"{NAME}:")
    a("""
    s_cmp_ge_u32 s2, 256
    s_cbranch_scc1 L_end
    """)
    stamp(a, cfg, 0, real=True); stamp(a, cfg, 1)
    a("""
    s_load_dwordx4 s[4:7], s[0:1], 0
    s_load_dwordx8 s[36:43], s[0:1], 16
    v_lshrrev_b32 v2, 6, v0
    v_and_b32 v1, 63, v0
    v_readfirstlane_b32 s16, v2
    """)
    if cfg.get("codepf", 1):
        a.c("wave 0 touches an 8 KB share of the kernel's own code so that instruction fetch hits L2")
        a(f"""
        s_getpc_b64 s[26:27]
        L_pc:
        s_bfe_u32 s3, s2, 0x30003
        s_lshl_b32 s3, s3, 13
        s_cmp_eq_u32 s16, 0
        s_cbranch_scc0 L_nopf
        v_lshl_add_u32 v3, v1, 7, s3
        v_min_u32 v3, L_code_end - L_pc - 4, v3
        global_load_dword v0, v3, s[26:27]
        L_nopf:
        """)
    a.c("tile: j = id&7, v = id>>3 ; cb(s17) = (v>>2) + 8*(j>>2) ; tb(s18) = (j&3)*4 + (v&3) ; cb 15: no tile")
    a("""
    s_lshr_b32 s17, s2, 5
    s_and_b32 s3, s2, 4
    s_lshl_b32 s3, s3, 1
    s_add_u32 s17, s17, s3
    s_bfe_u32 s3, s2, 0x20003
    s_and_b32 s18, s2, 3
    s_lshl_b32 s18, s18, 2
    s_add_u32 s18, s18, s3
    s_cmp_eq_u32 s17, 15
    s_cbranch_scc1 L_idle
    s_cmp_lt_u32 s16, 4
    s_cbranch_scc1 L_qkv_cons
    """)
    phase1_loader(a, cfg)
    a("L_idle:")
    if cfg.get("e2e"): a("s_memrealtime s[64:65]")
    a.c("workgroups without a GEMM tile: clear the hand-off flags, raise 'ready' in d_debug, pull second-stage x rows into L2")
    xr = cfg.get("xrot", XROT)
    a(f"""
    s_lshl_b32 s19, s18, 2
    s_mul_i32 s17, s18, {128*128}
    s_add_u32 s17, s17, {FB_OFF}
    s_lshl_b32 s20, s18, 4
    s_add_u32 s20, s20, s16
    s_mul_i32 s23, s20, {8*1280}
    s_add_u32 s20, s23, {64*1280}
    s_add_u32 s21, s20, 8192
    v_lshlrev_b32 v2, 7, v1
    v_min_u32 v3, {15*128}, v2
    v_mov_b32 v4, 0
    v_and_b32 v10, 15, v1
    v_lshlrev_b32 v10, 2, v10
    v_mov_b32 v11, {GO_ADDR}
    ds_write_b32 v11, v4
    """)
    PFC = cfg.get("pfc", [4])
    if PFC:
        a.c("lines of the k-chunks that end the two miss runs of this die: s24 = chunk offset of the die")
        a(f"""
        s_and_b32 s24, s2, 7
        s_lshl_b32 s24, s24, 2
        s_lshr_b32 s24, {sum(v << (4*i) for i, v in enumerate(xr))}, s24
        s_and_b32 s24, s24, 15
        s_lshl_b32 s25, s3, 2
        s_and_b32 s26, s16, 3
        s_add_u32 s25, s25, s26
        s_mul_i32 s25, s25, {4*3840}
        s_add_u32 s25, s25, 2048
        s_lshr_b32 s26, s16, 2
        s_mul_i32 s26, s26, 5
        s_add_u32 s24, s24, s26
        s_lshl_b32 s22, s18, 3
        s_and_b32 s26, s16, 3
        s_add_u32 s22, s22, s26
        s_mul_i32 s22, s22, {16*1280}
        v_lshrrev_b32 v5, 4, v1
        v_mul_u32_u24 v5, 3840, v5
        v_and_b32 v6, 15, v1
        v_min_u32 v8, 13, v6
        v_lshl_add_u32 v8, v8, 7, v5
        v_min_u32 v9, 15, v1
        v_mul_u32_u24 v9, 1280, v9
        """)
    a("s_waitcnt lgkmcnt(0)")
    common_srds(a)
    srd(a, 8, 4, 2048 * 1280)
    srd(a, 12, 6, 640 * 3840)
    def pf(c):
        a(f"""
        s_add_u32 s26, s24, {c}
        s_sub_u32 s27, s26, 10
        s_cselect_b32 s26, s26, s27
        s_mul_i32 s27, s26, {64*3840}
        s_add_u32 s27, s27, s25
        s_lshl_b32 s26, s26, 7
        s_add_u32 s26, s26, s22
        buffer_load_dword v94, v8, s[12:15], s27 offen
        buffer_load_dword v95, v9, s[8:11], s26 offen
        """)
    a(f"""
    s_cmp_eq_u32 s16, 0
    s_cbranch_scc0 L_idle_pf
    s_add_u32 s28, s17, 8192
    buffer_store_dword v4, v2, {WS}, s17 offen sc1
    buffer_store_dword v4, v2, {WS}, s28 offen sc1
    L_idle_pf:
    """)
    for c in PFC: pf(c)
    if not PFC: a(f"buffer_load_dword v92, v3, s[8:11], s21 offen")
    a(f"""
    s_cmp_eq_u32 s16, 0
    s_cbranch_scc0 L_idle_pf2
    v_mov_b32 v6, 1
    s_waitcnt vmcnt({2*len(PFC) if PFC else 1})
    s_mov_b64 exec, 1
    buffer_store_dword v6, v4, {DBG}, s19 offen sc1
    s_mov_b64 exec, -1
    L_idle_pf2:
    s_barrier
    buffer_load_dword v90, v2, s[8:11], s20 offen
    """)
    if PFC: a(f"buffer_load_dword v92, v3, s[8:11], s21 offen")
    if cfg.get("e2e"):
        srd(a, 96, 42, 1 << 20, add=STAMP_OFF + (2 << 20))
        a("""
        v_mov_b32 v93, s64
        s_mov_b64 exec, 1
        buffer_store_dword v93, v4, s[96:99], s19 offen
        s_mov_b64 exec, -1
        """)
    a("""
    s_cmp_eq_u32 s16, 0
    s_cbranch_scc0 L_rdy_i_ok
    """)
    poll(a, "L_rdy_i", 10, DBG, "0")
    a("""
    s_waitcnt vmcnt(0)
    s_barrier
    s_mov_b32 s63, 0
    s_cmp_lt_u32 s16, 4
    s_cbranch_scc1 L_late_setup
    """)
    attn_setup(a, cfg, early=True)
    a("s_branch L_early")
    a("L_late_setup:")
    attn_setup(a, cfg, early=False)
    a("s_barrier")
    a("s_branch L_late_st")
    page(a, cfg, "qk")
    a("L_qkv_cons:")
    phase1_consumer(a, cfg)
    page(a, cfg, "late")
    a(f"""
    L_late_st:
    v_mov_b32 v11, {GO_ADDR + 81920}
    ds_write_b32 v11, v{VZ}
    s_barrier
    """)
    if cfg.get("a4"):
        a(f"""
        s_waitcnt vmcnt(0)
        s_cmp_eq_u32 s63, 0
        s_cbranch_scc1 L_late_nofl
        s_mov_b64 exec, 1
        buffer_store_dword v{VONE}, v{VZ}, {WS}, s60 offen sc1
        s_mov_b64 exec, -1
        L_late_nofl:
        """)
        for g in kv_dma(2, back=81920): a(g)
        a("s_waitcnt vmcnt(4)")
        for g in kv_dma(3, back=81920): a(g)
        a("s_waitcnt vmcnt(5) lgkmcnt(0)")
        a("s_barrier")
        a("s_waitcnt vmcnt(0)")
        a("s_barrier")
    else:
        for g in kv_dma(2, back=81920): a(g)
        a("s_waitcnt vmcnt(5)")
    if cfg.get("a4"): pass
    elif cfg.get("u3first", 0):
        for g in kv_dma(3, back=81920): a(g)
        a(f"""
        s_cmp_eq_u32 s63, 0
        s_cbranch_scc1 L_late_nofl
        s_mov_b64 exec, 1
        buffer_store_dword v{VONE}, v{VZ}, {WS}, s60 offen sc1
        s_mov_b64 exec, -1
        s_waitcnt vmcnt(1) lgkmcnt(0)
        s_branch L_late_a3
        L_late_nofl:
        s_waitcnt vmcnt(0) lgkmcnt(0)
        L_late_a3:
        s_barrier
        """)
    else:
        a("""
        s_cmp_eq_u32 s63, 0
        s_cbranch_scc1 L_late_nofl
        """)
        raise_flag(a, "s60")
        a("L_late_nofl:")
        for g in kv_dma(3, back=81920): a(g)
        a("""
        s_waitcnt vmcnt(0) lgkmcnt(0)
        s_barrier
        """)
    wait_stage(a, cfg, "l", 0)
    stamp(a, cfg, 6)
    for g in kv_dma(0): a(g)
    qloads(a)
    a("s_waitcnt vmcnt(5) lgkmcnt(0)")
    stamp(a, cfg, 15)
    if cfg.get("u1in", 1):
        a("s_waitcnt vmcnt(0)")
    else:
        if not cfg.get("bl0"): a("s_barrier")
        for g in kv_dma(1): a(g)
        a("s_waitcnt vmcnt(5)")
    stamp(a, cfg, 7)
    attn_loop(a, cfg, early=False)
    a("s_branch L_epi")
    page(a, cfg, "early")
    a("L_early:")
    if cfg.get("direct", 0):
        assert cfg.get("krot", 0) == 0
        a(f"""
        v_lshlrev_b32 v6, 3, v1
        s_add_u32 s14, s61, s20
        s_lshr_b32 s3, s2, 5
        s_mul_i32 s30, s3, 160
        s_mul_i32 s3, s16, {32*1280}
        s_add_u32 s30, s30, s3
        s_mul_i32 s32, s16, 5120
        """)
    wait_stage(a, cfg, "e", cfg.get("epoll", 5))
    stamp(a, cfg, 6)
    if cfg.get("direct", 0):
        a.c("Q and the first key tile straight into registers: the first scores are ready when the LDS image is")
        a(f"""
        buffer_load_dwordx2 {vr(QT,2)}, v{VQT}, {WS}, s26 offen offset:2048 sc1
        buffer_load_dwordx2 {vr(KT,2)}, v6, {WS}, s14 offen offset:2048 sc1
        buffer_load_dwordx2 {vr(QM0,2)}, v{VQ}, {WS}, s22 offen sc1
        buffer_load_dwordx2 {vr(QM0+2,2)}, v{VQ}, {WS}, s22 offen offset:1024 sc1
        buffer_load_dwordx2 {vr(KM,2)}, v{VQ}, {WS}, s14 offen sc1
        buffer_load_dwordx2 {vr(KM+2,2)}, v{VQ}, {WS}, s14 offen offset:1024 sc1
        buffer_load_dwordx2 {vr(QM1,2)}, v{VQ}, {WS}, s23 offen sc1
        buffer_load_dwordx2 {vr(QM1+2,2)}, v{VQ}, {WS}, s23 offen offset:1024 sc1
        """)
        for g in kv_dma(0): a(g)
        a("s_setprio 3")
        a("s_waitcnt vmcnt(11)")
        a(Tm(0, SA)); a("s_nop 15"); a("s_nop 1"); a("s_waitcnt vmcnt(5)")
        a(Mm(0, SA, 0)); a(Mm(0, SA, 1))
        a(f"s_waitcnt vmcnt({cfg.get('u1w', 3)})")
        for g in kv_dma(1): a(g)
    else:
        for g in kv_dma(0): a(g)
        qloads(a)
        a(f"s_waitcnt vmcnt({cfg.get('u1w', 5)})")
        for g in kv_dma(1): a(g)
    a("s_waitcnt vmcnt(5) lgkmcnt(0)")
    stamp(a, cfg, 5)
    a("s_barrier")
    stamp(a, cfg, 7)
    attn_loop(a, cfg, early=True)
    a.c("the filler words of every tile this workgroup will read are in place")
    a("""
    s_cmp_eq_u32 s16, 4
    s_cbranch_scc0 L_epi
    """)
    a(f"s_waitcnt vmcnt({1 if cfg.get('notice', 9) == 4 else 0})")
    a("""
    v_cmp_ne_u32 vcc, 0, v5
    s_nop 0
    s_cmp_eq_u64 vcc, -1
    s_cbranch_scc0 L_r_wait
    """)
    a("L_epi:")
    attn_epilogue(a, cfg)
    phase3(a, cfg)
    if cfg.get("stamp"): a("s_waitcnt vmcnt(0)")
    stamp(a, cfg, 13); stamp(a, cfg, 14, real=True)
    if "xsel" in cfg:
        a(f"""
        s_waitcnt lgkmcnt(0)
        s_and_b32 s90, s2, 7
        s_cmp_eq_u32 s90, {cfg["xsel"]}
        s_cselect_b32 s90, s64, 0
        """)
    if cfg.get("xcc"):
        a("""
        s_waitcnt lgkmcnt(0)
        s_getreg_b32 s90, hwreg(HW_REG_XCC_ID, 0, 4)
        s_sub_u32 s90, s90, s2
        s_and_b32 s90, s90, 7
        s_mul_i32 s90, s90, 200
        """)
    stamp_flush(a, cfg, 0, 16, 8, wsptr=42)
    a("L_end:")
    a("s_endpgm")
    TAIL.pop()()
    a("L_code_end:")
    a("L_r_wait:")
    poll(a, "L_r_spin", P3+7, WS, "s33")
    a("s_branch L_epi")
    attn_slow(a)
    head = open("standalone__softmax_full_mha__prompt.s.ref").read().split("; Override launch")[0]
    descs = descriptor(NAME, 256)
    if cfg.get("probe"):
        import k_probe
        if cfg.get("lat"):
            head += "; @launch kernel=lat_kernel grid=(1,1,1) block=(64,1,1) lds=0\n"
            descs += k_probe.gen_lat(a, cfg)
        head += f"; @launch kernel={NAME} grid=(256,1,1) block=(512,1,1) lds=163840\n; @launch kernel=probe_kernel grid=(1,1,1) block=(64,1,1) lds=0\n"
        descs += k_probe.gen_probe(a, cfg)
    elif cfg.get("e2e"):
        import k_probe
        head += "; @launch kernel=prev_kernel grid=(1,1,1) block=(64,1,1) lds=0\n"
        a(".p2align 12")
        descs += k_probe.gen_prev(a, cfg)
        head += f"; @launch kernel={NAME} grid=(256,1,1) block=(512,1,1) lds=163840\n; @launch kernel=next_kernel grid=(1,1,1) block=(64,1,1) lds=0\n"
        descs += k_probe.gen_next(a, cfg)
    elif cfg.get("list"):
        head += f"; @launch kernel={NAME} grid=(256,1,1) block=(512,1,1) lds=163840\n"
    else:
        head += "; @launch grid=(256,1,1) block=(512,1,1) lds=163840\n"
    return head + '.amdgcn_target "amdgcn-amd-amdhsa--gfx950"\n.text\n' + a.text() + '.section .rodata,"a"\n' + descs

def gen(cfg):
    if not cfg.get("layout", 1): return gen1(cfg)
    import subprocess, tempfile, os
    d = tempfile.mkdtemp()
    c = dict(cfg, pages={"qk": 0, "v": 0, "late": 0, "early": cfg.get("eoff", 128)})
    open(d + "/a.s", "w").write(gen1(c))
    subprocess.run(["clang", "-x", "assembler", "-target", "amdgcn-amd-amdhsa", "-mcpu=gfx950", "-c", d + "/a.s", "-o", d + "/a.o"], check=True)
    o = subprocess.run(["llvm-objdump", "-t", d + "/a.o"], capture_output=True, text=True).stdout
    L = {m.group(2): int(m.group(1), 16) for m in re.finditer(r"^([0-9a-f]+) .* (L_\w+)$", o, re.M)}
    c["pages"]["qk"] = (-L["L_end_qk"]) % 4096 // 8 * 8
    c["pages"]["v"] = (-L["L_end_v"] - 64) % 4096 // 8 * 8
    return gen1(c)

if __name__ == "__main__":
    cfg = json.loads(sys.argv[2]) if len(sys.argv) > 2 else {}
    open(sys.argv[1], "w").write(gen(cfg))
```

```python
import sys, json, struct, re
from asmlib import *
NAME = "standalone__softmax_full_mha__prompt_kernel"
HQ = 81920
HKV = 163840
KV_OFF = 32 * HQ
O_OFF = KV_OFF + 32 * HKV
FB_OFF = O_OFF + 128 * 20480
FA_OFF = FB_OFF + 1024 * 128
F2_OFF = FA_OFF + 256 * 128
F3_OFF = F2_OFF + 256 * 128
WS_BYTES = F3_OFF + 256 * 128
SLOT = [0, 24576, 49152, 81920, 106496, 131072, 0, 24576, 49152, 139264]
CSCALE = struct.unpack("<I", struct.pack("<f", (20 ** -0.5) * 1.4426950408889634))[0]
WS, WO, OUT, DBG = "s[44:47]", "s[48:51]", "s[52:55]", "s[56:59]"
SPIN_MAX = 1 << 18

def spin_head(a, label):
    a(f"{label}:")
def spin_tail(a, label, mult=1):
    a(f"""
    s_cselect_b32 s35, {SPIN_MAX*mult}, s35
    s_add_u32 s35, s35, 1
    s_cmp_lt_u32 s35, {SPIN_MAX*mult}
    s_cbranch_scc1 {label}
    {label}_ok:
    """)

def poll(a, label, vaddr, rsrc, soff, dst=5):
    a(f"""
    s_mov_b32 s35, 0
    {label}:
    buffer_load_dword v{dst}, v{vaddr}, {rsrc}, {soff} offen sc1
    s_waitcnt vmcnt(0)
    v_cmp_ne_u32 vcc, 0, v{dst}
    s_nop 0
    s_cmp_eq_u64 vcc, -1
    """)
    spin_tail(a, label)

def paced_poll(a, cfg, label, vaddrs, soff):
    pace = cfg.get("pace" + label[-1], -1)
    n = len(vaddrs)
    dst = [5, 3][:n]
    if pace < 0:
        a(f"s_mov_b32 s35, 0\n{label}:")
        if pace < -1: a(f"s_sleep {-pace}")
        for d, v in zip(dst, vaddrs): a(f"buffer_load_dword v{d}, v{v}, {WS}, {soff} offen sc1")
        a(f"{label}_chk:")
        a("s_waitcnt vmcnt(0)")
    else:
        for d in dst: a(f"v_mov_b32 v{d}, 0")
        a(f"s_mov_b32 s35, 0\n{label}:")
        for d, v in zip(dst, vaddrs): a(f"buffer_load_dword v{d}, v{v}, {WS}, {soff} offen sc1")
        if pace: a(f"s_sleep {pace}")
        a(f"s_waitcnt vmcnt({n * cfg.get('pdepth', 4)})")
    if n == 2: a("v_and_b32 v2, v5, v3"); a("v_cmp_ne_u32 vcc, 0, v2")
    else: a("v_cmp_ne_u32 vcc, 0, v5")
    a("s_nop 0")
    a("s_cmp_eq_u64 vcc, -1")
    spin_tail(a, label, mult=4)

def raise_flag(a, soff):
    a(f"""
    v_mov_b32 v2, 0
    v_mov_b32 v3, 1
    s_mov_b64 exec, 1
    buffer_store_dword v3, v2, {WS}, {soff} offen sc1
    s_mov_b64 exec, -1
    """)

def page(a, cfg, key):
    off = cfg.get("pages", {}).get(key)
    if off is None: return
    if key == "v" and off:
        a(".p2align 8"); a(f".fill {(off - 256)//4}, 4, 0xbf800000"); return
    a(".p2align 12")
    if off: a(f".fill {off//4}, 4, 0xbf800000")

def common_srds(a):
    srd(a, 44, 42, WS_BYTES)
    srd(a, 48, 36, 640 * 1280)
    srd(a, 52, 38, 2048 * 1280)
    srd(a, 56, 40, 256)

XROT = [0, 1, 3, 4, 3, 4, 1, 2]
IDLE2 = True
CNT_ADDR = 133120 - 16
GO_ADDR = 81920 - 16
def phase1_loader(a, cfg):
    a.c("---------------- loader waves (become the early attention waves)")
    rot = cfg.get("rot", 2)
    NX0 = cfg.get("nx0", 7)
    if rot == 2:
        a("""
        s_add_u32 s100, s3, s17
        s_and_b32 s100, s100, 1
        s_mul_i32 s100, s100, 5
        """)
    elif rot == 3:
        a("""
        s_add_u32 s100, s3, s17
        s_mul_i32 s101, s100, 43
        s_lshr_b32 s101, s101, 7
        s_mul_i32 s101, s101, 3
        s_sub_u32 s100, s100, s101
        s_mul_i32 s100, s100, 7
        s_lshr_b32 s100, s100, 1
        """)
    elif rot == 4:
        a("""
        s_add_u32 s100, s3, s17
        s_and_b32 s100, s100, 3
        s_mul_i32 s100, s100, 5
        s_lshr_b32 s100, s100, 1
        """)
    else:
        a("s_mov_b32 s100, 0")
    xr = cfg.get("xrot", XROT)
    if xr:
        a(f"""
        s_and_b32 s101, s2, 7
        s_lshl_b32 s101, s101, 2
        s_lshr_b32 s101, {sum(v << (4*i) for i, v in enumerate(xr))}, s101
        s_and_b32 s101, s101, 15
        s_add_u32 s100, s100, s101
        s_sub_u32 s101, s100, 10
        s_cselect_b32 s100, s100, s101
        """)
    a(f"""
    s_and_b32 s19, s16, 3
    s_lshl_b32 s96, s19, 4
    s_lshr_b32 s101, s19, 1
    s_lshl_b32 s101, s101, 5
    s_and_b32 s34, s19, 1
    s_lshl_b32 s34, s34, 2
    s_add_u32 s101, s101, s34
    s_cmp_lt_u32 s17, 10
    s_cselect_b32 s96, s96, s101
    s_cselect_b32 s101, 4, 8
    s_mul_i32 s101, s101, 1280
    s_lshl_b32 s34, s18, 7
    s_add_u32 s96, s96, s34
    s_mul_i32 s96, s96, 1280
    v_lshrrev_b32 v2, 5, v1
    v_mul_u32_u24 v2, s101, v2
    v_bfe_u32 v3, v1, 3, 2
    v_mul_u32_u24 v3, 1280, v3
    v_lshrrev_b32 v5, 4, v1
    v_and_b32 v4, 7, v1
    v_xor_b32 v4, v4, v5
    v_lshlrev_b32 v4, 4, v4
    v_add3_u32 v8, v2, v3, v4
    v_xor_b32 v4, 64, v4
    v_add3_u32 v9, v2, v3, v4
    s_lshl_b32 s101, s101, 1
    s_sub_u32 s101, s101, 1024
    v_add_u32 v9, s101, v9
    v_and_b32 v3, 15, v1
    v_lshlrev_b32 v6, 1, v5
    v_xor_b32 v3, v3, v6
    v_mul_u32_u24 v2, 3840, v5
    v_lshl_add_u32 v16, v3, 4, v2
    v_add_u32 v17, {4*3840-1024}, v16
    v_xor_b32 v3, 8, v3
    v_lshl_add_u32 v18, v3, 4, v2
    v_add_u32 v19, {3*(4*3840-1024)}, v18
    v_add_u32 v18, {2*(4*3840-1024)}, v18
    s_mul_i32 s97, s19, {16*3840}
    s_lshl_b32 s3, s17, 8
    s_add_u32 s97, s97, s3
    s_lshl_b32 s98, s19, 11
    s_lshl_b32 s99, s19, 12
    s_mov_b32 s10, {2048*1280}
    s_mov_b32 s11, 0x00020000
    s_mov_b32 s14, {640*3840}
    s_mov_b32 s15, 0x00020000
    """)
    stamp(a, cfg, 8, grp="st")
    a("s_waitcnt lgkmcnt(0)")
    stamp(a, cfg, 9, grp="st")
    a(f"""
    s_mov_b32 s8, s4
    s_mov_b32 s9, s5
    s_mov_b32 s12, s6
    s_mov_b32 s13, s7
    """)
    XF1, XF2, WF_ = cfg.get("xfl", ""), cfg.get("x2fl", ""), cfg.get("wfl", "")
    def adv():
        a("""
        s_add_u32 s100, s100, 1
        s_cmp_eq_u32 s100, 10
        s_cselect_b32 s100, 0, s100
        """)
    def issue_x(lds, XF):
        a(f"""
        s_lshl_b32 s101, s100, 7
        s_add_u32 m0, s98, {lds}
        s_add_u32 s101, s101, s96
        """)
        for j in range(2):
            a(f"buffer_load_dwordx4 v{8+j}, s[8:11], s101 offen offset:{1024*j} {XF} lds")
    def issue(c):
        slot = SLOT[c]
        issue_x(slot, XF1)
        a(f"""
        s_mul_i32 s34, s100, {64*3840}
        s_add_u32 m0, s99, {slot+8192}
        s_add_u32 s34, s34, s97
        """)
        for j in range(4):
            a(f"buffer_load_dwordx4 v{16+j}, s[12:15], s34 offen offset:{1024*j} {WF_} lds")
        adv()
    def issue2(c):
        if c == 0: a(f"s_add_u32 s96, s96, {64*1280}")
        issue_x(81920 + 8192*c, XF2)
        if c < 9: adv()
    NPRE = cfg.get("npre", 3)
    if cfg.get("ldprio"): a(f"s_setprio {cfg['ldprio']}")
    groups = [[("c", c)] for c in range(10)]
    q = list(range(NX0))
    while q: groups.append([("x", i) for i in q[:3]]); q = q[3:]
    while len(groups) > 10 + NPRE:
        g = groups.pop(); groups[-1] = groups[-1] + g
    pend = []
    def put(g):
        for kind, i in g:
            if kind == "c": issue(i); pend.append(((kind, i), 6))
            else: issue2(i); pend.append(((kind, i), 2))
    def wait_for(item):
        k = [p[0] for p in pend].index(item)
        del pend[:k+1]
        a(f"s_waitcnt vmcnt({sum(p[1] for p in pend)})")
    for i in range(NPRE):
        put(groups.pop(0))
        if i == 0: stamp(a, cfg, 10, grp="st")
    common_srds(a)
    a(f"""
    v_and_b32 v10, 15, v1
    v_lshlrev_b32 v10, 2, v10
    s_lshl_b32 s60, s17, 4
    s_add_u32 s60, s60, s18
    s_lshl_b32 s60, s60, 7
    s_add_u32 s60, s60, {FA_OFF}
    """)
    t = Asm(); attn_setup(t, cfg, early=True)
    su = [l.strip() for l in t.lines if not l.strip().startswith(";")]
    at = cfg.get("esu", [0, 1, 2, 3, 4])
    per = -(-len(su) // len(at))
    def slice_(c):
        if c in at:
            for l in su[:per]: a(l)
            del su[:per]
    slice_(-1)
    for c in range(10):
        wait_for(("c", c))
        if c == 0: stamp(a, cfg, 2)
        if c in (3, 6): stamp(a, cfg, {3: 11, 6: 12}[c], grp="st")
        a("s_barrier")
        if cfg.get("rdyearly") == c: a(f"buffer_load_dword v5, v10, {DBG}, 0 offen sc1"); pend.append((("r", 0), 1))
        if groups: put(groups.pop(0))
        slice_(c)
    if not cfg.get("rdyearly"): a(f"buffer_load_dword v5, v10, {DBG}, 0 offen sc1"); pend.append((("r", 0), 1))
    stamp(a, cfg, 3)
    wait_for(("x", 2))
    a("s_barrier")
    a(f"""
    v_mov_b32 v11, {GO_ADDR}
    v_mov_b32 v7, 0
    ds_write_b32 v11, v7
    s_waitcnt vmcnt(0)
    v_cmp_ne_u32 vcc, 0, v5
    s_waitcnt lgkmcnt(0)
    s_cmp_eq_u64 vcc, -1
    s_cbranch_scc1 L_rdy_l_ok
    """)
    poll(a, "L_rdy_l", 10, DBG, "0")
    if NX0 > 3: a("s_barrier")
    if not cfg.get("flfirst", 1):
        for q in range(NX0, 10): issue2(q)
    a("""
    s_barrier
    s_cmp_eq_u32 s16, 4
    s_cbranch_scc0 L_ld_nofl
    """)
    a(f"""
    s_mov_b64 exec, 1
    buffer_store_dword v{VONE}, v{VZ}, {WS}, s60 offen sc1
    s_mov_b64 exec, -1
    L_ld_nofl:
    """)
    stamp(a, cfg, 4)
    if cfg.get("flfirst", 1):
        for q in range(NX0, 10): issue2(q)
    NX1 = cfg.get("nx1", 10)
    def xbars(extra):
        if NX1 < 10:
            a(f"s_waitcnt vmcnt({2*(10-NX1) + extra})")
            a("s_barrier")
        a(f"s_waitcnt vmcnt({extra})")
        a("s_barrier")
    if cfg.get("prepoll", 0):
        a(f"""
        s_cmp_eq_u32 s16, {cfg.get("epoll", 5)}
        s_cbranch_scc0 L_ld_nopoll
        buffer_load_dword v5, v{VPOLL}, {WS}, s33 offen sc1
        buffer_load_dword v3, v{VPOLL+1}, {WS}, s33 offen sc1
        s_mov_b32 s35, 0
        v_mov_b32 v7, 1
        """)
        xbars(2)
        a("s_branch L_poll1e_chk")
        a("L_ld_nopoll:")
    xbars(0)
    a("s_branch L_early")

def phase1_consumer(a, cfg):
    a.c("---------------- consumer waves (become the late attention waves)")
    XA, WA, ST, XF, AC, WR = 8, 10, 12, 16, 48, 96
    XB, WB = 4, 6
    SFLAG = cfg.get("sflag", 6)
    NX0 = cfg.get("nx0", 7)
    XBAR = {3, NX0, cfg.get("nx1", 10)}
    assert (NX0 == 3 or SFLAG >= 5) and SFLAG <= 2 * NX0 - 1
    a(f"""
    v_and_b32 v2, 15, v1
    v_lshrrev_b32 v3, 4, v1
    v_bfe_u32 v4, v1, 1, 3
    v_xor_b32 v4, v4, v3
    v_lshlrev_b32 v4, 4, v4
    v_lshl_add_u32 v{XA}, v2, 7, v4
    v_xor_b32 v{XA+1}, 64, v{XA}
    v_bfe_u32 v4, v1, 2, 2
    v_lshl_add_u32 v5, v3, 3, v4
    v_and_b32 v6, 1, v3
    v_lshl_or_b32 v4, v6, 2, v4
    s_lshl_b32 s3, s16, 1
    v_xor_b32 v4, s3, v4
    v_lshlrev_b32 v4, 5, v4
    v_lshl_add_u32 v4, v5, 8, v4
    v_and_b32 v5, 3, v1
    v_lshl_add_u32 v4, v5, 3, v4
    v_add_u32 v{WA}, 8192, v4
    v_xor_b32 v{WA+1}, 32, v{WA}
    s_lshl_b32 s60, s17, 2
    s_add_u32 s60, s60, s16
    s_lshl_b32 s60, s60, 4
    s_add_u32 s60, s60, s18
    s_lshl_b32 s60, s60, 7
    s_add_u32 s60, s60, {FB_OFF}
    s_mul_i32 s21, s18, 5120
    s_waitcnt lgkmcnt(0)
    """)
    common_srds(a)
    def xread(stage, ks, tt):
        c, s = divmod(ks, 2)
        if stage == 0: ad, off = (XA, SLOT[c]) if SLOT[c] < 81920 else (XB, SLOT[c] - 81920)
        else: ad, off = (XB, c * 8192) if c < 5 else (XA, (c - 5) * 8192)
        return f"ds_read_b128 {vr(XF+16*(ks&1)+4*tt,4)}, v{ad+s} offset:{off+2048*tt}"
    def wread(ks, ct, u):
        c, s = divmod(ks, 2)
        ad, off = (WA, SLOT[c]) if SLOT[c] < 81920 else (WB, SLOT[c] - 81920)
        if c == 9: off -= 8192
        return f"ds_read_b64_tr_b16 {vr(WR+8*ks+4*ct+2*u,2)}, v{ad+ct} offset:{off+(32*s+4*u)*256}"
    def reads(stage, ks):
        if stage == 0:
            return [wread(ks,0,0), wread(ks,0,1), xread(0,ks,0), wread(ks,1,0), wread(ks,1,1), xread(0,ks,1), xread(0,ks,2), xread(0,ks,3)]
        return [xread(1,ks,tt) for tt in range(4)]
    def mid():
        a("s_barrier")
        for r in reads(1, 0): a(r)
    def gemm(isv, epi):
        t = Asm(); attn_setup(t, cfg, early=False)
        su = [l.strip() for l in t.lines if not l.strip().startswith(";")]
        def filler(ks, n):
            while n and su:
                m = re.match(r"v_\w+ v\[?(\d+)", su[0])
                if m and int(m.group(1)) >= WR + 8 * ks: return
                a(su.pop(0)); n -= 1
        for i in range(2):
            a(f"v_add_u32 v{XB+i}, 81920, v{XA+i}")
            a(f"v_add_u32 v{WB+i}, 81920, v{WA+i}")
        a("s_barrier")
        stamp(a, cfg, 2)
        a(".p2align 3")
        for r in reads(0, 0): a(r)
        for stage in range(2):
            for ks in range(20):
                fl = stage == 1 and ks == SFLAG
                nxt = []
                bar = False
                if ks < 19:
                    nxt = reads(stage, ks + 1)
                    if ks % 2 == 1: bar = stage == 0 or ((ks + 1) // 2) in XBAR
                if fl and bar and (ks + 1) // 2 != NX0:
                    a("s_waitcnt lgkmcnt(0)"); a("s_barrier"); a("s_waitcnt vmcnt(0)"); a("s_barrier")
                elif fl and bar:
                    a("s_waitcnt vmcnt(0) lgkmcnt(0)"); a("s_barrier"); a("s_barrier"); a("s_nop 0")
                else:
                    a("s_waitcnt vmcnt(0) lgkmcnt(0)" if fl else "s_waitcnt lgkmcnt(0)")
                    if bar or fl: a("s_barrier")
                    elif stage == 0 or ks < cfg.get("su0", 5): a("s_nop 0")
                if fl: stamp(a, cfg, 4)
                if stage == 0 and ks == 13:
                    for i in range(2): a(f"v_add_u32 v{WB+i}, 8192, v{WB+i}")
                if stage == 1 and ks in (5, 13, 19): stamp(a, cfg, {5: 10, 13: 11, 19: 12}[ks], grp="p1")
                per = 2 if stage == 0 else 1
                for i in range(8):
                    tt, ct = i >> 1, (i & 1) ^ ((i >> 1) & 1)
                    acc = AC + 8 * tt + 4 * ct
                    x, w = vr(XF+16*(ks&1)+4*tt, 4), vr(WR+8*ks+4*ct, 4)
                    A, B = (x, w) if isv else (w, x)
                    c = "0" if ks == 0 else vr(acc, 4)
                    a(f"v_mfma_f32_16x16x32_bf16 {vr(acc,4)}, {A}, {B}, {c}")
                    if stage == 1 and ks >= cfg.get("su0", 5) and su and su[0].startswith("s_"): filler(ks, 1)
                    for r in nxt[per*i:per*i+per]: a(r)
                    if stage == 1 and ks >= cfg.get("su0", 5): filler(ks, 1 if nxt[i:i+1] else 2)
            if stage == 0:
                stamp(a, cfg, 3)
                a(f"v_add_u32 v{XA}, 122880, v{XA}")
                a(f"v_add_u32 v{XA+1}, 122880, v{XA+1}")
                epi(0)
                stamp(a, cfg, 8, grp="p1")
                if cfg.get("ackdiag"): a("s_waitcnt vmcnt(0)")
                if cfg.get("x0at", 99) > 7: mid()
                stamp(a, cfg, 9, grp="p1")
                a(".p2align 3")
            else:
                a("s_nop 1")
                epi(1)
                filler(20, 999)
    a("""
    s_cmp_lt_u32 s17, 10
    s_cbranch_scc0 L_qkv_v
    """)
    a.c("Q/K tiles: G = (cb%5)*32 + 8w + 4ct + g ; head = G/5 ; pos = G%5")
    a(f"""
    s_cmp_lt_u32 s17, 5
    s_cselect_b32 s25, 0, 81920
    s_cselect_b32 s12, {CSCALE}, 1.0
    s_cselect_b32 s23, 0, {KV_OFF}
    s_cselect_b32 s3, 0, 5
    s_add_u32 s24, s25, {HQ-2560}
    s_max_u32 s22, s25, 2560
    s_mov_b32 s13, s12
    s_add_u32 s21, s21, s23
    s_add_u32 s62, s22, s21
    s_sub_u32 s3, s17, s3
    s_lshl_b32 s3, s3, 2
    s_add_u32 s3, s3, s16
    s_lshl_b32 s3, s3, 3
    v_add_u32 v6, s3, v3
    v_lshlrev_b32 v4, 3, v2
    """)
    for ct in range(2):
        a(f"""
        v_add_u32 v7, {4*ct}, v6
        v_mul_u32_u24 v5, 52429, v7
        v_lshrrev_b32 v5, 18, v5
        v_lshl_add_u32 v7, v7, 9, v4
        v_mad_u32_u24 v{ST+ct}, v5, s24, v7
        """)
    late_qk, late_v = [], []
    def epi_qk(stage):
        for i in range(8):
            tt, ct = i >> 1, (i & 1) ^ ((i >> 1) & 1)
            acc = AC + 8 * tt + 4 * ct
            d = 80 + 2 * i
            a(f"v_pk_mul_f32 {vr(acc,2)}, {vr(acc,2)}, s[12:13]")
            a(f"v_pk_mul_f32 {vr(acc+2,2)}, {vr(acc+2,2)}, s[12:13]")
            a(f"v_cvt_pk_bf16_f32 v{d}, v{acc}, v{acc+1}")
            a(f"v_cvt_pk_bf16_f32 v{d+1}, v{acc+2}, v{acc+3}")
            st = f"buffer_store_dwordx2 {vr(d,2)}, v{ST+ct}, {WS}, s{62 if stage else 21} offen offset:{128*tt} sc1"
            if stage == 0: a(st)
            else: late_qk.append(st)
            if stage == 0 and i == cfg.get("x0at", 99): mid()
    def tail(stores, name):
        stamp(a, cfg, 5)
        a("s_barrier")
        a(f"{name}:")
        for st in stores: a(st)
        a("s_mov_b32 s63, 1")
        a("s_branch L_late_st")
    gemm(False, epi_qk)
    tail(late_qk, "L_end_qk")
    page(a, cfg, "v")
    a("L_qkv_v:")
    a.c("V tiles: col = (cb-10)*128 + 32w + 16ct + n ; head = col/20 ; d = col%20")
    a(f"""
    s_sub_u32 s3, s17, 10
    s_lshl_b32 s3, s3, 2
    s_add_u32 s3, s3, s16
    s_lshl_b32 s3, s3, 5
    v_add_u32 v6, s3, v2
    s_add_u32 s21, s21, {KV_OFF+2560}
    s_add_u32 s62, s21, 81920
    v_mul_u32_u24 v4, 320, v3
    s_mov_b32 s24, {HKV - 320}
    """)
    for ct in range(2):
        a(f"""
        v_add_u32 v7, {16*ct}, v6
        v_mul_u32_u24 v5, 13108, v7
        v_lshrrev_b32 v5, 18, v5
        v_lshl_add_u32 v7, v7, 4, v4
        v_mad_u32_u24 v{ST+ct}, v5, s24, v7
        """)
    def epi_v(stage):
        a("s_nop 2")
        for P in range(2):
            for ct in range(2):
                d = 80 + 8 * P + 4 * ct
                for ab in range(2):
                    acc = AC + 8 * (2 * P + ab) + 4 * ct
                    a(f"v_cvt_pk_bf16_f32 v{d+2*ab}, v{acc}, v{acc+1}")
                    a(f"v_cvt_pk_bf16_f32 v{d+2*ab+1}, v{acc+2}, v{acc+3}")
                st = f"buffer_store_dwordx4 {vr(d,4)}, v{ST+ct}, {WS}, s{62 if stage else 21} offen offset:{1280*P} sc1"
                if stage == 0: a(st)
                else: late_v.append(st)
                if stage == 0 and 2 * P + ct == cfg.get("x0at", 99) // 2: mid()
    gemm(True, epi_v)
    tail(late_v, "L_end_v")

SA, SB = 178, 210
O0, O1 = 146, 162
QM0, QM1, QT = 242, 246, 250
KM, KT = 16, 24
VV, SENT, WOA = 96, 112, 116
VL16, VQ, VQT, VPOLL = 121, 122, 123, 124
VOM, VOT, VXW, VXR, VONE, VZ = 126, 127, 128, 129, 130, 131
IDX, VKE, VKO, VT, VV0, VV1 = 132, 133, 134, 135, 136, 137

P3 = 138
PK = 70
def p3_kh(a, cfg, d):
    a(f"s_lshr_b32 s{d}, s16, 2")
    if cfg.get("khswap"):
        a(f"""
        s_bfe_u32 s3, s2, 0x10005
        s_xor_b32 s{d}, s{d}, s3
        """)
def p3_setup(a, cfg):
    p3_kh(a, cfg, 30)
    a(f"""
    s_and_b32 s31, s16, 3
    s_mul_i32 s3, s30, 51200
    v_lshrrev_b32 v2, 5, v1
    v_bfe_u32 v3, v1, 4, 1
    v_bfe_u32 v14, v1, 2, 2
    v_mul_u32_u24 v15, 20, v2
    v_lshl_add_u32 v15, v3, 2, v15
    v_add_u32 v15, v15, v14
    v_mul_u32_u24 v15, 160, v15
    v_and_b32 v2, 3, v1
    v_lshl_add_u32 v2, v2, 3, s3
    v_add_u32 v{P3}, v15, v2
    v_lshrrev_b32 v3, 4, v1
    v_mul_u32_u24 v15, 20, v3
    v_add3_u32 v15, v15, 16, v14
    v_mul_u32_u24 v15, 160, v15
    v_add_u32 v{P3+1}, v15, v2
    s_mul_i32 s3, s31, 5120
    s_add_u32 s3, s3, 143360
    v_add_u32 v{P3+2}, s3, v{VL16}
    s_mul_i32 s3, s31, 3584
    s_add_u32 s3, s3, 102400
    v_and_b32 v2, 15, v1
    v_mul_u32_u24 v2, 176, v2
    v_lshl_add_u32 v2, v3, 3, v2
    v_add_u32 v{P3+3}, s3, v2
    s_and_b32 s40, s2, 7
    s_lshl_b32 s41, s40, 2
    s_bfe_u32 s30, s2, 0x20003
    s_add_u32 s41, s41, s30
    s_lshl_b32 s40, s40, 12
    s_add_u32 s40, s40, {F2_OFF}
    s_lshl_b32 s41, s41, 2
    s_add_u32 s41, s41, s31
    s_mul_i32 s41, s41, 20480
    v_lshrrev_b32 v2, 1, v1
    v_lshlrev_b32 v{P3+7}, 7, v2
    """)
    for i in range(5):
        a(f"""
        v_add_u32 v2, {64*i}, v1
        v_mul_u32_u24 v3, 6554, v2
        v_lshrrev_b32 v3, 16, v3
        v_mul_u32_u24 v14, {1280-160}, v3
        v_lshl_add_u32 v{WOA+i}, v2, 4, v14
        """)
        if i < 3:
            a(f"""
            v_add_u32 v14, v2, v3
            v_lshl_add_u32 v{P3+4+i}, v14, 4, s3
            """)

def attn_setup(a, cfg, early, keep5=False):
    late = 0 if early else 1
    a.c("attention ids: s17=head s18=q pair s19=key half s21=KV base of head")
    a(f"""
    s_and_b32 s17, s2, 7
    s_lshl_b32 s17, s17, 2
    s_lshr_b32 s17, 0x75643120, s17
    s_and_b32 s17, s17, 7
    s_lshl_b32 s17, s17, 2
    s_bfe_u32 s3, s2, 0x20003
    s_add_u32 s17, s17, s3
    s_lshr_b32 s29, s2, 5
    s_lshl_b32 s18, s29, 2
    s_and_b32 s3, s16, 2
    s_add_u32 s18, s18, s3
    s_add_u32 s18, s18, {late}
    s_and_b32 s19, s16, 1
    s_mul_i32 s20, s19, 5120
    v_and_b32 v2, 31, v1
    v_lshrrev_b32 v3, 5, v1
    v_lshlrev_b32 v14, 3, v2
    v_lshl_add_u32 v{VQ}, v3, 9, v14
    v_add_u32 v{VKE}, s20, v{VQ}
    v_add_u32 v{VKO}, 256, v{VKE}
    v_lshlrev_b32 v14, 3, v1
    v_add_u32 v{VT}, s20, v14
    s_lshl_b32 s3, s19, 8
    v_xor_b32 v{VQT}, s3, v14
    v_mul_u32_u24 v15, 320, v3
    v_lshl_add_u32 v15, v2, 4, v15
    s_add_u32 s3, s20, 2560
    v_add_u32 v{VV0}, s3, v15
    v_add_u32 v{VV1}, 40960, v{VV0}
    v_lshlrev_b32 v{VL16}, 4, v1
    v_mov_b32 v{IDX}, 0xdddddddd
    s_mov_b32 s24, 0x000fffff
    s_mov_b32 s25, 0x000fffff
    v_cmp_eq_u32 vcc, 20, v2
    v_mov_b32 v15, 0x3f803f80
    s_mul_i32 s21, s17, {HKV}
    v_cndmask_b32 v{VV}, 0, v15, vcc
    s_add_u32 s21, s21, {KV_OFF}
    """)
    a(f"v_mov_b32 v{VV+1}, v{VV}")
    for i in range(1, 8): a(f"v_mov_b64 {vr(VV+2*i,2)}, {vr(VV,2)}")
    a.c("s22/s23: Q soffsets role0/role1, s26: Q pair base ; s27: first token block of this wave's K/V units ; s28: dma lds dest")
    a(f"""
    s_mul_i32 s26, s18, 2560
    s_mul_i32 s3, s17, {HQ}
    s_add_u32 s26, s26, s3
    s_lshl_b32 s3, s19, 8
    s_add_u32 s22, s26, s3
    s_xor_b32 s3, s3, 256
    s_add_u32 s23, s26, s3
    s_and_b32 s28, s16, 3
    s_mul_i32 s27, s29, {cfg.get("krot", 0)}
    s_add_u32 s27, s27, s28
    s_mul_i32 s28, s28, 5120
    s_add_u32 s28, s28, {late*81920}
    s_add_u32 s61, s21, {late*81920}
    """)
    a.c("O tile of this wave = 2*pair + (1^kh): s36/s37 store offsets, s38 flag 'filler in place', s39 flag 'stores acknowledged'")
    a(f"""
    s_lshl_b32 s30, s18, 1
    s_xor_b32 s31, s19, 1
    s_add_u32 s30, s30, s31
    s_mul_i32 s37, s30, 40960
    s_add_u32 s37, s37, {O_OFF}
    s_lshl_b32 s36, s17, 9
    s_add_u32 s36, s36, s37
    s_lshl_b32 s3, s17, 7
    s_add_u32 s37, s37, s3
    s_add_u32 s37, s37, 16384
    s_lshr_b32 s38, s2, 5
    s_lshl_b32 s38, s38, 12
    s_add_u32 s38, s38, s3
    s_add_u32 s38, s38, {F2_OFF}
    s_add_u32 s39, s38, {F3_OFF - F2_OFF}
    v_bfe_u32 v2, v1, 4, 1
    v_mul_u32_u24 v2, 20480, v2
    v_and_b32 v3, 15, v1
    v_lshl_add_u32 v{VOT}, v3, 3, v2
    v_lshl_add_u32 v2, v3, 4, v2
    v_lshrrev_b32 v3, 5, v1
    v_lshl_add_u32 v{VOM}, v3, 8, v2
    s_mul_i32 s3, s16, 3072
    s_add_u32 s3, s3, 102400
    v_add_u32 v{VXW}, s3, v{VL16}
    s_xor_b32 s3, s16, 1
    s_mul_i32 s3, s3, 3072
    s_add_u32 s3, s3, 102400
    v_add_u32 v{VXR}, s3, v{VL16}
    v_mov_b64 {vr(SENT,2)}, -1
    v_mov_b64 {vr(SENT+2,2)}, -1
    v_mov_b32 v{VONE}, 1
    v_mov_b32 v{VZ}, 0
    """)
    p3_setup(a, cfg)
    sh, sec = (7, 5) if early else (5, 20)
    a.c("poll addresses of the polling wave: K/V producers of all 16 token blocks, Q producers of both pairs")
    a(f"""
    s_mul_i32 s30, s17, 20
    s_add_u32 s31, s30, 19
    s_lshr_b32 s30, s30, {sh}
    s_lshr_b32 s31, s31, {sh}
    s_sub_u32 s31, s31, s30
    v_and_b32 v2, 1, v1
    v_mul_u32_u24 v2, s31, v2
    v_add_u32 v2, s30, v2
    v_lshrrev_b32 v14, 5, v1
    v_mul_u32_u24 v3, {sec}, v14
    v_add3_u32 v3, v2, v3, {sec}
    v_bfe_u32 v15, v1, 1, 4
    v_lshl_add_u32 v3, v3, 4, v15
    v_lshlrev_b32 v{VPOLL}, 7, v3
    v_bfe_u32 v2, v1, 4, 1
    v_mul_u32_u24 v2, s31, v2
    v_add_u32 v2, s30, v2
    s_lshr_b32 s3, s2, 5
    s_lshl_b32 s3, s3, 1
    v_lshl_add_u32 v2, v2, 4, v14
    v_add_u32 v2, s3, v2
    v_lshlrev_b32 v{VPOLL+1}, 7, v2
    s_mov_b32 s33, {FA_OFF if early else FB_OFF}
    """)
    for i in range(16): a(f"v_mov_b64 {vr(O0+2*i,2)}, 0")

def wait_stage(a, cfg, tag, wave):
    a(f"""
    s_mov_b32 s35, 0
    v_mov_b32 v7, 1
    s_cmp_eq_u32 s16, {wave}
    s_cbranch_scc0 L_gw{tag}
    """)
    paced_poll(a, cfg, f"L_poll1{tag}", [VPOLL, VPOLL+1], "s33")
    a(f"""
    ds_write_b32 v11, v7
    s_branch L_gw{tag}_ok
    L_gw{tag}:
    {"s_sleep " + str(cfg.get('gs' + tag, 1)) if cfg.get('gs' + tag, 1) else ""}
    ds_read_b32 v7, v11
    s_waitcnt lgkmcnt(0)
    v_readfirstlane_b32 s34, v7
    s_cmp_lg_u32 s34, 0
    """)
    spin_tail(a, f"L_gw{tag}", mult=16)

def kread(t):
    tl = t & 15
    o = 20 * (tl >> 1)
    return f"ds_read2st64_b64 {vr(KM+4*(t&1),4)}, v{VKO if t & 1 else VKE} offset0:{o} offset1:{o+2}"
def tread(b):
    o = 40 * (b & 3)
    return f"ds_read2st64_b64 {vr(KT+4*(b&1),4)}, v{VT} offset0:{o+4} offset1:{o+24}"
def vread(t, f):
    tl = t & 15
    ad = VV0 if tl < 8 else VV1
    return f"ds_read_b128 {vr(VV+8*(t&1)+4*f,4)}, v{ad} offset:{10240*((tl>>1)&3)+1280*(t&1)+640*f}"
def Tm(t, dst):
    b, T = divmod(t, 4)
    return f"v_mfma_f32_32x32x4_2b_bf16 {vr(dst,32)}, {vr(KT+4*(b&1)+2*(T>>1),2)}, {vr(QT,2)}, 0 cbsz:1 abid:{T&1}"
def Mm(t, dst, r):
    return f"v_mfma_f32_32x32x16_bf16 {vr(dst+16*r,16)}, {vr(KM+4*(t&1),4)}, {vr(QM1 if r else QM0,4)}, {vr(dst+16*r,16)}"
def Pm(o, t, f, s):
    return f"v_smfmac_f32_32x32x32_bf16 {vr(o,16)}, {vr(VV+8*(t&1)+4*f,4)}, {vr(s,8)}, v{IDX}"

def qloads(a):
    a(f"""
    buffer_load_dwordx2 {vr(QT,2)}, v{VQT}, {WS}, s26 offen offset:2048 sc1
    buffer_load_dwordx2 {vr(QM0,2)}, v{VQ}, {WS}, s22 offen sc1
    buffer_load_dwordx2 {vr(QM0+2,2)}, v{VQ}, {WS}, s22 offen offset:1024 sc1
    buffer_load_dwordx2 {vr(QM1,2)}, v{VQ}, {WS}, s23 offen sc1
    buffer_load_dwordx2 {vr(QM1+2,2)}, v{VQ}, {WS}, s23 offen offset:1024 sc1
    """)
def kv_dma(i, back=0):
    g = [f"""
        s_add_u32 s3, s27, {4*i}
        s_and_b32 s3, s3, 15
        s_mul_i32 s3, s3, 5120
        {f"s_sub_u32 s3, s3, {back}" if back else ""}
        s_add_u32 m0, s28, {(i*20480 - back) & 0xffffffff}
        s_add_u32 s29, s61, s3
        buffer_load_dwordx4 v{VL16}, {WS}, s29 offen sc1 lds"""]
    for j in range(1, 4):
        g.append(f"buffer_load_dwordx4 v{VL16}, {WS}, s29 offen offset:{1024*j} sc1 lds")
    g.append(f"""
        s_add_u32 m0, s28, {(i*20480+4096 - back) & 0xffffffff}
        s_add_u32 s29, s29, 4096
        buffer_load_dwordx4 v{VL16}, {WS}, s29 offen sc1 lds""")
    return g
def wo_dma(nper):
    g = []
    for p in range(nper):
        for i in range(5):
            pre = ""
            if i == 0:
                pre = f"""
                s_add_u32 s31, s30, {p*8*32*1280}
                """
            g.append(pre + f"""
                s_add_u32 m0, s32, {p*8*5120 + 1024*i}
                s_nop 0
                buffer_load_dwordx4 v{WOA+i}, {WO}, s31 offen lds
                s_nop 0""")
    return g

def attn_loop(a, cfg, early):
    tag = "e" if early else "l"
    direct = early and cfg.get("direct", 0)
    wo_ids = f"""
    s_lshr_b32 s3, s2, 5
    s_mul_i32 s30, s3, 160
    s_mul_i32 s3, s16, {32*1280}
    s_add_u32 s30, s30, s3
    s_mul_i32 s32, s16, 5120
    """
    if direct:
        a("s_mov_b64 exec, s[24:25]"); a(vread(0, 0)); a(vread(0, 1)); a("s_mov_b64 exec, -1")
        a(kread(1))
        a(f"ds_read_b64 {vr(KT+2,2)}, v{VT} offset:{24*512}")
    else:
        a(f"s_setprio {3 if early else 2}")
        a(tread(0)); a(kread(0)); a(kread(1))
        a("s_mov_b64 exec, s[24:25]"); a(vread(0, 0)); a(vread(0, 1)); a("s_mov_b64 exec, -1")
        a.c("wo dma: s30 source, s32 lds dest")
        a(wo_ids)
        a(f"s_waitcnt lgkmcnt({0 if cfg.get('stamp') else 4})")
        if cfg.get("lp", {}).get("pro"): a("s_memtime s[70:71]")
        a(Tm(0, SA)); a("s_nop 15"); a("s_nop 1"); a("s_waitcnt lgkmcnt(3)")
        a(Mm(0, SA, 0)); a(Mm(0, SA, 1)); a("s_nop 10")
    dma = {}
    TB = cfg.get("tb", 14) if early else 14
    be, bl = cfg.get("be", [18, 18, 26]), cfg.get("bl", [18, 18, 26])
    assert (be[0] == be[1]) == (bl[0] == bl[1])
    assert be[0] <= 18 and min(be[1], bl[1]) >= 15 and min(be[2], bl[2]) >= 25
    if early:
        B2, C1, C2 = be
        bars = {2: "vmcnt(0)", 6: None, TB: None, C1: None, C2: None}; bars[B2] = "vmcnt(0)"; assert B2 == C1
        if cfg.get("a4"): bars[cfg["a4"]] = None
        prio = cfg.get("prio_e", {str(TB): 1, "18": 3, "24": 1, "26": 3, "29": 2, "31": 1})
    else:
        B2, C1, C2 = bl
        bars = {C1: None, C2: None}
        bars[B2] = "vmcnt(0)"
        b0 = cfg.get("bl0", 0)
        if b0 or cfg.get("u1in", 1): bars[b0] = None
        sp = cfg.get("spread", 2)
        q = (kv_dma(1) if cfg.get("u1in", 1) else []) + kv_dma(2) + kv_dma(3); t0 = b0 + cfg.get("sp0", 0)
        while q: dma[t0] = q[:sp]; q = q[sp:]; t0 += 1
        assert t0 < B2
        assert B2 >= b0 + 3
        prio = cfg.get("prio_l", {"18": 2, "25": 0, "26": 3, "29": 2, "30": 1, "31": 0})
    prio = {int(k): v for k, v in prio.items()}
    wo = wo_dma(2 if early else 3)
    for i in range(5): dma[C1 + i] = wo[2*i:2*i+2]
    for i in range(3): dma[C2 + i] = wo[10+2*i:12+2*i]
    if cfg.get("opt", 1):
        ts = cfg.get("tsent", [16, 9])[0 if early else 1]
        assert not dma.get(ts)
        dma[ts] = [f"buffer_store_dwordx4 {vr(SENT,4)}, v{VOM}, {WS}, s36 offen sc1",
            f"""s_mov_b32 exec_hi, 0
            buffer_store_dwordx2 {vr(SENT,2)}, v{VOT}, {WS}, s37 offen sc1
            s_mov_b32 exec_hi, -1"""]
    if early:
        def w4(body, lab): return f"s_cmp_eq_u32 s16, 4\ns_cbranch_scc0 {lab}\n{body}\n{lab}:"
        assert not dma.get(C1 + 5) and not dma.get(28)
        dma[C1 + 5] = [w4(f"""s_mov_b64 exec, 1
            buffer_store_dword v{VONE}, v{VZ}, {WS}, s38 offen sc1
            s_mov_b64 exec, -1""", "L_r_set")]
        assert not dma.get(27) and C2 <= 27
        dma[27] = [f"v_mov_b32 v11, {CNT_ADDR}\nds_write_b32 v11, v{VZ}"]
        dma[28] = [w4(f"buffer_load_dword v5, v{P3+7}, {WS}, s40 offen sc1", "L_r_get")]
    nt = cfg.get("nt", ["e", 31, 0])
    if cfg.get("notice", 9) == 4 and nt[0] == tag:
        tn = Asm(); notice(tn, dict(cfg, nw=4 if early else 0), False)
        assert not dma.get(nt[1]) and nt[1] > C2
        dma[nt[1]] = ["" if i != nt[2] else "\n".join(tn.lines) for i in range(5)]
    a(".p2align 3")
    for t in range(32):
        cur, nxt = (SA, SB) if t % 2 == 0 else (SB, SA)
        e = iter(range(32))
        def E(n):
            for _ in range(n):
                i = next(e); a(f"v_exp_f32 v{cur+i}, v{cur+i}")
        dq = list(dma.get(t, []))
        def D(n):
            for _ in range(n):
                if dq: a(dq.pop(0))
        many = len(dq) > 2
        a.c(f"step {t}")
        E(2)
        if t > 0: a(Pm(O1, t-1, 1, nxt+24))
        vm = bars.get(t)
        if direct and t == 0: a("s_nop 0")
        else: a(f"s_waitcnt {vm + ' ' if vm else ''}lgkmcnt(0)")
        n4 = 1
        lp = cfg.get("lp", {}).get(tag + str(t))
        if lp and lp[0]: a(f"s_memtime s[{64+2*lp[0]}:{65+2*lp[0]}]")
        if t in bars: a("s_barrier"); n4 += 1
        if lp and lp[1]: a(f"s_memtime s[{64+2*lp[1]}:{65+2*lp[1]}]")
        if t in prio: a(f"s_setprio {prio[t]}"); n4 += 1
        if n4 % 2: a("s_nop 0")
        if t == 14:
            for r in (VKE, VKO, VT, VV0): a(f"v_add_u32 v{r}, 81920, v{r}")
        if t == 16: a(f"v_add_u32 v{VV1}, 81920, v{VV1}")
        if TB == 15 and t == 15: a(tread(4)); a(kread(16))
        if t + 2 < 32 and not (TB == 15 and t == 14): a(kread(t+2))
        if many: D(1)
        E(4)
        if TB == 15 and t == 15: a(f"s_waitcnt lgkmcnt({0 if cfg.get('lp') else 1})"); a("s_nop 0")
        if t < 31: a(Tm(t+1, nxt))
        E(8)
        if direct and t == 0: a(f"s_waitcnt lgkmcnt({0 if cfg.get('stamp') else 1})"); a("s_nop 0")
        a(Pm(O0, t, 0, cur))
        one = early and t < cfg.get("vone", 16)
        if one: a("s_mov_b64 exec, s[24:25]"); a(vread(t+1, 0)); a(vread(t+1, 1)); a("s_mov_b64 exec, -1")
        elif t < 31: a("s_mov_b64 exec, s[24:25]"); a(vread(t+1, 0)); a("s_mov_b64 exec, -1")
        if many: D(1)
        E(4)
        a(Pm(O0, t, 1, cur+8))
        if t < 31 and not one: a("s_mov_b64 exec, s[24:25]"); a(vread(t+1, 1)); a("s_mov_b64 exec, -1")
        if many: D(1)
        E(4)
        if t < 31: a(Mm(t+1, nxt, 0))
        D(1)
        E(4)
        a(Pm(O1, t, 0, cur+16))
        if t % 4 == 2 and t // 4 < 7 and not (TB == 15 and t == 14): a(tread(t//4+1))
        D(1)
        E(4)
        if t < 31: a(Mm(t+1, nxt, 1))
        else:
            a.c("hand the role-0 tile to the partner wave (other key half)")
            for i in (2, 0, 1): a(f"ds_write_b128 v{VXW}, {vr(O0+4*i,4)} offset:{1024*i}")
        E(2)
        assert not dq

def attn_epilogue(a, cfg):
    stamp(a, cfg, 8)
    if cfg.get("lp"): a("s_memtime s[88:89]")
    a(f"""
    s_setprio 0
    s_nop 0
    {Pm(O1, 31, 1, SB+24)}
    """)
    if cfg.get("notice", 9) == 3:
        a("s_waitcnt vmcnt(0)"); notice(a, cfg, False); a("s_waitcnt lgkmcnt(0)")
    elif cfg.get("notice", 9) == 4:
        a(f"""
        s_waitcnt vmcnt(1) lgkmcnt(0)
        s_cmp_eq_u32 s16, {4 if cfg.get("nt", ["e", 31, 0])[0] == "e" else 0}
        s_cbranch_scc1 L_epi_w
        s_waitcnt vmcnt(0)
        L_epi_w:
        """)
    else: a("s_waitcnt vmcnt(0) lgkmcnt(0)")
    a(f"""
    s_barrier
    ds_read_b128 {vr(O0+8,4)}, v{VXR} offset:2048
    ds_read_b128 {vr(O0,4)}, v{VXR}
    ds_read_b128 {vr(O0+4,4)}, v{VXR} offset:1024
    """)
    if cfg.get("opt", 1) and cfg.get("notice", 9) == 2: notice(a, cfg, False)
    a("""
    s_nop 6
    s_waitcnt lgkmcnt(2)
    """)
    a(f"""
    v_pk_add_f32 {vr(O1+8,2)}, {vr(O1+8,2)}, {vr(O0+8,2)}
    v_pk_add_f32 {vr(O1+10,2)}, {vr(O1+10,2)}, {vr(O0+10,2)}
    v_mov_b32 v7, v{O1+8}
    v_mov_b32 v9, v{O1+8}
    s_mov_b32 s30, 0x21800000
    s_waitcnt lgkmcnt(1)
    v_permlane32_swap_b32 v7, v9
    v_pk_add_f32 {vr(O1,2)}, {vr(O1,2)}, {vr(O0,2)}
    v_pk_add_f32 {vr(O1+2,2)}, {vr(O1+2,2)}, {vr(O0+2,2)}
    s_mov_b32 s31, 0x5d800000
    s_waitcnt lgkmcnt(0)
    v_pk_add_f32 {vr(O1+4,2)}, {vr(O1+4,2)}, {vr(O0+4,2)}
    v_pk_add_f32 {vr(O1+6,2)}, {vr(O1+6,2)}, {vr(O0+6,2)}
    """)
    a.c("run-time check of the shift-free softmax: row sum in [2^-60, 2^60], finite accumulators; else redo with the true row max")
    a(f"""
    v_cmp_le_f32 s[32:33], s30, v9
    v_cmp_ge_f32 s[34:35], s31, v9
    v_pk_mul_f32 v[10:11], {vr(O1+8,2)}, 0
    """)
    for i in (10, 0, 2, 4, 6): a(f"v_pk_fma_f32 v[10:11], {vr(O1+i,2)}, 0, v[10:11]")
    a(f"""
    s_and_b64 s[32:33], s[32:33], s[34:35]
    v_cmp_o_f32 vcc, v10, v11
    v_rcp_f32 v8, v9
    s_and_b64 s[32:33], s[32:33], vcc
    s_cmp_eq_u64 s[32:33], -1
    s_cbranch_scc0 L_attn_slow
    L_attn_fin:
    """)
    for i in range(4): a(f"v_pk_mul_f32 {vr(O1+2*i,2)}, {vr(O1+2*i,2)}, v[8:9] op_sel_hi:[1,0]")
    for i in range(4): a(f"v_cvt_pk_bf16_f32 v{PK+i}, v{O1+2*i}, v{O1+2*i+1}")
    a(f"buffer_store_dwordx4 {vr(PK,4)}, v{VOM}, {WS}, s36 offen sc1")
    for i in range(4, 6): a(f"v_pk_mul_f32 {vr(O1+2*i,2)}, {vr(O1+2*i,2)}, v[8:9] op_sel_hi:[1,0]")
    for i in range(4, 6): a(f"v_cvt_pk_bf16_f32 v{PK+i}, v{O1+2*i}, v{O1+2*i+1}")
    a(f"""
    s_mov_b32 exec_hi, 0
    buffer_store_dwordx2 {vr(PK+4,2)}, v{VOT}, {WS}, s37 offen sc1
    s_mov_b32 exec_hi, -1
    """)
    stamp(a, cfg, 9)
    if cfg.get("opt", 1) and cfg.get("notice", 9) < 2: notice(a, cfg, cfg.get("notice", 9) == 0)

def notice(a, cfg, bar):
    a.c("early notice: readers check the tiles for the filler words written before and fall back to the acknowledged flags")
    if bar: a("s_barrier")
    a(f"""
    s_cmp_eq_u32 s16, {cfg.get("nw", 4)}
    s_cbranch_scc0 L_nonotice
    s_mov_b64 exec, 1
    buffer_store_dword v{VONE}, v{VZ}, {WS}, s38 offen sc1
    s_mov_b64 exec, -1
    L_nonotice:
    """)

def attn_slow(a):
    a.c("exact path: softmax with the true row maximum for the query tile this wave keeps")
    a("L_attn_slow:")
    a(f"""
    v_and_b32 v2, 31, v1
    v_lshlrev_b32 v14, 3, v2
    v_lshrrev_b32 v3, 5, v1
    v_mul_u32_u24 v3, 320, v3
    v_lshl_add_u32 v15, v2, 4, v3
    v_mov_b32 v10, 0xff800000
    s_mov_b32 s34, 0
    """)
    for i in range(16): a(f"v_mov_b32 v{O1+i}, 0")
    a(f"""
    L_slow_pass:
    s_mov_b32 s35, 0
    L_slow_tile:
    s_lshr_b32 s30, s35, 1
    s_mul_i32 s30, s30, 5120
    s_add_u32 s30, s30, s21
    s_and_b32 s3, s35, 1
    s_mul_i32 s31, s3, 1280
    s_add_u32 s31, s31, s30
    s_lshl_b32 s3, s3, 8
    s_add_u32 s30, s30, s3
    buffer_load_dwordx2 {vr(KT,2)}, v14, {WS}, s30 offen offset:2048 sc1
    buffer_load_dwordx2 {vr(KM,2)}, v{VQ}, {WS}, s30 offen sc1
    buffer_load_dwordx2 {vr(KM+2,2)}, v{VQ}, {WS}, s30 offen offset:1024 sc1
    s_mov_b64 exec, s[24:25]
    buffer_load_dwordx4 {vr(VV,4)}, v15, {WS}, s31 offen offset:2560 sc1
    buffer_load_dwordx4 {vr(VV+4,4)}, v15, {WS}, s31 offen offset:3200 sc1
    s_mov_b64 exec, -1
    s_waitcnt vmcnt(0)
    v_mfma_f32_32x32x4_2b_bf16 {vr(SA,32)}, {vr(KT,2)}, {vr(QT,2)}, 0
    s_nop 15
    s_nop 3
    v_mfma_f32_32x32x16_bf16 {vr(SA+16,16)}, {vr(KM,4)}, {vr(QM1,4)}, {vr(SA+16,16)}
    s_nop 15
    s_cmp_eq_u32 s34, 0
    s_cbranch_scc0 L_slow_pv
    """)
    for i in range(8): a(f"v_max3_f32 v10, v10, v{SA+16+2*i}, v{SA+17+2*i}")
    a("s_branch L_slow_next")
    a("L_slow_pv:")
    for i in range(16): a(f"v_sub_f32 v{SA+16+i}, v{SA+16+i}, v10")
    for i in range(16): a(f"v_exp_f32 v{SA+16+i}, v{SA+16+i}")
    a(f"""
    s_nop 3
    v_smfmac_f32_32x32x32_bf16 {vr(O1,16)}, {vr(VV,4)}, {vr(SA+16,8)}, v{IDX}
    v_smfmac_f32_32x32x32_bf16 {vr(O1,16)}, {vr(VV+4,4)}, {vr(SA+24,8)}, v{IDX}
    s_nop 15
    L_slow_next:
    s_add_u32 s35, s35, 1
    s_cmp_lt_u32 s35, 64
    s_cbranch_scc1 L_slow_tile
    s_cmp_eq_u32 s34, 0
    s_cbranch_scc0 L_slow_done
    v_mov_b32 v11, v10
    s_nop 1
    v_permlane32_swap_b32 v10, v11
    s_nop 1
    v_max_f32 v10, v10, v11
    s_mov_b32 s34, 1
    s_branch L_slow_pass
    L_slow_done:
    v_mov_b32 v7, v{O1+8}
    v_mov_b32 v9, v{O1+8}
    s_nop 1
    v_permlane32_swap_b32 v7, v9
    s_nop 1
    v_rcp_f32 v8, v9
    s_branch L_attn_fin
    """)

TAIL = []
def phase3(a, cfg):
    OF, AC, WF = 16, 56, 76
    VW, VWT, VPB, VSW, VSR, VL, VL8 = 6, 7, 8, 9, 10, 0, 4
    VOS = [13, 14, 15]
    VW2, VWT2 = 3, 5
    OPT = cfg.get("opt", 1)
    def reads(ks):
        hf, p = divmod(ks, 5)
        r = []
        for t in range(5):
            for u in range(2):
                if p < 4: ad, off = (VW2 if hf else VW), (40*p + 8*u)*160 + 32*t
                else: ad, off = (VWT2 if hf else VWT), 80*u*160 + 32*t
                r.append(f"ds_read_b64_tr_b16 {vr(WF+20*(ks%9)+4*t+2*u,2)}, v{ad} offset:{off}")
        return r
    def unpack():
        a(f"""
        s_getreg_b32 s30, hwreg(HW_REG_XCC_ID, 0, 1)
        s_xor_b32 s30, s30, s2
        {"s_xor_b32 s30, s30, 1" if cfg.get("hinv") else ""}
        s_and_b32 s30, s30, 1
        s_mul_i32 s31, s30, 25600
        s_sub_u32 s32, 25600, s31
        v_add_u32 v{VW}, s31, v{P3}
        v_add_u32 v{VWT}, s31, v{P3+1}
        v_add_u32 v{VW2}, s32, v{P3}
        v_add_u32 v{VWT2}, s32, v{P3+1}
        """)
        for i in range(2, 7): a(f"v_mov_b32 v{VW+i}, v{P3+i}")
        for i in range(3): a(f"v_mov_b32 v{VOS[i]}, v{WOA+i}")
        a(f"""
        v_mov_b32 v{VL}, v{VL16}
        v_lshlrev_b32 v{VL8}, 3, v1
        """)
        p3_kh(a, cfg, 26)
        a(f"""
        s_lshr_b32 s27, s2, 5
        s_mul_i32 s27, s27, 160
        s_add_u32 s27, s27, s41
        s_add_u32 s28, s41, {O_OFF}
        s_lshl_b32 s3, s26, 1
        s_add_u32 s3, s3, s30
        s_xor_b32 s29, s3, 1
        s_lshl_b32 s22, s3, 12
        s_add_u32 s22, s22, s28
        s_lshl_b32 s24, s29, 12
        s_add_u32 s24, s24, s28
        s_add_u32 s28, s28, 16384
        s_lshl_b32 s23, s3, 10
        s_add_u32 s23, s23, s28
        s_lshl_b32 s25, s29, 10
        s_add_u32 s25, s25, s28
        """)
    a.c("---- output projection: 64 tokens x 80 columns")
    if not OPT:
        a("""
        s_waitcnt vmcnt(0)
        s_barrier
        s_cmp_eq_u32 s16, 0
        s_cbranch_scc0 L_p3_nofl
        """)
        raise_flag(a, "s38")
        a("L_p3_nofl:")
    NPB, WIN = cfg.get("npb", 6), cfg.get("win", 5)
    LOADS = []
    for ks in range(10):
        hf, p = divmod(ks, 5)
        if p < 4: LOADS.append([f"buffer_load_dwordx4 {vr(OF+4*ks,4)}, v{VL}, {WS}, s{22+2*hf} offen offset:{1024*p} sc1"])
        else: LOADS.append([f"buffer_load_dwordx2 {vr(OF+4*ks+2*u,2)}, v{VL8}, {WS}, s{23+2*hf} offen offset:{512*u} sc1" for u in range(2)])
    assert WIN == 5
    PW = cfg.get("pw", 7)
    UL = []
    if cfg.get("ulate"):
        a0 = a.lines; a.lines = []
        a(f"v_mov_b32 v2, v{P3+7}"); unpack()
        UL = a.lines; a.lines = a0
        k = [i for i, l in enumerate(UL) if "s_and_b32 s30, s30, 1" in l][0]
        for l in UL[1:k+1]: a(l)
        UL = UL[:1] + UL[k+1:]
    else:
        a(f"v_mov_b32 v2, v{P3+7}")
        unpack()
    a.c("all stores are issued: read the first half of the heads (dies that usually finish first); filler words tell what has not arrived")
    def front(pre, il, mid=None):
        for l in UL: a(l)
        rest = [r for ks in range(NPB) for r in reads(ks)]
        for r in rest[:pre]: a(r)
        rest = rest[pre:]
        if mid: mid()
        for g in LOADS[:5]:
            for l in g: a(l)
            for r in rest[:il]: a(r)
            rest = rest[il:]
        for r in rest: a(r)
        a(f"""
        v_mov_b32 v1, 1
        v_mov_b32 v{AC}, {CNT_ADDR}
        s_waitcnt vmcnt(6)
        s_mov_b64 exec, 1
        ds_add_u32 v{AC}, v1
        s_mov_b64 exec, -1
        s_waitcnt lgkmcnt(0)
        """)
        stamp(a, cfg, 10)
        if cfg.get("p3d"): a("s_memtime s[68:69]")
    later = [reads(ks) for ks in range(NPB, 9)]
    if cfg.get("ev", 2) == 5:
        a("s_mov_b32 s28, 0"); a("s_barrier")
    else:
        a(f"""
        s_xor_b32 s3, s30, s2
        s_mov_b32 s28, 0
        s_bitcmp0_b32 s3, 0
        s_barrier
        {"s_branch" if cfg.get("force_two") else "s_cbranch_scc1"} L_p3_two
        """)
    if cfg.get("p3d"): a("s_memtime s[78:79]")
    if cfg.get("yprio"):
        a("s_cmp_lt_u32 s16, 4"); a("s_cbranch_scc1 L_noyp"); a("s_setprio 1"); a("L_noyp:")
    front(cfg.get("pre", 10), cfg.get("il", 10))
    if cfg.get("yprio") == 1: a("s_setprio 0")
    VMX = 1
    KB = cfg.get("kb", 9)
    stubs = []
    def conf7(lab):
        a("s_cmp_eq_u32 s16, 7"); a(f"s_cbranch_scc0 {lab}"); a("s_call_b64 s[32:33], L_confirm"); a(f"{lab}:")
    q = [(x, k) for k in range(NPB, 10) for x in reads(k)]
    SLOTS = [[[] for _ in range(5)] for _ in range(10)]
    pat = cfg.get("pat", [2, 2, 1, 0, 2])
    for j in range(cfg.get("s0", 0 if NPB < 9 else 1), 10):
        for t in range(5):
            SLOTS[j][t] = q[:pat[t]]; q = q[pat[t]:]
    assert not any(k == 9 for t in range(5) for _, k in SLOTS[0][t])
    DUAL = cfg.get("dual", 1)
    def both(t):
        if DUAL:
            a(f"v_pk_add_f32 {vr(AC+4*t,2)}, {vr(AC+4*t,2)}, {vr(OF+4*t,2)}")
            a(f"v_pk_add_f32 {vr(AC+4*t+2,2)}, {vr(AC+4*t+2,2)}, {vr(OF+4*t+2,2)}")
    def chk(ks):
        r = OF + 4 * ks
        return [f"v_max3_u32 v{VMX}, v{r}, v{r+1}, v{r+2}", f"v_max_u32 v{VMX}, v{VMX}, v{r+3}", f"v_cmp_eq_u32 vcc, -1, v{VMX}"]
    def arrive(ks, slide):
        hi = min(ks + 5, 10) if slide else 5
        vm = sum(len(g) for g in LOADS[ks+1:hi])
        lg = ""
        if ks >= NPB:
            done = [k for j in range(ks) for t in range(5) if j < ks - 1 or t <= 2 for _, k in SLOTS[j][t]]
            assert done.count(ks) == 10
            n = sum(k > ks for k in done)
            lg = f" lgkmcnt({min(n, 15)})"
        a(f"s_waitcnt vmcnt({vm})" + lg)
        if slide and ks < 5:
            for l in LOADS[ks + 5]: a(l)
    def mf(ks, tag="", slide=True, head=False, nxt=True):
        if head:
            arrive(ks, slide)
            for x in chk(ks): a(x)
        if cfg.get("p3d") and ks in (0, 3, 7, 9): a("s_memtime s[%d:%d]" % {0: (70, 71), 3: (72, 73), 7: (74, 75), 9: (76, 77)}[ks])
        lab = f"L_ck{ks}{tag}"
        a(f"""
        {"s_branch" if cfg.get("force_redo") else "s_cbranch_vccnz"} {lab}_again
        {lab}_ok:
        """)
        stubs.append((lab, ks, 5 if ks < 5 else 10))
        rd = SLOTS[ks]
        cn = chk(ks + 1) if nxt and ks < 9 else None
        for t in range(5):
            acc = (OF if DUAL and ks >= 5 else AC) + 4*t
            c = "0" if ks == 0 or (DUAL and ks == 5) else vr(acc, 4)
            a(f"v_mfma_f32_16x16x32_bf16 {vr(acc,4)}, {vr(WF+20*(ks%9)+4*t,4)}, {vr(OF+4*ks,4)}, {c}")
            for x, _ in rd[t]: a(x)
            if cn and t == 2: arrive(ks + 1, slide); a(cn[0])
            if cn and t == 3: a(cn[1]); a(cn[2])
    assert NPB >= 4
    def redo():
        a.c("a filler word was read: load the window again; after some tries wait for the acknowledged flags")
        NTRY = cfg.get("ntry", 32)
        for lab, ks, hi in stubs[::-1]:
            a(f"{lab}_again:")
            if cfg.get("stamp"): a("s_waitcnt lgkmcnt(0)"); a("s_mov_b32 s68, -1")
            a(f"""
            s_add_u32 s28, s28, 1
            s_cmp_eq_u32 s28, {NTRY}
            s_cbranch_scc0 {lab}_ld
            s_call_b64 s[30:31], L_confirmed
            {lab}_ld:
            """)
            if cfg.get("rsl", 4): a(f"s_sleep {cfg.get('rsl', 4)}")
            hf, p = divmod(ks, 5)
            grl = cfg.get("grl", 2)
            ids = range(ks, hi) if not grl else sorted(set(range(ks, 5*hf + min(p | 1, 4) + 1)) | {5*hf + 4})
            vm = 0
            if grl == 2:
                assert lab[-1] != "b"
                ids = range(ks, min(ks + 6, 10)); vm = sum(len(LOADS[i]) for i in ids[1:])
            for i in ids:
                for l in LOADS[i]: a(l)
            a(f"""
            s_waitcnt vmcnt({vm})
            s_cmp_ge_u32 s28, {NTRY}
            s_cbranch_scc1 {lab}_ok
            """)
            for x in chk(ks): a(x)
            a(f"""
            {"s_branch" if cfg.get("force_redo") else "s_cbranch_vccnz"} {lab}_again
            s_branch {lab}_ok
            """)
        a.c("once all eight waves have seen their stores acknowledged, say so; then wait until every producer has said so")
        a(f"""
        L_confirmed:
        s_mov_b32 s35, 0
        L_cnt:
        v_mov_b32 v1, {CNT_ADDR}
        ds_read_b32 v1, v1
        s_waitcnt lgkmcnt(0)
        v_readfirstlane_b32 s34, v1
        s_cmp_eq_u32 s34, 8
        """)
        spin_tail(a, "L_cnt", mult=16)
        a(f"""
        s_mov_b64 exec, 1
        buffer_store_dword v1, v{VL}, {WS}, s39 offen sc1
        s_mov_b64 exec, -1
        s_add_u32 s34, s40, {F3_OFF - F2_OFF}
        s_waitcnt vmcnt(0)
        """)
        poll(a, "L_poll3", 2, WS, "s34", dst=1)
        a("s_setpc_b64 s[30:31]")
    def path2():
        pw2 = cfg.get("pw2", 1)
        a.c("dies that usually finish first start reading a little later")
        a("L_p3_two:")
        EV = cfg.get("ev", 2)
        if EV == 1:
            a.c("a die that usually finishes early waits for notices before it starts reading")
            a(f"""
            s_cmp_eq_u32 s16, 1
            s_cbranch_scc0 L_gate_n0
            buffer_load_dword v1, v2, {WS}, s40 offen sc1
            L_gate_n0:
            """)
            def gate():
                a(f"""
                s_cmp_eq_u32 s16, 1
                s_cbranch_scc0 L_gpoll_ok
                s_lshl_b32 s3, s30, 4
                s_lshr_b32 s20, {0 if cfg.get("gall") else 0xffff0000}, s3
                s_mov_b32 s21, s20
                s_mov_b32 s35, 0
                s_branch L_gpoll_chk
                L_gpoll:
                buffer_load_dword v1, v2, {WS}, s40 offen sc1
                L_gpoll_chk:
                s_waitcnt vmcnt(0)
                v_cmp_ne_u32 vcc, 0, v1
                s_nop 0
                s_or_b64 vcc, vcc, s[20:21]
                s_cmp_eq_u64 vcc, -1
                """)
                spin_tail(a, "L_gpoll")
                a("s_barrier")
            front(cfg.get("pre2", 45), 5, gate)
        else:
            front(cfg.get("pre2", 45), 5)
        if EV >= 3:
            for ks in range(5): mf(ks, "b", slide=False, head=ks == 0, nxt=ks < 4)
            if EV == 4: a("s_barrier")
            for g in LOADS[5:]:
                for l in g: a(l)
            arrive(5, True)
            for x in chk(5): a(x)
            a("s_branch L_p3_join")
            return
        if EV:
            a("s_branch L_p3_one")
            return
        a(f"""
        s_cmp_eq_u32 s16, {pw2}
        s_cbranch_scc0 L_p3_two1
        buffer_load_dword v{OF+20}, v2, {WS}, s40 offen sc1
        L_p3_two1:
        """)
        for ks in range(5): mf(ks, "b", slide=False, head=ks == 0, nxt=ks < 4)
        a(f"""
        s_cmp_eq_u32 s16, {pw2}
        s_cbranch_scc0 L_poll2_ok
        v_cmp_ne_u32 vcc, 0, v{OF+20}
        s_nop 0
        s_cmp_eq_u64 vcc, -1
        s_cbranch_scc1 L_poll2_ok
        """)
        poll(a, "L_poll2", 2, WS, "s40", dst=1)
        a("s_barrier")
        stamp(a, cfg, 11)
        for g in LOADS[5:]:
            for l in g: a(l)
            if cfg.get("gap", -1) >= 0: a(f"s_nop {cfg.get('gap', 7)}")
        arrive(5, True)
        for x in chk(5): a(x)
        a("s_branch L_p3_join")
    TAIL.append(redo if cfg.get("ev", 2) == 5 else (lambda: (redo(), path2())) if cfg.get("ev", 2) == 2 else lambda: (path2(), redo()))
    a("L_p3_one:")
    stamp(a, cfg, 11)
    for ks in range(5): mf(ks, head=ks == 0)
    a("L_p3_join:")
    for ks in range(5, KB): mf(ks)
    a("""
    s_waitcnt lgkmcnt(0)
    s_cmp_lt_u32 s16, 4
    s_cbranch_scc0 L_out_fin
    """)
    for ks in range(KB, 10): mf(ks, "w")
    stamp(a, cfg, 12)
    a("s_nop 3")
    for t in range(5):
        both(t)
        a(f"ds_write_b128 v{VPB}, {vr(AC+4*t,4)} offset:{1024*t}")
        if t < 4 and not DUAL: a("s_nop 0")
    a("""
    v_mov_b32 v1, 1
    s_waitcnt lgkmcnt(0)
    s_barrier
    s_cmp_eq_u32 s16, 0
    s_cbranch_scc0 L_fin
    """)
    a.c("every wave has seen its O stores acknowledged: tell readers that fall back")
    a(f"""
    s_mov_b64 exec, 1
    buffer_store_dword v1, v{VL}, {WS}, s39 offen sc1
    s_branch L_fin
    L_out_fin:
    s_barrier
    """)
    PB = WF + 20
    for t in range(5): a(f"ds_read_b128 {vr(PB+4*t,4)}, v{VPB} offset:{1024*t}")
    for ks in range(KB, 10): mf(ks, "f")
    stamp(a, cfg, 12)
    a("s_waitcnt lgkmcnt(0)")
    a("s_nop 2")
    for t in range(5):
        both(t)
        a(f"v_pk_add_f32 {vr(AC+4*t,2)}, {vr(AC+4*t,2)}, {vr(PB+4*t,2)}")
        a(f"v_pk_add_f32 {vr(AC+4*t+2,2)}, {vr(AC+4*t+2,2)}, {vr(PB+4*t+2,2)}")
        a(f"v_cvt_pk_bf16_f32 v{OF+20+2*t}, v{AC+4*t}, v{AC+4*t+1}")
        a(f"v_cvt_pk_bf16_f32 v{OF+21+2*t}, v{AC+4*t+2}, v{AC+4*t+3}")
        a(f"ds_write_b64 v{VSW}, {vr(OF+20+2*t,2)} offset:{32*t}")
    for i in range(3): a(f"ds_read_b128 {vr(PB+4*i,4)}, v{VSR+i}")
    OFL = cfg.get("outfl", "")
    for i in range(3):
        a(f"s_waitcnt lgkmcnt({2-i})")
        if i == 2: a("s_mov_b32 exec_hi, 0")
        a(f"buffer_store_dwordx4 {vr(PB+4*i,4)}, v{VOS[i]}, {OUT}, s27 offen {OFL}")
    a("L_fin:")


DOC = """;
; One persistent launch, 256 workgroups x 8 waves (one per CU), three phases.
;
; 1. QKV projection. 240 workgroups own a 128 token x 128 column tile. Waves 4-7 stream x and wqkv into LDS (LDS-DMA),
;    waves 0-3 multiply (MFMA 16x16x32). The tile is done in two stages of 64 tokens; the weight fragments stay in
;    it is rounded. Results go to d_ws in MFMA fragment order with write-through stores; a flag per producer follows once
;    its stores are acknowledged. The 16 workgroups without a tile clear the flags (and say so in d_debug, which every
;    workgroup checks before it touches a flag) and prefetch into L2.
; 2. Attention. Workgroup = (head, 256 queries), K and V of the head in LDS, wave = 64 queries x 1024 keys.
;    picks the upper half (the bf16 value) of every fp32 P word; a row of ones in V^T yields the row sums.
;    earlier in the launch (flagged and checked before any read); a fragment that still shows such a word is loaded
"""

def gen1(cfg):
    a = Asm()
    a(f".globl {NAME}")
    a(".p2align 12")
    a(f".fill {cfg.get('pad', 3328)//4}, 4, 0xbf800000")
    a(".p2align 8")
    a(f".type {NAME},@function")
    a(f"{NAME}:")
    a("""
    s_cmp_ge_u32 s2, 256
    s_cbranch_scc1 L_end
    """)
    stamp(a, cfg, 0, real=True); stamp(a, cfg, 1)
    a("""
    s_load_dwordx4 s[4:7], s[0:1], 0
    s_load_dwordx8 s[36:43], s[0:1], 16
    v_lshrrev_b32 v2, 6, v0
    v_and_b32 v1, 63, v0
    v_readfirstlane_b32 s16, v2
    """)
    if cfg.get("codepf", 1):
        a.c("wave 0 touches an 8 KB share of the kernel's own code so that instruction fetch hits L2")
        a(f"""
        s_getpc_b64 s[26:27]
        L_pc:
        s_bfe_u32 s3, s2, 0x30003
        s_lshl_b32 s3, s3, 13
        s_cmp_eq_u32 s16, 0
        s_cbranch_scc0 L_nopf
        v_lshl_add_u32 v3, v1, 7, s3
        v_min_u32 v3, L_code_end - L_pc - 4, v3
        global_load_dword v0, v3, s[26:27]
        L_nopf:
        """)
    a.c("tile: j = id&7, v = id>>3 ; cb(s17) = (v>>2) + 8*(j>>2) ; tb(s18) = (j&3)*4 + (v&3) ; cb 15: no tile")
    a("""
    s_lshr_b32 s17, s2, 5
    s_and_b32 s3, s2, 4
    s_lshl_b32 s3, s3, 1
    s_add_u32 s17, s17, s3
    s_bfe_u32 s3, s2, 0x20003
    s_and_b32 s18, s2, 3
    s_lshl_b32 s18, s18, 2
    s_add_u32 s18, s18, s3
    s_cmp_eq_u32 s17, 15
    s_cbranch_scc1 L_idle
    s_cmp_lt_u32 s16, 4
    s_cbranch_scc1 L_qkv_cons
    """)
    phase1_loader(a, cfg)
    a("L_idle:")
    if cfg.get("e2e"): a("s_memrealtime s[64:65]")
    a.c("workgroups without a GEMM tile: clear the hand-off flags, raise 'ready' in d_debug, pull second-stage x rows into L2")
    xr = cfg.get("xrot", XROT)
    a(f"""
    s_lshl_b32 s19, s18, 2
    s_mul_i32 s17, s18, {112*128}
    s_add_u32 s17, s17, {FB_OFF}
    s_lshl_b32 s20, s18, 4
    s_add_u32 s20, s20, s16
    s_mul_i32 s23, s20, {8*1280}
    s_add_u32 s20, s23, {64*1280}
    s_add_u32 s21, s20, 8192
    v_lshlrev_b32 v2, 7, v1
    v_min_u32 v3, {15*128}, v2
    v_mov_b32 v4, 0
    v_and_b32 v10, 15, v1
    v_lshlrev_b32 v10, 2, v10
    v_mov_b32 v11, {GO_ADDR}
    ds_write_b32 v11, v4
    """)
    PFC = cfg.get("pfc", [4])
    if PFC:
        a.c("lines of the k-chunks that end the two miss runs of this die: s24 = chunk offset of the die")
        a(f"""
        s_and_b32 s24, s2, 7
        s_lshl_b32 s24, s24, 2
        s_lshr_b32 s24, {sum(v << (4*i) for i, v in enumerate(xr))}, s24
        s_and_b32 s24, s24, 15
        s_lshl_b32 s25, s3, 2
        s_and_b32 s26, s16, 3
        s_add_u32 s25, s25, s26
        s_mul_i32 s25, s25, {4*3840}
        s_add_u32 s25, s25, 2048
        s_lshr_b32 s26, s16, 2
        s_mul_i32 s26, s26, 5
        s_add_u32 s24, s24, s26
        s_lshl_b32 s22, s18, 3
        s_and_b32 s26, s16, 3
        s_add_u32 s22, s22, s26
        s_mul_i32 s22, s22, {16*1280}
        v_lshrrev_b32 v5, 4, v1
        v_mul_u32_u24 v5, 3840, v5
        v_and_b32 v6, 15, v1
        v_min_u32 v8, 13, v6
        v_lshl_add_u32 v8, v8, 7, v5
        v_min_u32 v9, 15, v1
        v_mul_u32_u24 v9, 1280, v9
        """)
    a("s_waitcnt lgkmcnt(0)")
    common_srds(a)
    srd(a, 8, 4, 2048 * 1280)
    srd(a, 12, 6, 640 * 3840)
    def pf(c):
        a(f"""
        s_add_u32 s26, s24, {c}
        s_sub_u32 s27, s26, 10
        s_cselect_b32 s26, s26, s27
        s_mul_i32 s27, s26, {64*3840}
        s_add_u32 s27, s27, s25
        s_lshl_b32 s26, s26, 7
        s_add_u32 s26, s26, s22
        buffer_load_dword v94, v8, s[12:15], s27 offen
        buffer_load_dword v95, v9, s[8:11], s26 offen
        """)
    a(f"""
    s_cmp_eq_u32 s16, 0
    s_cbranch_scc0 L_idle_pf
    s_add_u32 s28, s17, 8192
    v_min_u32 v7, {47*128}, v2
    buffer_store_dword v4, v2, {WS}, s17 offen sc1
    buffer_store_dword v4, v7, {WS}, s28 offen sc1
    L_idle_pf:
    """)
    for c in PFC: pf(c)
    if not PFC: a(f"buffer_load_dword v92, v3, s[8:11], s21 offen")
    a(f"""
    s_cmp_eq_u32 s16, 0
    s_cbranch_scc0 L_idle_pf2
    v_mov_b32 v6, 1
    s_waitcnt vmcnt({2*len(PFC) if PFC else 1})
    s_mov_b64 exec, 1
    buffer_store_dword v6, v4, {DBG}, s19 offen sc1
    s_mov_b64 exec, -1
    L_idle_pf2:
    s_barrier
    buffer_load_dword v90, v2, s[8:11], s20 offen
    """)
    if PFC: a(f"buffer_load_dword v92, v3, s[8:11], s21 offen")
    if cfg.get("e2e"):
        srd(a, 96, 42, 1 << 20, add=STAMP_OFF + (2 << 20))
        a("""
        v_mov_b32 v93, s64
        s_mov_b64 exec, 1
        buffer_store_dword v93, v4, s[96:99], s19 offen
        s_mov_b64 exec, -1
        """)
    a("""
    s_cmp_eq_u32 s16, 0
    s_cbranch_scc0 L_rdy_i_ok
    """)
    poll(a, "L_rdy_i", 10, DBG, "0")
    a("""
    s_waitcnt vmcnt(0)
    s_barrier
    s_mov_b32 s63, 0
    s_cmp_lt_u32 s16, 4
    s_cbranch_scc1 L_late_setup
    """)
    attn_setup(a, cfg, early=True)
    a("s_branch L_early")
    a("L_late_setup:")
    attn_setup(a, cfg, early=False)
    a("s_barrier")
    a("s_branch L_late_st")
    page(a, cfg, "qk")
    a("L_qkv_cons:")
    phase1_consumer(a, cfg)
    page(a, cfg, "late")
    a(f"""
    L_late_st:
    v_mov_b32 v11, {GO_ADDR + 81920}
    ds_write_b32 v11, v{VZ}
    s_barrier
    """)
    if cfg.get("a4"):
        a(f"""
        s_waitcnt vmcnt(0)
        s_cmp_eq_u32 s63, 0
        s_cbranch_scc1 L_late_nofl
        s_mov_b64 exec, 1
        buffer_store_dword v{VONE}, v{VZ}, {WS}, s60 offen sc1
        s_mov_b64 exec, -1
        L_late_nofl:
        """)
        for g in kv_dma(2, back=81920): a(g)
        a("s_waitcnt vmcnt(4)")
        for g in kv_dma(3, back=81920): a(g)
        a("s_waitcnt vmcnt(5) lgkmcnt(0)")
        a("s_barrier")
        a("s_waitcnt vmcnt(0)")
        a("s_barrier")
    else:
        for g in kv_dma(2, back=81920): a(g)
        a("s_waitcnt vmcnt(5)")
    if cfg.get("a4"): pass
    elif cfg.get("u3first", 0):
        for g in kv_dma(3, back=81920): a(g)
        a(f"""
        s_cmp_eq_u32 s63, 0
        s_cbranch_scc1 L_late_nofl
        s_mov_b64 exec, 1
        buffer_store_dword v{VONE}, v{VZ}, {WS}, s60 offen sc1
        s_mov_b64 exec, -1
        s_waitcnt vmcnt(1) lgkmcnt(0)
        s_branch L_late_a3
        L_late_nofl:
        s_waitcnt vmcnt(0) lgkmcnt(0)
        L_late_a3:
        s_barrier
        """)
    else:
        a("""
        s_cmp_eq_u32 s63, 0
        s_cbranch_scc1 L_late_nofl
        """)
        raise_flag(a, "s60")
        a("L_late_nofl:")
        for g in kv_dma(3, back=81920): a(g)
        a("""
        s_waitcnt vmcnt(0) lgkmcnt(0)
        s_barrier
        """)
    wait_stage(a, cfg, "l", 0)
    stamp(a, cfg, 6)
    for g in kv_dma(0): a(g)
    qloads(a)
    a("s_waitcnt vmcnt(5) lgkmcnt(0)")
    stamp(a, cfg, 15)
    if cfg.get("u1in", 1):
        a("s_waitcnt vmcnt(0)")
    else:
        if not cfg.get("bl0"): a("s_barrier")
        for g in kv_dma(1): a(g)
        a("s_waitcnt vmcnt(5)")
    stamp(a, cfg, 7)
    attn_loop(a, cfg, early=False)
    a("s_branch L_epi")
    page(a, cfg, "early")
    a("L_early:")
    if cfg.get("direct", 0):
        assert cfg.get("krot", 0) == 0
        a(f"""
        v_lshlrev_b32 v6, 3, v1
        s_add_u32 s14, s61, s20
        s_lshr_b32 s3, s2, 5
        s_mul_i32 s30, s3, 160
        s_mul_i32 s3, s16, {32*1280}
        s_add_u32 s30, s30, s3
        s_mul_i32 s32, s16, 5120
        """)
    wait_stage(a, cfg, "e", cfg.get("epoll", 5))
    stamp(a, cfg, 6)
    if cfg.get("direct", 0):
        a.c("Q and the first key tile straight into registers: the first scores are ready when the LDS image is")
        a(f"""
        buffer_load_dwordx2 {vr(QT,2)}, v{VQT}, {WS}, s26 offen offset:2048 sc1
        buffer_load_dwordx2 {vr(KT,2)}, v6, {WS}, s14 offen offset:2048 sc1
        buffer_load_dwordx2 {vr(QM0,2)}, v{VQ}, {WS}, s22 offen sc1
        buffer_load_dwordx2 {vr(QM0+2,2)}, v{VQ}, {WS}, s22 offen offset:1024 sc1
        buffer_load_dwordx2 {vr(KM,2)}, v{VQ}, {WS}, s14 offen sc1
        buffer_load_dwordx2 {vr(KM+2,2)}, v{VQ}, {WS}, s14 offen offset:1024 sc1
        buffer_load_dwordx2 {vr(QM1,2)}, v{VQ}, {WS}, s23 offen sc1
        buffer_load_dwordx2 {vr(QM1+2,2)}, v{VQ}, {WS}, s23 offen offset:1024 sc1
        """)
        for g in kv_dma(0): a(g)
        a("s_setprio 3")
        a("s_waitcnt vmcnt(11)")
        a(Tm(0, SA)); a("s_nop 15"); a("s_nop 1"); a("s_waitcnt vmcnt(5)")
        a(Mm(0, SA, 0)); a(Mm(0, SA, 1))
        a(f"s_waitcnt vmcnt({cfg.get('u1w', 3)})")
        for g in kv_dma(1): a(g)
    else:
        for g in kv_dma(0): a(g)
        qloads(a)
        a(f"s_waitcnt vmcnt({cfg.get('u1w', 5)})")
        for g in kv_dma(1): a(g)
    a("s_waitcnt vmcnt(5) lgkmcnt(0)")
    stamp(a, cfg, 5)
    a("s_barrier")
    stamp(a, cfg, 7)
    attn_loop(a, cfg, early=True)
    a.c("the filler words of every tile this workgroup will read are in place")
    a("""
    s_cmp_eq_u32 s16, 4
    s_cbranch_scc0 L_epi
    """)
    a(f"s_waitcnt vmcnt({1 if cfg.get('notice', 9) == 4 else 0})")
    a("""
    v_cmp_ne_u32 vcc, 0, v5
    s_nop 0
    s_cmp_eq_u64 vcc, -1
    s_cbranch_scc0 L_r_wait
    """)
    a("L_epi:")
    attn_epilogue(a, cfg)
    phase3(a, cfg)
    if cfg.get("stamp"): a("s_waitcnt vmcnt(0)")
    stamp(a, cfg, 13); stamp(a, cfg, 14, real=True)
    if cfg.get("stamp"): a("s_waitcnt lgkmcnt(0)"); a("s_mov_b32 s94, s28")
    if "xsel" in cfg:
        a(f"""
        s_waitcnt lgkmcnt(0)
        s_and_b32 s90, s2, 7
        s_cmp_eq_u32 s90, {cfg["xsel"]}
        s_cselect_b32 s90, s64, 0
        """)
    if cfg.get("xcc"):
        a("""
        s_waitcnt lgkmcnt(0)
        s_getreg_b32 s90, hwreg(HW_REG_XCC_ID, 0, 4)
        s_sub_u32 s90, s90, s2
        s_and_b32 s90, s90, 7
        s_mul_i32 s90, s90, 200
        """)
    stamp_flush(a, cfg, 0, 16, 8, wsptr=42)
    a("L_end:")
    a("s_endpgm")
    TAIL.pop()()
    a("L_code_end:")
    a("L_r_wait:")
    poll(a, "L_r_spin", P3+7, WS, "s40")
    a("s_branch L_epi")
    attn_slow(a)
    head = open("standalone__softmax_full_mha__prompt.s.ref").read().split("; Override launch")[0]
    descs = descriptor(NAME, 256)
    if cfg.get("probe"):
        import k_probe
        if cfg.get("lat"):
            head += "; @launch kernel=lat_kernel grid=(1,1,1) block=(64,1,1) lds=0\n"
            descs += k_probe.gen_lat(a, cfg)
        head += f"; @launch kernel={NAME} grid=(256,1,1) block=(512,1,1) lds=163840\n; @launch kernel=probe_kernel grid=(1,1,1) block=(64,1,1) lds=0\n"
        descs += k_probe.gen_probe(a, cfg)
    elif cfg.get("e2e"):
        import k_probe
        head += "; @launch kernel=prev_kernel grid=(1,1,1) block=(64,1,1) lds=0\n"
        a(".p2align 12")
        descs += k_probe.gen_prev(a, cfg)
        head += f"; @launch kernel={NAME} grid=(256,1,1) block=(512,1,1) lds=163840\n; @launch kernel=next_kernel grid=(1,1,1) block=(64,1,1) lds=0\n"
        descs += k_probe.gen_next(a, cfg)
    elif cfg.get("list"):
        head += f"; @launch kernel={NAME} grid=(256,1,1) block=(512,1,1) lds=163840\n"
    else:
        head += "; @launch grid=(256,1,1) block=(512,1,1) lds=163840\n"
    return head + DOC + '.amdgcn_target "amdgcn-amd-amdhsa--gfx950"\n.text\n' + a.text() + '.section .rodata,"a"\n' + descs

def gen(cfg):
    if not cfg.get("layout", 1): return gen1(cfg)
    import subprocess, tempfile, os
    d = tempfile.mkdtemp()
    c = dict(cfg, pages={"qk": 0, "v": 0, "late": 0, "early": cfg.get("eoff", 128)})
    open(d + "/a.s", "w").write(gen1(c))
    subprocess.run(["clang", "-x", "assembler", "-target", "amdgcn-amd-amdhsa", "-mcpu=gfx950", "-c", d + "/a.s", "-o", d + "/a.o"], check=True)
    o = subprocess.run(["llvm-objdump", "-t", d + "/a.o"], capture_output=True, text=True).stdout
    L = {m.group(2): int(m.group(1), 16) for m in re.finditer(r"^([0-9a-f]+) .* (L_\w+)$", o, re.M)}
    c["pages"]["qk"] = (-L["L_end_qk"]) % 4096 // 8 * 8
    c["pages"]["v"] = (-L["L_end_v"] - 64) % 4096 // 8 * 8
    return gen1(c)

if __name__ == "__main__":
    cfg = json.loads(sys.argv[2]) if len(sys.argv) > 2 else {}
    open(sys.argv[1], "w").write(gen(cfg))
```

```python
import sys, json, struct, re
from asmlib import *
NAME = "standalone__softmax_full_mha__prompt_kernel"
HQ = 81920
HKV = 163840
KV_OFF = 32 * HQ
O_OFF = KV_OFF + 32 * HKV
FB_OFF = O_OFF + 128 * 20480
FA_OFF = FB_OFF + 1024 * 128
F2_OFF = FA_OFF + 256 * 128
F3_OFF = F2_OFF + 256 * 128
WS_BYTES = F3_OFF + 256 * 128
SLOT = [0, 24576, 49152, 81920, 106496, 131072, 0, 24576, 49152, 139264]
CSCALE = struct.unpack("<I", struct.pack("<f", (20 ** -0.5) * 1.4426950408889634))[0]
WS, WO, OUT, DBG = "s[44:47]", "s[48:51]", "s[52:55]", "s[56:59]"
SPIN_MAX = 1 << 18

def spin_head(a, label):
    a(f"{label}:")
def spin_tail(a, label, mult=1):
    a(f"""
    s_cselect_b32 s35, {SPIN_MAX*mult}, s35
    s_add_u32 s35, s35, 1
    s_cmp_lt_u32 s35, {SPIN_MAX*mult}
    s_cbranch_scc1 {label}
    {label}_ok:
    """)

def poll(a, label, vaddr, rsrc, soff, dst=5):
    a(f"""
    s_mov_b32 s35, 0
    {label}:
    buffer_load_dword v{dst}, v{vaddr}, {rsrc}, {soff} offen sc1
    s_waitcnt vmcnt(0)
    v_cmp_ne_u32 vcc, 0, v{dst}
    s_nop 0
    s_cmp_eq_u64 vcc, -1
    """)
    spin_tail(a, label)

def paced_poll(a, cfg, label, vaddrs, soff):
    pace = cfg.get("pace" + label[-1], -1)
    n = len(vaddrs)
    dst = [5, 3][:n]
    if pace < 0:
        a(f"s_mov_b32 s35, 0\n{label}:")
        if pace < -1: a(f"s_sleep {-pace}")
        for d, v in zip(dst, vaddrs): a(f"buffer_load_dword v{d}, v{v}, {WS}, {soff} offen sc1")
        a(f"{label}_chk:")
        a("s_waitcnt vmcnt(0)")
    else:
        for d in dst: a(f"v_mov_b32 v{d}, 0")
        a(f"s_mov_b32 s35, 0\n{label}:")
        for d, v in zip(dst, vaddrs): a(f"buffer_load_dword v{d}, v{v}, {WS}, {soff} offen sc1")
        if pace: a(f"s_sleep {pace}")
        a(f"s_waitcnt vmcnt({n * cfg.get('pdepth', 4)})")
    if n == 2: a("v_and_b32 v2, v5, v3"); a("v_cmp_ne_u32 vcc, 0, v2")
    else: a("v_cmp_ne_u32 vcc, 0, v5")
    a("s_nop 0")
    a("s_cmp_eq_u64 vcc, -1")
    spin_tail(a, label, mult=4)

def raise_flag(a, soff):
    a(f"""
    v_mov_b32 v2, 0
    v_mov_b32 v3, 1
    s_mov_b64 exec, 1
    buffer_store_dword v3, v2, {WS}, {soff} offen sc1
    s_mov_b64 exec, -1
    """)

def page(a, cfg, key):
    off = cfg.get("pages", {}).get(key)
    if off is None: return
    if key == "v" and off:
        a(".p2align 8"); a(f".fill {(off - 256)//4}, 4, 0xbf800000"); return
    a(".p2align 12")
    if off: a(f".fill {off//4}, 4, 0xbf800000")

def common_srds(a):
    srd(a, 44, 42, WS_BYTES)
    srd(a, 48, 36, 640 * 1280)
    srd(a, 52, 38, 2048 * 1280)
    srd(a, 56, 40, 256)

XROT = [0, 1, 3, 4, 3, 4, 1, 2]
IDLE2 = True
CNT_ADDR = 133120 - 16
GO_ADDR = 81920 - 16
def phase1_loader(a, cfg):
    a.c("---------------- loader waves (become the early attention waves)")
    rot = cfg.get("rot", 2)
    NX0 = cfg.get("nx0", 7)
    if rot == 2:
        a("""
        s_add_u32 s100, s3, s17
        s_and_b32 s100, s100, 1
        s_mul_i32 s100, s100, 5
        """)
    elif rot == 3:
        a("""
        s_add_u32 s100, s3, s17
        s_mul_i32 s101, s100, 43
        s_lshr_b32 s101, s101, 7
        s_mul_i32 s101, s101, 3
        s_sub_u32 s100, s100, s101
        s_mul_i32 s100, s100, 7
        s_lshr_b32 s100, s100, 1
        """)
    elif rot == 4:
        a("""
        s_add_u32 s100, s3, s17
        s_and_b32 s100, s100, 3
        s_mul_i32 s100, s100, 5
        s_lshr_b32 s100, s100, 1
        """)
    else:
        a("s_mov_b32 s100, 0")
    xr = cfg.get("xrot", XROT)
    if xr:
        a(f"""
        s_and_b32 s101, s2, 7
        s_lshl_b32 s101, s101, 2
        s_lshr_b32 s101, {sum(v << (4*i) for i, v in enumerate(xr))}, s101
        s_and_b32 s101, s101, 15
        s_add_u32 s100, s100, s101
        s_sub_u32 s101, s100, 10
        s_cselect_b32 s100, s100, s101
        """)
    a(f"""
    s_and_b32 s19, s16, 3
    s_lshl_b32 s96, s19, 4
    s_lshr_b32 s101, s19, 1
    s_lshl_b32 s101, s101, 5
    s_and_b32 s34, s19, 1
    s_lshl_b32 s34, s34, 2
    s_add_u32 s101, s101, s34
    s_cmp_lt_u32 s17, 10
    s_cselect_b32 s96, s96, s101
    s_cselect_b32 s101, 4, 8
    s_mul_i32 s101, s101, 1280
    s_lshl_b32 s34, s18, 7
    s_add_u32 s96, s96, s34
    s_mul_i32 s96, s96, 1280
    v_lshrrev_b32 v2, 5, v1
    v_mul_u32_u24 v2, s101, v2
    v_bfe_u32 v3, v1, 3, 2
    v_mul_u32_u24 v3, 1280, v3
    v_lshrrev_b32 v5, 4, v1
    v_and_b32 v4, 7, v1
    v_xor_b32 v4, v4, v5
    v_lshlrev_b32 v4, 4, v4
    v_add3_u32 v8, v2, v3, v4
    v_xor_b32 v4, 64, v4
    v_add3_u32 v9, v2, v3, v4
    s_lshl_b32 s101, s101, 1
    s_sub_u32 s101, s101, 1024
    v_add_u32 v9, s101, v9
    v_and_b32 v3, 15, v1
    v_lshlrev_b32 v6, 1, v5
    v_xor_b32 v3, v3, v6
    v_mul_u32_u24 v2, 3840, v5
    v_lshl_add_u32 v16, v3, 4, v2
    v_add_u32 v17, {4*3840-1024}, v16
    v_xor_b32 v3, 8, v3
    v_lshl_add_u32 v18, v3, 4, v2
    v_add_u32 v19, {3*(4*3840-1024)}, v18
    v_add_u32 v18, {2*(4*3840-1024)}, v18
    s_mul_i32 s97, s19, {16*3840}
    s_lshl_b32 s3, s17, 8
    s_add_u32 s97, s97, s3
    s_lshl_b32 s98, s19, 11
    s_lshl_b32 s99, s19, 12
    s_mov_b32 s10, {2048*1280}
    s_mov_b32 s11, 0x00020000
    s_mov_b32 s14, {640*3840}
    s_mov_b32 s15, 0x00020000
    """)
    stamp(a, cfg, 8, grp="st")
    a("s_waitcnt lgkmcnt(0)")
    stamp(a, cfg, 9, grp="st")
    a(f"""
    s_mov_b32 s8, s4
    s_mov_b32 s9, s5
    s_mov_b32 s12, s6
    s_mov_b32 s13, s7
    """)
    XF1, XF2, WF_ = cfg.get("xfl", ""), cfg.get("x2fl", ""), cfg.get("wfl", "")
    def adv():
        a("""
        s_add_u32 s100, s100, 1
        s_cmp_eq_u32 s100, 10
        s_cselect_b32 s100, 0, s100
        """)
    def issue_x(lds, XF):
        a(f"""
        s_lshl_b32 s101, s100, 7
        s_add_u32 m0, s98, {lds}
        s_add_u32 s101, s101, s96
        """)
        for j in range(2):
            a(f"buffer_load_dwordx4 v{8+j}, s[8:11], s101 offen offset:{1024*j} {XF} lds")
    def issue(c):
        slot = SLOT[c]
        issue_x(slot, XF1)
        a(f"""
        s_mul_i32 s34, s100, {64*3840}
        s_add_u32 m0, s99, {slot+8192}
        s_add_u32 s34, s34, s97
        """)
        for j in range(4):
            a(f"buffer_load_dwordx4 v{16+j}, s[12:15], s34 offen offset:{1024*j} {WF_} lds")
        adv()
    def issue2(c):
        if c == 0: a(f"s_add_u32 s96, s96, {64*1280}")
        issue_x(81920 + 8192*c, XF2)
        if c < 9: adv()
    NPRE = cfg.get("npre", 3)
    if cfg.get("ldprio"): a(f"s_setprio {cfg['ldprio']}")
    groups = [[("c", c)] for c in range(10)]
    q = list(range(NX0))
    while q: groups.append([("x", i) for i in q[:3]]); q = q[3:]
    while len(groups) > 10 + NPRE:
        g = groups.pop(); groups[-1] = groups[-1] + g
    pend = []
    def put(g):
        for kind, i in g:
            if kind == "c": issue(i); pend.append(((kind, i), 6))
            else: issue2(i); pend.append(((kind, i), 2))
    def wait_for(item):
        k = [p[0] for p in pend].index(item)
        del pend[:k+1]
        a(f"s_waitcnt vmcnt({sum(p[1] for p in pend)})")
    for i in range(NPRE):
        put(groups.pop(0))
        if i == 0: stamp(a, cfg, 10, grp="st")
    common_srds(a)
    a(f"""
    v_and_b32 v10, 15, v1
    v_lshlrev_b32 v10, 2, v10
    s_lshl_b32 s60, s17, 4
    s_add_u32 s60, s60, s18
    s_lshl_b32 s60, s60, 7
    s_add_u32 s60, s60, {FA_OFF}
    """)
    t = Asm(); attn_setup(t, cfg, early=True)
    su = [l.strip() for l in t.lines if not l.strip().startswith(";")]
    at = cfg.get("esu", [0, 1, 2, 3, 4])
    per = -(-len(su) // len(at))
    def slice_(c):
        if c in at:
            for l in su[:per]: a(l)
            del su[:per]
    slice_(-1)
    for c in range(10):
        wait_for(("c", c))
        if c == 0: stamp(a, cfg, 2)
        if c in (3, 6): stamp(a, cfg, {3: 11, 6: 12}[c], grp="st")
        a("s_barrier")
        if cfg.get("rdyearly") == c: a(f"buffer_load_dword v5, v10, {DBG}, 0 offen sc1"); pend.append((("r", 0), 1))
        if groups: put(groups.pop(0))
        slice_(c)
    if not cfg.get("rdyearly"): a(f"buffer_load_dword v5, v10, {DBG}, 0 offen sc1"); pend.append((("r", 0), 1))
    stamp(a, cfg, 3)
    wait_for(("x", 2))
    a("s_barrier")
    a(f"""
    v_mov_b32 v11, {GO_ADDR}
    v_mov_b32 v7, 0
    ds_write_b32 v11, v7
    s_waitcnt vmcnt(0)
    v_cmp_ne_u32 vcc, 0, v5
    s_waitcnt lgkmcnt(0)
    s_cmp_eq_u64 vcc, -1
    s_cbranch_scc1 L_rdy_l_ok
    """)
    poll(a, "L_rdy_l", 10, DBG, "0")
    if NX0 > 3: a("s_barrier")
    if not cfg.get("flfirst", 1):
        for q in range(NX0, 10): issue2(q)
    a("""
    s_barrier
    s_cmp_eq_u32 s16, 4
    s_cbranch_scc0 L_ld_nofl
    """)
    a(f"""
    s_mov_b64 exec, 1
    buffer_store_dword v{VONE}, v{VZ}, {WS}, s60 offen sc1
    s_mov_b64 exec, -1
    L_ld_nofl:
    """)
    stamp(a, cfg, 4)
    if cfg.get("flfirst", 1):
        for q in range(NX0, 10): issue2(q)
    NX1 = cfg.get("nx1", 10)
    def xbars(extra):
        if NX1 < 10:
            a(f"s_waitcnt vmcnt({2*(10-NX1) + extra})")
            a("s_barrier")
        a(f"s_waitcnt vmcnt({extra})")
        a("s_barrier")
    if cfg.get("prepoll", 0):
        a(f"""
        s_cmp_eq_u32 s16, {cfg.get("epoll", 5)}
        s_cbranch_scc0 L_ld_nopoll
        s_waitcnt vmcnt({cfg.get("ppw", 5)})
        buffer_load_dword v5, v{VPOLL}, {WS}, s33 offen sc1
        buffer_load_dword v3, v{VPOLL+1}, {WS}, s33 offen sc1
        s_mov_b32 s35, 0
        v_mov_b32 v7, 1
        """)
        xbars(2)
        a("s_branch L_poll1e_chk")
        a("L_ld_nopoll:")
    xbars(0)
    a("s_branch L_early")

def phase1_consumer(a, cfg):
    a.c("---------------- consumer waves (become the late attention waves)")
    XA, WA, ST, XF, AC, WR = 8, 10, 12, 16, 48, 96
    XB, WB = 4, 6
    SFLAG = cfg.get("sflag", 6)
    NX0 = cfg.get("nx0", 7)
    XBAR = {3, NX0, cfg.get("nx1", 10)}
    assert (NX0 == 3 or SFLAG >= 5) and SFLAG <= 2 * NX0 - 1
    a(f"""
    v_and_b32 v2, 15, v1
    v_lshrrev_b32 v3, 4, v1
    v_bfe_u32 v4, v1, 1, 3
    v_xor_b32 v4, v4, v3
    v_lshlrev_b32 v4, 4, v4
    v_lshl_add_u32 v{XA}, v2, 7, v4
    v_xor_b32 v{XA+1}, 64, v{XA}
    v_bfe_u32 v4, v1, 2, 2
    v_lshl_add_u32 v5, v3, 3, v4
    v_and_b32 v6, 1, v3
    v_lshl_or_b32 v4, v6, 2, v4
    s_lshl_b32 s3, s16, 1
    v_xor_b32 v4, s3, v4
    v_lshlrev_b32 v4, 5, v4
    v_lshl_add_u32 v4, v5, 8, v4
    v_and_b32 v5, 3, v1
    v_lshl_add_u32 v4, v5, 3, v4
    v_add_u32 v{WA}, 8192, v4
    v_xor_b32 v{WA+1}, 32, v{WA}
    s_lshl_b32 s60, s17, 2
    s_add_u32 s60, s60, s16
    s_lshl_b32 s60, s60, 4
    s_add_u32 s60, s60, s18
    s_lshl_b32 s60, s60, 7
    s_add_u32 s60, s60, {FB_OFF}
    s_mul_i32 s21, s18, 5120
    s_waitcnt lgkmcnt(0)
    """)
    common_srds(a)
    def xread(stage, ks, tt):
        c, s = divmod(ks, 2)
        if stage == 0: ad, off = (XA, SLOT[c]) if SLOT[c] < 81920 else (XB, SLOT[c] - 81920)
        else: ad, off = (XB, c * 8192) if c < 5 else (XA, (c - 5) * 8192)
        return f"ds_read_b128 {vr(XF+16*(ks&1)+4*tt,4)}, v{ad+s} offset:{off+2048*tt}"
    def wread(ks, ct, u):
        c, s = divmod(ks, 2)
        ad, off = (WA, SLOT[c]) if SLOT[c] < 81920 else (WB, SLOT[c] - 81920)
        if c == 9: off -= 8192
        return f"ds_read_b64_tr_b16 {vr(WR+8*ks+4*ct+2*u,2)}, v{ad+ct} offset:{off+(32*s+4*u)*256}"
    def reads(stage, ks):
        if stage == 0:
            return [wread(ks,0,0), wread(ks,0,1), xread(0,ks,0), wread(ks,1,0), wread(ks,1,1), xread(0,ks,1), xread(0,ks,2), xread(0,ks,3)]
        return [xread(1,ks,tt) for tt in range(4)]
    def mid():
        a("s_barrier")
        for r in reads(1, 0): a(r)
    def gemm(isv, epi):
        t = Asm(); attn_setup(t, cfg, early=False)
        su = [l.strip() for l in t.lines if not l.strip().startswith(";")]
        def filler(ks, n):
            while n and su:
                m = re.match(r"v_\w+ v\[?(\d+)", su[0])
                if m and int(m.group(1)) >= WR + 8 * ks: return
                a(su.pop(0)); n -= 1
        for i in range(2):
            a(f"v_add_u32 v{XB+i}, 81920, v{XA+i}")
            a(f"v_add_u32 v{WB+i}, 81920, v{WA+i}")
        a("s_barrier")
        stamp(a, cfg, 2)
        a(".p2align 3")
        for r in reads(0, 0): a(r)
        for stage in range(2):
            for ks in range(20):
                fl = stage == 1 and ks == SFLAG
                nxt = []
                bar = False
                if ks < 19:
                    nxt = reads(stage, ks + 1)
                    if ks % 2 == 1: bar = stage == 0 or ((ks + 1) // 2) in XBAR
                if fl and bar and (ks + 1) // 2 != NX0:
                    a("s_waitcnt lgkmcnt(0)"); a("s_barrier"); a("s_waitcnt vmcnt(0)"); a("s_barrier")
                elif fl and bar:
                    a("s_waitcnt vmcnt(0) lgkmcnt(0)"); a("s_barrier"); a("s_barrier"); a("s_nop 0")
                else:
                    a("s_waitcnt vmcnt(0) lgkmcnt(0)" if fl else "s_waitcnt lgkmcnt(0)")
                    if bar or fl: a("s_barrier")
                    elif stage == 0 or ks < cfg.get("su0", 5): a("s_nop 0")
                if fl: stamp(a, cfg, 4)
                if stage == 0 and ks == 13:
                    for i in range(2): a(f"v_add_u32 v{WB+i}, 8192, v{WB+i}")
                if stage == 1 and ks in (5, 13, 19): stamp(a, cfg, {5: 10, 13: 11, 19: 12}[ks], grp="p1")
                per = 2 if stage == 0 else 1
                for i in range(8):
                    tt, ct = i >> 1, (i & 1) ^ ((i >> 1) & 1)
                    acc = AC + 8 * tt + 4 * ct
                    x, w = vr(XF+16*(ks&1)+4*tt, 4), vr(WR+8*ks+4*ct, 4)
                    A, B = (x, w) if isv else (w, x)
                    c = "0" if ks == 0 else vr(acc, 4)
                    a(f"v_mfma_f32_16x16x32_bf16 {vr(acc,4)}, {A}, {B}, {c}")
                    if stage == 1 and ks >= cfg.get("su0", 5) and su and su[0].startswith("s_"): filler(ks, 1)
                    for r in nxt[per*i:per*i+per]: a(r)
                    if stage == 1 and ks >= cfg.get("su0", 5): filler(ks, 1 if nxt[i:i+1] else 2)
            if stage == 0:
                stamp(a, cfg, 3)
                a(f"v_add_u32 v{XA}, 122880, v{XA}")
                a(f"v_add_u32 v{XA+1}, 122880, v{XA+1}")
                epi(0)
                stamp(a, cfg, 8, grp="p1")
                if cfg.get("ackdiag"): a("s_waitcnt vmcnt(0)")
                if cfg.get("x0at", 99) > 7: mid()
                stamp(a, cfg, 9, grp="p1")
                a(".p2align 3")
            else:
                a("s_nop 1")
                epi(1)
                filler(20, 999)
    a("""
    s_cmp_lt_u32 s17, 10
    s_cbranch_scc0 L_qkv_v
    """)
    a.c("Q/K tiles: G = (cb%5)*32 + 8w + 4ct + g ; head = G/5 ; pos = G%5")
    a(f"""
    s_cmp_lt_u32 s17, 5
    s_cselect_b32 s25, 0, 81920
    s_cselect_b32 s12, {CSCALE}, 1.0
    s_cselect_b32 s23, 0, {KV_OFF}
    s_cselect_b32 s3, 0, 5
    s_add_u32 s24, s25, {HQ-2560}
    s_max_u32 s22, s25, 2560
    s_mov_b32 s13, s12
    s_add_u32 s21, s21, s23
    s_add_u32 s62, s22, s21
    s_sub_u32 s3, s17, s3
    s_lshl_b32 s3, s3, 2
    s_add_u32 s3, s3, s16
    s_lshl_b32 s3, s3, 3
    v_add_u32 v6, s3, v3
    v_lshlrev_b32 v4, 3, v2
    """)
    for ct in range(2):
        a(f"""
        v_add_u32 v7, {4*ct}, v6
        v_mul_u32_u24 v5, 52429, v7
        v_lshrrev_b32 v5, 18, v5
        v_lshl_add_u32 v7, v7, 9, v4
        v_mad_u32_u24 v{ST+ct}, v5, s24, v7
        """)
    late_qk, late_v = [], []
    def epi_qk(stage):
        for i in range(8):
            tt, ct = i >> 1, (i & 1) ^ ((i >> 1) & 1)
            acc = AC + 8 * tt + 4 * ct
            d = 80 + 2 * i
            a(f"v_pk_mul_f32 {vr(acc,2)}, {vr(acc,2)}, s[12:13]")
            a(f"v_pk_mul_f32 {vr(acc+2,2)}, {vr(acc+2,2)}, s[12:13]")
            a(f"v_cvt_pk_bf16_f32 v{d}, v{acc}, v{acc+1}")
            a(f"v_cvt_pk_bf16_f32 v{d+1}, v{acc+2}, v{acc+3}")
            st = f"buffer_store_dwordx2 {vr(d,2)}, v{ST+ct}, {WS}, s{62 if stage else 21} offen offset:{128*tt} sc1"
            if stage == 0: a(st)
            else: late_qk.append(st)
            if stage == 0 and i == cfg.get("x0at", 99): mid()
    def tail(stores, name):
        stamp(a, cfg, 5)
        a("s_barrier")
        a(f"{name}:")
        for st in stores: a(st)
        a("s_mov_b32 s63, 1")
        a("s_branch L_late_st")
    gemm(False, epi_qk)
    tail(late_qk, "L_end_qk")
    page(a, cfg, "v")
    a("L_qkv_v:")
    a.c("V tiles: col = (cb-10)*128 + 32w + 16ct + n ; head = col/20 ; d = col%20")
    a(f"""
    s_sub_u32 s3, s17, 10
    s_lshl_b32 s3, s3, 2
    s_add_u32 s3, s3, s16
    s_lshl_b32 s3, s3, 5
    v_add_u32 v6, s3, v2
    s_add_u32 s21, s21, {KV_OFF+2560}
    s_add_u32 s62, s21, 81920
    v_mul_u32_u24 v4, 320, v3
    s_mov_b32 s24, {HKV - 320}
    """)
    for ct in range(2):
        a(f"""
        v_add_u32 v7, {16*ct}, v6
        v_mul_u32_u24 v5, 13108, v7
        v_lshrrev_b32 v5, 18, v5
        v_lshl_add_u32 v7, v7, 4, v4
        v_mad_u32_u24 v{ST+ct}, v5, s24, v7
        """)
    def epi_v(stage):
        a("s_nop 2")
        for P in range(2):
            for ct in range(2):
                d = 80 + 8 * P + 4 * ct
                for ab in range(2):
                    acc = AC + 8 * (2 * P + ab) + 4 * ct
                    a(f"v_cvt_pk_bf16_f32 v{d+2*ab}, v{acc}, v{acc+1}")
                    a(f"v_cvt_pk_bf16_f32 v{d+2*ab+1}, v{acc+2}, v{acc+3}")
                st = f"buffer_store_dwordx4 {vr(d,4)}, v{ST+ct}, {WS}, s{62 if stage else 21} offen offset:{1280*P} sc1"
                if stage == 0: a(st)
                else: late_v.append(st)
                if stage == 0 and 2 * P + ct == cfg.get("x0at", 99) // 2: mid()
    gemm(True, epi_v)
    tail(late_v, "L_end_v")

SA, SB = 178, 210
O0, O1 = 146, 162
QM0, QM1, QT = 242, 246, 250
KM, KT = 16, 24
VV, SENT, WOA = 96, 112, 116
VL16, VQ, VQT, VPOLL = 121, 122, 123, 124
VOM, VOT, VXW, VXR, VONE, VZ = 126, 127, 128, 129, 130, 131
IDX, VKE, VKO, VT, VV0, VV1 = 132, 133, 134, 135, 136, 137

P3 = 138
PK = 70
def p3_kh(a, cfg, d):
    a(f"s_lshr_b32 s{d}, s16, 2")
    if cfg.get("khswap"):
        a(f"""
        s_bfe_u32 s3, s2, 0x10005
        s_xor_b32 s{d}, s{d}, s3
        """)
def p3_setup(a, cfg):
    p3_kh(a, cfg, 30)
    a(f"""
    s_and_b32 s31, s16, 3
    s_mul_i32 s3, s30, 51200
    v_lshrrev_b32 v2, 5, v1
    v_bfe_u32 v3, v1, 4, 1
    v_bfe_u32 v14, v1, 2, 2
    v_mul_u32_u24 v15, 20, v2
    v_lshl_add_u32 v15, v3, 2, v15
    v_add_u32 v15, v15, v14
    v_mul_u32_u24 v15, 160, v15
    v_and_b32 v2, 3, v1
    v_lshl_add_u32 v2, v2, 3, s3
    v_add_u32 v{P3}, v15, v2
    v_lshrrev_b32 v3, 4, v1
    v_mul_u32_u24 v15, 20, v3
    v_add3_u32 v15, v15, 16, v14
    v_mul_u32_u24 v15, 160, v15
    v_add_u32 v{P3+1}, v15, v2
    s_mul_i32 s3, s31, 5120
    s_add_u32 s3, s3, 143360
    v_add_u32 v{P3+2}, s3, v{VL16}
    s_mul_i32 s3, s31, 3584
    s_add_u32 s3, s3, 102400
    v_and_b32 v2, 15, v1
    v_mul_u32_u24 v2, 176, v2
    v_lshl_add_u32 v2, v3, 3, v2
    v_add_u32 v{P3+3}, s3, v2
    s_and_b32 s40, s2, 7
    s_lshl_b32 s41, s40, 2
    s_bfe_u32 s30, s2, 0x20003
    s_add_u32 s41, s41, s30
    s_lshl_b32 s40, s40, 12
    s_add_u32 s40, s40, {F2_OFF}
    s_lshl_b32 s41, s41, 2
    s_add_u32 s41, s41, s31
    s_mul_i32 s41, s41, 20480
    v_lshrrev_b32 v2, 1, v1
    v_lshlrev_b32 v{P3+7}, 7, v2
    """)
    for i in range(5):
        a(f"""
        v_add_u32 v2, {64*i}, v1
        v_mul_u32_u24 v3, 6554, v2
        v_lshrrev_b32 v3, 16, v3
        v_mul_u32_u24 v14, {1280-160}, v3
        v_lshl_add_u32 v{WOA+i}, v2, 4, v14
        """)
        if i < 3:
            a(f"""
            v_add_u32 v14, v2, v3
            v_lshl_add_u32 v{P3+4+i}, v14, 4, s3
            """)

def attn_setup(a, cfg, early, keep5=False):
    late = 0 if early else 1
    a.c("attention ids: s17=head s18=q pair s19=key half s21=KV base of head")
    a(f"""
    s_and_b32 s17, s2, 7
    s_lshl_b32 s17, s17, 2
    s_lshr_b32 s17, 0x75643120, s17
    s_and_b32 s17, s17, 7
    s_lshl_b32 s17, s17, 2
    s_bfe_u32 s3, s2, 0x20003
    s_add_u32 s17, s17, s3
    s_lshr_b32 s29, s2, 5
    s_lshl_b32 s18, s29, 2
    s_and_b32 s3, s16, 2
    s_add_u32 s18, s18, s3
    s_add_u32 s18, s18, {late}
    s_and_b32 s19, s16, 1
    s_mul_i32 s20, s19, 5120
    v_and_b32 v2, 31, v1
    v_lshrrev_b32 v3, 5, v1
    v_lshlrev_b32 v14, 3, v2
    v_lshl_add_u32 v{VQ}, v3, 9, v14
    v_add_u32 v{VKE}, s20, v{VQ}
    v_add_u32 v{VKO}, 256, v{VKE}
    v_lshlrev_b32 v14, 3, v1
    v_add_u32 v{VT}, s20, v14
    s_lshl_b32 s3, s19, 8
    v_xor_b32 v{VQT}, s3, v14
    v_mul_u32_u24 v15, 320, v3
    v_lshl_add_u32 v15, v2, 4, v15
    s_add_u32 s3, s20, 2560
    v_add_u32 v{VV0}, s3, v15
    v_add_u32 v{VV1}, 40960, v{VV0}
    v_lshlrev_b32 v{VL16}, 4, v1
    v_mov_b32 v{IDX}, 0xdddddddd
    s_mov_b32 s24, 0x000fffff
    s_mov_b32 s25, 0x000fffff
    v_cmp_eq_u32 vcc, 20, v2
    v_mov_b32 v15, 0x3f803f80
    s_mul_i32 s21, s17, {HKV}
    v_cndmask_b32 v{VV}, 0, v15, vcc
    s_add_u32 s21, s21, {KV_OFF}
    """)
    a(f"v_mov_b32 v{VV+1}, v{VV}")
    for i in range(1, 8): a(f"v_mov_b64 {vr(VV+2*i,2)}, {vr(VV,2)}")
    a.c("s22/s23: Q soffsets role0/role1, s26: Q pair base ; s27: first token block of this wave's K/V units ; s28: dma lds dest")
    a(f"""
    s_mul_i32 s26, s18, 2560
    s_mul_i32 s3, s17, {HQ}
    s_add_u32 s26, s26, s3
    s_lshl_b32 s3, s19, 8
    s_add_u32 s22, s26, s3
    s_xor_b32 s3, s3, 256
    s_add_u32 s23, s26, s3
    s_and_b32 s28, s16, 3
    s_mul_i32 s27, s29, {cfg.get("krot", 0)}
    s_add_u32 s27, s27, s28
    s_mul_i32 s28, s28, 5120
    s_add_u32 s28, s28, {late*81920}
    s_add_u32 s61, s21, {late*81920}
    """)
    a.c("O tile of this wave = 2*pair + (1^kh): s36/s37 store offsets, s38 flag 'filler in place', s39 flag 'stores acknowledged'")
    a(f"""
    s_lshl_b32 s30, s18, 1
    s_xor_b32 s31, s19, 1
    s_add_u32 s30, s30, s31
    s_mul_i32 s37, s30, 40960
    s_add_u32 s37, s37, {O_OFF}
    s_lshl_b32 s36, s17, 9
    s_add_u32 s36, s36, s37
    s_lshl_b32 s3, s17, 7
    s_add_u32 s37, s37, s3
    s_add_u32 s37, s37, 16384
    s_lshr_b32 s38, s2, 5
    s_lshl_b32 s38, s38, 12
    s_add_u32 s38, s38, s3
    s_add_u32 s38, s38, {F2_OFF}
    s_add_u32 s39, s38, {F3_OFF - F2_OFF}
    v_bfe_u32 v2, v1, 4, 1
    v_mul_u32_u24 v2, 20480, v2
    v_and_b32 v3, 15, v1
    v_lshl_add_u32 v{VOT}, v3, 3, v2
    v_lshl_add_u32 v2, v3, 4, v2
    v_lshrrev_b32 v3, 5, v1
    v_lshl_add_u32 v{VOM}, v3, 8, v2
    s_mul_i32 s3, s16, 3072
    s_add_u32 s3, s3, 102400
    v_add_u32 v{VXW}, s3, v{VL16}
    s_xor_b32 s3, s16, 1
    s_mul_i32 s3, s3, 3072
    s_add_u32 s3, s3, 102400
    v_add_u32 v{VXR}, s3, v{VL16}
    v_mov_b64 {vr(SENT,2)}, -1
    v_mov_b64 {vr(SENT+2,2)}, -1
    v_mov_b32 v{VONE}, 1
    v_mov_b32 v{VZ}, 0
    """)
    p3_setup(a, cfg)
    sh, sec = (7, 5) if early else (5, 20)
    a.c("poll addresses of the polling wave: K/V producers of all 16 token blocks, Q producers of both pairs")
    a(f"""
    s_mul_i32 s30, s17, 20
    s_add_u32 s31, s30, 19
    s_lshr_b32 s30, s30, {sh}
    s_lshr_b32 s31, s31, {sh}
    s_sub_u32 s31, s31, s30
    v_and_b32 v2, 1, v1
    v_mul_u32_u24 v2, s31, v2
    v_add_u32 v2, s30, v2
    v_lshrrev_b32 v14, 5, v1
    v_mul_u32_u24 v3, {sec}, v14
    v_add3_u32 v3, v2, v3, {sec}
    v_bfe_u32 v15, v1, 1, 4
    v_lshl_add_u32 v3, v3, 4, v15
    v_lshlrev_b32 v{VPOLL}, 7, v3
    v_bfe_u32 v2, v1, 4, 1
    v_mul_u32_u24 v2, s31, v2
    v_add_u32 v2, s30, v2
    s_lshr_b32 s3, s2, 5
    s_lshl_b32 s3, s3, 1
    v_lshl_add_u32 v2, v2, 4, v14
    v_add_u32 v2, s3, v2
    v_lshlrev_b32 v{VPOLL+1}, 7, v2
    s_mov_b32 s33, {FA_OFF if early else FB_OFF}
    """)
    for i in range(16): a(f"v_mov_b64 {vr(O0+2*i,2)}, 0")

def wait_stage(a, cfg, tag, wave):
    a(f"""
    s_mov_b32 s35, 0
    v_mov_b32 v7, 1
    s_cmp_eq_u32 s16, {wave}
    s_cbranch_scc0 L_gw{tag}
    """)
    paced_poll(a, cfg, f"L_poll1{tag}", [VPOLL, VPOLL+1], "s33")
    a(f"""
    ds_write_b32 v11, v7
    s_branch L_gw{tag}_ok
    L_gw{tag}:
    {"s_sleep " + str(cfg.get('gs' + tag, 1)) if cfg.get('gs' + tag, 1) else ""}
    ds_read_b32 v7, v11
    s_waitcnt lgkmcnt(0)
    v_readfirstlane_b32 s34, v7
    s_cmp_lg_u32 s34, 0
    """)
    spin_tail(a, f"L_gw{tag}", mult=16)

def kread(t):
    tl = t & 15
    o = 20 * (tl >> 1)
    return f"ds_read2st64_b64 {vr(KM+4*(t&1),4)}, v{VKO if t & 1 else VKE} offset0:{o} offset1:{o+2}"
def tread(b):
    o = 40 * (b & 3)
    return f"ds_read2st64_b64 {vr(KT+4*(b&1),4)}, v{VT} offset0:{o+4} offset1:{o+24}"
def vread(t, f):
    tl = t & 15
    ad = VV0 if tl < 8 else VV1
    return f"ds_read_b128 {vr(VV+8*(t&1)+4*f,4)}, v{ad} offset:{10240*((tl>>1)&3)+1280*(t&1)+640*f}"
def Tm(t, dst):
    b, T = divmod(t, 4)
    return f"v_mfma_f32_32x32x4_2b_bf16 {vr(dst,32)}, {vr(KT+4*(b&1)+2*(T>>1),2)}, {vr(QT,2)}, 0 cbsz:1 abid:{T&1}"
def Mm(t, dst, r):
    return f"v_mfma_f32_32x32x16_bf16 {vr(dst+16*r,16)}, {vr(KM+4*(t&1),4)}, {vr(QM1 if r else QM0,4)}, {vr(dst+16*r,16)}"
def Pm(o, t, f, s):
    return f"v_smfmac_f32_32x32x32_bf16 {vr(o,16)}, {vr(VV+8*(t&1)+4*f,4)}, {vr(s,8)}, v{IDX}"

def qloads(a):
    a(f"""
    buffer_load_dwordx2 {vr(QT,2)}, v{VQT}, {WS}, s26 offen offset:2048 sc1
    buffer_load_dwordx2 {vr(QM0,2)}, v{VQ}, {WS}, s22 offen sc1
    buffer_load_dwordx2 {vr(QM0+2,2)}, v{VQ}, {WS}, s22 offen offset:1024 sc1
    buffer_load_dwordx2 {vr(QM1,2)}, v{VQ}, {WS}, s23 offen sc1
    buffer_load_dwordx2 {vr(QM1+2,2)}, v{VQ}, {WS}, s23 offen offset:1024 sc1
    """)
def kv_dma(i, back=0):
    g = [f"""
        s_add_u32 s3, s27, {4*i}
        s_and_b32 s3, s3, 15
        s_mul_i32 s3, s3, 5120
        {f"s_sub_u32 s3, s3, {back}" if back else ""}
        s_add_u32 m0, s28, {(i*20480 - back) & 0xffffffff}
        s_add_u32 s29, s61, s3
        buffer_load_dwordx4 v{VL16}, {WS}, s29 offen sc1 lds"""]
    for j in range(1, 4):
        g.append(f"buffer_load_dwordx4 v{VL16}, {WS}, s29 offen offset:{1024*j} sc1 lds")
    g.append(f"""
        s_add_u32 m0, s28, {(i*20480+4096 - back) & 0xffffffff}
        s_add_u32 s29, s29, 4096
        buffer_load_dwordx4 v{VL16}, {WS}, s29 offen sc1 lds""")
    return g
def wo_dma(nper):
    g = []
    for p in range(nper):
        for i in range(5):
            pre = ""
            if i == 0:
                pre = f"""
                s_add_u32 s31, s30, {p*8*32*1280}
                """
            g.append(pre + f"""
                s_add_u32 m0, s32, {p*8*5120 + 1024*i}
                s_nop 0
                buffer_load_dwordx4 v{WOA+i}, {WO}, s31 offen lds
                s_nop 0""")
    return g

def attn_loop(a, cfg, early):
    tag = "e" if early else "l"
    direct = early and cfg.get("direct", 0)
    wo_ids = f"""
    s_lshr_b32 s3, s2, 5
    s_mul_i32 s30, s3, 160
    s_mul_i32 s3, s16, {32*1280}
    s_add_u32 s30, s30, s3
    s_mul_i32 s32, s16, 5120
    """
    if direct:
        a("s_mov_b64 exec, s[24:25]"); a(vread(0, 0)); a(vread(0, 1)); a("s_mov_b64 exec, -1")
        a(kread(1))
        a(f"ds_read_b64 {vr(KT+2,2)}, v{VT} offset:{24*512}")
    else:
        a(f"s_setprio {3 if early else 2}")
        a(tread(0)); a(kread(0)); a(kread(1))
        a("s_mov_b64 exec, s[24:25]"); a(vread(0, 0)); a(vread(0, 1)); a("s_mov_b64 exec, -1")
        a.c("wo dma: s30 source, s32 lds dest")
        a(wo_ids)
        a(f"s_waitcnt lgkmcnt({0 if cfg.get('stamp') else 4})")
        if cfg.get("lp", {}).get("pro"): a("s_memtime s[70:71]")
        a(Tm(0, SA)); a("s_nop 15"); a("s_nop 1"); a("s_waitcnt lgkmcnt(3)")
        a(Mm(0, SA, 0)); a(Mm(0, SA, 1)); a("s_nop 10")
    dma = {}
    TB = cfg.get("tb", 14) if early else 14
    be, bl = cfg.get("be", [18, 18, 26]), cfg.get("bl", [18, 18, 26])
    assert (be[0] == be[1]) == (bl[0] == bl[1])
    assert be[0] <= 18 and min(be[1], bl[1]) >= 15 and min(be[2], bl[2]) >= 25
    if early:
        B2, C1, C2 = be
        bars = {2: "vmcnt(0)", 6: None, TB: None, C1: None, C2: None}; bars[B2] = "vmcnt(0)"; assert B2 == C1
        if cfg.get("a4"): bars[cfg["a4"]] = None
        prio = cfg.get("prio_e", {str(TB): 1, "18": 3, "24": 1, "26": 3, "29": 2, "31": 1})
    else:
        B2, C1, C2 = bl
        bars = {C1: None, C2: None}
        bars[B2] = "vmcnt(0)"
        b0 = cfg.get("bl0", 0)
        if b0 or cfg.get("u1in", 1): bars[b0] = None
        sp = cfg.get("spread", 2)
        q = (kv_dma(1) if cfg.get("u1in", 1) else []) + kv_dma(2) + kv_dma(3); t0 = b0 + cfg.get("sp0", 0)
        while q: dma[t0] = q[:sp]; q = q[sp:]; t0 += 1
        assert t0 < B2
        assert B2 >= b0 + 3
        prio = cfg.get("prio_l", {"18": 2, "25": 0, "26": 3, "29": 2, "30": 1, "31": 0})
    prio = {int(k): v for k, v in prio.items()}
    wo = wo_dma(2 if early else 3)
    for i in range(5): dma[C1 + i] = wo[2*i:2*i+2]
    for i in range(3): dma[C2 + i] = wo[10+2*i:12+2*i]
    if cfg.get("opt", 1):
        ts = cfg.get("tsent", [16, 9])[0 if early else 1]
        assert not dma.get(ts)
        dma[ts] = [f"buffer_store_dwordx4 {vr(SENT,4)}, v{VOM}, {WS}, s36 offen sc1",
            f"""s_mov_b32 exec_hi, 0
            buffer_store_dwordx2 {vr(SENT,2)}, v{VOT}, {WS}, s37 offen sc1
            s_mov_b32 exec_hi, -1"""]
    if early:
        def w4(body, lab): return f"s_cmp_eq_u32 s16, 4\ns_cbranch_scc0 {lab}\n{body}\n{lab}:"
        assert not dma.get(C1 + 5) and not dma.get(28)
        dma[C1 + 5] = [w4(f"""s_mov_b64 exec, 1
            buffer_store_dword v{VONE}, v{VZ}, {WS}, s38 offen sc1
            s_mov_b64 exec, -1""", "L_r_set")]
        assert not dma.get(27) and C2 <= 27
        dma[27] = [f"v_mov_b32 v11, {CNT_ADDR}\nds_write_b32 v11, v{VZ}"]
        dma[28] = [w4(f"buffer_load_dword v5, v{P3+7}, {WS}, s40 offen sc1", "L_r_get")]
    nt = cfg.get("nt", ["e", 31, 0])
    if cfg.get("notice", 9) == 4 and nt[0] == tag:
        tn = Asm(); notice(tn, dict(cfg, nw=4 if early else 0), False)
        assert not dma.get(nt[1]) and nt[1] > C2
        dma[nt[1]] = ["" if i != nt[2] else "\n".join(tn.lines) for i in range(5)]
    a(".p2align 3")
    for t in range(32):
        cur, nxt = (SA, SB) if t % 2 == 0 else (SB, SA)
        e = iter(range(32))
        def E(n):
            for _ in range(n):
                i = next(e); a(f"v_exp_f32 v{cur+i}, v{cur+i}")
        dq = list(dma.get(t, []))
        def D(n):
            for _ in range(n):
                if dq: a(dq.pop(0))
        many = len(dq) > 2
        a.c(f"step {t}")
        E(2)
        if t > 0: a(Pm(O1, t-1, 1, nxt+24))
        vm = bars.get(t)
        if direct and t == 0: a("s_nop 0")
        else: a(f"s_waitcnt {vm + ' ' if vm else ''}lgkmcnt(0)")
        n4 = 1
        lp = cfg.get("lp", {}).get(tag + str(t))
        if lp and lp[0]: a(f"s_memtime s[{64+2*lp[0]}:{65+2*lp[0]}]")
        if t in bars: a("s_barrier"); n4 += 1
        if lp and lp[1]: a(f"s_memtime s[{64+2*lp[1]}:{65+2*lp[1]}]")
        if t in prio: a(f"s_setprio {prio[t]}"); n4 += 1
        if n4 % 2: a("s_nop 0")
        if t == 14:
            for r in (VKE, VKO, VT, VV0): a(f"v_add_u32 v{r}, 81920, v{r}")
        if t == 16: a(f"v_add_u32 v{VV1}, 81920, v{VV1}")
        if TB == 15 and t == 15: a(tread(4)); a(kread(16))
        if t + 2 < 32 and not (TB == 15 and t == 14): a(kread(t+2))
        if many: D(1)
        E(4)
        if TB == 15 and t == 15: a(f"s_waitcnt lgkmcnt({0 if cfg.get('lp') else 1})"); a("s_nop 0")
        if t < 31: a(Tm(t+1, nxt))
        E(8)
        if direct and t == 0: a(f"s_waitcnt lgkmcnt({0 if cfg.get('stamp') else 1})"); a("s_nop 0")
        a(Pm(O0, t, 0, cur))
        one = early and t < cfg.get("vone", 16)
        if one: a("s_mov_b64 exec, s[24:25]"); a(vread(t+1, 0)); a(vread(t+1, 1)); a("s_mov_b64 exec, -1")
        elif t < 31: a("s_mov_b64 exec, s[24:25]"); a(vread(t+1, 0)); a("s_mov_b64 exec, -1")
        if many: D(1)
        E(4)
        a(Pm(O0, t, 1, cur+8))
        if t < 31 and not one: a("s_mov_b64 exec, s[24:25]"); a(vread(t+1, 1)); a("s_mov_b64 exec, -1")
        if many: D(1)
        E(4)
        if t < 31: a(Mm(t+1, nxt, 0))
        D(1)
        E(4)
        a(Pm(O1, t, 0, cur+16))
        if t % 4 == 2 and t // 4 < 7 and not (TB == 15 and t == 14): a(tread(t//4+1))
        D(1)
        E(4)
        if t < 31: a(Mm(t+1, nxt, 1))
        else:
            a.c("hand the role-0 tile to the partner wave (other key half)")
            for i in (2, 0, 1): a(f"ds_write_b128 v{VXW}, {vr(O0+4*i,4)} offset:{1024*i}")
        E(2)
        assert not dq

def attn_epilogue(a, cfg):
    stamp(a, cfg, 8)
    if cfg.get("lp"): a("s_memtime s[88:89]")
    a(f"""
    s_setprio 0
    s_nop 0
    {Pm(O1, 31, 1, SB+24)}
    """)
    if cfg.get("notice", 9) == 3:
        a("s_waitcnt vmcnt(0)"); notice(a, cfg, False); a("s_waitcnt lgkmcnt(0)")
    elif cfg.get("notice", 9) == 4:
        a(f"""
        s_waitcnt vmcnt(1) lgkmcnt(0)
        s_cmp_eq_u32 s16, {4 if cfg.get("nt", ["e", 31, 0])[0] == "e" else 0}
        s_cbranch_scc1 L_epi_w
        s_waitcnt vmcnt(0)
        L_epi_w:
        """)
    else: a("s_waitcnt vmcnt(0) lgkmcnt(0)")
    a(f"""
    s_barrier
    ds_read_b128 {vr(O0+8,4)}, v{VXR} offset:2048
    ds_read_b128 {vr(O0,4)}, v{VXR}
    ds_read_b128 {vr(O0+4,4)}, v{VXR} offset:1024
    """)
    if cfg.get("opt", 1) and cfg.get("notice", 9) == 2: notice(a, cfg, False)
    a("""
    s_nop 6
    s_waitcnt lgkmcnt(2)
    """)
    a(f"""
    v_pk_add_f32 {vr(O1+8,2)}, {vr(O1+8,2)}, {vr(O0+8,2)}
    v_pk_add_f32 {vr(O1+10,2)}, {vr(O1+10,2)}, {vr(O0+10,2)}
    v_mov_b32 v7, v{O1+8}
    v_mov_b32 v9, v{O1+8}
    s_mov_b32 s30, 0x21800000
    s_waitcnt lgkmcnt(1)
    v_permlane32_swap_b32 v7, v9
    v_pk_add_f32 {vr(O1,2)}, {vr(O1,2)}, {vr(O0,2)}
    v_pk_add_f32 {vr(O1+2,2)}, {vr(O1+2,2)}, {vr(O0+2,2)}
    s_mov_b32 s31, 0x5d800000
    s_waitcnt lgkmcnt(0)
    v_pk_add_f32 {vr(O1+4,2)}, {vr(O1+4,2)}, {vr(O0+4,2)}
    v_pk_add_f32 {vr(O1+6,2)}, {vr(O1+6,2)}, {vr(O0+6,2)}
    """)
    a.c("run-time check of the shift-free softmax: row sum in [2^-60, 2^60], finite accumulators; else redo with the true row max")
    a(f"""
    v_cmp_le_f32 s[32:33], s30, v9
    v_cmp_ge_f32 s[34:35], s31, v9
    v_pk_mul_f32 v[10:11], {vr(O1+8,2)}, 0
    """)
    for i in (10, 0, 2, 4, 6): a(f"v_pk_fma_f32 v[10:11], {vr(O1+i,2)}, 0, v[10:11]")
    a(f"""
    s_and_b64 s[32:33], s[32:33], s[34:35]
    v_cmp_o_f32 vcc, v10, v11
    v_rcp_f32 v8, v9
    s_and_b64 s[32:33], s[32:33], vcc
    s_cmp_eq_u64 s[32:33], -1
    s_cbranch_scc0 L_attn_slow
    L_attn_fin:
    """)
    for i in range(4): a(f"v_pk_mul_f32 {vr(O1+2*i,2)}, {vr(O1+2*i,2)}, v[8:9] op_sel_hi:[1,0]")
    for i in range(4): a(f"v_cvt_pk_bf16_f32 v{PK+i}, v{O1+2*i}, v{O1+2*i+1}")
    a(f"buffer_store_dwordx4 {vr(PK,4)}, v{VOM}, {WS}, s36 offen sc1")
    for i in range(4, 6): a(f"v_pk_mul_f32 {vr(O1+2*i,2)}, {vr(O1+2*i,2)}, v[8:9] op_sel_hi:[1,0]")
    for i in range(4, 6): a(f"v_cvt_pk_bf16_f32 v{PK+i}, v{O1+2*i}, v{O1+2*i+1}")
    a(f"""
    s_mov_b32 exec_hi, 0
    buffer_store_dwordx2 {vr(PK+4,2)}, v{VOT}, {WS}, s37 offen sc1
    s_mov_b32 exec_hi, -1
    """)
    stamp(a, cfg, 9)
    if cfg.get("opt", 1) and cfg.get("notice", 9) < 2: notice(a, cfg, cfg.get("notice", 9) == 0)

def notice(a, cfg, bar):
    a.c("early notice: readers check the tiles for the filler words written before and fall back to the acknowledged flags")
    if bar: a("s_barrier")
    a(f"""
    s_cmp_eq_u32 s16, {cfg.get("nw", 4)}
    s_cbranch_scc0 L_nonotice
    s_mov_b64 exec, 1
    buffer_store_dword v{VONE}, v{VZ}, {WS}, s38 offen sc1
    s_mov_b64 exec, -1
    L_nonotice:
    """)

def attn_slow(a):
    a.c("exact path: softmax with the true row maximum for the query tile this wave keeps")
    a("L_attn_slow:")
    a(f"""
    v_and_b32 v2, 31, v1
    v_lshlrev_b32 v14, 3, v2
    v_lshrrev_b32 v3, 5, v1
    v_mul_u32_u24 v3, 320, v3
    v_lshl_add_u32 v15, v2, 4, v3
    v_mov_b32 v10, 0xff800000
    s_mov_b32 s34, 0
    """)
    for i in range(16): a(f"v_mov_b32 v{O1+i}, 0")
    a(f"""
    L_slow_pass:
    s_mov_b32 s35, 0
    L_slow_tile:
    s_lshr_b32 s30, s35, 1
    s_mul_i32 s30, s30, 5120
    s_add_u32 s30, s30, s21
    s_and_b32 s3, s35, 1
    s_mul_i32 s31, s3, 1280
    s_add_u32 s31, s31, s30
    s_lshl_b32 s3, s3, 8
    s_add_u32 s30, s30, s3
    buffer_load_dwordx2 {vr(KT,2)}, v14, {WS}, s30 offen offset:2048 sc1
    buffer_load_dwordx2 {vr(KM,2)}, v{VQ}, {WS}, s30 offen sc1
    buffer_load_dwordx2 {vr(KM+2,2)}, v{VQ}, {WS}, s30 offen offset:1024 sc1
    s_mov_b64 exec, s[24:25]
    buffer_load_dwordx4 {vr(VV,4)}, v15, {WS}, s31 offen offset:2560 sc1
    buffer_load_dwordx4 {vr(VV+4,4)}, v15, {WS}, s31 offen offset:3200 sc1
    s_mov_b64 exec, -1
    s_waitcnt vmcnt(0)
    v_mfma_f32_32x32x4_2b_bf16 {vr(SA,32)}, {vr(KT,2)}, {vr(QT,2)}, 0
    s_nop 15
    s_nop 3
    v_mfma_f32_32x32x16_bf16 {vr(SA+16,16)}, {vr(KM,4)}, {vr(QM1,4)}, {vr(SA+16,16)}
    s_nop 15
    s_cmp_eq_u32 s34, 0
    s_cbranch_scc0 L_slow_pv
    """)
    for i in range(8): a(f"v_max3_f32 v10, v10, v{SA+16+2*i}, v{SA+17+2*i}")
    a("s_branch L_slow_next")
    a("L_slow_pv:")
    for i in range(16): a(f"v_sub_f32 v{SA+16+i}, v{SA+16+i}, v10")
    for i in range(16): a(f"v_exp_f32 v{SA+16+i}, v{SA+16+i}")
    a(f"""
    s_nop 3
    v_smfmac_f32_32x32x32_bf16 {vr(O1,16)}, {vr(VV,4)}, {vr(SA+16,8)}, v{IDX}
    v_smfmac_f32_32x32x32_bf16 {vr(O1,16)}, {vr(VV+4,4)}, {vr(SA+24,8)}, v{IDX}
    s_nop 15
    L_slow_next:
    s_add_u32 s35, s35, 1
    s_cmp_lt_u32 s35, 64
    s_cbranch_scc1 L_slow_tile
    s_cmp_eq_u32 s34, 0
    s_cbranch_scc0 L_slow_done
    v_mov_b32 v11, v10
    s_nop 1
    v_permlane32_swap_b32 v10, v11
    s_nop 1
    v_max_f32 v10, v10, v11
    s_mov_b32 s34, 1
    s_branch L_slow_pass
    L_slow_done:
    v_mov_b32 v7, v{O1+8}
    v_mov_b32 v9, v{O1+8}
    s_nop 1
    v_permlane32_swap_b32 v7, v9
    s_nop 1
    v_rcp_f32 v8, v9
    s_branch L_attn_fin
    """)

TAIL = []
def phase3(a, cfg):
    OF, AC, WF = 16, 56, 76
    VW, VWT, VPB, VSW, VSR, VL, VL8 = 6, 7, 8, 9, 10, 0, 4
    VOS = [13, 14, 15]
    VW2, VWT2 = 3, 5
    OPT = cfg.get("opt", 1)
    def reads(ks):
        hf, p = divmod(ks, 5)
        r = []
        for t in range(5):
            for u in range(2):
                if p < 4: ad, off = (VW2 if hf else VW), (40*p + 8*u)*160 + 32*t
                else: ad, off = (VWT2 if hf else VWT), 80*u*160 + 32*t
                r.append(f"ds_read_b64_tr_b16 {vr(WF+20*(ks%9)+4*t+2*u,2)}, v{ad} offset:{off}")
        return r
    def unpack():
        a(f"""
        s_getreg_b32 s30, hwreg(HW_REG_XCC_ID, 0, 1)
        s_xor_b32 s30, s30, s2
        {"s_xor_b32 s30, s30, 1" if cfg.get("hinv") else ""}
        s_and_b32 s30, s30, 1
        s_mul_i32 s31, s30, 25600
        s_sub_u32 s32, 25600, s31
        v_add_u32 v{VW}, s31, v{P3}
        v_add_u32 v{VWT}, s31, v{P3+1}
        v_add_u32 v{VW2}, s32, v{P3}
        v_add_u32 v{VWT2}, s32, v{P3+1}
        """)
        for i in range(2, 7): a(f"v_mov_b32 v{VW+i}, v{P3+i}")
        for i in range(3): a(f"v_mov_b32 v{VOS[i]}, v{WOA+i}")
        a(f"""
        v_mov_b32 v{VL}, v{VL16}
        v_lshlrev_b32 v{VL8}, 3, v1
        """)
        p3_kh(a, cfg, 26)
        a(f"""
        s_lshr_b32 s27, s2, 5
        s_mul_i32 s27, s27, 160
        s_add_u32 s27, s27, s41
        s_add_u32 s28, s41, {O_OFF}
        s_lshl_b32 s3, s26, 1
        s_add_u32 s3, s3, s30
        s_xor_b32 s29, s3, 1
        s_lshl_b32 s22, s3, 12
        s_add_u32 s22, s22, s28
        s_lshl_b32 s24, s29, 12
        s_add_u32 s24, s24, s28
        s_add_u32 s28, s28, 16384
        s_lshl_b32 s23, s3, 10
        s_add_u32 s23, s23, s28
        s_lshl_b32 s25, s29, 10
        s_add_u32 s25, s25, s28
        """)
    a.c("---- output projection: 64 tokens x 80 columns")
    if not OPT:
        a("""
        s_waitcnt vmcnt(0)
        s_barrier
        s_cmp_eq_u32 s16, 0
        s_cbranch_scc0 L_p3_nofl
        """)
        raise_flag(a, "s38")
        a("L_p3_nofl:")
    NPB, WIN = cfg.get("npb", 6), cfg.get("win", 5)
    LOADS = []
    for ks in range(10):
        hf, p = divmod(ks, 5)
        if p < 4: LOADS.append([f"buffer_load_dwordx4 {vr(OF+4*ks,4)}, v{VL}, {WS}, s{22+2*hf} offen offset:{1024*p} sc1"])
        else: LOADS.append([f"buffer_load_dwordx2 {vr(OF+4*ks+2*u,2)}, v{VL8}, {WS}, s{23+2*hf} offen offset:{512*u} sc1" for u in range(2)])
    assert WIN == 5
    PW = cfg.get("pw", 7)
    UL = []
    if cfg.get("ulate"):
        a0 = a.lines; a.lines = []
        a(f"v_mov_b32 v2, v{P3+7}"); unpack()
        UL = a.lines; a.lines = a0
        k = [i for i, l in enumerate(UL) if "s_and_b32 s30, s30, 1" in l][0]
        for l in UL[1:k+1]: a(l)
        UL = UL[:1] + UL[k+1:]
    else:
        a(f"v_mov_b32 v2, v{P3+7}")
        unpack()
    a.c("all stores are issued: read the first half of the heads (dies that usually finish first); filler words tell what has not arrived")
    def front(pre, il, mid=None):
        for l in UL: a(l)
        rest = [r for ks in range(NPB) for r in reads(ks)]
        for r in rest[:pre]: a(r)
        rest = rest[pre:]
        if mid: mid()
        for g in LOADS[:5]:
            for l in g: a(l)
            for r in rest[:il]: a(r)
            rest = rest[il:]
        for r in rest: a(r)
        a(f"""
        v_mov_b32 v1, 1
        v_mov_b32 v{AC}, {CNT_ADDR}
        s_waitcnt vmcnt(6)
        s_mov_b64 exec, 1
        ds_add_u32 v{AC}, v1
        s_mov_b64 exec, -1
        s_waitcnt lgkmcnt(0)
        """)
        stamp(a, cfg, 10)
        if cfg.get("p3d"): a("s_memtime s[68:69]")
    later = [reads(ks) for ks in range(NPB, 9)]
    if cfg.get("ev", 2) == 5:
        a("s_mov_b32 s28, 0"); a("s_barrier")
    else:
        a(f"""
        s_xor_b32 s3, s30, s2
        s_mov_b32 s28, 0
        s_bitcmp0_b32 s3, 0
        s_barrier
        {"s_branch" if cfg.get("force_two") else "s_cbranch_scc1"} L_p3_two
        """)
    if cfg.get("p3d"): a("s_memtime s[78:79]")
    if cfg.get("yprio"):
        a("s_cmp_lt_u32 s16, 4"); a("s_cbranch_scc1 L_noyp"); a("s_setprio 1"); a("L_noyp:")
    front(cfg.get("pre", 10), cfg.get("il", 10))
    if cfg.get("yprio") == 1: a("s_setprio 0")
    VMX = 1
    KB = cfg.get("kb", 9)
    stubs = []
    def conf7(lab):
        a("s_cmp_eq_u32 s16, 7"); a(f"s_cbranch_scc0 {lab}"); a("s_call_b64 s[32:33], L_confirm"); a(f"{lab}:")
    q = [(x, k) for k in range(NPB, 10) for x in reads(k)]
    SLOTS = [[[] for _ in range(5)] for _ in range(10)]
    pat = cfg.get("pat", [2, 2, 1, 0, 2])
    for j in range(cfg.get("s0", 0 if NPB < 9 else 1), 10):
        for t in range(5):
            SLOTS[j][t] = q[:pat[t]]; q = q[pat[t]:]
    assert not any(k == 9 for t in range(5) for _, k in SLOTS[0][t])
    DUAL = cfg.get("dual", 1)
    def both(t):
        if DUAL:
            a(f"v_pk_add_f32 {vr(AC+4*t,2)}, {vr(AC+4*t,2)}, {vr(OF+4*t,2)}")
            a(f"v_pk_add_f32 {vr(AC+4*t+2,2)}, {vr(AC+4*t+2,2)}, {vr(OF+4*t+2,2)}")
    def chk(ks):
        r = OF + 4 * ks
        return [f"v_max3_u32 v{VMX}, v{r}, v{r+1}, v{r+2}", f"v_max_u32 v{VMX}, v{VMX}, v{r+3}", f"v_cmp_eq_u32 vcc, -1, v{VMX}"]
    def arrive(ks, slide):
        hi = min(ks + 5, 10) if slide else 5
        vm = sum(len(g) for g in LOADS[ks+1:hi])
        lg = ""
        if ks >= NPB:
            done = [k for j in range(ks) for t in range(5) if j < ks - 1 or t <= 2 for _, k in SLOTS[j][t]]
            assert done.count(ks) == 10
            n = sum(k > ks for k in done)
            lg = f" lgkmcnt({min(n, 15)})"
        a(f"s_waitcnt vmcnt({vm})" + lg)
        if slide and ks < 5:
            for l in LOADS[ks + 5]: a(l)
    def mf(ks, tag="", slide=True, head=False, nxt=True):
        if head:
            arrive(ks, slide)
            for x in chk(ks): a(x)
        if cfg.get("p3d") and ks in (0, 3, 7, 9): a("s_memtime s[%d:%d]" % {0: (70, 71), 3: (72, 73), 7: (74, 75), 9: (76, 77)}[ks])
        lab = f"L_ck{ks}{tag}"
        a(f"""
        {"s_branch" if cfg.get("force_redo") else "s_cbranch_vccnz"} {lab}_again
        {lab}_ok:
        """)
        stubs.append((lab, ks, 5 if ks < 5 else 10))
        rd = SLOTS[ks]
        cn = chk(ks + 1) if nxt and ks < 9 else None
        for t in range(5):
            acc = (OF if DUAL and ks >= 5 else AC) + 4*t
            c = "0" if ks == 0 or (DUAL and ks == 5) else vr(acc, 4)
            a(f"v_mfma_f32_16x16x32_bf16 {vr(acc,4)}, {vr(WF+20*(ks%9)+4*t,4)}, {vr(OF+4*ks,4)}, {c}")
            for x, _ in rd[t]: a(x)
            if cn and t == 2: arrive(ks + 1, slide); a(cn[0])
            if cn and t == 3: a(cn[1]); a(cn[2])
    assert NPB >= 4
    def redo():
        a.c("a filler word was read: load the window again; after some tries wait for the acknowledged flags")
        NTRY = cfg.get("ntry", 32)
        for lab, ks, hi in stubs[::-1]:
            a(f"{lab}_again:")
            if cfg.get("stamp"): a("s_waitcnt lgkmcnt(0)"); a("s_mov_b32 s68, -1")
            a(f"""
            s_add_u32 s28, s28, 1
            s_cmp_eq_u32 s28, {NTRY}
            s_cbranch_scc0 {lab}_ld
            s_call_b64 s[30:31], L_confirmed
            {lab}_ld:
            """)
            if cfg.get("rsl", 0): a(f"s_sleep {cfg.get('rsl', 4)}")
            hf, p = divmod(ks, 5)
            grl = cfg.get("grl", 2)
            ids = range(ks, hi) if not grl else sorted(set(range(ks, 5*hf + min(p | 1, 4) + 1)) | {5*hf + 4})
            vm = 0
            if grl == 2:
                assert lab[-1] != "b"
                ids = range(ks, min(ks + 6, 10)); vm = sum(len(LOADS[i]) for i in ids[1:])
            for i in ids:
                for l in LOADS[i]: a(l)
            a(f"""
            s_waitcnt vmcnt({vm})
            s_cmp_ge_u32 s28, {NTRY}
            s_cbranch_scc1 {lab}_ok
            """)
            for x in chk(ks): a(x)
            a(f"""
            {"s_branch" if cfg.get("force_redo") else "s_cbranch_vccnz"} {lab}_again
            s_branch {lab}_ok
            """)
        a.c("once all eight waves have seen their stores acknowledged, say so; then wait until every producer has said so")
        a(f"""
        L_confirmed:
        s_mov_b32 s35, 0
        L_cnt:
        v_mov_b32 v1, {CNT_ADDR}
        ds_read_b32 v1, v1
        s_waitcnt lgkmcnt(0)
        v_readfirstlane_b32 s34, v1
        s_cmp_eq_u32 s34, 8
        """)
        spin_tail(a, "L_cnt", mult=16)
        a(f"""
        s_mov_b64 exec, 1
        buffer_store_dword v1, v{VL}, {WS}, s39 offen sc1
        s_mov_b64 exec, -1
        s_add_u32 s34, s40, {F3_OFF - F2_OFF}
        s_waitcnt vmcnt(0)
        """)
        poll(a, "L_poll3", 2, WS, "s34", dst=1)
        a("s_setpc_b64 s[30:31]")
    def path2():
        pw2 = cfg.get("pw2", 1)
        a.c("dies that usually finish first start reading a little later")
        a("L_p3_two:")
        EV = cfg.get("ev", 2)
        if EV == 1:
            a.c("a die that usually finishes early waits for notices before it starts reading")
            a(f"""
            s_cmp_eq_u32 s16, 1
            s_cbranch_scc0 L_gate_n0
            buffer_load_dword v1, v2, {WS}, s40 offen sc1
            L_gate_n0:
            """)
            def gate():
                a(f"""
                s_cmp_eq_u32 s16, 1
                s_cbranch_scc0 L_gpoll_ok
                s_lshl_b32 s3, s30, 4
                s_lshr_b32 s20, {0 if cfg.get("gall") else 0xffff0000}, s3
                s_mov_b32 s21, s20
                s_mov_b32 s35, 0
                s_branch L_gpoll_chk
                L_gpoll:
                buffer_load_dword v1, v2, {WS}, s40 offen sc1
                L_gpoll_chk:
                s_waitcnt vmcnt(0)
                v_cmp_ne_u32 vcc, 0, v1
                s_nop 0
                s_or_b64 vcc, vcc, s[20:21]
                s_cmp_eq_u64 vcc, -1
                """)
                spin_tail(a, "L_gpoll")
                a("s_barrier")
            front(cfg.get("pre2", 45), 5, gate)
        else:
            front(cfg.get("pre2", 45), 5)
        if EV >= 3:
            for ks in range(5): mf(ks, "b", slide=False, head=ks == 0, nxt=ks < 4)
            if EV == 4: a("s_barrier")
            for g in LOADS[5:]:
                for l in g: a(l)
            arrive(5, True)
            for x in chk(5): a(x)
            a("s_branch L_p3_join")
            return
        if EV:
            a("s_branch L_p3_one")
            return
        a(f"""
        s_cmp_eq_u32 s16, {pw2}
        s_cbranch_scc0 L_p3_two1
        buffer_load_dword v{OF+20}, v2, {WS}, s40 offen sc1
        L_p3_two1:
        """)
        for ks in range(5): mf(ks, "b", slide=False, head=ks == 0, nxt=ks < 4)
        a(f"""
        s_cmp_eq_u32 s16, {pw2}
        s_cbranch_scc0 L_poll2_ok
        v_cmp_ne_u32 vcc, 0, v{OF+20}
        s_nop 0
        s_cmp_eq_u64 vcc, -1
        s_cbranch_scc1 L_poll2_ok
        """)
        poll(a, "L_poll2", 2, WS, "s40", dst=1)
        a("s_barrier")
        stamp(a, cfg, 11)
        for g in LOADS[5:]:
            for l in g: a(l)
            if cfg.get("gap", -1) >= 0: a(f"s_nop {cfg.get('gap', 7)}")
        arrive(5, True)
        for x in chk(5): a(x)
        a("s_branch L_p3_join")
    TAIL.append(redo if cfg.get("ev", 2) == 5 else (lambda: (redo(), path2())) if cfg.get("ev", 2) == 2 else lambda: (path2(), redo()))
    a("L_p3_one:")
    stamp(a, cfg, 11)
    for ks in range(5): mf(ks, head=ks == 0)
    a("L_p3_join:")
    for ks in range(5, KB): mf(ks)
    a("""
    s_waitcnt lgkmcnt(0)
    s_cmp_lt_u32 s16, 4
    s_cbranch_scc0 L_out_fin
    """)
    for ks in range(KB, 10): mf(ks, "w")
    stamp(a, cfg, 12)
    a("s_nop 3")
    for t in range(5):
        both(t)
        a(f"ds_write_b128 v{VPB}, {vr(AC+4*t,4)} offset:{1024*t}")
        if t < 4 and not DUAL: a("s_nop 0")
    a("""
    v_mov_b32 v1, 1
    s_waitcnt lgkmcnt(0)
    s_barrier
    s_cmp_eq_u32 s16, 0
    s_cbranch_scc0 L_fin
    """)
    a.c("every wave has seen its O stores acknowledged: tell readers that fall back")
    a(f"""
    s_mov_b64 exec, 1
    buffer_store_dword v1, v{VL}, {WS}, s39 offen sc1
    s_branch L_fin
    L_out_fin:
    s_barrier
    """)
    PB = WF + 20
    for t in range(5): a(f"ds_read_b128 {vr(PB+4*t,4)}, v{VPB} offset:{1024*t}")
    for ks in range(KB, 10): mf(ks, "f")
    stamp(a, cfg, 12)
    a("s_waitcnt lgkmcnt(0)")
    a("s_nop 2")
    for t in range(5):
        both(t)
        a(f"v_pk_add_f32 {vr(AC+4*t,2)}, {vr(AC+4*t,2)}, {vr(PB+4*t,2)}")
        a(f"v_pk_add_f32 {vr(AC+4*t+2,2)}, {vr(AC+4*t+2,2)}, {vr(PB+4*t+2,2)}")
        a(f"v_cvt_pk_bf16_f32 v{OF+20+2*t}, v{AC+4*t}, v{AC+4*t+1}")
        a(f"v_cvt_pk_bf16_f32 v{OF+21+2*t}, v{AC+4*t+2}, v{AC+4*t+3}")
        a(f"ds_write_b64 v{VSW}, {vr(OF+20+2*t,2)} offset:{32*t}")
    for i in range(3): a(f"ds_read_b128 {vr(PB+4*i,4)}, v{VSR+i}")
    OFL = cfg.get("outfl", "")
    for i in range(3):
        a(f"s_waitcnt lgkmcnt({2-i})")
        if i == 2: a("s_mov_b32 exec_hi, 0")
        a(f"buffer_store_dwordx4 {vr(PB+4*i,4)}, v{VOS[i]}, {OUT}, s27 offen {OFL}")
    a("L_fin:")


DOC = """;
; One persistent launch, 256 workgroups x 8 waves (one per CU), three phases.
;
; 1. QKV projection. 240 workgroups own a 128 token x 128 column tile. Waves 4-7 stream x and wqkv into LDS (LDS-DMA),
;    waves 0-3 multiply (MFMA 16x16x32). The tile is done in two stages of 64 tokens; the weight fragments stay in
;    it is rounded. Results go to d_ws in MFMA fragment order with write-through stores; a flag per producer follows once
;    its stores are acknowledged. The 16 workgroups without a tile clear the flags (and say so in d_debug, which every
;    workgroup checks before it touches a flag) and prefetch into L2.
; 2. Attention. Workgroup = (head, 256 queries), K and V of the head in LDS, wave = 64 queries x 1024 keys.
;    picks the upper half (the bf16 value) of every fp32 P word; a row of ones in V^T yields the row sums.
;    earlier in the launch (flagged and checked before any read); a fragment that still shows such a word is loaded
"""

def gen1(cfg):
    a = Asm()
    a(f".globl {NAME}")
    a(".p2align 12")
    a(f".fill {cfg.get('pad', 3328)//4}, 4, 0xbf800000")
    a(".p2align 8")
    a(f".type {NAME},@function")
    a(f"{NAME}:")
    a("""
    s_cmp_ge_u32 s2, 256
    s_cbranch_scc1 L_end
    """)
    stamp(a, cfg, 0, real=True); stamp(a, cfg, 1)
    a("""
    s_load_dwordx4 s[4:7], s[0:1], 0
    s_load_dwordx8 s[36:43], s[0:1], 16
    v_lshrrev_b32 v2, 6, v0
    v_and_b32 v1, 63, v0
    v_readfirstlane_b32 s16, v2
    """)
    if cfg.get("codepf", 1):
        a.c("wave 0 touches an 8 KB share of the kernel's own code so that instruction fetch hits L2")
        a(f"""
        s_getpc_b64 s[26:27]
        L_pc:
        s_bfe_u32 s3, s2, 0x30003
        s_lshl_b32 s3, s3, 13
        s_cmp_eq_u32 s16, 0
        s_cbranch_scc0 L_nopf
        v_lshl_add_u32 v3, v1, 7, s3
        v_min_u32 v3, L_code_end - L_pc - 4, v3
        global_load_dword v0, v3, s[26:27]
        L_nopf:
        """)
    if cfg.get("mapq", 1):
        a.c("tile: j = id&7, v = id>>3 ; cb(s17) = (v>>2) + (j<4 ? 7 : 0) ; tb(s18) = (j&3)*4 + (v&3) ; j>=4, v>=28: no tile")
        a("""
        s_bfe_u32 s3, s2, 0x20003
        s_and_b32 s18, s2, 3
        s_lshl_b32 s18, s18, 2
        s_add_u32 s18, s18, s3
        s_and_b32 s17, s2, 0xe4
        s_cmp_eq_u32 s17, 0xe4
        s_cbranch_scc1 L_idle
        s_bitcmp1_b32 s2, 2
        s_cselect_b32 s19, 0, 7
        s_lshr_b32 s17, s2, 5
        s_add_u32 s17, s17, s19
        s_cmp_lt_u32 s16, 4
        s_cbranch_scc1 L_qkv_cons
        """)
    else:
        a.c("tile: j = id&7, v = id>>3 ; cb(s17) = (v>>2) + 8*(j>>2) ; tb(s18) = (j&3)*4 + (v&3) ; cb 15: no tile")
        a("""
        s_lshr_b32 s17, s2, 5
        s_and_b32 s3, s2, 4
        s_lshl_b32 s3, s3, 1
        s_add_u32 s17, s17, s3
        s_bfe_u32 s3, s2, 0x20003
        s_and_b32 s18, s2, 3
        s_lshl_b32 s18, s18, 2
        s_add_u32 s18, s18, s3
        s_cmp_eq_u32 s17, 15
        s_cbranch_scc1 L_idle
        s_cmp_lt_u32 s16, 4
        s_cbranch_scc1 L_qkv_cons
        """)
    phase1_loader(a, cfg)
    a("L_idle:")
    if cfg.get("e2e"): a("s_memrealtime s[64:65]")
    a.c("workgroups without a GEMM tile: clear the hand-off flags, raise 'ready' in d_debug, pull second-stage x rows into L2")
    xr = cfg.get("xrot", XROT)
    a(f"""
    s_lshl_b32 s19, s18, 2
    s_mul_i32 s17, s18, {112*128}
    s_add_u32 s17, s17, {FB_OFF}
    s_lshl_b32 s20, s18, 4
    s_add_u32 s20, s20, s16
    s_mul_i32 s23, s20, {8*1280}
    s_add_u32 s20, s23, {64*1280}
    s_add_u32 s21, s20, 8192
    v_lshlrev_b32 v2, 7, v1
    v_min_u32 v3, {15*128}, v2
    v_mov_b32 v4, 0
    v_and_b32 v10, 15, v1
    v_lshlrev_b32 v10, 2, v10
    v_mov_b32 v11, {GO_ADDR}
    ds_write_b32 v11, v4
    """)
    PFC = cfg.get("pfc", [4])
    if PFC:
        a.c("lines of the k-chunks that end the two miss runs of this die: s24 = chunk offset of the die")
        a(f"""
        s_and_b32 s24, s2, 7
        s_lshl_b32 s24, s24, 2
        s_lshr_b32 s24, {sum(v << (4*i) for i, v in enumerate(xr))}, s24
        s_and_b32 s24, s24, 15
        s_lshl_b32 s25, s3, 2
        s_and_b32 s26, s16, 3
        s_add_u32 s25, s25, s26
        s_mul_i32 s25, s25, {4*3840}
        {"" if cfg.get("mapq", 1) else "s_add_u32 s25, s25, 2048"}
        s_lshr_b32 s26, s16, 2
        s_mul_i32 s26, s26, 5
        s_add_u32 s24, s24, s26
        s_lshl_b32 s22, s18, 3
        s_and_b32 s26, s16, 3
        s_add_u32 s22, s22, s26
        s_mul_i32 s22, s22, {16*1280}
        v_lshrrev_b32 v5, 4, v1
        v_mul_u32_u24 v5, 3840, v5
        v_and_b32 v6, 15, v1
        v_min_u32 v8, 13, v6
        v_lshl_add_u32 v8, v8, 7, v5
        v_min_u32 v9, 15, v1
        v_mul_u32_u24 v9, 1280, v9
        """)
    a("s_waitcnt lgkmcnt(0)")
    common_srds(a)
    srd(a, 8, 4, 2048 * 1280)
    srd(a, 12, 6, 640 * 3840)
    def pf(c):
        a(f"""
        s_add_u32 s26, s24, {c}
        s_sub_u32 s27, s26, 10
        s_cselect_b32 s26, s26, s27
        s_mul_i32 s27, s26, {64*3840}
        s_add_u32 s27, s27, s25
        s_lshl_b32 s26, s26, 7
        s_add_u32 s26, s26, s22
        buffer_load_dword v94, v8, s[12:15], s27 offen
        buffer_load_dword v95, v9, s[8:11], s26 offen
        """)
    a(f"""
    s_cmp_eq_u32 s16, 0
    s_cbranch_scc0 L_idle_pf
    s_add_u32 s28, s17, 8192
    v_min_u32 v7, {47*128}, v2
    buffer_store_dword v4, v2, {WS}, s17 offen sc1
    buffer_store_dword v4, v7, {WS}, s28 offen sc1
    L_idle_pf:
    """)
    X1 = cfg.get("x1pf", 0)
    for c in PFC: pf(c)
    n1 = 2 * len(PFC)
    if X1:
        a(f"""
        s_add_u32 s26, s23, 8192
        buffer_load_dword v88, v2, s[8:11], s23 offen
        buffer_load_dword v89, v3, s[8:11], s26 offen
        """)
        n1 += 2
    if not n1: a(f"buffer_load_dword v92, v3, s[8:11], s21 offen")
    a(f"""
    s_cmp_eq_u32 s16, 0
    s_cbranch_scc0 L_idle_pf2
    v_mov_b32 v6, 1
    s_waitcnt vmcnt({n1 or 1})
    s_mov_b64 exec, 1
    buffer_store_dword v6, v4, {DBG}, s19 offen sc1
    s_mov_b64 exec, -1
    L_idle_pf2:
    s_barrier
    buffer_load_dword v90, v2, s[8:11], s20 offen
    """)
    if n1: a(f"buffer_load_dword v92, v3, s[8:11], s21 offen")
    if cfg.get("e2e"):
        srd(a, 96, 42, 1 << 20, add=STAMP_OFF + (2 << 20))
        a("""
        v_mov_b32 v93, s64
        s_mov_b64 exec, 1
        buffer_store_dword v93, v4, s[96:99], s19 offen
        s_mov_b64 exec, -1
        """)
    a("""
    s_cmp_eq_u32 s16, 0
    s_cbranch_scc0 L_rdy_i_ok
    """)
    poll(a, "L_rdy_i", 10, DBG, "0")
    a("""
    s_waitcnt vmcnt(0)
    s_barrier
    s_mov_b32 s63, 0
    s_cmp_lt_u32 s16, 4
    s_cbranch_scc1 L_late_setup
    """)
    attn_setup(a, cfg, early=True)
    a("s_branch L_early")
    a("L_late_setup:")
    attn_setup(a, cfg, early=False)
    a("s_barrier")
    a("s_branch L_late_st")
    page(a, cfg, "qk")
    a("L_qkv_cons:")
    phase1_consumer(a, cfg)
    page(a, cfg, "late")
    a(f"""
    L_late_st:
    v_mov_b32 v11, {GO_ADDR + 81920}
    ds_write_b32 v11, v{VZ}
    s_barrier
    """)
    if cfg.get("a4"):
        a(f"""
        s_waitcnt vmcnt(0)
        s_cmp_eq_u32 s63, 0
        s_cbranch_scc1 L_late_nofl
        s_mov_b64 exec, 1
        buffer_store_dword v{VONE}, v{VZ}, {WS}, s60 offen sc1
        s_mov_b64 exec, -1
        L_late_nofl:
        """)
        for g in kv_dma(2, back=81920): a(g)
        a("s_waitcnt vmcnt(4)")
        for g in kv_dma(3, back=81920): a(g)
        a("s_waitcnt vmcnt(5) lgkmcnt(0)")
        a("s_barrier")
        a("s_waitcnt vmcnt(0)")
        a("s_barrier")
    else:
        for g in kv_dma(2, back=81920): a(g)
        a("s_waitcnt vmcnt(5)")
    if cfg.get("a4"): pass
    elif cfg.get("u3first", 0):
        for g in kv_dma(3, back=81920): a(g)
        a(f"""
        s_cmp_eq_u32 s63, 0
        s_cbranch_scc1 L_late_nofl
        s_mov_b64 exec, 1
        buffer_store_dword v{VONE}, v{VZ}, {WS}, s60 offen sc1
        s_mov_b64 exec, -1
        s_waitcnt vmcnt(1) lgkmcnt(0)
        s_branch L_late_a3
        L_late_nofl:
        s_waitcnt vmcnt(0) lgkmcnt(0)
        L_late_a3:
        s_barrier
        """)
    else:
        a("""
        s_cmp_eq_u32 s63, 0
        s_cbranch_scc1 L_late_nofl
        """)
        raise_flag(a, "s60")
        a("L_late_nofl:")
        for g in kv_dma(3, back=81920): a(g)
        a("""
        s_waitcnt vmcnt(0) lgkmcnt(0)
        s_barrier
        """)
    wait_stage(a, cfg, "l", 0)
    stamp(a, cfg, 6)
    for g in kv_dma(0): a(g)
    qloads(a)
    a("s_waitcnt vmcnt(5) lgkmcnt(0)")
    stamp(a, cfg, 15)
    if cfg.get("u1in", 1):
        a("s_waitcnt vmcnt(0)")
    else:
        if not cfg.get("bl0"): a("s_barrier")
        for g in kv_dma(1): a(g)
        a("s_waitcnt vmcnt(5)")
    stamp(a, cfg, 7)
    attn_loop(a, cfg, early=False)
    a("s_branch L_epi")
    page(a, cfg, "early")
    a("L_early:")
    if cfg.get("direct", 0):
        assert cfg.get("krot", 0) == 0
        a(f"""
        v_lshlrev_b32 v6, 3, v1
        s_add_u32 s14, s61, s20
        s_lshr_b32 s3, s2, 5
        s_mul_i32 s30, s3, 160
        s_mul_i32 s3, s16, {32*1280}
        s_add_u32 s30, s30, s3
        s_mul_i32 s32, s16, 5120
        """)
    wait_stage(a, cfg, "e", cfg.get("epoll", 5))
    stamp(a, cfg, 6)
    if cfg.get("direct", 0):
        a.c("Q and the first key tile straight into registers: the first scores are ready when the LDS image is")
        a(f"""
        buffer_load_dwordx2 {vr(QT,2)}, v{VQT}, {WS}, s26 offen offset:2048 sc1
        buffer_load_dwordx2 {vr(KT,2)}, v6, {WS}, s14 offen offset:2048 sc1
        buffer_load_dwordx2 {vr(QM0,2)}, v{VQ}, {WS}, s22 offen sc1
        buffer_load_dwordx2 {vr(QM0+2,2)}, v{VQ}, {WS}, s22 offen offset:1024 sc1
        buffer_load_dwordx2 {vr(KM,2)}, v{VQ}, {WS}, s14 offen sc1
        buffer_load_dwordx2 {vr(KM+2,2)}, v{VQ}, {WS}, s14 offen offset:1024 sc1
        buffer_load_dwordx2 {vr(QM1,2)}, v{VQ}, {WS}, s23 offen sc1
        buffer_load_dwordx2 {vr(QM1+2,2)}, v{VQ}, {WS}, s23 offen offset:1024 sc1
        """)
        for g in kv_dma(0): a(g)
        a("s_setprio 3")
        a("s_waitcnt vmcnt(11)")
        a(Tm(0, SA)); a("s_nop 15"); a("s_nop 1"); a("s_waitcnt vmcnt(5)")
        a(Mm(0, SA, 0)); a(Mm(0, SA, 1))
        a(f"s_waitcnt vmcnt({cfg.get('u1w', 3)})")
        for g in kv_dma(1): a(g)
    else:
        for g in kv_dma(0): a(g)
        qloads(a)
        a(f"s_waitcnt vmcnt({cfg.get('u1w', 5)})")
        for g in kv_dma(1): a(g)
    a("s_waitcnt vmcnt(5) lgkmcnt(0)")
    stamp(a, cfg, 5)
    a("s_barrier")
    stamp(a, cfg, 7)
    attn_loop(a, cfg, early=True)
    a.c("the filler words of every tile this workgroup will read are in place")
    a("""
    s_cmp_eq_u32 s16, 4
    s_cbranch_scc0 L_epi
    """)
    a(f"s_waitcnt vmcnt({1 if cfg.get('notice', 9) == 4 else 0})")
    a("""
    v_cmp_ne_u32 vcc, 0, v5
    s_nop 0
    s_cmp_eq_u64 vcc, -1
    s_cbranch_scc0 L_r_wait
    """)
    a("L_epi:")
    attn_epilogue(a, cfg)
    phase3(a, cfg)
    if cfg.get("stamp"): a("s_waitcnt vmcnt(0)")
    stamp(a, cfg, 13); stamp(a, cfg, 14, real=True)
    if cfg.get("stamp"): a("s_waitcnt lgkmcnt(0)"); a("s_mov_b32 s94, s28")
    if "xsel" in cfg:
        a(f"""
        s_waitcnt lgkmcnt(0)
        s_and_b32 s90, s2, 7
        s_cmp_eq_u32 s90, {cfg["xsel"]}
        s_cselect_b32 s90, s64, 0
        """)
    if cfg.get("xcc"):
        a("""
        s_waitcnt lgkmcnt(0)
        s_getreg_b32 s90, hwreg(HW_REG_XCC_ID, 0, 4)
        s_sub_u32 s90, s90, s2
        s_and_b32 s90, s90, 7
        s_mul_i32 s90, s90, 200
        """)
    stamp_flush(a, cfg, 0, 16, 8, wsptr=42)
    a("L_end:")
    a("s_endpgm")
    TAIL.pop()()
    a("L_code_end:")
    a("L_r_wait:")
    poll(a, "L_r_spin", P3+7, WS, "s40")
    a("s_branch L_epi")
    attn_slow(a)
    head = open("standalone__softmax_full_mha__prompt.s.ref").read().split("; Override launch")[0]
    descs = descriptor(NAME, 256)
    if cfg.get("probe"):
        import k_probe
        if cfg.get("lat"):
            head += "; @launch kernel=lat_kernel grid=(1,1,1) block=(64,1,1) lds=0\n"
            descs += k_probe.gen_lat(a, cfg)
        head += f"; @launch kernel={NAME} grid=(256,1,1) block=(512,1,1) lds=163840\n; @launch kernel=probe_kernel grid=(1,1,1) block=(64,1,1) lds=0\n"
        descs += k_probe.gen_probe(a, cfg)
    elif cfg.get("e2e"):
        import k_probe
        head += "; @launch kernel=prev_kernel grid=(1,1,1) block=(64,1,1) lds=0\n"
        a(".p2align 12")
        descs += k_probe.gen_prev(a, cfg)
        head += f"; @launch kernel={NAME} grid=(256,1,1) block=(512,1,1) lds=163840\n; @launch kernel=next_kernel grid=(1,1,1) block=(64,1,1) lds=0\n"
        descs += k_probe.gen_next(a, cfg)
    elif cfg.get("list"):
        head += f"; @launch kernel={NAME} grid=(256,1,1) block=(512,1,1) lds=163840\n"
    else:
        head += "; @launch grid=(256,1,1) block=(512,1,1) lds=163840\n"
    return head + DOC + '.amdgcn_target "amdgcn-amd-amdhsa--gfx950"\n.text\n' + a.text() + '.section .rodata,"a"\n' + descs

def gen(cfg):
    if not cfg.get("layout", 1): return gen1(cfg)
    import subprocess, tempfile, os
    d = tempfile.mkdtemp()
    c = dict(cfg, pages={"qk": 0, "v": 0, "late": 0, "early": cfg.get("eoff", 128)})
    open(d + "/a.s", "w").write(gen1(c))
    subprocess.run(["clang", "-x", "assembler", "-target", "amdgcn-amd-amdhsa", "-mcpu=gfx950", "-c", d + "/a.s", "-o", d + "/a.o"], check=True)
    o = subprocess.run(["llvm-objdump", "-t", d + "/a.o"], capture_output=True, text=True).stdout
    L = {m.group(2): int(m.group(1), 16) for m in re.finditer(r"^([0-9a-f]+) .* (L_\w+)$", o, re.M)}
    c["pages"]["qk"] = (-L["L_end_qk"]) % 4096 // 8 * 8
    c["pages"]["v"] = (-L["L_end_v"] - 64) % 4096 // 8 * 8
    return gen1(c)

if __name__ == "__main__":
    cfg = json.loads(sys.argv[2]) if len(sys.argv) > 2 else {}
    open(sys.argv[1], "w").write(gen(cfg))
```

```python
import sys, json, struct, re
from asmlib import *
NAME = "standalone__softmax_full_mha__prompt_kernel"
HQ = 81920
HKV = 163840
KV_OFF = 32 * HQ
O_OFF = KV_OFF + 32 * HKV
FB_OFF = O_OFF + 128 * 20480
FA_OFF = FB_OFF + 1024 * 128
F2_OFF = FA_OFF + 256 * 128
F3_OFF = F2_OFF + 256 * 128
WS_BYTES = F3_OFF + 256 * 128
SLOT = [0, 24576, 49152, 81920, 106496, 131072, 0, 24576, 49152, 139264]
CSCALE = struct.unpack("<I", struct.pack("<f", (20 ** -0.5) * 1.4426950408889634))[0]
WS, WO, OUT, DBG = "s[44:47]", "s[48:51]", "s[52:55]", "s[56:59]"
SPIN_MAX = 1 << 18

def spin_head(a, label):
    a(f"{label}:")
def spin_tail(a, label, mult=1):
    a(f"""
    s_cselect_b32 s35, {SPIN_MAX*mult}, s35
    s_add_u32 s35, s35, 1
    s_cmp_lt_u32 s35, {SPIN_MAX*mult}
    s_cbranch_scc1 {label}
    {label}_ok:
    """)

def poll(a, label, vaddr, rsrc, soff, dst=5):
    a(f"""
    s_mov_b32 s35, 0
    {label}:
    buffer_load_dword v{dst}, v{vaddr}, {rsrc}, {soff} offen sc1
    s_waitcnt vmcnt(0)
    v_cmp_ne_u32 vcc, 0, v{dst}
    s_nop 0
    s_cmp_eq_u64 vcc, -1
    """)
    spin_tail(a, label)

def paced_poll(a, cfg, label, vaddrs, soff):
    pace = cfg.get("pace" + label[-1], -1)
    n = len(vaddrs)
    dst = [5, 3][:n]
    if pace < 0:
        a(f"s_mov_b32 s35, 0\n{label}:")
        if pace < -1: a(f"s_sleep {-pace}")
        for d, v in zip(dst, vaddrs): a(f"buffer_load_dword v{d}, v{v}, {WS}, {soff} offen sc1")
        a(f"{label}_chk:")
        a("s_waitcnt vmcnt(0)")
    else:
        for d in dst: a(f"v_mov_b32 v{d}, 0")
        a(f"s_mov_b32 s35, 0\n{label}:")
        for d, v in zip(dst, vaddrs): a(f"buffer_load_dword v{d}, v{v}, {WS}, {soff} offen sc1")
        if pace: a(f"s_sleep {pace}")
        a(f"s_waitcnt vmcnt({n * cfg.get('pdepth', 4)})")
    if n == 2: a("v_and_b32 v2, v5, v3"); a("v_cmp_ne_u32 vcc, 0, v2")
    else: a("v_cmp_ne_u32 vcc, 0, v5")
    a("s_nop 0")
    a("s_cmp_eq_u64 vcc, -1")
    spin_tail(a, label, mult=4)

def raise_scalar(a, soff):
    a(f"""
    s_add_u32 s6, s42, {soff}
    s_addc_u32 s7, s43, 0
    s_mov_b32 s5, 1
    s_atomic_add s5, s[6:7], 0x0 glc
    """)

def raise_flag(a, soff):
    a(f"""
    v_mov_b32 v2, 0
    v_mov_b32 v3, 1
    s_mov_b64 exec, 1
    buffer_store_dword v3, v2, {WS}, {soff} offen sc1
    s_mov_b64 exec, -1
    """)

def page(a, cfg, key):
    off = cfg.get("pages", {}).get(key)
    if off is None: return
    if key == "v" and off:
        a(".p2align 8"); a(f".fill {(off - 256)//4}, 4, 0xbf800000"); return
    a(".p2align 12")
    if off: a(f".fill {off//4}, 4, 0xbf800000")

def common_srds(a):
    srd(a, 44, 42, WS_BYTES)
    srd(a, 48, 36, 640 * 1280)
    srd(a, 52, 38, 2048 * 1280)
    srd(a, 56, 40, 256)

XROT = [0, 1, 3, 4, 3, 4, 1, 2]
IDLE2 = True
CNT_ADDR = 133120 - 16
GO_ADDR = 81920 - 16
def phase1_loader(a, cfg):
    a.c("---------------- loader waves (become the early attention waves)")
    rot = cfg.get("rot", 2)
    NX0 = cfg.get("nx0", 6)
    if rot == 2:
        a("""
        s_add_u32 s100, s3, s17
        s_and_b32 s100, s100, 1
        s_mul_i32 s100, s100, 5
        """)
    elif rot == 3:
        a("""
        s_add_u32 s100, s3, s17
        s_mul_i32 s101, s100, 43
        s_lshr_b32 s101, s101, 7
        s_mul_i32 s101, s101, 3
        s_sub_u32 s100, s100, s101
        s_mul_i32 s100, s100, 7
        s_lshr_b32 s100, s100, 1
        """)
    elif rot == 4:
        a("""
        s_add_u32 s100, s3, s17
        s_and_b32 s100, s100, 3
        s_mul_i32 s100, s100, 5
        s_lshr_b32 s100, s100, 1
        """)
    else:
        a("s_mov_b32 s100, 0")
    xr = cfg.get("xrot", XROT)
    if xr:
        a(f"""
        s_and_b32 s101, s2, 7
        s_lshl_b32 s101, s101, 2
        s_lshr_b32 s101, {sum(v << (4*i) for i, v in enumerate(xr))}, s101
        s_and_b32 s101, s101, 15
        s_add_u32 s100, s100, s101
        s_sub_u32 s101, s100, 10
        s_cselect_b32 s100, s100, s101
        """)
    a(f"""
    s_and_b32 s19, s16, 3
    s_lshl_b32 s96, s19, 4
    s_lshr_b32 s101, s19, 1
    s_lshl_b32 s101, s101, 5
    s_and_b32 s34, s19, 1
    s_lshl_b32 s34, s34, 2
    s_add_u32 s101, s101, s34
    s_cmp_lt_u32 s17, 10
    s_cselect_b32 s96, s96, s101
    s_cselect_b32 s101, 4, 8
    s_mul_i32 s101, s101, 1280
    s_lshl_b32 s34, s18, 7
    s_add_u32 s96, s96, s34
    s_mul_i32 s96, s96, 1280
    v_lshrrev_b32 v2, 5, v1
    v_mul_u32_u24 v2, s101, v2
    v_bfe_u32 v3, v1, 3, 2
    v_mul_u32_u24 v3, 1280, v3
    v_lshrrev_b32 v5, 4, v1
    v_and_b32 v4, 7, v1
    v_xor_b32 v4, v4, v5
    v_lshlrev_b32 v4, 4, v4
    v_add3_u32 v8, v2, v3, v4
    v_xor_b32 v4, 64, v4
    v_add3_u32 v9, v2, v3, v4
    s_lshl_b32 s101, s101, 1
    s_sub_u32 s101, s101, 1024
    v_add_u32 v9, s101, v9
    v_and_b32 v3, 15, v1
    v_lshlrev_b32 v6, 1, v5
    v_xor_b32 v3, v3, v6
    v_mul_u32_u24 v2, 3840, v5
    v_lshl_add_u32 v16, v3, 4, v2
    v_add_u32 v17, {4*3840-1024}, v16
    v_xor_b32 v3, 8, v3
    v_lshl_add_u32 v18, v3, 4, v2
    v_add_u32 v19, {3*(4*3840-1024)}, v18
    v_add_u32 v18, {2*(4*3840-1024)}, v18
    s_mul_i32 s97, s19, {16*3840}
    s_lshl_b32 s3, s17, 8
    s_add_u32 s97, s97, s3
    s_lshl_b32 s98, s19, 11
    s_lshl_b32 s99, s19, 12
    s_mov_b32 s10, {2048*1280}
    s_mov_b32 s11, 0x00020000
    s_mov_b32 s14, {640*3840}
    s_mov_b32 s15, 0x00020000
    """)
    stamp(a, cfg, 8, grp="st")
    a("s_waitcnt lgkmcnt(0)")
    stamp(a, cfg, 9, grp="st")
    a(f"""
    s_mov_b32 s8, s4
    s_mov_b32 s9, s5
    s_mov_b32 s12, s6
    s_mov_b32 s13, s7
    """)
    XF1, XF2, WF_ = cfg.get("xfl", ""), cfg.get("x2fl", ""), cfg.get("wfl", "")
    def adv():
        a("""
        s_add_u32 s100, s100, 1
        s_cmp_eq_u32 s100, 10
        s_cselect_b32 s100, 0, s100
        """)
    def issue_x(lds, XF):
        a(f"""
        s_lshl_b32 s101, s100, 7
        s_add_u32 m0, s98, {lds}
        s_add_u32 s101, s101, s96
        """)
        for j in range(2):
            a(f"buffer_load_dwordx4 v{8+j}, s[8:11], s101 offen offset:{1024*j} {XF} lds")
    def issue(c):
        slot = SLOT[c]
        issue_x(slot, XF1)
        a(f"""
        s_mul_i32 s34, s100, {64*3840}
        s_add_u32 m0, s99, {slot+8192}
        s_add_u32 s34, s34, s97
        """)
        for j in range(4):
            a(f"buffer_load_dwordx4 v{16+j}, s[12:15], s34 offen offset:{1024*j} {WF_} lds")
        adv()
    def issue2(c):
        if c == 0: a(f"s_add_u32 s96, s96, {64*1280}")
        issue_x(81920 + 8192*c, XF2)
        if c < 9: adv()
    NPRE = cfg.get("npre", 3)
    if cfg.get("ldprio"): a(f"s_setprio {cfg['ldprio']}")
    groups = [[("c", c)] for c in range(10)]
    q = list(range(NX0))
    while q: groups.append([("x", i) for i in q[:3]]); q = q[3:]
    while len(groups) > 10 + NPRE:
        g = groups.pop(); groups[-1] = groups[-1] + g
    pend = []
    def put(g):
        for kind, i in g:
            if kind == "c": issue(i); pend.append(((kind, i), 6))
            else: issue2(i); pend.append(((kind, i), 2))
    def wait_for(item):
        k = [p[0] for p in pend].index(item)
        del pend[:k+1]
        a(f"s_waitcnt vmcnt({sum(p[1] for p in pend)})")
    for i in range(NPRE):
        put(groups.pop(0))
        if i == 0: stamp(a, cfg, 10, grp="st")
    common_srds(a)
    a(f"""
    v_and_b32 v10, 15, v1
    v_lshlrev_b32 v10, 2, v10
    s_lshl_b32 s60, s17, 4
    s_add_u32 s60, s60, s18
    s_lshl_b32 s60, s60, 7
    s_add_u32 s60, s60, {FA_OFF}
    """)
    t = Asm(); attn_setup(t, cfg, early=True)
    su = [l.strip() for l in t.lines if not l.strip().startswith(";")]
    at = cfg.get("esu", [0, 1, 2, 3, 4])
    per = -(-len(su) // len(at))
    def slice_(c):
        if c in at:
            for l in su[:per]: a(l)
            del su[:per]
    slice_(-1)
    for c in range(10):
        wait_for(("c", c))
        if c == 0: stamp(a, cfg, 2)
        if c in (3, 6): stamp(a, cfg, {3: 11, 6: 12}[c], grp="st")
        a("s_barrier")
        if cfg.get("rdyearly") == c: a(f"buffer_load_dword v5, v10, {DBG}, 0 offen sc1"); pend.append((("r", 0), 1))
        if groups: put(groups.pop(0))
        slice_(c)
    if not cfg.get("rdyearly"): a(f"buffer_load_dword v5, v10, {DBG}, 0 offen sc1"); pend.append((("r", 0), 1))
    stamp(a, cfg, 3)
    wait_for(("x", 2))
    a("s_barrier")
    a(f"""
    v_mov_b32 v11, {GO_ADDR}
    v_mov_b32 v7, 0
    ds_write_b32 v11, v7
    s_waitcnt vmcnt(0)
    v_cmp_ne_u32 vcc, 0, v5
    s_waitcnt lgkmcnt(0)
    s_cmp_eq_u64 vcc, -1
    s_cbranch_scc1 L_rdy_l_ok
    """)
    poll(a, "L_rdy_l", 10, DBG, "0")
    if NX0 > 3 and not cfg.get("mergef", 1): a("s_barrier")
    SA_ = cfg.get("sat", 1)
    NXF = cfg.get("nxf", NX0)
    for q in range(NX0, NXF): issue2(q)
    a("""
    s_barrier
    s_cmp_eq_u32 s16, 4
    s_cbranch_scc0 L_ld_nofl
    """)
    if SA_: raise_scalar(a, "s60")
    else:
        a(f"""
        s_mov_b64 exec, 1
        buffer_store_dword v{VONE}, v{VZ}, {WS}, s60 offen sc1
        s_mov_b64 exec, -1
        """)
    a("L_ld_nofl:")
    stamp(a, cfg, 4)
    for q in range(NXF, 10): issue2(q)
    NX1 = cfg.get("nx1", 10)
    def xbars(extra):
        if NX1 < 10:
            a(f"s_waitcnt vmcnt({2*(10-NX1) + extra})")
            a("s_barrier")
        a(f"s_waitcnt vmcnt({extra})")
        a("s_barrier")
    if cfg.get("prepoll", 0):
        a(f"""
        s_cmp_eq_u32 s16, {cfg.get("epoll", 5)}
        s_cbranch_scc0 L_ld_nopoll
        s_waitcnt vmcnt({cfg.get("ppw", 5)})
        buffer_load_dword v5, v{VPOLL}, {WS}, s33 offen sc1
        buffer_load_dword v3, v{VPOLL+1}, {WS}, s33 offen sc1
        s_mov_b32 s35, 0
        v_mov_b32 v7, 1
        """)
        xbars(2)
        a("s_branch L_poll1e_chk")
        a("L_ld_nopoll:")
    xbars(0)
    a("s_branch L_early")

def phase1_consumer(a, cfg):
    a.c("---------------- consumer waves (become the late attention waves)")
    XA, WA, ST, XF, AC, WR = 8, 10, 12, 16, 48, 96
    XB, WB = 4, 6
    SFLAG = cfg.get("sflag", 4)
    NX0 = cfg.get("nx0", 6)
    XBAR = {3, NX0, cfg.get("nx1", 10)}
    if cfg.get("mergef", 1):
        assert SFLAG <= 5 and NX0 > 3 and cfg.get("nxf", NX0) == NX0
        XBAR.discard(3)
    else: assert (NX0 == 3 or SFLAG >= 5) and SFLAG <= 2 * NX0 - 1
    a(f"""
    v_and_b32 v2, 15, v1
    v_lshrrev_b32 v3, 4, v1
    v_bfe_u32 v4, v1, 1, 3
    v_xor_b32 v4, v4, v3
    v_lshlrev_b32 v4, 4, v4
    v_lshl_add_u32 v{XA}, v2, 7, v4
    v_xor_b32 v{XA+1}, 64, v{XA}
    v_bfe_u32 v4, v1, 2, 2
    v_lshl_add_u32 v5, v3, 3, v4
    v_and_b32 v6, 1, v3
    v_lshl_or_b32 v4, v6, 2, v4
    s_lshl_b32 s3, s16, 1
    v_xor_b32 v4, s3, v4
    v_lshlrev_b32 v4, 5, v4
    v_lshl_add_u32 v4, v5, 8, v4
    v_and_b32 v5, 3, v1
    v_lshl_add_u32 v4, v5, 3, v4
    v_add_u32 v{WA}, 8192, v4
    v_xor_b32 v{WA+1}, 32, v{WA}
    s_lshl_b32 s60, s17, 2
    s_add_u32 s60, s60, s16
    s_lshl_b32 s60, s60, 4
    s_add_u32 s60, s60, s18
    s_lshl_b32 s60, s60, 7
    s_add_u32 s60, s60, {FB_OFF}
    s_mul_i32 s21, s18, 5120
    s_waitcnt lgkmcnt(0)
    """)
    common_srds(a)
    def xread(stage, ks, tt):
        c, s = divmod(ks, 2)
        if stage == 0: ad, off = (XA, SLOT[c]) if SLOT[c] < 81920 else (XB, SLOT[c] - 81920)
        else: ad, off = (XB, c * 8192) if c < 5 else (XA, (c - 5) * 8192)
        return f"ds_read_b128 {vr(XF+16*(ks&1)+4*tt,4)}, v{ad+s} offset:{off+2048*tt}"
    def wread(ks, ct, u):
        c, s = divmod(ks, 2)
        ad, off = (WA, SLOT[c]) if SLOT[c] < 81920 else (WB, SLOT[c] - 81920)
        if c == 9: off -= 8192
        return f"ds_read_b64_tr_b16 {vr(WR+8*ks+4*ct+2*u,2)}, v{ad+ct} offset:{off+(32*s+4*u)*256}"
    def reads(stage, ks):
        if stage == 0:
            return [wread(ks,0,0), wread(ks,0,1), xread(0,ks,0), wread(ks,1,0), wread(ks,1,1), xread(0,ks,1), xread(0,ks,2), xread(0,ks,3)]
        return [xread(1,ks,tt) for tt in range(4)]
    def mid():
        a("s_barrier")
        for r in reads(1, 0): a(r)
    def gemm(isv, epi):
        t = Asm(); attn_setup(t, cfg, early=False)
        su = [l.strip() for l in t.lines if not l.strip().startswith(";")]
        def filler(ks, n):
            while n and su:
                m = re.match(r"v_\w+ v\[?(\d+)", su[0])
                if m and int(m.group(1)) >= WR + 8 * ks: return
                a(su.pop(0)); n -= 1
        for i in range(2):
            a(f"v_add_u32 v{XB+i}, 81920, v{XA+i}")
            a(f"v_add_u32 v{WB+i}, 81920, v{WA+i}")
        a("s_barrier")
        stamp(a, cfg, 2)
        a(".p2align 3")
        for r in reads(0, 0): a(r)
        for stage in range(2):
            for ks in range(20):
                fl = stage == 1 and ks == SFLAG
                nxt = []
                bar = False
                if ks < 19:
                    nxt = reads(stage, ks + 1)
                    if ks % 2 == 1: bar = stage == 0 or ((ks + 1) // 2) in XBAR
                    X2 = cfg.get("x2at")
                    if X2 and stage == 1:
                        assert SFLAG < X2 <= 2 * NX0 - 1
                        if ks == 2 * NX0 - 1: bar = False
                        if ks == X2: bar = True
                if fl and bar and (ks + 1) // 2 != NX0:
                    a("s_waitcnt lgkmcnt(0)"); a("s_barrier"); a("s_waitcnt vmcnt(0)"); a("s_barrier")
                elif fl and bar:
                    a("s_waitcnt vmcnt(0) lgkmcnt(0)"); a("s_barrier"); a("s_barrier"); a("s_nop 0")
                else:
                    a("s_waitcnt vmcnt(0) lgkmcnt(0)" if fl else "s_waitcnt lgkmcnt(0)")
                    if bar or fl: a("s_barrier")
                    elif stage == 0 or ks < cfg.get("su0", 5): a("s_nop 0")
                if fl: stamp(a, cfg, 4)
                if stage == 0 and ks == 13:
                    for i in range(2): a(f"v_add_u32 v{WB+i}, 8192, v{WB+i}")
                if stage == 1 and ks in (5, 13, 19): stamp(a, cfg, {5: 10, 13: 11, 19: 12}[ks], grp="p1")
                per = 2 if stage == 0 else 1
                for i in range(8):
                    tt, ct = i >> 1, (i & 1) ^ ((i >> 1) & 1)
                    acc = AC + 8 * tt + 4 * ct
                    x, w = vr(XF+16*(ks&1)+4*tt, 4), vr(WR+8*ks+4*ct, 4)
                    A, B = (x, w) if isv else (w, x)
                    c = "0" if ks == 0 else vr(acc, 4)
                    a(f"v_mfma_f32_16x16x32_bf16 {vr(acc,4)}, {A}, {B}, {c}")
                    if stage == 1 and ks >= cfg.get("su0", 5) and su and su[0].startswith("s_"): filler(ks, 1)
                    for r in nxt[per*i:per*i+per]: a(r)
                    if stage == 1 and ks >= cfg.get("su0", 5): filler(ks, 1 if nxt[i:i+1] else 2)
            if stage == 0:
                stamp(a, cfg, 3)
                a(f"v_add_u32 v{XA}, 122880, v{XA}")
                a(f"v_add_u32 v{XA+1}, 122880, v{XA+1}")
                epi(0)
                stamp(a, cfg, 8, grp="p1")
                if cfg.get("ackdiag"): a("s_waitcnt vmcnt(0)")
                if cfg.get("x0at", 99) > 7: mid()
                stamp(a, cfg, 9, grp="p1")
                a(".p2align 3")
            else:
                a("s_nop 1")
                epi(1)
                filler(20, 999)
    a("""
    s_cmp_lt_u32 s17, 10
    s_cbranch_scc0 L_qkv_v
    """)
    a.c("Q/K tiles: G = (cb%5)*32 + 8w + 4ct + g ; head = G/5 ; pos = G%5")
    a(f"""
    s_cmp_lt_u32 s17, 5
    s_cselect_b32 s25, 0, 81920
    s_cselect_b32 s12, {CSCALE}, 1.0
    s_cselect_b32 s23, 0, {KV_OFF}
    s_cselect_b32 s3, 0, 5
    s_add_u32 s24, s25, {HQ-2560}
    s_max_u32 s22, s25, 2560
    s_mov_b32 s13, s12
    s_add_u32 s21, s21, s23
    s_add_u32 s62, s22, s21
    s_sub_u32 s3, s17, s3
    s_lshl_b32 s3, s3, 2
    s_add_u32 s3, s3, s16
    s_lshl_b32 s3, s3, 3
    v_add_u32 v6, s3, v3
    v_lshlrev_b32 v4, 3, v2
    """)
    for ct in range(2):
        a(f"""
        v_add_u32 v7, {4*ct}, v6
        v_mul_u32_u24 v5, 52429, v7
        v_lshrrev_b32 v5, 18, v5
        v_lshl_add_u32 v7, v7, 9, v4
        v_mad_u32_u24 v{ST+ct}, v5, s24, v7
        """)
    late_qk, late_v = [], []
    def epi_qk(stage):
        for i in range(8):
            tt, ct = i >> 1, (i & 1) ^ ((i >> 1) & 1)
            acc = AC + 8 * tt + 4 * ct
            d = 80 + 2 * i
            a(f"v_pk_mul_f32 {vr(acc,2)}, {vr(acc,2)}, s[12:13]")
            a(f"v_pk_mul_f32 {vr(acc+2,2)}, {vr(acc+2,2)}, s[12:13]")
            a(f"v_cvt_pk_bf16_f32 v{d}, v{acc}, v{acc+1}")
            a(f"v_cvt_pk_bf16_f32 v{d+1}, v{acc+2}, v{acc+3}")
            st = f"buffer_store_dwordx2 {vr(d,2)}, v{ST+ct}, {WS}, s{62 if stage else 21} offen offset:{128*tt} sc1"
            if stage == 0: a(st)
            else: late_qk.append(st)
            if stage == 0 and i == cfg.get("x0at", 99): mid()
    def tail(stores, name):
        stamp(a, cfg, 5)
        a("s_barrier")
        a(f"{name}:")
        for st in stores: a(st)
        a("s_mov_b32 s63, 1")
        a("s_branch L_late_st")
    gemm(False, epi_qk)
    tail(late_qk, "L_end_qk")
    page(a, cfg, "v")
    a("L_qkv_v:")
    a.c("V tiles: col = (cb-10)*128 + 32w + 16ct + n ; head = col/20 ; d = col%20")
    a(f"""
    s_sub_u32 s3, s17, 10
    s_lshl_b32 s3, s3, 2
    s_add_u32 s3, s3, s16
    s_lshl_b32 s3, s3, 5
    v_add_u32 v6, s3, v2
    s_add_u32 s21, s21, {KV_OFF+2560}
    s_add_u32 s62, s21, 81920
    v_mul_u32_u24 v4, 320, v3
    s_mov_b32 s24, {HKV - 320}
    """)
    for ct in range(2):
        a(f"""
        v_add_u32 v7, {16*ct}, v6
        v_mul_u32_u24 v5, 13108, v7
        v_lshrrev_b32 v5, 18, v5
        v_lshl_add_u32 v7, v7, 4, v4
        v_mad_u32_u24 v{ST+ct}, v5, s24, v7
        """)
    def epi_v(stage):
        a("s_nop 2")
        for P in range(2):
            for ct in range(2):
                d = 80 + 8 * P + 4 * ct
                for ab in range(2):
                    acc = AC + 8 * (2 * P + ab) + 4 * ct
                    a(f"v_cvt_pk_bf16_f32 v{d+2*ab}, v{acc}, v{acc+1}")
                    a(f"v_cvt_pk_bf16_f32 v{d+2*ab+1}, v{acc+2}, v{acc+3}")
                st = f"buffer_store_dwordx4 {vr(d,4)}, v{ST+ct}, {WS}, s{62 if stage else 21} offen offset:{1280*P} sc1"
                if stage == 0: a(st)
                else: late_v.append(st)
                if stage == 0 and 2 * P + ct == cfg.get("x0at", 99) // 2: mid()
    gemm(True, epi_v)
    tail(late_v, "L_end_v")

SA, SB = 178, 210
O0, O1 = 146, 162
QM0, QM1, QT = 242, 246, 250
KM, KT = 16, 24
VV, SENT, WOA = 96, 112, 116
VL16, VQ, VQT, VPOLL = 121, 122, 123, 124
VOM, VOT, VXW, VXR, VONE, VZ = 126, 127, 128, 129, 130, 131
IDX, VKE, VKO, VT, VV0, VV1 = 132, 133, 134, 135, 136, 137

P3 = 138
PK = 70
def p3_kh(a, cfg, d):
    a(f"s_lshr_b32 s{d}, s16, 2")
    if cfg.get("khswap"):
        a(f"""
        s_bfe_u32 s3, s2, 0x10005
        s_xor_b32 s{d}, s{d}, s3
        """)
def p3_setup(a, cfg):
    p3_kh(a, cfg, 30)
    a(f"""
    s_and_b32 s31, s16, 3
    s_mul_i32 s3, s30, 51200
    v_lshrrev_b32 v2, 5, v1
    v_bfe_u32 v3, v1, 4, 1
    v_bfe_u32 v14, v1, 2, 2
    v_mul_u32_u24 v15, 20, v2
    v_lshl_add_u32 v15, v3, 2, v15
    v_add_u32 v15, v15, v14
    v_mul_u32_u24 v15, 160, v15
    v_and_b32 v2, 3, v1
    v_lshl_add_u32 v2, v2, 3, s3
    v_add_u32 v{P3}, v15, v2
    v_lshrrev_b32 v3, 4, v1
    v_mul_u32_u24 v15, 20, v3
    v_add3_u32 v15, v15, 16, v14
    v_mul_u32_u24 v15, 160, v15
    v_add_u32 v{P3+1}, v15, v2
    s_mul_i32 s3, s31, 5120
    s_add_u32 s3, s3, 143360
    v_add_u32 v{P3+2}, s3, v{VL16}
    s_mul_i32 s3, s31, 3584
    s_add_u32 s3, s3, 102400
    v_and_b32 v2, 15, v1
    v_mul_u32_u24 v2, 176, v2
    v_lshl_add_u32 v2, v3, 3, v2
    v_add_u32 v{P3+3}, s3, v2
    s_and_b32 s40, s2, 7
    s_lshl_b32 s41, s40, 2
    s_bfe_u32 s30, s2, 0x20003
    s_add_u32 s41, s41, s30
    s_lshl_b32 s40, s40, 12
    s_add_u32 s40, s40, {F2_OFF}
    s_lshl_b32 s41, s41, 2
    s_add_u32 s41, s41, s31
    s_mul_i32 s41, s41, 20480
    v_lshrrev_b32 v2, 1, v1
    v_lshlrev_b32 v{P3+7}, 7, v2
    """)
    for i in range(5):
        a(f"""
        v_add_u32 v2, {64*i}, v1
        v_mul_u32_u24 v3, 6554, v2
        v_lshrrev_b32 v3, 16, v3
        v_mul_u32_u24 v14, {1280-160}, v3
        v_lshl_add_u32 v{WOA+i}, v2, 4, v14
        """)
        if i < 3:
            a(f"""
            v_add_u32 v14, v2, v3
            v_lshl_add_u32 v{P3+4+i}, v14, 4, s3
            """)

def attn_setup(a, cfg, early, keep5=False):
    late = 0 if early else 1
    a.c("attention ids: s17=head s18=q pair s19=key half s21=KV base of head")
    a(f"""
    s_and_b32 s17, s2, 7
    s_lshl_b32 s17, s17, 2
    s_lshr_b32 s17, 0x75643120, s17
    s_and_b32 s17, s17, 7
    s_lshl_b32 s17, s17, 2
    s_bfe_u32 s3, s2, 0x20003
    s_add_u32 s17, s17, s3
    s_lshr_b32 s29, s2, 5
    s_lshl_b32 s18, s29, 2
    s_and_b32 s3, s16, 2
    s_add_u32 s18, s18, s3
    s_add_u32 s18, s18, {late}
    s_and_b32 s19, s16, 1
    s_mul_i32 s20, s19, 5120
    v_and_b32 v2, 31, v1
    v_lshrrev_b32 v3, 5, v1
    v_lshlrev_b32 v14, 3, v2
    v_lshl_add_u32 v{VQ}, v3, 9, v14
    v_add_u32 v{VKE}, s20, v{VQ}
    v_add_u32 v{VKO}, 256, v{VKE}
    v_lshlrev_b32 v14, 3, v1
    v_add_u32 v{VT}, s20, v14
    s_lshl_b32 s3, s19, 8
    v_xor_b32 v{VQT}, s3, v14
    v_mul_u32_u24 v15, 320, v3
    v_lshl_add_u32 v15, v2, 4, v15
    s_add_u32 s3, s20, 2560
    v_add_u32 v{VV0}, s3, v15
    v_add_u32 v{VV1}, 40960, v{VV0}
    v_lshlrev_b32 v{VL16}, 4, v1
    v_mov_b32 v{IDX}, 0xdddddddd
    s_mov_b32 s24, 0x000fffff
    s_mov_b32 s25, 0x000fffff
    v_cmp_eq_u32 vcc, 20, v2
    v_mov_b32 v15, 0x3f803f80
    s_mul_i32 s21, s17, {HKV}
    v_cndmask_b32 v{VV}, 0, v15, vcc
    s_add_u32 s21, s21, {KV_OFF}
    """)
    a(f"v_mov_b32 v{VV+1}, v{VV}")
    for i in range(1, 8): a(f"v_mov_b64 {vr(VV+2*i,2)}, {vr(VV,2)}")
    a.c("s22/s23: Q soffsets role0/role1, s26: Q pair base ; s27: first token block of this wave's K/V units ; s28: dma lds dest")
    a(f"""
    s_mul_i32 s26, s18, 2560
    s_mul_i32 s3, s17, {HQ}
    s_add_u32 s26, s26, s3
    s_lshl_b32 s3, s19, 8
    s_add_u32 s22, s26, s3
    s_xor_b32 s3, s3, 256
    s_add_u32 s23, s26, s3
    s_and_b32 s28, s16, 3
    s_mul_i32 s27, s29, {cfg.get("krot", 0)}
    s_add_u32 s27, s27, s28
    s_mul_i32 s28, s28, 5120
    s_add_u32 s28, s28, {late*81920}
    s_add_u32 s61, s21, {late*81920}
    """)
    a.c("O tile of this wave = 2*pair + (1^kh): s36/s37 store offsets, s38 flag 'filler in place', s39 flag 'stores acknowledged'")
    a(f"""
    s_lshl_b32 s30, s18, 1
    s_xor_b32 s31, s19, 1
    s_add_u32 s30, s30, s31
    s_mul_i32 s37, s30, 40960
    s_add_u32 s37, s37, {O_OFF}
    s_lshl_b32 s36, s17, 9
    s_add_u32 s36, s36, s37
    s_lshl_b32 s3, s17, 7
    s_add_u32 s37, s37, s3
    s_add_u32 s37, s37, 16384
    s_lshr_b32 s38, s2, 5
    s_lshl_b32 s38, s38, 12
    s_add_u32 s38, s38, s3
    s_add_u32 s38, s38, {F2_OFF}
    s_add_u32 s39, s38, {F3_OFF - F2_OFF}
    v_bfe_u32 v2, v1, 4, 1
    v_mul_u32_u24 v2, 20480, v2
    v_and_b32 v3, 15, v1
    v_lshl_add_u32 v{VOT}, v3, 3, v2
    v_lshl_add_u32 v2, v3, 4, v2
    v_lshrrev_b32 v3, 5, v1
    v_lshl_add_u32 v{VOM}, v3, 8, v2
    s_mul_i32 s3, s16, 3072
    s_add_u32 s3, s3, 102400
    v_add_u32 v{VXW}, s3, v{VL16}
    s_xor_b32 s3, s16, 1
    s_mul_i32 s3, s3, 3072
    s_add_u32 s3, s3, 102400
    v_add_u32 v{VXR}, s3, v{VL16}
    v_mov_b64 {vr(SENT,2)}, -1
    v_mov_b64 {vr(SENT+2,2)}, -1
    v_mov_b32 v{VONE}, 1
    v_mov_b32 v{VZ}, 0
    """)
    p3_setup(a, cfg)
    sh, sec = (7, 5) if early else (5, 20)
    a.c("poll addresses of the polling wave: K/V producers of all 16 token blocks, Q producers of both pairs")
    a(f"""
    s_mul_i32 s30, s17, 20
    s_add_u32 s31, s30, 19
    s_lshr_b32 s30, s30, {sh}
    s_lshr_b32 s31, s31, {sh}
    s_sub_u32 s31, s31, s30
    v_and_b32 v2, 1, v1
    v_mul_u32_u24 v2, s31, v2
    v_add_u32 v2, s30, v2
    v_lshrrev_b32 v14, 5, v1
    v_mul_u32_u24 v3, {sec}, v14
    v_add3_u32 v3, v2, v3, {sec}
    v_bfe_u32 v15, v1, 1, 4
    v_lshl_add_u32 v3, v3, 4, v15
    v_lshlrev_b32 v{VPOLL}, 7, v3
    v_bfe_u32 v2, v1, 4, 1
    v_mul_u32_u24 v2, s31, v2
    v_add_u32 v2, s30, v2
    s_lshr_b32 s3, s2, 5
    s_lshl_b32 s3, s3, 1
    v_lshl_add_u32 v2, v2, 4, v14
    v_add_u32 v2, s3, v2
    v_lshlrev_b32 v{VPOLL+1}, 7, v2
    s_mov_b32 s33, {FA_OFF if early else FB_OFF}
    """)
    for i in range(16): a(f"v_mov_b64 {vr(O0+2*i,2)}, 0")

def wait_stage(a, cfg, tag, wave):
    a(f"""
    s_mov_b32 s35, 0
    v_mov_b32 v7, 1
    s_cmp_eq_u32 s16, {wave}
    s_cbranch_scc0 L_gw{tag}
    """)
    if cfg.get("pd" + tag): a(f"s_sleep {cfg['pd' + tag]}")
    paced_poll(a, cfg, f"L_poll1{tag}", [VPOLL, VPOLL+1], "s33")
    a(f"""
    ds_write_b32 v11, v7
    s_branch L_gw{tag}_ok
    L_gw{tag}:
    {"s_sleep " + str(cfg.get('gs' + tag, 1)) if cfg.get('gs' + tag, 1) else ""}
    ds_read_b32 v7, v11
    s_waitcnt lgkmcnt(0)
    v_readfirstlane_b32 s34, v7
    s_cmp_lg_u32 s34, 0
    """)
    spin_tail(a, f"L_gw{tag}", mult=16)

def kread(t):
    tl = t & 15
    o = 20 * (tl >> 1)
    return f"ds_read2st64_b64 {vr(KM+4*(t&1),4)}, v{VKO if t & 1 else VKE} offset0:{o} offset1:{o+2}"
def tread(b):
    o = 40 * (b & 3)
    return f"ds_read2st64_b64 {vr(KT+4*(b&1),4)}, v{VT} offset0:{o+4} offset1:{o+24}"
def vread(t, f):
    tl = t & 15
    ad = VV0 if tl < 8 else VV1
    return f"ds_read_b128 {vr(VV+8*(t&1)+4*f,4)}, v{ad} offset:{10240*((tl>>1)&3)+1280*(t&1)+640*f}"
def Tm(t, dst):
    b, T = divmod(t, 4)
    return f"v_mfma_f32_32x32x4_2b_bf16 {vr(dst,32)}, {vr(KT+4*(b&1)+2*(T>>1),2)}, {vr(QT,2)}, 0 cbsz:1 abid:{T&1}"
def Mm(t, dst, r):
    return f"v_mfma_f32_32x32x16_bf16 {vr(dst+16*r,16)}, {vr(KM+4*(t&1),4)}, {vr(QM1 if r else QM0,4)}, {vr(dst+16*r,16)}"
def Pm(o, t, f, s):
    return f"v_smfmac_f32_32x32x32_bf16 {vr(o,16)}, {vr(VV+8*(t&1)+4*f,4)}, {vr(s,8)}, v{IDX}"

def qloads(a):
    a(f"""
    buffer_load_dwordx2 {vr(QT,2)}, v{VQT}, {WS}, s26 offen offset:2048 sc1
    buffer_load_dwordx2 {vr(QM0,2)}, v{VQ}, {WS}, s22 offen sc1
    buffer_load_dwordx2 {vr(QM0+2,2)}, v{VQ}, {WS}, s22 offen offset:1024 sc1
    buffer_load_dwordx2 {vr(QM1,2)}, v{VQ}, {WS}, s23 offen sc1
    buffer_load_dwordx2 {vr(QM1+2,2)}, v{VQ}, {WS}, s23 offen offset:1024 sc1
    """)
def kv_dma(i, back=0):
    g = [f"""
        s_add_u32 s3, s27, {4*i}
        s_and_b32 s3, s3, 15
        s_mul_i32 s3, s3, 5120
        {f"s_sub_u32 s3, s3, {back}" if back else ""}
        s_add_u32 m0, s28, {(i*20480 - back) & 0xffffffff}
        s_add_u32 s29, s61, s3
        buffer_load_dwordx4 v{VL16}, {WS}, s29 offen sc1 lds"""]
    for j in range(1, 4):
        g.append(f"buffer_load_dwordx4 v{VL16}, {WS}, s29 offen offset:{1024*j} sc1 lds")
    g.append(f"""
        s_add_u32 m0, s28, {(i*20480+4096 - back) & 0xffffffff}
        s_add_u32 s29, s29, 4096
        buffer_load_dwordx4 v{VL16}, {WS}, s29 offen sc1 lds""")
    return g
def wo_dma(nper):
    g = []
    for p in range(nper):
        for i in range(5):
            pre = ""
            if i == 0:
                pre = f"""
                s_add_u32 s31, s30, {p*8*32*1280}
                """
            g.append(pre + f"""
                s_add_u32 m0, s32, {p*8*5120 + 1024*i}
                s_nop 0
                buffer_load_dwordx4 v{WOA+i}, {WO}, s31 offen lds
                s_nop 0""")
    return g

def attn_loop(a, cfg, early):
    tag = "e" if early else "l"
    direct = early and cfg.get("direct", 0)
    wo_ids = f"""
    s_lshr_b32 s3, s2, 5
    s_mul_i32 s30, s3, 160
    s_mul_i32 s3, s16, {32*1280}
    s_add_u32 s30, s30, s3
    s_mul_i32 s32, s16, 5120
    """
    if direct:
        a("s_mov_b64 exec, s[24:25]"); a(vread(0, 0)); a(vread(0, 1)); a("s_mov_b64 exec, -1")
        a(kread(1))
        a(f"ds_read_b64 {vr(KT+2,2)}, v{VT} offset:{24*512}")
    else:
        a(f"s_setprio {3 if early else 2}")
        a(tread(0)); a(kread(0)); a(kread(1))
        a("s_mov_b64 exec, s[24:25]"); a(vread(0, 0)); a(vread(0, 1)); a("s_mov_b64 exec, -1")
        a.c("wo dma: s30 source, s32 lds dest")
        a(wo_ids)
        a(f"s_waitcnt lgkmcnt({0 if cfg.get('stamp') else 4})")
        if cfg.get("lp", {}).get("pro"): a("s_memtime s[70:71]")
        a(Tm(0, SA)); a("s_nop 15"); a("s_nop 1"); a("s_waitcnt lgkmcnt(3)")
        a(Mm(0, SA, 0)); a(Mm(0, SA, 1)); a("s_nop 10")
    dma = {}
    TB = cfg.get("tb", 14) if early else 14
    be, bl = cfg.get("be", [18, 18, 26]), cfg.get("bl", [18, 18, 26])
    assert (be[0] == be[1]) == (bl[0] == bl[1])
    assert be[0] <= 18 and min(be[1], bl[1]) >= 15 and min(be[2], bl[2]) >= 25
    if early:
        B2, C1, C2 = be
        bars = {2: "vmcnt(0)", 6: None, TB: None, C1: None, C2: None}; bars[B2] = "vmcnt(0)"; assert B2 == C1
        if cfg.get("a4"): bars[cfg["a4"]] = None
        prio = cfg.get("prio_e", {str(TB): 1, "18": 3, "24": 1, "26": 3, "29": 2, "31": 1})
    else:
        B2, C1, C2 = bl
        bars = {C1: None, C2: None}
        bars[B2] = "vmcnt(0)"
        b0 = cfg.get("bl0", 0)
        if b0 or cfg.get("u1in", 1): bars[b0] = None
        sp = cfg.get("spread", 2)
        q = (kv_dma(1) if cfg.get("u1in", 1) else []) + kv_dma(2) + kv_dma(3); t0 = b0 + cfg.get("sp0", 0)
        while q: dma[t0] = q[:sp]; q = q[sp:]; t0 += 1
        assert t0 < B2
        assert B2 >= b0 + 3
        prio = cfg.get("prio_l", {"18": 2, "25": 0, "26": 3, "29": 2, "30": 1, "31": 0})
    prio = {int(k): v for k, v in prio.items()}
    wo = wo_dma(2 if early else 3)
    for i in range(5): dma[C1 + i] = wo[2*i:2*i+2]
    for i in range(3): dma[C2 + i] = wo[10+2*i:12+2*i]
    if cfg.get("opt", 1):
        ts = cfg.get("tsent", [16, 9])[0 if early else 1]
        assert not dma.get(ts)
        dma[ts] = [f"buffer_store_dwordx4 {vr(SENT,4)}, v{VOM}, {WS}, s36 offen sc1",
            f"""s_mov_b32 exec_hi, 0
            buffer_store_dwordx2 {vr(SENT,2)}, v{VOT}, {WS}, s37 offen sc1
            s_mov_b32 exec_hi, -1"""]
    if early:
        def w4(body, lab): return f"s_cmp_eq_u32 s16, 4\ns_cbranch_scc0 {lab}\n{body}\n{lab}:"
        assert not dma.get(C1 + 5) and not dma.get(28)
        dma[C1 + 5] = [w4(f"""s_mov_b64 exec, 1
            buffer_store_dword v{VONE}, v{VZ}, {WS}, s38 offen sc1
            s_mov_b64 exec, -1""", "L_r_set")]
        assert not dma.get(27) and C2 <= 27
        dma[27] = [f"v_mov_b32 v11, {CNT_ADDR}\nds_write_b32 v11, v{VZ}"]
        dma[28] = [w4(f"buffer_load_dword v5, v{P3+7}, {WS}, s40 offen sc1", "L_r_get")]
    nt = cfg.get("nt", ["e", 31, 0])
    if cfg.get("notice", 9) == 4 and nt[0] == tag:
        tn = Asm(); notice(tn, dict(cfg, nw=4 if early else 0), False)
        assert not dma.get(nt[1]) and nt[1] > C2
        dma[nt[1]] = ["" if i != nt[2] else "\n".join(tn.lines) for i in range(5)]
    a(".p2align 3")
    for t in range(32):
        cur, nxt = (SA, SB) if t % 2 == 0 else (SB, SA)
        e = iter(range(32))
        def E(n):
            for _ in range(n):
                i = next(e); a(f"v_exp_f32 v{cur+i}, v{cur+i}")
        dq = list(dma.get(t, []))
        def D(n):
            for _ in range(n):
                if dq: a(dq.pop(0))
        many = len(dq) > 2
        a.c(f"step {t}")
        E(2)
        if t > 0: a(Pm(O1, t-1, 1, nxt+24))
        vm = bars.get(t)
        if direct and t == 0: a("s_nop 0")
        else: a(f"s_waitcnt {vm + ' ' if vm else ''}lgkmcnt(0)")
        n4 = 1
        lp = cfg.get("lp", {}).get(tag + str(t))
        if lp and lp[0]: a(f"s_memtime s[{64+2*lp[0]}:{65+2*lp[0]}]")
        if t in bars: a("s_barrier"); n4 += 1
        if lp and lp[1]: a(f"s_memtime s[{64+2*lp[1]}:{65+2*lp[1]}]")
        if t in prio: a(f"s_setprio {prio[t]}"); n4 += 1
        if n4 % 2: a("s_nop 0")
        if t == 14:
            for r in (VKE, VKO, VT, VV0): a(f"v_add_u32 v{r}, 81920, v{r}")
        if t == 16: a(f"v_add_u32 v{VV1}, 81920, v{VV1}")
        if TB == 15 and t == 15: a(tread(4)); a(kread(16))
        if t + 2 < 32 and not (TB == 15 and t == 14): a(kread(t+2))
        if many: D(1)
        E(4)
        if TB == 15 and t == 15: a(f"s_waitcnt lgkmcnt({0 if cfg.get('lp') else 1})"); a("s_nop 0")
        if t < 31: a(Tm(t+1, nxt))
        E(8)
        if direct and t == 0: a(f"s_waitcnt lgkmcnt({0 if cfg.get('stamp') else 1})"); a("s_nop 0")
        a(Pm(O0, t, 0, cur))
        one = early and t < cfg.get("vone", 16)
        if one: a("s_mov_b64 exec, s[24:25]"); a(vread(t+1, 0)); a(vread(t+1, 1)); a("s_mov_b64 exec, -1")
        elif t < 31: a("s_mov_b64 exec, s[24:25]"); a(vread(t+1, 0)); a("s_mov_b64 exec, -1")
        if many: D(1)
        E(4)
        a(Pm(O0, t, 1, cur+8))
        if t < 31 and not one: a("s_mov_b64 exec, s[24:25]"); a(vread(t+1, 1)); a("s_mov_b64 exec, -1")
        if many: D(1)
        E(4)
        if t < 31: a(Mm(t+1, nxt, 0))
        D(1)
        E(4)
        a(Pm(O1, t, 0, cur+16))
        if t % 4 == 2 and t // 4 < 7 and not (TB == 15 and t == 14): a(tread(t//4+1))
        D(1)
        E(4)
        if t < 31: a(Mm(t+1, nxt, 1))
        else:
            a.c("hand the role-0 tile to the partner wave (other key half)")
            for i in (2, 0, 1): a(f"ds_write_b128 v{VXW}, {vr(O0+4*i,4)} offset:{1024*i}")
        E(2)
        assert not dq

def attn_epilogue(a, cfg):
    stamp(a, cfg, 8)
    if cfg.get("lp"): a("s_memtime s[88:89]")
    a(f"""
    s_setprio 0
    s_nop 0
    {Pm(O1, 31, 1, SB+24)}
    """)
    if cfg.get("notice", 9) == 3:
        a("s_waitcnt vmcnt(0)"); notice(a, cfg, False); a("s_waitcnt lgkmcnt(0)")
    elif cfg.get("notice", 9) == 4:
        a(f"""
        s_waitcnt vmcnt(1) lgkmcnt(0)
        s_cmp_eq_u32 s16, {4 if cfg.get("nt", ["e", 31, 0])[0] == "e" else 0}
        s_cbranch_scc1 L_epi_w
        s_waitcnt vmcnt(0)
        L_epi_w:
        """)
    else: a("s_waitcnt vmcnt(0) lgkmcnt(0)")
    a(f"""
    s_barrier
    ds_read_b128 {vr(O0+8,4)}, v{VXR} offset:2048
    ds_read_b128 {vr(O0,4)}, v{VXR}
    ds_read_b128 {vr(O0+4,4)}, v{VXR} offset:1024
    """)
    if cfg.get("opt", 1) and cfg.get("notice", 9) == 2: notice(a, cfg, False)
    a("""
    s_nop 6
    s_waitcnt lgkmcnt(2)
    """)
    a(f"""
    v_pk_add_f32 {vr(O1+8,2)}, {vr(O1+8,2)}, {vr(O0+8,2)}
    v_pk_add_f32 {vr(O1+10,2)}, {vr(O1+10,2)}, {vr(O0+10,2)}
    v_mov_b32 v7, v{O1+8}
    v_mov_b32 v9, v{O1+8}
    s_mov_b32 s30, 0x21800000
    s_waitcnt lgkmcnt(1)
    v_permlane32_swap_b32 v7, v9
    v_pk_add_f32 {vr(O1,2)}, {vr(O1,2)}, {vr(O0,2)}
    v_pk_add_f32 {vr(O1+2,2)}, {vr(O1+2,2)}, {vr(O0+2,2)}
    s_mov_b32 s31, 0x5d800000
    s_waitcnt lgkmcnt(0)
    v_pk_add_f32 {vr(O1+4,2)}, {vr(O1+4,2)}, {vr(O0+4,2)}
    v_pk_add_f32 {vr(O1+6,2)}, {vr(O1+6,2)}, {vr(O0+6,2)}
    """)
    a.c("run-time check of the shift-free softmax: row sum in [2^-60, 2^60], finite accumulators; else redo with the true row max")
    a(f"""
    v_cmp_le_f32 s[32:33], s30, v9
    v_cmp_ge_f32 s[34:35], s31, v9
    v_pk_mul_f32 v[10:11], {vr(O1+8,2)}, 0
    """)
    for i in (10, 0, 2, 4, 6): a(f"v_pk_fma_f32 v[10:11], {vr(O1+i,2)}, 0, v[10:11]")
    a(f"""
    s_and_b64 s[32:33], s[32:33], s[34:35]
    v_cmp_o_f32 vcc, v10, v11
    v_rcp_f32 v8, v9
    s_and_b64 s[32:33], s[32:33], vcc
    s_cmp_eq_u64 s[32:33], -1
    s_cbranch_scc0 L_attn_slow
    L_attn_fin:
    """)
    for i in range(4): a(f"v_pk_mul_f32 {vr(O1+2*i,2)}, {vr(O1+2*i,2)}, v[8:9] op_sel_hi:[1,0]")
    for i in range(4): a(f"v_cvt_pk_bf16_f32 v{PK+i}, v{O1+2*i}, v{O1+2*i+1}")
    a(f"buffer_store_dwordx4 {vr(PK,4)}, v{VOM}, {WS}, s36 offen sc1")
    for i in range(4, 6): a(f"v_pk_mul_f32 {vr(O1+2*i,2)}, {vr(O1+2*i,2)}, v[8:9] op_sel_hi:[1,0]")
    for i in range(4, 6): a(f"v_cvt_pk_bf16_f32 v{PK+i}, v{O1+2*i}, v{O1+2*i+1}")
    a(f"""
    s_mov_b32 exec_hi, 0
    buffer_store_dwordx2 {vr(PK+4,2)}, v{VOT}, {WS}, s37 offen sc1
    s_mov_b32 exec_hi, -1
    """)
    stamp(a, cfg, 9)
    if cfg.get("opt", 1) and cfg.get("notice", 9) < 2: notice(a, cfg, cfg.get("notice", 9) == 0)

def notice(a, cfg, bar):
    a.c("early notice: readers check the tiles for the filler words written before and fall back to the acknowledged flags")
    if bar: a("s_barrier")
    a(f"""
    s_cmp_eq_u32 s16, {cfg.get("nw", 4)}
    s_cbranch_scc0 L_nonotice
    s_mov_b64 exec, 1
    buffer_store_dword v{VONE}, v{VZ}, {WS}, s38 offen sc1
    s_mov_b64 exec, -1
    L_nonotice:
    """)

def attn_slow(a):
    a.c("exact path: softmax with the true row maximum for the query tile this wave keeps")
    a("L_attn_slow:")
    a(f"""
    v_and_b32 v2, 31, v1
    v_lshlrev_b32 v14, 3, v2
    v_lshrrev_b32 v3, 5, v1
    v_mul_u32_u24 v3, 320, v3
    v_lshl_add_u32 v15, v2, 4, v3
    v_mov_b32 v10, 0xff800000
    s_mov_b32 s34, 0
    """)
    for i in range(16): a(f"v_mov_b32 v{O1+i}, 0")
    a(f"""
    L_slow_pass:
    s_mov_b32 s35, 0
    L_slow_tile:
    s_lshr_b32 s30, s35, 1
    s_mul_i32 s30, s30, 5120
    s_add_u32 s30, s30, s21
    s_and_b32 s3, s35, 1
    s_mul_i32 s31, s3, 1280
    s_add_u32 s31, s31, s30
    s_lshl_b32 s3, s3, 8
    s_add_u32 s30, s30, s3
    buffer_load_dwordx2 {vr(KT,2)}, v14, {WS}, s30 offen offset:2048 sc1
    buffer_load_dwordx2 {vr(KM,2)}, v{VQ}, {WS}, s30 offen sc1
    buffer_load_dwordx2 {vr(KM+2,2)}, v{VQ}, {WS}, s30 offen offset:1024 sc1
    s_mov_b64 exec, s[24:25]
    buffer_load_dwordx4 {vr(VV,4)}, v15, {WS}, s31 offen offset:2560 sc1
    buffer_load_dwordx4 {vr(VV+4,4)}, v15, {WS}, s31 offen offset:3200 sc1
    s_mov_b64 exec, -1
    s_waitcnt vmcnt(0)
    v_mfma_f32_32x32x4_2b_bf16 {vr(SA,32)}, {vr(KT,2)}, {vr(QT,2)}, 0
    s_nop 15
    s_nop 3
    v_mfma_f32_32x32x16_bf16 {vr(SA+16,16)}, {vr(KM,4)}, {vr(QM1,4)}, {vr(SA+16,16)}
    s_nop 15
    s_cmp_eq_u32 s34, 0
    s_cbranch_scc0 L_slow_pv
    """)
    for i in range(8): a(f"v_max3_f32 v10, v10, v{SA+16+2*i}, v{SA+17+2*i}")
    a("s_branch L_slow_next")
    a("L_slow_pv:")
    for i in range(16): a(f"v_sub_f32 v{SA+16+i}, v{SA+16+i}, v10")
    for i in range(16): a(f"v_exp_f32 v{SA+16+i}, v{SA+16+i}")
    a(f"""
    s_nop 3
    v_smfmac_f32_32x32x32_bf16 {vr(O1,16)}, {vr(VV,4)}, {vr(SA+16,8)}, v{IDX}
    v_smfmac_f32_32x32x32_bf16 {vr(O1,16)}, {vr(VV+4,4)}, {vr(SA+24,8)}, v{IDX}
    s_nop 15
    L_slow_next:
    s_add_u32 s35, s35, 1
    s_cmp_lt_u32 s35, 64
    s_cbranch_scc1 L_slow_tile
    s_cmp_eq_u32 s34, 0
    s_cbranch_scc0 L_slow_done
    v_mov_b32 v11, v10
    s_nop 1
    v_permlane32_swap_b32 v10, v11
    s_nop 1
    v_max_f32 v10, v10, v11
    s_mov_b32 s34, 1
    s_branch L_slow_pass
    L_slow_done:
    v_mov_b32 v7, v{O1+8}
    v_mov_b32 v9, v{O1+8}
    s_nop 1
    v_permlane32_swap_b32 v7, v9
    s_nop 1
    v_rcp_f32 v8, v9
    s_branch L_attn_fin
    """)

TAIL = []
def phase3(a, cfg):
    OF, AC, WF = 16, 56, 76
    VW, VWT, VPB, VSW, VSR, VL, VL8 = 6, 7, 8, 9, 10, 0, 4
    VOS = [13, 14, 15]
    VW2, VWT2 = 3, 5
    OPT = cfg.get("opt", 1)
    def reads(ks):
        hf, p = divmod(ks, 5)
        r = []
        for t in range(5):
            for u in range(2):
                if p < 4: ad, off = (VW2 if hf else VW), (40*p + 8*u)*160 + 32*t
                else: ad, off = (VWT2 if hf else VWT), 80*u*160 + 32*t
                r.append(f"ds_read_b64_tr_b16 {vr(WF+20*(ks%9)+4*t+2*u,2)}, v{ad} offset:{off}")
        return r
    def unpack():
        a(f"""
        s_getreg_b32 s30, hwreg(HW_REG_XCC_ID, 0, 1)
        s_xor_b32 s30, s30, s2
        {"s_xor_b32 s30, s30, 1" if cfg.get("hinv") else ""}
        s_and_b32 s30, s30, 1
        s_mul_i32 s31, s30, 25600
        s_sub_u32 s32, 25600, s31
        v_add_u32 v{VW}, s31, v{P3}
        v_add_u32 v{VWT}, s31, v{P3+1}
        v_add_u32 v{VW2}, s32, v{P3}
        v_add_u32 v{VWT2}, s32, v{P3+1}
        """)
        for i in range(2, 7): a(f"v_mov_b32 v{VW+i}, v{P3+i}")
        for i in range(3): a(f"v_mov_b32 v{VOS[i]}, v{WOA+i}")
        a(f"""
        v_mov_b32 v{VL}, v{VL16}
        v_lshlrev_b32 v{VL8}, 3, v1
        """)
        p3_kh(a, cfg, 26)
        a(f"""
        s_lshr_b32 s27, s2, 5
        s_mul_i32 s27, s27, 160
        s_add_u32 s27, s27, s41
        s_add_u32 s28, s41, {O_OFF}
        s_lshl_b32 s3, s26, 1
        s_add_u32 s3, s3, s30
        s_xor_b32 s29, s3, 1
        s_lshl_b32 s22, s3, 12
        s_add_u32 s22, s22, s28
        s_lshl_b32 s24, s29, 12
        s_add_u32 s24, s24, s28
        s_add_u32 s28, s28, 16384
        s_lshl_b32 s23, s3, 10
        s_add_u32 s23, s23, s28
        s_lshl_b32 s25, s29, 10
        s_add_u32 s25, s25, s28
        """)
    a.c("---- output projection: 64 tokens x 80 columns")
    if not OPT:
        a("""
        s_waitcnt vmcnt(0)
        s_barrier
        s_cmp_eq_u32 s16, 0
        s_cbranch_scc0 L_p3_nofl
        """)
        raise_flag(a, "s38")
        a("L_p3_nofl:")
    NPB, WIN = cfg.get("npb", 6), cfg.get("win", 5)
    LOADS = []
    for ks in range(10):
        hf, p = divmod(ks, 5)
        if p < 4: LOADS.append([f"buffer_load_dwordx4 {vr(OF+4*ks,4)}, v{VL}, {WS}, s{22+2*hf} offen offset:{1024*p} sc1"])
        else: LOADS.append([f"buffer_load_dwordx2 {vr(OF+4*ks+2*u,2)}, v{VL8}, {WS}, s{23+2*hf} offen offset:{512*u} sc1" for u in range(2)])
    assert WIN == 5
    PW = cfg.get("pw", 7)
    UL = []
    if cfg.get("ulate"):
        a0 = a.lines; a.lines = []
        a(f"v_mov_b32 v2, v{P3+7}"); unpack()
        UL = a.lines; a.lines = a0
        k = [i for i, l in enumerate(UL) if "s_and_b32 s30, s30, 1" in l][0]
        for l in UL[1:k+1]: a(l)
        UL = UL[:1] + UL[k+1:]
    else:
        a(f"v_mov_b32 v2, v{P3+7}")
        unpack()
    a.c("all stores are issued: read the first half of the heads (dies that usually finish first); filler words tell what has not arrived")
    def front(pre, il, mid=None):
        for l in UL: a(l)
        rest = [r for ks in range(NPB) for r in reads(ks)]
        for r in rest[:pre]: a(r)
        rest = rest[pre:]
        if mid: mid()
        for g in LOADS[:5]:
            for l in g: a(l)
            for r in rest[:il]: a(r)
            rest = rest[il:]
        for r in rest: a(r)
        a(f"""
        v_mov_b32 v1, 1
        v_mov_b32 v{AC}, {CNT_ADDR}
        s_waitcnt vmcnt(6)
        s_mov_b64 exec, 1
        ds_add_u32 v{AC}, v1
        s_mov_b64 exec, -1
        s_waitcnt lgkmcnt(0)
        """)
        stamp(a, cfg, 10)
        if cfg.get("p3d"): a("s_memtime s[68:69]")
    later = [reads(ks) for ks in range(NPB, 9)]
    if cfg.get("ev", 2) == 5:
        a("s_mov_b32 s28, 0"); a("s_barrier")
    else:
        a(f"""
        s_xor_b32 s3, s30, s2
        s_mov_b32 s28, 0
        s_bitcmp0_b32 s3, 0
        s_barrier
        {"s_branch" if cfg.get("force_two") else "s_cbranch_scc1"} L_p3_two
        """)
    if cfg.get("p3d"): a("s_memtime s[78:79]")
    if cfg.get("yprio"):
        a("s_cmp_lt_u32 s16, 4"); a("s_cbranch_scc1 L_noyp"); a("s_setprio 1"); a("L_noyp:")
    front(cfg.get("pre", 10), cfg.get("il", 10))
    if cfg.get("yprio") == 1: a("s_setprio 0")
    VMX = 1
    KB = cfg.get("kb", 9)
    stubs = []
    def conf7(lab):
        a("s_cmp_eq_u32 s16, 7"); a(f"s_cbranch_scc0 {lab}"); a("s_call_b64 s[32:33], L_confirm"); a(f"{lab}:")
    q = [(x, k) for k in range(NPB, 10) for x in reads(k)]
    SLOTS = [[[] for _ in range(5)] for _ in range(10)]
    pat = cfg.get("pat", [2, 2, 1, 0, 2])
    for j in range(cfg.get("s0", 0 if NPB < 9 else 1), 10):
        for t in range(5):
            SLOTS[j][t] = q[:pat[t]]; q = q[pat[t]:]
    assert not any(k == 9 for t in range(5) for _, k in SLOTS[0][t])
    DUAL = cfg.get("dual", 1)
    def both(t):
        if DUAL:
            a(f"v_pk_add_f32 {vr(AC+4*t,2)}, {vr(AC+4*t,2)}, {vr(OF+4*t,2)}")
            a(f"v_pk_add_f32 {vr(AC+4*t+2,2)}, {vr(AC+4*t+2,2)}, {vr(OF+4*t+2,2)}")
    def chk(ks):
        r = OF + 4 * ks
        return [f"v_max3_u32 v{VMX}, v{r}, v{r+1}, v{r+2}", f"v_max_u32 v{VMX}, v{VMX}, v{r+3}", f"v_cmp_eq_u32 vcc, -1, v{VMX}"]
    def arrive(ks, slide):
        hi = min(ks + 5, 10) if slide else 5
        vm = sum(len(g) for g in LOADS[ks+1:hi])
        lg = ""
        if ks >= NPB:
            done = [k for j in range(ks) for t in range(5) if j < ks - 1 or t <= 2 for _, k in SLOTS[j][t]]
            assert done.count(ks) == 10
            n = sum(k > ks for k in done)
            lg = f" lgkmcnt({min(n, 15)})"
        a(f"s_waitcnt vmcnt({vm})" + lg)
        if slide and ks < 5:
            for l in LOADS[ks + 5]: a(l)
    def mf(ks, tag="", slide=True, head=False, nxt=True):
        if head:
            arrive(ks, slide)
            for x in chk(ks): a(x)
        if cfg.get("p3d") and ks in (0, 3, 7, 9): a("s_memtime s[%d:%d]" % {0: (70, 71), 3: (72, 73), 7: (74, 75), 9: (76, 77)}[ks])
        lab = f"L_ck{ks}{tag}"
        a(f"""
        {"s_branch" if cfg.get("force_redo") else "s_cbranch_vccnz"} {lab}_again
        {lab}_ok:
        """)
        stubs.append((lab, ks, 5 if ks < 5 else 10))
        rd = SLOTS[ks]
        cn = chk(ks + 1) if nxt and ks < 9 else None
        for t in range(5):
            acc = (OF if DUAL and ks >= 5 else AC) + 4*t
            c = "0" if ks == 0 or (DUAL and ks == 5) else vr(acc, 4)
            a(f"v_mfma_f32_16x16x32_bf16 {vr(acc,4)}, {vr(WF+20*(ks%9)+4*t,4)}, {vr(OF+4*ks,4)}, {c}")
            for x, _ in rd[t]: a(x)
            if cn and t == 2: arrive(ks + 1, slide); a(cn[0])
            if cn and t == 3: a(cn[1]); a(cn[2])
    assert NPB >= 4
    def redo():
        a.c("a filler word was read: load the window again; after some tries wait for the acknowledged flags")
        NTRY = cfg.get("ntry", 32)
        for lab, ks, hi in stubs[::-1]:
            a(f"{lab}_again:")
            if cfg.get("stamp"): a("s_waitcnt lgkmcnt(0)"); a("s_mov_b32 s68, -1")
            a(f"""
            s_add_u32 s28, s28, 1
            s_cmp_eq_u32 s28, {NTRY}
            s_cbranch_scc0 {lab}_ld
            s_call_b64 s[30:31], L_confirmed
            {lab}_ld:
            """)
            if cfg.get("rsl", 0): a(f"s_sleep {cfg.get('rsl', 4)}")
            hf, p = divmod(ks, 5)
            grl = cfg.get("grl", 2)
            ids = range(ks, hi) if not grl else sorted(set(range(ks, 5*hf + min(p | 1, 4) + 1)) | {5*hf + 4})
            vm = 0
            if grl == 2:
                assert lab[-1] != "b"
                ids = range(ks, min(ks + 6, 10)); vm = sum(len(LOADS[i]) for i in ids[1:])
            for i in ids:
                for l in LOADS[i]: a(l)
            a(f"""
            s_waitcnt vmcnt({vm})
            s_cmp_ge_u32 s28, {NTRY}
            s_cbranch_scc1 {lab}_ok
            """)
            for x in chk(ks): a(x)
            a(f"""
            {"s_branch" if cfg.get("force_redo") else "s_cbranch_vccnz"} {lab}_again
            s_branch {lab}_ok
            """)
        a.c("once all eight waves have seen their stores acknowledged, say so; then wait until every producer has said so")
        a(f"""
        L_confirmed:
        s_mov_b32 s35, 0
        L_cnt:
        v_mov_b32 v1, {CNT_ADDR}
        ds_read_b32 v1, v1
        s_waitcnt lgkmcnt(0)
        v_readfirstlane_b32 s34, v1
        s_cmp_eq_u32 s34, 8
        """)
        spin_tail(a, "L_cnt", mult=16)
        a(f"""
        s_mov_b64 exec, 1
        buffer_store_dword v1, v{VL}, {WS}, s39 offen sc1
        s_mov_b64 exec, -1
        s_add_u32 s34, s40, {F3_OFF - F2_OFF}
        s_waitcnt vmcnt(0)
        """)
        poll(a, "L_poll3", 2, WS, "s34", dst=1)
        a("s_setpc_b64 s[30:31]")
    def path2():
        pw2 = cfg.get("pw2", 1)
        a.c("dies that usually finish first start reading a little later")
        a("L_p3_two:")
        EV = cfg.get("ev", 2)
        if EV == 1:
            a.c("a die that usually finishes early waits for notices before it starts reading")
            a(f"""
            s_cmp_eq_u32 s16, 1
            s_cbranch_scc0 L_gate_n0
            buffer_load_dword v1, v2, {WS}, s40 offen sc1
            L_gate_n0:
            """)
            def gate():
                a(f"""
                s_cmp_eq_u32 s16, 1
                s_cbranch_scc0 L_gpoll_ok
                s_lshl_b32 s3, s30, 4
                s_lshr_b32 s20, {0 if cfg.get("gall") else 0xffff0000}, s3
                s_mov_b32 s21, s20
                s_mov_b32 s35, 0
                s_branch L_gpoll_chk
                L_gpoll:
                buffer_load_dword v1, v2, {WS}, s40 offen sc1
                L_gpoll_chk:
                s_waitcnt vmcnt(0)
                v_cmp_ne_u32 vcc, 0, v1
                s_nop 0
                s_or_b64 vcc, vcc, s[20:21]
                s_cmp_eq_u64 vcc, -1
                """)
                spin_tail(a, "L_gpoll")
                a("s_barrier")
            front(cfg.get("pre2", 45), 5, gate)
        else:
            front(cfg.get("pre2", 45), 5)
        if EV >= 3:
            for ks in range(5): mf(ks, "b", slide=False, head=ks == 0, nxt=ks < 4)
            if EV == 4: a("s_barrier")
            for g in LOADS[5:]:
                for l in g: a(l)
            arrive(5, True)
            for x in chk(5): a(x)
            a("s_branch L_p3_join")
            return
        if EV:
            a("s_branch L_p3_one")
            return
        a(f"""
        s_cmp_eq_u32 s16, {pw2}
        s_cbranch_scc0 L_p3_two1
        buffer_load_dword v{OF+20}, v2, {WS}, s40 offen sc1
        L_p3_two1:
        """)
        for ks in range(5): mf(ks, "b", slide=False, head=ks == 0, nxt=ks < 4)
        a(f"""
        s_cmp_eq_u32 s16, {pw2}
        s_cbranch_scc0 L_poll2_ok
        v_cmp_ne_u32 vcc, 0, v{OF+20}
        s_nop 0
        s_cmp_eq_u64 vcc, -1
        s_cbranch_scc1 L_poll2_ok
        """)
        poll(a, "L_poll2", 2, WS, "s40", dst=1)
        a("s_barrier")
        stamp(a, cfg, 11)
        for g in LOADS[5:]:
            for l in g: a(l)
            if cfg.get("gap", -1) >= 0: a(f"s_nop {cfg.get('gap', 7)}")
        arrive(5, True)
        for x in chk(5): a(x)
        a("s_branch L_p3_join")
    TAIL.append(redo if cfg.get("ev", 2) == 5 else (lambda: (redo(), path2())) if cfg.get("ev", 2) == 2 else lambda: (path2(), redo()))
    a("L_p3_one:")
    stamp(a, cfg, 11)
    for ks in range(5): mf(ks, head=ks == 0)
    a("L_p3_join:")
    for ks in range(5, KB): mf(ks)
    a("""
    s_waitcnt lgkmcnt(0)
    s_cmp_lt_u32 s16, 4
    s_cbranch_scc0 L_out_fin
    """)
    for ks in range(KB, 10): mf(ks, "w")
    stamp(a, cfg, 12)
    a("s_nop 3")
    for t in range(5):
        both(t)
        a(f"ds_write_b128 v{VPB}, {vr(AC+4*t,4)} offset:{1024*t}")
        if t < 4 and not DUAL: a("s_nop 0")
    a("""
    v_mov_b32 v1, 1
    s_waitcnt lgkmcnt(0)
    s_barrier
    s_cmp_eq_u32 s16, 0
    s_cbranch_scc0 L_fin
    """)
    a.c("every wave has seen its O stores acknowledged: tell readers that fall back")
    a(f"""
    s_mov_b64 exec, 1
    buffer_store_dword v1, v{VL}, {WS}, s39 offen sc1
    s_branch L_fin
    L_out_fin:
    s_barrier
    """)
    PB = WF + 20
    for t in range(5): a(f"ds_read_b128 {vr(PB+4*t,4)}, v{VPB} offset:{1024*t}")
    for ks in range(KB, 10): mf(ks, "f")
    stamp(a, cfg, 12)
    a("s_waitcnt lgkmcnt(0)")
    a("s_nop 2")
    for t in range(5):
        both(t)
        a(f"v_pk_add_f32 {vr(AC+4*t,2)}, {vr(AC+4*t,2)}, {vr(PB+4*t,2)}")
        a(f"v_pk_add_f32 {vr(AC+4*t+2,2)}, {vr(AC+4*t+2,2)}, {vr(PB+4*t+2,2)}")
        a(f"v_cvt_pk_bf16_f32 v{OF+20+2*t}, v{AC+4*t}, v{AC+4*t+1}")
        a(f"v_cvt_pk_bf16_f32 v{OF+21+2*t}, v{AC+4*t+2}, v{AC+4*t+3}")
        a(f"ds_write_b64 v{VSW}, {vr(OF+20+2*t,2)} offset:{32*t}")
    for i in range(3): a(f"ds_read_b128 {vr(PB+4*i,4)}, v{VSR+i}")
    OFL = cfg.get("outfl", "")
    for i in range(3):
        a(f"s_waitcnt lgkmcnt({2-i})")
        if i == 2: a("s_mov_b32 exec_hi, 0")
        a(f"buffer_store_dwordx4 {vr(PB+4*i,4)}, v{VOS[i]}, {OUT}, s27 offen {OFL}")
    a("L_fin:")


DOC = """;
; One persistent launch, 256 workgroups x 8 waves (one per CU), three phases.
;
; 1. QKV projection. 240 workgroups own a 128 token x 128 column tile. Waves 4-7 stream x and wqkv into LDS (LDS-DMA),
;    waves 0-3 multiply (MFMA 16x16x32). The tile is done in two stages of 64 tokens; the weight fragments stay in
;    it is rounded. Results go to d_ws in MFMA fragment order with write-through stores; a flag per producer follows once
;    its stores are acknowledged. The 16 workgroups without a tile clear the flags (and say so in d_debug, which every
;    workgroup checks before it touches a flag) and prefetch into L2.
; 2. Attention. Workgroup = (head, 256 queries), K and V of the head in LDS, wave = 64 queries x 1024 keys.
;    picks the upper half (the bf16 value) of every fp32 P word; a row of ones in V^T yields the row sums.
;    earlier in the launch (flagged and checked before any read); a fragment that still shows such a word is loaded
"""

def gen1(cfg):
    a = Asm()
    a(f".globl {NAME}")
    a(".p2align 12")
    a(f".fill {cfg.get('pad', 3328)//4}, 4, 0xbf800000")
    a(".p2align 8")
    a(f".type {NAME},@function")
    a(f"{NAME}:")
    a("""
    s_cmp_ge_u32 s2, 256
    s_cbranch_scc1 L_end
    """)
    stamp(a, cfg, 0, real=True); stamp(a, cfg, 1)
    a("""
    s_load_dwordx4 s[4:7], s[0:1], 0
    s_load_dwordx8 s[36:43], s[0:1], 16
    v_lshrrev_b32 v2, 6, v0
    v_and_b32 v1, 63, v0
    v_readfirstlane_b32 s16, v2
    """)
    if cfg.get("codepf", 1):
        a.c("wave 0 touches an 8 KB share of the kernel's own code so that instruction fetch hits L2")
        a(f"""
        s_getpc_b64 s[26:27]
        L_pc:
        s_bfe_u32 s3, s2, 0x30003
        s_lshl_b32 s3, s3, 13
        s_cmp_eq_u32 s16, 0
        s_cbranch_scc0 L_nopf
        v_lshl_add_u32 v3, v1, 7, s3
        v_min_u32 v3, L_code_end - L_pc - 4, v3
        global_load_dword v0, v3, s[26:27]
        L_nopf:
        """)
    if cfg.get("mapq", 1):
        a.c("tile: j = id&7, v = id>>3 ; cb(s17) = (v>>2) + (j<4 ? 7 : 0) ; tb(s18) = (j&3)*4 + (v&3) ; j>=4, v>=28: no tile")
        a("""
        s_bfe_u32 s3, s2, 0x20003
        s_and_b32 s18, s2, 3
        s_lshl_b32 s18, s18, 2
        s_add_u32 s18, s18, s3
        s_and_b32 s17, s2, 0xe4
        s_cmp_eq_u32 s17, 0xe4
        s_cbranch_scc1 L_idle
        s_bitcmp1_b32 s2, 2
        s_cselect_b32 s19, 0, 7
        s_lshr_b32 s17, s2, 5
        s_add_u32 s17, s17, s19
        s_cmp_lt_u32 s16, 4
        s_cbranch_scc1 L_qkv_cons
        """)
    else:
        a.c("tile: j = id&7, v = id>>3 ; cb(s17) = (v>>2) + 8*(j>>2) ; tb(s18) = (j&3)*4 + (v&3) ; cb 15: no tile")
        a("""
        s_lshr_b32 s17, s2, 5
        s_and_b32 s3, s2, 4
        s_lshl_b32 s3, s3, 1
        s_add_u32 s17, s17, s3
        s_bfe_u32 s3, s2, 0x20003
        s_and_b32 s18, s2, 3
        s_lshl_b32 s18, s18, 2
        s_add_u32 s18, s18, s3
        s_cmp_eq_u32 s17, 15
        s_cbranch_scc1 L_idle
        s_cmp_lt_u32 s16, 4
        s_cbranch_scc1 L_qkv_cons
        """)
    phase1_loader(a, cfg)
    a("L_idle:")
    if cfg.get("e2e"): a("s_memrealtime s[64:65]")
    a.c("workgroups without a GEMM tile: clear the hand-off flags, raise 'ready' in d_debug, pull second-stage x rows into L2")
    xr = cfg.get("xrot", XROT)
    a(f"""
    s_lshl_b32 s19, s18, 2
    s_mul_i32 s17, s18, {112*128}
    s_add_u32 s17, s17, {FB_OFF}
    s_lshl_b32 s20, s18, 4
    s_add_u32 s20, s20, s16
    s_mul_i32 s23, s20, {8*1280}
    s_add_u32 s20, s23, {64*1280}
    s_add_u32 s21, s20, 8192
    v_lshlrev_b32 v2, 7, v1
    v_min_u32 v3, {15*128}, v2
    v_mov_b32 v4, 0
    v_and_b32 v10, 15, v1
    v_lshlrev_b32 v10, 2, v10
    v_mov_b32 v11, {GO_ADDR}
    ds_write_b32 v11, v4
    """)
    PFC = cfg.get("pfc", [4])
    if PFC:
        a.c("lines of the k-chunks that end the two miss runs of this die: s24 = chunk offset of the die")
        a(f"""
        s_and_b32 s24, s2, 7
        s_lshl_b32 s24, s24, 2
        s_lshr_b32 s24, {sum(v << (4*i) for i, v in enumerate(xr))}, s24
        s_and_b32 s24, s24, 15
        s_lshl_b32 s25, s3, 2
        s_and_b32 s26, s16, 3
        s_add_u32 s25, s25, s26
        s_mul_i32 s25, s25, {4*3840}
        {"" if cfg.get("mapq", 1) else "s_add_u32 s25, s25, 2048"}
        s_lshr_b32 s26, s16, 2
        s_mul_i32 s26, s26, 5
        s_add_u32 s24, s24, s26
        s_lshl_b32 s22, s18, 3
        s_and_b32 s26, s16, 3
        s_add_u32 s22, s22, s26
        s_mul_i32 s22, s22, {16*1280}
        v_lshrrev_b32 v5, 4, v1
        v_mul_u32_u24 v5, 3840, v5
        v_and_b32 v6, 15, v1
        v_min_u32 v8, 13, v6
        v_lshl_add_u32 v8, v8, 7, v5
        v_min_u32 v9, 15, v1
        v_mul_u32_u24 v9, 1280, v9
        """)
    a("s_waitcnt lgkmcnt(0)")
    common_srds(a)
    srd(a, 8, 4, 2048 * 1280)
    srd(a, 12, 6, 640 * 3840)
    def pf(c):
        a(f"""
        s_add_u32 s26, s24, {c}
        s_sub_u32 s27, s26, 10
        s_cselect_b32 s26, s26, s27
        s_mul_i32 s27, s26, {64*3840}
        s_add_u32 s27, s27, s25
        s_lshl_b32 s26, s26, 7
        s_add_u32 s26, s26, s22
        buffer_load_dword v94, v8, s[12:15], s27 offen
        buffer_load_dword v95, v9, s[8:11], s26 offen
        """)
    a(f"""
    s_cmp_eq_u32 s16, 0
    s_cbranch_scc0 L_idle_pf
    s_add_u32 s28, s17, 8192
    v_min_u32 v7, {47*128}, v2
    buffer_store_dword v4, v2, {WS}, s17 offen sc1
    buffer_store_dword v4, v7, {WS}, s28 offen sc1
    L_idle_pf:
    """)
    X1 = cfg.get("x1pf", 0)
    for c in PFC: pf(c)
    n1 = 2 * len(PFC)
    if X1:
        a(f"""
        s_add_u32 s26, s23, 8192
        buffer_load_dword v88, v2, s[8:11], s23 offen
        buffer_load_dword v89, v3, s[8:11], s26 offen
        """)
        n1 += 2
    if not n1: a(f"buffer_load_dword v92, v3, s[8:11], s21 offen")
    a(f"""
    s_cmp_eq_u32 s16, 0
    s_cbranch_scc0 L_idle_pf2
    v_mov_b32 v6, 1
    s_waitcnt vmcnt({n1 or 1})
    s_mov_b64 exec, 1
    buffer_store_dword v6, v4, {DBG}, s19 offen sc1
    s_mov_b64 exec, -1
    L_idle_pf2:
    s_barrier
    buffer_load_dword v90, v2, s[8:11], s20 offen
    """)
    if n1: a(f"buffer_load_dword v92, v3, s[8:11], s21 offen")
    if cfg.get("e2e"):
        srd(a, 96, 42, 1 << 20, add=STAMP_OFF + (2 << 20))
        a("""
        v_mov_b32 v93, s64
        s_mov_b64 exec, 1
        buffer_store_dword v93, v4, s[96:99], s19 offen
        s_mov_b64 exec, -1
        """)
    a("""
    s_cmp_eq_u32 s16, 0
    s_cbranch_scc0 L_rdy_i_ok
    """)
    poll(a, "L_rdy_i", 10, DBG, "0")
    a("""
    s_waitcnt vmcnt(0)
    s_barrier
    s_mov_b32 s63, 0
    s_cmp_lt_u32 s16, 4
    s_cbranch_scc1 L_late_setup
    """)
    attn_setup(a, cfg, early=True)
    if cfg.get("qfirst", 0):
        a.c("look only at the flags of this workgroup's Q producers until those are up: lines read before they are written slow the writers")
        a(f"""
        s_cmp_eq_u32 s16, {cfg.get("epoll", 5)}
        s_cbranch_scc0 L_early
        """)
        poll(a, "L_qfirst", VPOLL+1, WS, "s33")
    a("s_branch L_early")
    a("L_late_setup:")
    attn_setup(a, cfg, early=False)
    a("s_barrier")
    a("s_branch L_late_st")
    page(a, cfg, "qk")
    a("L_qkv_cons:")
    phase1_consumer(a, cfg)
    page(a, cfg, "late")
    a(f"""
    L_late_st:
    v_mov_b32 v11, {GO_ADDR + 81920}
    ds_write_b32 v11, v{VZ}
    s_barrier
    """)
    if cfg.get("a4"):
        a(f"""
        s_waitcnt vmcnt(0)
        s_cmp_eq_u32 s63, 0
        s_cbranch_scc1 L_late_nofl
        s_mov_b64 exec, 1
        buffer_store_dword v{VONE}, v{VZ}, {WS}, s60 offen sc1
        s_mov_b64 exec, -1
        L_late_nofl:
        """)
        for g in kv_dma(2, back=81920): a(g)
        a("s_waitcnt vmcnt(4)")
        for g in kv_dma(3, back=81920): a(g)
        a("s_waitcnt vmcnt(5) lgkmcnt(0)")
        a("s_barrier")
        a("s_waitcnt vmcnt(0)")
        a("s_barrier")
    else:
        for g in kv_dma(2, back=81920): a(g)
        a("s_waitcnt vmcnt(5)")
    if cfg.get("a4"): pass
    elif cfg.get("u3first", 0):
        for g in kv_dma(3, back=81920): a(g)
        a(f"""
        s_cmp_eq_u32 s63, 0
        s_cbranch_scc1 L_late_nofl
        s_mov_b64 exec, 1
        buffer_store_dword v{VONE}, v{VZ}, {WS}, s60 offen sc1
        s_mov_b64 exec, -1
        s_waitcnt vmcnt(1) lgkmcnt(0)
        s_branch L_late_a3
        L_late_nofl:
        s_waitcnt vmcnt(0) lgkmcnt(0)
        L_late_a3:
        s_barrier
        """)
    else:
        a("""
        s_cmp_eq_u32 s63, 0
        s_cbranch_scc1 L_late_nofl
        """)
        if cfg.get("sat2", 1): raise_scalar(a, "s60")
        else: raise_flag(a, "s60")
        a("L_late_nofl:")
        for g in kv_dma(3, back=81920): a(g)
        a("""
        s_waitcnt vmcnt(0) lgkmcnt(0)
        s_barrier
        """)
    wait_stage(a, cfg, "l", 0)
    stamp(a, cfg, 6)
    for g in kv_dma(0): a(g)
    qloads(a)
    a("s_waitcnt vmcnt(5) lgkmcnt(0)")
    stamp(a, cfg, 15)
    if cfg.get("u1in", 1):
        a("s_waitcnt vmcnt(0)")
    else:
        if not cfg.get("bl0"): a("s_barrier")
        for g in kv_dma(1): a(g)
        a("s_waitcnt vmcnt(5)")
    stamp(a, cfg, 7)
    attn_loop(a, cfg, early=False)
    a("s_branch L_epi")
    page(a, cfg, "early")
    a("L_early:")
    if cfg.get("direct", 0):
        assert cfg.get("krot", 0) == 0
        a(f"""
        v_lshlrev_b32 v6, 3, v1
        s_add_u32 s14, s61, s20
        s_lshr_b32 s3, s2, 5
        s_mul_i32 s30, s3, 160
        s_mul_i32 s3, s16, {32*1280}
        s_add_u32 s30, s30, s3
        s_mul_i32 s32, s16, 5120
        """)
    wait_stage(a, cfg, "e", cfg.get("epoll", 5))
    stamp(a, cfg, 6)
    if cfg.get("direct", 0):
        a.c("Q and the first key tile straight into registers: the first scores are ready when the LDS image is")
        a(f"""
        buffer_load_dwordx2 {vr(QT,2)}, v{VQT}, {WS}, s26 offen offset:2048 sc1
        buffer_load_dwordx2 {vr(KT,2)}, v6, {WS}, s14 offen offset:2048 sc1
        buffer_load_dwordx2 {vr(QM0,2)}, v{VQ}, {WS}, s22 offen sc1
        buffer_load_dwordx2 {vr(QM0+2,2)}, v{VQ}, {WS}, s22 offen offset:1024 sc1
        buffer_load_dwordx2 {vr(KM,2)}, v{VQ}, {WS}, s14 offen sc1
        buffer_load_dwordx2 {vr(KM+2,2)}, v{VQ}, {WS}, s14 offen offset:1024 sc1
        buffer_load_dwordx2 {vr(QM1,2)}, v{VQ}, {WS}, s23 offen sc1
        buffer_load_dwordx2 {vr(QM1+2,2)}, v{VQ}, {WS}, s23 offen offset:1024 sc1
        """)
        for g in kv_dma(0): a(g)
        a("s_setprio 3")
        a("s_waitcnt vmcnt(11)")
        a(Tm(0, SA)); a("s_nop 15"); a("s_nop 1"); a("s_waitcnt vmcnt(5)")
        a(Mm(0, SA, 0)); a(Mm(0, SA, 1))
        a(f"s_waitcnt vmcnt({cfg.get('u1w', 3)})")
        for g in kv_dma(1): a(g)
    else:
        for g in kv_dma(0): a(g)
        qloads(a)
        a(f"s_waitcnt vmcnt({cfg.get('u1w', 5)})")
        for g in kv_dma(1): a(g)
    a("s_waitcnt vmcnt(5) lgkmcnt(0)")
    stamp(a, cfg, 5)
    a("s_barrier")
    stamp(a, cfg, 7)
    attn_loop(a, cfg, early=True)
    a.c("the filler words of every tile this workgroup will read are in place")
    a("""
    s_cmp_eq_u32 s16, 4
    s_cbranch_scc0 L_epi
    """)
    a(f"s_waitcnt vmcnt({1 if cfg.get('notice', 9) == 4 else 0})")
    a("""
    v_cmp_ne_u32 vcc, 0, v5
    s_nop 0
    s_cmp_eq_u64 vcc, -1
    s_cbranch_scc0 L_r_wait
    """)
    a("L_epi:")
    attn_epilogue(a, cfg)
    phase3(a, cfg)
    if cfg.get("stamp"): a("s_waitcnt vmcnt(0)")
    stamp(a, cfg, 13); stamp(a, cfg, 14, real=True)
    if cfg.get("stamp"): a("s_waitcnt lgkmcnt(0)"); a("s_mov_b32 s94, s28")
    if "xsel" in cfg:
        a(f"""
        s_waitcnt lgkmcnt(0)
        s_and_b32 s90, s2, 7
        s_cmp_eq_u32 s90, {cfg["xsel"]}
        s_cselect_b32 s90, s64, 0
        """)
    if cfg.get("xcc"):
        a("""
        s_waitcnt lgkmcnt(0)
        s_getreg_b32 s90, hwreg(HW_REG_XCC_ID, 0, 4)
        s_sub_u32 s90, s90, s2
        s_and_b32 s90, s90, 7
        s_mul_i32 s90, s90, 200
        """)
    stamp_flush(a, cfg, 0, 16, 8, wsptr=42)
    a("L_end:")
    a("s_endpgm")
    TAIL.pop()()
    a("L_code_end:")
    a("L_r_wait:")
    poll(a, "L_r_spin", P3+7, WS, "s40")
    a("s_branch L_epi")
    attn_slow(a)
    head = open("standalone__softmax_full_mha__prompt.s.ref").read().split("; Override launch")[0]
    descs = descriptor(NAME, 256)
    if cfg.get("probe"):
        import k_probe
        if cfg.get("lat"):
            head += "; @launch kernel=lat_kernel grid=(1,1,1) block=(64,1,1) lds=0\n"
            descs += k_probe.gen_lat(a, cfg)
        head += f"; @launch kernel={NAME} grid=(256,1,1) block=(512,1,1) lds=163840\n; @launch kernel=probe_kernel grid=(1,1,1) block=(64,1,1) lds=0\n"
        descs += k_probe.gen_probe(a, cfg)
    elif cfg.get("e2e"):
        import k_probe
        head += "; @launch kernel=prev_kernel grid=(1,1,1) block=(64,1,1) lds=0\n"
        a(".p2align 12")
        descs += k_probe.gen_prev(a, cfg)
        head += f"; @launch kernel={NAME} grid=(256,1,1) block=(512,1,1) lds=163840\n; @launch kernel=next_kernel grid=(1,1,1) block=(64,1,1) lds=0\n"
        descs += k_probe.gen_next(a, cfg)
    elif cfg.get("list"):
        head += f"; @launch kernel={NAME} grid=(256,1,1) block=(512,1,1) lds=163840\n"
    else:
        head += "; @launch grid=(256,1,1) block=(512,1,1) lds=163840\n"
    return head + DOC + '.amdgcn_target "amdgcn-amd-amdhsa--gfx950"\n.text\n' + a.text() + '.section .rodata,"a"\n' + descs

def gen(cfg):
    if not cfg.get("layout", 1): return gen1(cfg)
    import subprocess, tempfile, os
    d = tempfile.mkdtemp()
    c = dict(cfg, pages={"qk": 0, "v": 0, "late": 0, "early": cfg.get("eoff", 128)})
    open(d + "/a.s", "w").write(gen1(c))
    subprocess.run(["clang", "-x", "assembler", "-target", "amdgcn-amd-amdhsa", "-mcpu=gfx950", "-c", d + "/a.s", "-o", d + "/a.o"], check=True)
    o = subprocess.run(["llvm-objdump", "-t", d + "/a.o"], capture_output=True, text=True).stdout
    L = {m.group(2): int(m.group(1), 16) for m in re.finditer(r"^([0-9a-f]+) .* (L_\w+)$", o, re.M)}
    c["pages"]["qk"] = (-L["L_end_qk"]) % 4096 // 8 * 8
    c["pages"]["v"] = (-L["L_end_v"] - 64) % 4096 // 8 * 8
    return gen1(c)

if __name__ == "__main__":
    cfg = json.loads(sys.argv[2]) if len(sys.argv) > 2 else {}
    open(sys.argv[1], "w").write(gen(cfg))
```

```python
import sys, json, struct, re
from asmlib import *
NAME = "standalone__softmax_full_mha__prompt_kernel"
HQ = 81920
HKV = 163840
KV_OFF = 32 * HQ
O_OFF = KV_OFF + 32 * HKV
FB_OFF = O_OFF + 128 * 20480
FA_OFF = FB_OFF + 256 * 128
F2_OFF = FA_OFF + 256 * 128
F3_OFF = F2_OFF + 256 * 128
WS_BYTES = F3_OFF + 256 * 128
SLOT = [0, 24576, 49152, 81920, 106496, 131072, 0, 24576, 49152, 139264]
CSCALE = struct.unpack("<I", struct.pack("<f", (20 ** -0.5) * 1.4426950408889634))[0]
WS, WO, OUT, DBG = "s[44:47]", "s[48:51]", "s[52:55]", "s[56:59]"
SPIN_MAX = 1 << 18

def spin_head(a, label):
    a(f"{label}:")
def spin_tail(a, label, mult=1):
    a(f"""
    s_cselect_b32 s35, {SPIN_MAX*mult}, s35
    s_add_u32 s35, s35, 1
    s_cmp_lt_u32 s35, {SPIN_MAX*mult}
    s_cbranch_scc1 {label}
    {label}_ok:
    """)

def poll(a, label, vaddr, rsrc, soff, dst=5):
    a(f"""
    s_mov_b32 s35, 0
    {label}:
    buffer_load_dword v{dst}, v{vaddr}, {rsrc}, {soff} offen sc1
    s_waitcnt vmcnt(0)
    v_cmp_ne_u32 vcc, 0, v{dst}
    s_nop 0
    s_cmp_eq_u64 vcc, -1
    """)
    spin_tail(a, label)

def paced_poll(a, cfg, label, vaddrs, soff):
    pace = cfg.get("pace" + label[-1], -1)
    n = len(vaddrs)
    dst = [5, 3][:n]
    if pace < 0:
        a(f"s_mov_b32 s35, 0\n{label}:")
        if pace < -1: a(f"s_sleep {-pace}")
        for d, v in zip(dst, vaddrs): a(f"buffer_load_dword v{d}, v{v}, {WS}, {soff} offen sc1")
        a(f"{label}_chk:")
        a("s_waitcnt vmcnt(0)")
        if label == "L_poll1e" and cfg.get("touch", 3) == 3:
            a(f"{label}_first:")
            a("s_waitcnt vmcnt(2)")
    else:
        for d in dst: a(f"v_mov_b32 v{d}, 0")
        a(f"s_mov_b32 s35, 0\n{label}:")
        for d, v in zip(dst, vaddrs): a(f"buffer_load_dword v{d}, v{v}, {WS}, {soff} offen sc1")
        if pace: a(f"s_sleep {pace}")
        a(f"s_waitcnt vmcnt({n * cfg.get('pdepth', 4)})")
    if n == 2 and label[-1] == "l": a("v_min_u32 v2, v5, v3"); a("v_cmp_eq_u32 vcc, 4, v2")
    elif n == 2: a("v_and_b32 v2, v5, v3"); a("v_cmp_ne_u32 vcc, 0, v2")
    else: a("v_cmp_ne_u32 vcc, 0, v5")
    a("s_nop 0")
    a("s_cmp_eq_u64 vcc, -1")
    spin_tail(a, label, mult=4)

def raise_scalar(a, soff):
    a(f"""
    s_add_u32 s6, s42, {soff}
    s_addc_u32 s7, s43, 0
    s_mov_b32 s5, 1
    s_atomic_add s5, s[6:7], 0x0 glc
    """)

def raise_flag(a, soff):
    a(f"""
    v_mov_b32 v2, 0
    v_mov_b32 v3, 1
    s_mov_b64 exec, 1
    buffer_store_dword v3, v2, {WS}, {soff} offen sc1
    s_mov_b64 exec, -1
    """)

def page(a, cfg, key):
    off = cfg.get("pages", {}).get(key)
    if off is None: return
    if key == "v" and off:
        a(".p2align 8"); a(f".fill {(off - 256)//4}, 4, 0xbf800000"); return
    a(".p2align 12")
    if off: a(f".fill {off//4}, 4, 0xbf800000")

def common_srds(a):
    srd(a, 44, 42, WS_BYTES)
    srd(a, 48, 36, 640 * 1280)
    srd(a, 52, 38, 2048 * 1280)
    srd(a, 56, 40, 256)

XROT = [0, 1, 3, 4, 3, 4, 1, 2]
IDLE2 = True
CNT_ADDR = 133120 - 16
GO_ADDR = 81920 - 16
def phase1_loader(a, cfg):
    a.c("---------------- loader waves (become the early attention waves)")
    rot = cfg.get("rot", 2)
    NX0 = cfg.get("nx0", 6)
    if rot == 2:
        a("""
        s_add_u32 s100, s3, s17
        s_and_b32 s100, s100, 1
        s_mul_i32 s100, s100, 5
        """)
    elif rot == 3:
        a("""
        s_add_u32 s100, s3, s17
        s_mul_i32 s101, s100, 43
        s_lshr_b32 s101, s101, 7
        s_mul_i32 s101, s101, 3
        s_sub_u32 s100, s100, s101
        s_mul_i32 s100, s100, 7
        s_lshr_b32 s100, s100, 1
        """)
    elif rot == 4:
        a("""
        s_add_u32 s100, s3, s17
        s_and_b32 s100, s100, 3
        s_mul_i32 s100, s100, 5
        s_lshr_b32 s100, s100, 1
        """)
    else:
        a("s_mov_b32 s100, 0")
    xr = cfg.get("xrot", XROT)
    if xr:
        a(f"""
        s_and_b32 s101, s2, 7
        s_lshl_b32 s101, s101, 2
        s_lshr_b32 s101, {sum(v << (4*i) for i, v in enumerate(xr))}, s101
        s_and_b32 s101, s101, 15
        s_add_u32 s100, s100, s101
        s_sub_u32 s101, s100, 10
        s_cselect_b32 s100, s100, s101
        """)
    a(f"""
    s_and_b32 s19, s16, 3
    s_lshl_b32 s96, s19, 4
    s_lshr_b32 s101, s19, 1
    s_lshl_b32 s101, s101, 5
    s_and_b32 s34, s19, 1
    s_lshl_b32 s34, s34, 2
    s_add_u32 s101, s101, s34
    s_cmp_lt_u32 s17, 10
    s_cselect_b32 s96, s96, s101
    s_cselect_b32 s101, 4, 8
    s_mul_i32 s101, s101, 1280
    s_lshl_b32 s34, s18, 7
    s_add_u32 s96, s96, s34
    s_mul_i32 s96, s96, 1280
    v_lshrrev_b32 v2, 5, v1
    v_mul_u32_u24 v2, s101, v2
    v_bfe_u32 v3, v1, 3, 2
    v_mul_u32_u24 v3, 1280, v3
    v_lshrrev_b32 v5, 4, v1
    v_and_b32 v4, 7, v1
    v_xor_b32 v4, v4, v5
    v_lshlrev_b32 v4, 4, v4
    v_add3_u32 v8, v2, v3, v4
    v_xor_b32 v4, 64, v4
    v_add3_u32 v9, v2, v3, v4
    s_lshl_b32 s101, s101, 1
    s_sub_u32 s101, s101, 1024
    v_add_u32 v9, s101, v9
    v_and_b32 v3, 15, v1
    v_lshlrev_b32 v6, 1, v5
    v_xor_b32 v3, v3, v6
    v_mul_u32_u24 v2, 3840, v5
    v_lshl_add_u32 v16, v3, 4, v2
    v_add_u32 v17, {4*3840-1024}, v16
    v_xor_b32 v3, 8, v3
    v_lshl_add_u32 v18, v3, 4, v2
    v_add_u32 v19, {3*(4*3840-1024)}, v18
    v_add_u32 v18, {2*(4*3840-1024)}, v18
    s_mul_i32 s97, s19, {16*3840}
    s_lshl_b32 s3, s17, 8
    s_add_u32 s97, s97, s3
    s_lshl_b32 s98, s19, 11
    s_lshl_b32 s99, s19, 12
    s_mov_b32 s10, {2048*1280}
    s_mov_b32 s11, 0x00020000
    s_mov_b32 s14, {640*3840}
    s_mov_b32 s15, 0x00020000
    """)
    stamp(a, cfg, 8, grp="st")
    a("s_waitcnt lgkmcnt(0)")
    stamp(a, cfg, 9, grp="st")
    a(f"""
    s_mov_b32 s8, s4
    s_mov_b32 s9, s5
    s_mov_b32 s12, s6
    s_mov_b32 s13, s7
    """)
    XF1, XF2, WF_ = cfg.get("xfl", ""), cfg.get("x2fl", ""), cfg.get("wfl", "")
    def adv():
        a("""
        s_add_u32 s100, s100, 1
        s_cmp_eq_u32 s100, 10
        s_cselect_b32 s100, 0, s100
        """)
    def issue_x(lds, XF):
        a(f"""
        s_lshl_b32 s101, s100, 7
        s_add_u32 m0, s98, {lds}
        s_add_u32 s101, s101, s96
        """)
        for j in range(2):
            a(f"buffer_load_dwordx4 v{8+j}, s[8:11], s101 offen offset:{1024*j} {XF} lds")
    def issue(c):
        slot = SLOT[c]
        issue_x(slot, XF1)
        a(f"""
        s_mul_i32 s34, s100, {64*3840}
        s_add_u32 m0, s99, {slot+8192}
        s_add_u32 s34, s34, s97
        """)
        for j in range(4):
            a(f"buffer_load_dwordx4 v{16+j}, s[12:15], s34 offen offset:{1024*j} {WF_} lds")
        adv()
    def issue2(c):
        if c == 0: a(f"s_add_u32 s96, s96, {64*1280}")
        issue_x(81920 + 8192*c, XF2)
        if c < 9: adv()
    NPRE = cfg.get("npre", 3)
    if cfg.get("ldprio"): a(f"s_setprio {cfg['ldprio']}")
    groups = [[("c", c)] for c in range(10)]
    q = list(range(NX0))
    while q: groups.append([("x", i) for i in q[:3]]); q = q[3:]
    while len(groups) > 10 + NPRE:
        g = groups.pop(); groups[-1] = groups[-1] + g
    pend = []
    def put(g):
        for kind, i in g:
            if kind == "c": issue(i); pend.append(((kind, i), 6))
            else: issue2(i); pend.append(((kind, i), 2))
    def wait_for(item):
        k = [p[0] for p in pend].index(item)
        del pend[:k+1]
        a(f"s_waitcnt vmcnt({sum(p[1] for p in pend)})")
    for i in range(NPRE):
        put(groups.pop(0))
        if i == 0: stamp(a, cfg, 10, grp="st")
    common_srds(a)
    a(f"""
    v_and_b32 v10, 15, v1
    v_lshlrev_b32 v10, 2, v10
    s_lshl_b32 s60, s17, 4
    s_add_u32 s60, s60, s18
    s_lshl_b32 s60, s60, 7
    s_add_u32 s60, s60, {FA_OFF}
    """)
    XT = cfg.get("xtouch", 0)
    if XT:
        a("""
        s_bfe_u32 s4, s17, 0x20001
        s_lshl_b32 s4, s4, 2
        s_add_u32 s4, s4, s19
        s_lshl_b32 s3, s18, 5
        s_add_u32 s4, s4, s3
        s_add_u32 s4, s4, 16
        s_mul_i32 s4, s4, 5120
        """)
    t = Asm(); attn_setup(t, cfg, early=True)
    su = [l.strip() for l in t.lines if not l.strip().startswith(";")]
    at = cfg.get("esu", [0, 1, 2, 3, 4])
    per = -(-len(su) // len(at))
    def slice_(c):
        if c in at:
            for l in su[:per]: a(l)
            del su[:per]
    slice_(-1)
    for c in range(10):
        wait_for(("c", c))
        if c == 0: stamp(a, cfg, 2)
        if c in (3, 6): stamp(a, cfg, {3: 11, 6: 12}[c], grp="st")
        a("s_barrier")
        if cfg.get("rdyearly") == c: a(f"buffer_load_dword v5, v10, {DBG}, 0 offen sc1"); pend.append((("r", 0), 1))
        if groups: put(groups.pop(0))
        slice_(c)
    if not cfg.get("rdyearly"): a(f"buffer_load_dword v5, v10, {DBG}, 0 offen sc1"); pend.append((("r", 0), 1))
    stamp(a, cfg, 3)
    if XT:
        assert NX0 == 6
        a("""
        v_min_u32 v2, 15, v1
        v_and_b32 v3, 3, v2
        v_add_u32 v3, s100, v3
        v_subrev_u32 v4, 10, v3
        v_min_u32 v3, v3, v4
        v_lshrrev_b32 v2, 2, v2
        v_mul_u32_u24 v2, 1280, v2
        v_lshl_add_u32 v2, v3, 7, v2
        """)
    wait_for(("x", 2))
    a("s_barrier")
    if XT:
        a.c("behind the stores: pull a share of the last four second-stage x chunks into L2")
        a("buffer_load_dword v22, v2, s[8:11], s4 offen")
    a(f"""
    v_mov_b32 v11, {GO_ADDR}
    v_mov_b32 v7, 0
    ds_write_b32 v11, v7
    s_waitcnt vmcnt({1 if XT else 0})
    v_cmp_ne_u32 vcc, 0, v5
    s_waitcnt lgkmcnt(0)
    s_cmp_eq_u64 vcc, -1
    s_cbranch_scc1 L_rdy_l_ok
    """)
    poll(a, "L_rdy_l", 10, DBG, "0")
    if NX0 > 3 and not cfg.get("mergef", 1): a("s_barrier")
    SA_ = cfg.get("sat", 1)
    NXF = cfg.get("nxf", NX0)
    for q in range(NX0, NXF): issue2(q)
    a("""
    s_barrier
    s_cmp_eq_u32 s16, 4
    s_cbranch_scc0 L_ld_nofl
    """)
    if SA_: raise_scalar(a, "s60")
    else:
        a(f"""
        s_mov_b64 exec, 1
        buffer_store_dword v{VONE}, v{VZ}, {WS}, s60 offen sc1
        s_mov_b64 exec, -1
        """)
    a("L_ld_nofl:")
    if cfg.get("eprio"): a(f"s_setprio {cfg['eprio']}")
    stamp(a, cfg, 4)
    for q in range(NXF, 10): issue2(q)
    NX1 = cfg.get("nx1", 10)
    def xbars(extra):
        if NX1 < 10:
            a(f"s_waitcnt vmcnt({2*(10-NX1) + extra})")
            a("s_barrier")
        a(f"s_waitcnt vmcnt({extra})")
        a("s_barrier")
    if cfg.get("prepoll", 0):
        a(f"""
        s_cmp_eq_u32 s16, {cfg.get("epoll", 5)}
        s_cbranch_scc0 L_ld_nopoll
        s_waitcnt vmcnt({cfg.get("ppw", 5)})
        buffer_load_dword v5, v{VPOLL}, {WS}, s33 offen sc1
        buffer_load_dword v3, v{VPOLL+1}, {WS}, s33 offen sc1
        s_mov_b32 s35, 0
        v_mov_b32 v7, 1
        """)
        xbars(2)
        a("s_branch L_poll1e_chk")
        a("L_ld_nopoll:")
    TP = cfg.get("touch", 3)
    if TP == 3:
        a.c("the polling wave also touches the lines of Q and a quarter of the first K/V units (shared with the head's other workgroups):")
        a.c("a pure L2 prefetch; a line touched too early is dropped again by the producer's write")
        ep = cfg.get("epoll", 5)
        a(f"""
        s_cmp_eq_u32 s16, {ep}
        s_cbranch_scc0 L_ld_nt
        v_min_u32 v2, 39, v1
        v_cmp_lt_u32 vcc, 19, v2
        s_lshr_b32 s3, s2, 5
        s_and_b32 s3, s3, 3
        s_mul_i32 s3, s3, 5120
        s_add_u32 s3, s3, s21
        {"s_sub_u32 s34, s26, 5120" if ep & 2 else "s_mov_b32 s34, s26"}
        v_add_u32 v4, 20, v2
        v_cndmask_b32 v4, v2, v4, vcc
        v_lshlrev_b32 v4, 7, v4
        v_lshlrev_b32 v6, 7, v2
        s_mov_b32 s35, 0
        v_mov_b32 v7, 1
        """)
        direct_init(a, cfg)
        xbars(0)
        a(f"""
        buffer_load_dword v5, v{VPOLL}, {WS}, s33 offen sc1
        buffer_load_dword v3, v{VPOLL+1}, {WS}, s33 offen sc1
        buffer_load_dword v34, v6, {WS}, s3 offen sc1
        buffer_load_dword v35, v4, {WS}, s34 offen sc1
        s_branch L_poll1e_first
        L_ld_nt:
        """)
    elif TP:
        a.c("lines of Q (wave 6) and of the first K/V units (wave 7: a quarter, shared with the head's other workgroups) to touch while the flags are polled")
        a(f"""
        v_min_u32 v2, 39, v1
        s_lshr_b32 s3, s2, 5
        s_and_b32 s3, s3, 3
        s_mul_i32 s3, s3, 5120
        s_add_u32 s3, s3, s21
        s_sub_u32 s34, s26, 5120
        v_cmp_lt_u32 vcc, 19, v2
        s_cmp_eq_u32 s16, 6
        s_cselect_b32 s3, s34, s3
        s_cselect_b32 s34, 20, 0
        v_add_u32 v3, s34, v2
        v_cndmask_b32 v2, v2, v3, vcc
        v_lshlrev_b32 v2, 7, v2
        """)
        if TP == 2:
            a("s_cmp_lt_u32 s16, 6"); a("s_cbranch_scc1 L_ld_nt")
            a(f"s_waitcnt vmcnt({cfg.get('tw', 2)})")
            a(f"buffer_load_dword v6, v2, {WS}, s3 offen sc1")
            xbars(1); a("s_branch L_early"); a("L_ld_nt:")
    xbars(0)
    if TP == 1:
        a(f"""
        s_cmp_lt_u32 s16, 6
        s_cbranch_scc1 L_early
        buffer_load_dword v6, v2, {WS}, s3 offen sc1
        """)
    a("s_branch L_early")

def phase1_consumer(a, cfg):
    a.c("---------------- consumer waves (become the late attention waves)")
    XA, WA, ST, XF, AC, WR = 8, 10, 12, 16, 48, 96
    XB, WB = 4, 6
    W60 = "s_lshl_b32 s60, s17, 2\ns_add_u32 s60, s60, s16\ns_lshl_b32 s60, s60, 4"
    SFLAG = cfg.get("sflag", 4)
    NX0 = cfg.get("nx0", 6)
    XBAR = {3, NX0, cfg.get("nx1", 10)}
    if cfg.get("mergef", 1):
        assert SFLAG <= 5 and NX0 > 3 and cfg.get("nxf", NX0) == NX0
        XBAR.discard(3)
    else: assert (NX0 == 3 or SFLAG >= 5) and SFLAG <= 2 * NX0 - 1
    a(f"""
    v_and_b32 v2, 15, v1
    v_lshrrev_b32 v3, 4, v1
    v_bfe_u32 v4, v1, 1, 3
    v_xor_b32 v4, v4, v3
    v_lshlrev_b32 v4, 4, v4
    v_lshl_add_u32 v{XA}, v2, 7, v4
    v_xor_b32 v{XA+1}, 64, v{XA}
    v_bfe_u32 v4, v1, 2, 2
    v_lshl_add_u32 v5, v3, 3, v4
    v_and_b32 v6, 1, v3
    v_lshl_or_b32 v4, v6, 2, v4
    s_lshl_b32 s3, s16, 1
    v_xor_b32 v4, s3, v4
    v_lshlrev_b32 v4, 5, v4
    v_lshl_add_u32 v4, v5, 8, v4
    v_and_b32 v5, 3, v1
    v_lshl_add_u32 v4, v5, 3, v4
    v_add_u32 v{WA}, 8192, v4
    v_xor_b32 v{WA+1}, 32, v{WA}
    s_lshl_b32 s60, s17, 4
    s_add_u32 s60, s60, s18
    s_lshl_b32 s60, s60, 7
    s_add_u32 s60, s60, {FB_OFF}
    s_mul_i32 s21, s18, 5120
    s_waitcnt lgkmcnt(0)
    """)
    common_srds(a)
    def xread(stage, ks, tt):
        c, s = divmod(ks, 2)
        if stage == 0: ad, off = (XA, SLOT[c]) if SLOT[c] < 81920 else (XB, SLOT[c] - 81920)
        else: ad, off = (XB, c * 8192) if c < 5 else (XA, (c - 5) * 8192)
        return f"ds_read_b128 {vr(XF+16*(ks&1)+4*tt,4)}, v{ad+s} offset:{off+2048*tt}"
    def wread(ks, ct, u):
        c, s = divmod(ks, 2)
        ad, off = (WA, SLOT[c]) if SLOT[c] < 81920 else (WB, SLOT[c] - 81920)
        if c == 9: off -= 8192
        return f"ds_read_b64_tr_b16 {vr(WR+8*ks+4*ct+2*u,2)}, v{ad+ct} offset:{off+(32*s+4*u)*256}"
    def reads(stage, ks):
        if stage == 0:
            return [wread(ks,0,0), wread(ks,0,1), xread(0,ks,0), wread(ks,1,0), wread(ks,1,1), xread(0,ks,1), xread(0,ks,2), xread(0,ks,3)]
        return [xread(1,ks,tt) for tt in range(4)]
    def mid():
        a("s_barrier")
        for r in reads(1, 0): a(r)
    def gemm(isv, epi):
        t = Asm(); attn_setup(t, cfg, early=False)
        su = [l.strip() for l in t.lines if not l.strip().startswith(";")]
        def filler(ks, n):
            while n and su:
                m = re.match(r"v_\w+ v\[?(\d+)", su[0])
                if m and int(m.group(1)) >= WR + 8 * ks: return
                a(su.pop(0)); n -= 1
        for i in range(2):
            a(f"v_add_u32 v{XB+i}, 81920, v{XA+i}")
            a(f"v_add_u32 v{WB+i}, 81920, v{WA+i}")
        a("s_barrier")
        stamp(a, cfg, 2)
        a(".p2align 3")
        for r in reads(0, 0): a(r)
        for stage in range(2):
            for ks in range(20):
                fl = stage == 1 and ks == SFLAG
                nxt = []
                bar = False
                if ks < 19:
                    nxt = reads(stage, ks + 1)
                    if ks % 2 == 1: bar = stage == 0 or ((ks + 1) // 2) in XBAR
                    X2 = cfg.get("x2at")
                    if X2 and stage == 1:
                        assert SFLAG < X2 <= 2 * NX0 - 1
                        if ks == 2 * NX0 - 1: bar = False
                        if ks == X2: bar = True
                if fl and bar and (ks + 1) // 2 != NX0:
                    a("s_waitcnt lgkmcnt(0)"); a("s_barrier"); a("s_waitcnt vmcnt(0)"); a("s_barrier")
                elif fl and bar:
                    a("s_waitcnt vmcnt(0) lgkmcnt(0)"); a("s_barrier"); a("s_barrier"); a("s_nop 0")
                else:
                    a("s_waitcnt vmcnt(0) lgkmcnt(0)" if fl else "s_waitcnt lgkmcnt(0)")
                    if bar or fl: a("s_barrier")
                    elif stage == 0 or ks < cfg.get("su0", 5): a("s_nop 0")
                if fl: stamp(a, cfg, 4)
                if stage == 0 and ks == 13:
                    for i in range(2): a(f"v_add_u32 v{WB+i}, 8192, v{WB+i}")
                if stage == 1 and ks in (5, 13, 19): stamp(a, cfg, {5: 10, 13: 11, 19: 12}[ks], grp="p1")
                per = 2 if stage == 0 else 1
                for i in range(8):
                    tt, ct = i >> 1, (i & 1) ^ ((i >> 1) & 1)
                    acc = AC + 8 * tt + 4 * ct
                    x, w = vr(XF+16*(ks&1)+4*tt, 4), vr(WR+8*ks+4*ct, 4)
                    A, B = (x, w) if isv else (w, x)
                    c = "0" if ks == 0 else vr(acc, 4)
                    a(f"v_mfma_f32_16x16x32_bf16 {vr(acc,4)}, {A}, {B}, {c}")
                    if stage == 1 and ks >= cfg.get("su0", 5) and su and su[0].startswith("s_"): filler(ks, 1)
                    for r in nxt[per*i:per*i+per]: a(r)
                    if stage == 1 and ks >= cfg.get("su0", 5): filler(ks, 1 if nxt[i:i+1] else 2)
            if stage == 0:
                stamp(a, cfg, 3)
                a(f"v_add_u32 v{XA}, 122880, v{XA}")
                a(f"v_add_u32 v{XA+1}, 122880, v{XA+1}")
                epi(0)
                stamp(a, cfg, 8, grp="p1")
                if cfg.get("ackdiag"): a("s_waitcnt vmcnt(0)")
                if cfg.get("x0at", 99) > 7: mid()
                stamp(a, cfg, 9, grp="p1")
                a(".p2align 3")
            else:
                a("s_nop 1")
                epi(1)
                filler(20, 999)
    a("""
    s_cmp_lt_u32 s17, 10
    s_cbranch_scc0 L_qkv_v
    """)
    a.c("Q/K tiles: G = (cb%5)*32 + 8w + 4ct + g ; head = G/5 ; pos = G%5")
    a(f"""
    s_cmp_lt_u32 s17, 5
    s_cselect_b32 s25, 0, 81920
    s_cselect_b32 s12, {CSCALE}, 1.0
    s_cselect_b32 s23, 0, {KV_OFF}
    s_cselect_b32 s3, 0, 5
    s_add_u32 s24, s25, {HQ-2560}
    s_max_u32 s22, s25, 2560
    s_mov_b32 s13, s12
    s_add_u32 s21, s21, s23
    s_add_u32 s62, s22, s21
    s_sub_u32 s3, s17, s3
    s_lshl_b32 s3, s3, 2
    s_add_u32 s3, s3, s16
    s_lshl_b32 s3, s3, 3
    v_add_u32 v6, s3, v3
    v_lshlrev_b32 v4, 3, v2
    """)
    for ct in range(2):
        a(f"""
        v_add_u32 v7, {4*ct}, v6
        v_mul_u32_u24 v5, 52429, v7
        v_lshrrev_b32 v5, 18, v5
        v_lshl_add_u32 v7, v7, 9, v4
        v_mad_u32_u24 v{ST+ct}, v5, s24, v7
        """)
    late_qk, late_v = [], []
    def epi_qk(stage):
        for i in range(8):
            tt, ct = i >> 1, (i & 1) ^ ((i >> 1) & 1)
            acc = AC + 8 * tt + 4 * ct
            d = 80 + 2 * i
            a(f"v_pk_mul_f32 {vr(acc,2)}, {vr(acc,2)}, s[12:13]")
            a(f"v_pk_mul_f32 {vr(acc+2,2)}, {vr(acc+2,2)}, s[12:13]")
            a(f"v_cvt_pk_bf16_f32 v{d}, v{acc}, v{acc+1}")
            a(f"v_cvt_pk_bf16_f32 v{d+1}, v{acc+2}, v{acc+3}")
            st = f"buffer_store_dwordx2 {vr(d,2)}, v{ST+ct}, {WS}, s{62 if stage else 21} offen offset:{128*tt} sc1"
            if stage == 0: a(st)
            else: late_qk.append(st)
            if stage == 0 and i == cfg.get("x0at", 99): mid()
    def tail(stores, name):
        stamp(a, cfg, 5)
        a("s_barrier")
        a(f"{name}:")
        for st in stores: a(st)
        a("s_mov_b32 s63, 1")
        a("s_branch L_late_st")
    gemm(False, epi_qk)
    tail(late_qk, "L_end_qk")
    page(a, cfg, "v")
    a("L_qkv_v:")
    a.c("V tiles: col = (cb-10)*128 + 32w + 16ct + n ; head = col/20 ; d = col%20")
    a(f"""
    s_sub_u32 s3, s17, 10
    s_lshl_b32 s3, s3, 2
    s_add_u32 s3, s3, s16
    s_lshl_b32 s3, s3, 5
    v_add_u32 v6, s3, v2
    s_add_u32 s21, s21, {KV_OFF+2560}
    s_add_u32 s62, s21, 81920
    v_mul_u32_u24 v4, 320, v3
    s_mov_b32 s24, {HKV - 320}
    """)
    for ct in range(2):
        a(f"""
        v_add_u32 v7, {16*ct}, v6
        v_mul_u32_u24 v5, 13108, v7
        v_lshrrev_b32 v5, 18, v5
        v_lshl_add_u32 v7, v7, 4, v4
        v_mad_u32_u24 v{ST+ct}, v5, s24, v7
        """)
    def epi_v(stage):
        a("s_nop 2")
        for P in range(2):
            for ct in range(2):
                d = 80 + 8 * P + 4 * ct
                for ab in range(2):
                    acc = AC + 8 * (2 * P + ab) + 4 * ct
                    a(f"v_cvt_pk_bf16_f32 v{d+2*ab}, v{acc}, v{acc+1}")
                    a(f"v_cvt_pk_bf16_f32 v{d+2*ab+1}, v{acc+2}, v{acc+3}")
                st = f"buffer_store_dwordx4 {vr(d,4)}, v{ST+ct}, {WS}, s{62 if stage else 21} offen offset:{1280*P} sc1"
                if stage == 0: a(st)
                else: late_v.append(st)
                if stage == 0 and 2 * P + ct == cfg.get("x0at", 99) // 2: mid()
    gemm(True, epi_v)
    tail(late_v, "L_end_v")

SA, SB = 178, 210
O0, O1 = 146, 162
QM0, QM1, QT = 242, 246, 250
KM, KT = 16, 24
VV, SENT, WOA = 96, 112, 116
VL16, VQ, VQT, VPOLL = 121, 122, 123, 124
VOM, VOT, VXW, VXR, VONE, VZ = 126, 127, 128, 129, 130, 131
IDX, VKE, VKO, VT, VV0, VV1 = 132, 133, 134, 135, 136, 137

P3 = 138
PK = 70
def p3_kh(a, cfg, d):
    a(f"s_lshr_b32 s{d}, s16, 2")
    if cfg.get("khswap"):
        a(f"""
        s_bfe_u32 s3, s2, 0x10005
        s_xor_b32 s{d}, s{d}, s3
        """)
def p3_setup(a, cfg):
    p3_kh(a, cfg, 30)
    a(f"""
    s_and_b32 s31, s16, 3
    s_mul_i32 s3, s30, 51200
    v_lshrrev_b32 v2, 5, v1
    v_bfe_u32 v3, v1, 4, 1
    v_bfe_u32 v14, v1, 2, 2
    v_mul_u32_u24 v15, 20, v2
    v_lshl_add_u32 v15, v3, 2, v15
    v_add_u32 v15, v15, v14
    v_mul_u32_u24 v15, 160, v15
    v_and_b32 v2, 3, v1
    v_lshl_add_u32 v2, v2, 3, s3
    v_add_u32 v{P3}, v15, v2
    v_lshrrev_b32 v3, 4, v1
    v_mul_u32_u24 v15, 20, v3
    v_add3_u32 v15, v15, 16, v14
    v_mul_u32_u24 v15, 160, v15
    v_add_u32 v{P3+1}, v15, v2
    s_mul_i32 s3, s31, 5120
    s_add_u32 s3, s3, 143360
    v_add_u32 v{P3+2}, s3, v{VL16}
    s_mul_i32 s3, s31, 3584
    s_add_u32 s3, s3, 102400
    v_and_b32 v2, 15, v1
    v_mul_u32_u24 v2, 176, v2
    v_lshl_add_u32 v2, v3, 3, v2
    v_add_u32 v{P3+3}, s3, v2
    s_and_b32 s40, s2, 7
    s_lshl_b32 s41, s40, 2
    s_bfe_u32 s30, s2, 0x20003
    s_add_u32 s41, s41, s30
    s_lshl_b32 s40, s40, 12
    s_add_u32 s40, s40, {F2_OFF}
    s_lshl_b32 s41, s41, 2
    s_add_u32 s41, s41, s31
    s_mul_i32 s41, s41, 20480
    v_lshrrev_b32 v2, 1, v1
    v_lshlrev_b32 v{P3+7}, 7, v2
    """)
    for i in range(5):
        a(f"""
        v_add_u32 v2, {64*i}, v1
        v_mul_u32_u24 v3, 6554, v2
        v_lshrrev_b32 v3, 16, v3
        v_mul_u32_u24 v14, {1280-160}, v3
        v_lshl_add_u32 v{WOA+i}, v2, 4, v14
        """)
        if i < 3:
            a(f"""
            v_add_u32 v14, v2, v3
            v_lshl_add_u32 v{P3+4+i}, v14, 4, s3
            """)

def attn_setup(a, cfg, early, keep5=False):
    late = 0 if early else 1
    a.c("attention ids: s17=head s18=q pair s19=key half s21=KV base of head")
    a(f"""
    s_and_b32 s17, s2, 7
    s_lshl_b32 s17, s17, 2
    s_lshr_b32 s17, 0x75643120, s17
    s_and_b32 s17, s17, 7
    s_lshl_b32 s17, s17, 2
    s_bfe_u32 s3, s2, 0x20003
    s_add_u32 s17, s17, s3
    s_lshr_b32 s29, s2, 5
    s_lshl_b32 s18, s29, 2
    s_and_b32 s3, s16, 2
    s_add_u32 s18, s18, s3
    s_add_u32 s18, s18, {late}
    s_and_b32 s19, s16, 1
    s_mul_i32 s20, s19, 5120
    v_and_b32 v2, 31, v1
    v_lshrrev_b32 v3, 5, v1
    v_lshlrev_b32 v14, 3, v2
    v_lshl_add_u32 v{VQ}, v3, 9, v14
    v_add_u32 v{VKE}, s20, v{VQ}
    v_add_u32 v{VKO}, 256, v{VKE}
    v_lshlrev_b32 v14, 3, v1
    v_add_u32 v{VT}, s20, v14
    s_lshl_b32 s3, s19, 8
    v_xor_b32 v{VQT}, s3, v14
    v_mul_u32_u24 v15, 320, v3
    v_lshl_add_u32 v15, v2, 4, v15
    s_add_u32 s3, s20, 2560
    v_add_u32 v{VV0}, s3, v15
    v_add_u32 v{VV1}, 40960, v{VV0}
    v_lshlrev_b32 v{VL16}, 4, v1
    v_mov_b32 v{IDX}, 0xdddddddd
    s_mov_b32 s24, 0x000fffff
    s_mov_b32 s25, 0x000fffff
    v_cmp_eq_u32 vcc, 20, v2
    v_mov_b32 v15, 0x3f803f80
    s_mul_i32 s21, s17, {HKV}
    v_cndmask_b32 v{VV}, 0, v15, vcc
    s_add_u32 s21, s21, {KV_OFF}
    """)
    a(f"v_mov_b32 v{VV+1}, v{VV}")
    for i in range(1, 8): a(f"v_mov_b64 {vr(VV+2*i,2)}, {vr(VV,2)}")
    a.c("s22/s23: Q soffsets role0/role1, s26: Q pair base ; s27: first token block of this wave's K/V units ; s28: dma lds dest")
    a(f"""
    s_mul_i32 s26, s18, 2560
    s_mul_i32 s3, s17, {HQ}
    s_add_u32 s26, s26, s3
    s_lshl_b32 s3, s19, 8
    s_add_u32 s22, s26, s3
    s_xor_b32 s3, s3, 256
    s_add_u32 s23, s26, s3
    s_and_b32 s28, s16, 3
    s_mul_i32 s27, s29, {cfg.get("krot", 0)}
    s_add_u32 s27, s27, s28
    s_mul_i32 s28, s28, 5120
    s_add_u32 s28, s28, {late*81920}
    s_add_u32 s61, s21, {late*81920}
    """)
    a.c("O tile of this wave = 2*pair + (1^kh): s36/s37 store offsets, s38 flag 'filler in place', s39 flag 'stores acknowledged'")
    a(f"""
    s_lshl_b32 s30, s18, 1
    s_xor_b32 s31, s19, 1
    s_add_u32 s30, s30, s31
    s_mul_i32 s37, s30, 40960
    s_add_u32 s37, s37, {O_OFF}
    s_lshl_b32 s36, s17, 9
    s_add_u32 s36, s36, s37
    s_lshl_b32 s3, s17, 7
    s_add_u32 s37, s37, s3
    s_add_u32 s37, s37, 16384
    s_lshr_b32 s38, s2, 5
    s_lshl_b32 s38, s38, 12
    s_add_u32 s38, s38, s3
    s_add_u32 s38, s38, {F2_OFF}
    s_add_u32 s39, s38, {F3_OFF - F2_OFF}
    v_bfe_u32 v2, v1, 4, 1
    v_mul_u32_u24 v2, 20480, v2
    v_and_b32 v3, 15, v1
    v_lshl_add_u32 v{VOT}, v3, 3, v2
    v_lshl_add_u32 v2, v3, 4, v2
    v_lshrrev_b32 v3, 5, v1
    v_lshl_add_u32 v{VOM}, v3, 8, v2
    s_mul_i32 s3, s16, 3072
    s_add_u32 s3, s3, 102400
    v_add_u32 v{VXW}, s3, v{VL16}
    s_xor_b32 s3, s16, 1
    s_mul_i32 s3, s3, 3072
    s_add_u32 s3, s3, 102400
    v_add_u32 v{VXR}, s3, v{VL16}
    v_mov_b64 {vr(SENT,2)}, -1
    v_mov_b64 {vr(SENT+2,2)}, -1
    v_mov_b32 v{VONE}, 1
    v_mov_b32 v{VZ}, 0
    """)
    p3_setup(a, cfg)
    sh, sec = (7, 5) if True else None
    a.c("poll addresses of the polling wave: K/V producers of all 16 token blocks, Q producers of both pairs")
    a(f"""
    s_mul_i32 s30, s17, 20
    s_add_u32 s31, s30, 19
    s_lshr_b32 s30, s30, {sh}
    s_lshr_b32 s31, s31, {sh}
    s_sub_u32 s31, s31, s30
    v_and_b32 v2, 1, v1
    v_mul_u32_u24 v2, s31, v2
    v_add_u32 v2, s30, v2
    v_lshrrev_b32 v14, 5, v1
    v_mul_u32_u24 v3, {sec}, v14
    v_add3_u32 v3, v2, v3, {sec}
    v_bfe_u32 v15, v1, 1, 4
    v_lshl_add_u32 v3, v3, 4, v15
    v_lshlrev_b32 v{VPOLL}, 7, v3
    v_bfe_u32 v2, v1, 4, 1
    v_mul_u32_u24 v2, s31, v2
    v_add_u32 v2, s30, v2
    s_lshr_b32 s3, s2, 5
    s_lshl_b32 s3, s3, 1
    v_lshl_add_u32 v2, v2, 4, v14
    v_add_u32 v2, s3, v2
    v_lshlrev_b32 v{VPOLL+1}, 7, v2
    s_mov_b32 s33, {FA_OFF if early else FB_OFF}
    """)
    for i in range(16): a(f"v_mov_b64 {vr(O0+2*i,2)}, 0")

def direct_init(a, cfg):
    if cfg.get("direct", 0):
        assert cfg.get("krot", 0) == 0
        a(f"""
        v_lshlrev_b32 v33, 3, v1
        s_add_u32 s14, s61, s20
        s_lshr_b32 s30, s2, 5
        s_mul_i32 s30, s30, 160
        s_mul_i32 s32, s16, {32*1280}
        s_add_u32 s30, s30, s32
        s_mul_i32 s32, s16, 5120
        """)

def wait_stage(a, cfg, tag, wave):
    a(f"""
    s_mov_b32 s35, 0
    v_mov_b32 v7, 1
    s_cmp_eq_u32 s16, {wave}
    s_cbranch_scc0 L_gw{tag}
    """)
    if cfg.get("pd" + tag): a(f"s_sleep {cfg['pd' + tag]}")
    paced_poll(a, cfg, f"L_poll1{tag}", [VPOLL, VPOLL+1], "s33")
    a(f"""
    ds_write_b32 v11, v7
    s_branch L_gw{tag}_ok
    L_gw{tag}:
    {"s_sleep " + str(cfg.get('gs' + tag, 3 if tag == 'l' else 1)) if cfg.get('gs' + tag, 3 if tag == 'l' else 1) else ""}
    ds_read_b32 v7, v11
    s_waitcnt lgkmcnt(0)
    v_readfirstlane_b32 s34, v7
    s_cmp_lg_u32 s34, 0
    """)
    spin_tail(a, f"L_gw{tag}", mult=16)

def kread(t):
    tl = t & 15
    o = 20 * (tl >> 1)
    return f"ds_read2st64_b64 {vr(KM+4*(t&1),4)}, v{VKO if t & 1 else VKE} offset0:{o} offset1:{o+2}"
def tread(b):
    o = 40 * (b & 3)
    return f"ds_read2st64_b64 {vr(KT+4*(b&1),4)}, v{VT} offset0:{o+4} offset1:{o+24}"
def vread(t, f):
    tl = t & 15
    ad = VV0 if tl < 8 else VV1
    return f"ds_read_b128 {vr(VV+8*(t&1)+4*f,4)}, v{ad} offset:{10240*((tl>>1)&3)+1280*(t&1)+640*f}"
def Tm(t, dst):
    b, T = divmod(t, 4)
    return f"v_mfma_f32_32x32x4_2b_bf16 {vr(dst,32)}, {vr(KT+4*(b&1)+2*(T>>1),2)}, {vr(QT,2)}, 0 cbsz:1 abid:{T&1}"
def Mm(t, dst, r):
    return f"v_mfma_f32_32x32x16_bf16 {vr(dst+16*r,16)}, {vr(KM+4*(t&1),4)}, {vr(QM1 if r else QM0,4)}, {vr(dst+16*r,16)}"
def Pm(o, t, f, s):
    return f"v_smfmac_f32_32x32x32_bf16 {vr(o,16)}, {vr(VV+8*(t&1)+4*f,4)}, {vr(s,8)}, v{IDX}"

def qloads(a):
    a(f"""
    buffer_load_dwordx2 {vr(QT,2)}, v{VQT}, {WS}, s26 offen offset:2048 sc1
    buffer_load_dwordx2 {vr(QM0,2)}, v{VQ}, {WS}, s22 offen sc1
    buffer_load_dwordx2 {vr(QM0+2,2)}, v{VQ}, {WS}, s22 offen offset:1024 sc1
    buffer_load_dwordx2 {vr(QM1,2)}, v{VQ}, {WS}, s23 offen sc1
    buffer_load_dwordx2 {vr(QM1+2,2)}, v{VQ}, {WS}, s23 offen offset:1024 sc1
    """)
def kv_dma(i, back=0):
    g = [f"""
        s_add_u32 s3, s27, {4*i}
        s_and_b32 s3, s3, 15
        s_mul_i32 s3, s3, 5120
        {f"s_sub_u32 s3, s3, {back}" if back else ""}
        s_add_u32 m0, s28, {(i*20480 - back) & 0xffffffff}
        s_add_u32 s29, s61, s3
        buffer_load_dwordx4 v{VL16}, {WS}, s29 offen sc1 lds"""]
    for j in range(1, 4):
        g.append(f"buffer_load_dwordx4 v{VL16}, {WS}, s29 offen offset:{1024*j} sc1 lds")
    g.append(f"""
        s_add_u32 m0, s28, {(i*20480+4096 - back) & 0xffffffff}
        s_add_u32 s29, s29, 4096
        buffer_load_dwordx4 v{VL16}, {WS}, s29 offen sc1 lds""")
    return g
def wo_dma(nper):
    g = []
    for p in range(nper):
        for i in range(5):
            pre = ""
            if i == 0:
                pre = f"""
                s_add_u32 s31, s30, {p*8*32*1280}
                """
            g.append(pre + f"""
                s_add_u32 m0, s32, {p*8*5120 + 1024*i}
                s_nop 0
                buffer_load_dwordx4 v{WOA+i}, {WO}, s31 offen lds
                s_nop 0""")
    return g

def attn_loop(a, cfg, early):
    tag = "e" if early else "l"
    direct = early and cfg.get("direct", 0)
    wo_ids = f"""
    s_lshr_b32 s3, s2, 5
    s_mul_i32 s30, s3, 160
    s_mul_i32 s3, s16, {32*1280}
    s_add_u32 s30, s30, s3
    s_mul_i32 s32, s16, 5120
    """
    if direct:
        a("s_mov_b64 exec, s[24:25]"); a(vread(0, 0)); a(vread(0, 1)); a("s_mov_b64 exec, -1")
        a(kread(1))
        a(f"ds_read_b64 {vr(KT+2,2)}, v{VT} offset:{24*512}")
    else:
        if early or cfg.get("lprio", 2) < 2: a(f"s_setprio {3 if early else 2}")
        a(tread(0)); a(kread(0)); a(kread(1))
        a("s_mov_b64 exec, s[24:25]"); a(vread(0, 0)); a(vread(0, 1)); a("s_mov_b64 exec, -1")
        a.c("wo dma: s30 source, s32 lds dest")
        a(wo_ids)
        a(f"s_waitcnt lgkmcnt({0 if cfg.get('stamp') else 4})")
        if cfg.get("lp", {}).get("pro"): a("s_memtime s[70:71]")
        a(Tm(0, SA)); a("s_nop 15"); a("s_nop 1"); a("s_waitcnt lgkmcnt(3)")
        a(Mm(0, SA, 0)); a(Mm(0, SA, 1)); a("s_nop 10")
    dma = {}
    TB = cfg.get("tb", 14) if early else 14
    be, bl = cfg.get("be", [18, 18, 26]), cfg.get("bl", [18, 18, 26])
    assert (be[0] == be[1]) == (bl[0] == bl[1])
    assert be[0] <= 18 and min(be[1], bl[1]) >= 15 and min(be[2], bl[2]) >= 25
    if early:
        B2, C1, C2 = be
        bars = {2: "vmcnt(0)", 6: None, TB: None, C1: None, C2: None}; bars[B2] = "vmcnt(0)"; assert B2 == C1
        if cfg.get("a4"): bars[cfg["a4"]] = None
        prio = cfg.get("prio_e", {str(TB): 1, "18": 3, "24": 1, "26": 3, "29": 2, "31": 1})
    else:
        B2, C1, C2 = bl
        bars = {C1: None, C2: None}
        bars[B2] = "vmcnt(0)"
        b0 = cfg.get("bl0", 0)
        if b0 or cfg.get("u1in", 1): bars[b0] = None
        sp = cfg.get("spread", 2)
        q = (kv_dma(1) if cfg.get("u1in", 1) else []) + kv_dma(2) + kv_dma(3); t0 = b0 + cfg.get("sp0", 0)
        while q: dma[t0] = q[:sp]; q = q[sp:]; t0 += 1
        assert t0 < B2
        assert B2 >= b0 + 3
        prio = cfg.get("prio_l", {"18": 2, "25": 0, "26": 3, "29": 2, "30": 1, "31": 0})
    prio = {int(k): v for k, v in prio.items()}
    if not early and cfg.get("lprio", 2) == 2: prio[0] = 2
    wo = wo_dma(2 if early else 3)
    for i in range(5): dma[C1 + i] = wo[2*i:2*i+2]
    for i in range(3): dma[C2 + i] = wo[10+2*i:12+2*i]
    if cfg.get("opt", 1):
        ts = cfg.get("tsent", [16, 9])[0 if early else 1]
        assert not dma.get(ts)
        dma[ts] = [f"buffer_store_dwordx4 {vr(SENT,4)}, v{VOM}, {WS}, s36 offen sc1",
            f"""s_mov_b32 exec_hi, 0
            buffer_store_dwordx2 {vr(SENT,2)}, v{VOT}, {WS}, s37 offen sc1
            s_mov_b32 exec_hi, -1"""]
    if early:
        def w4(body, lab): return f"s_cmp_eq_u32 s16, 4\ns_cbranch_scc0 {lab}\n{body}\n{lab}:"
        assert not dma.get(C1 + 5) and not dma.get(28)
        dma[C1 + 5] = [w4(f"""s_mov_b64 exec, 1
            buffer_store_dword v{VONE}, v{VZ}, {WS}, s38 offen sc1
            s_mov_b64 exec, -1""", "L_r_set")]
        assert not dma.get(27) and C2 <= 27
        dma[27] = [f"v_mov_b32 v11, {CNT_ADDR}\nds_write_b32 v11, v{VZ}"]
        dma[28] = [w4(f"buffer_load_dword v5, v{P3+7}, {WS}, s40 offen sc1", "L_r_get")]
    nt = cfg.get("nt", ["e", 31, 0])
    if cfg.get("notice", 9) == 4 and nt[0] == tag:
        tn = Asm(); notice(tn, dict(cfg, nw=4 if early else 0), False)
        assert not dma.get(nt[1]) and nt[1] > C2
        dma[nt[1]] = ["" if i != nt[2] else "\n".join(tn.lines) for i in range(5)]
    a(".p2align 3")
    for t in range(32):
        cur, nxt = (SA, SB) if t % 2 == 0 else (SB, SA)
        e = iter(range(32))
        def E(n):
            for _ in range(n):
                i = next(e); a(f"v_exp_f32 v{cur+i}, v{cur+i}")
        dq = list(dma.get(t, []))
        def D(n):
            for _ in range(n):
                if dq: a(dq.pop(0))
        many = len(dq) > 2
        a.c(f"step {t}")
        E(2)
        if t > 0: a(Pm(O1, t-1, 1, nxt+24))
        vm = bars.get(t)
        if direct and t == 0: a("s_nop 0")
        else: a(f"s_waitcnt {vm + ' ' if vm else ''}lgkmcnt(0)")
        n4 = 1
        lp = cfg.get("lp", {}).get(tag + str(t))
        if lp and lp[0]: a(f"s_memtime s[{64+2*lp[0]}:{65+2*lp[0]}]")
        if t in bars: a("s_barrier"); n4 += 1
        if lp and lp[1]: a(f"s_memtime s[{64+2*lp[1]}:{65+2*lp[1]}]")
        if t in prio: a(f"s_setprio {prio[t]}"); n4 += 1
        if n4 % 2: a("s_nop 0")
        if t == 14:
            for r in (VKE, VKO, VT, VV0): a(f"v_add_u32 v{r}, 81920, v{r}")
        if t == 16: a(f"v_add_u32 v{VV1}, 81920, v{VV1}")
        if TB == 15 and t == 15: a(tread(4)); a(kread(16))
        if t + 2 < 32 and not (TB == 15 and t == 14): a(kread(t+2))
        if many: D(1)
        E(4)
        if TB == 15 and t == 15: a(f"s_waitcnt lgkmcnt({0 if cfg.get('lp') else 1})"); a("s_nop 0")
        if t < 31: a(Tm(t+1, nxt))
        E(8)
        if direct and t == 0: a(f"s_waitcnt lgkmcnt({0 if cfg.get('stamp') else 1})"); a("s_nop 0")
        a(Pm(O0, t, 0, cur))
        one = early and t < cfg.get("vone", 16)
        if one: a("s_mov_b64 exec, s[24:25]"); a(vread(t+1, 0)); a(vread(t+1, 1)); a("s_mov_b64 exec, -1")
        elif t < 31: a("s_mov_b64 exec, s[24:25]"); a(vread(t+1, 0)); a("s_mov_b64 exec, -1")
        if many: D(1)
        E(4)
        a(Pm(O0, t, 1, cur+8))
        if t < 31 and not one: a("s_mov_b64 exec, s[24:25]"); a(vread(t+1, 1)); a("s_mov_b64 exec, -1")
        if many: D(1)
        E(4)
        if t < 31: a(Mm(t+1, nxt, 0))
        D(1)
        E(4)
        a(Pm(O1, t, 0, cur+16))
        if t % 4 == 2 and t // 4 < 7 and not (TB == 15 and t == 14): a(tread(t//4+1))
        D(1)
        E(4)
        if t < 31: a(Mm(t+1, nxt, 1))
        else:
            a.c("hand the role-0 tile to the partner wave (other key half)")
            for i in (2, 0, 1): a(f"ds_write_b128 v{VXW}, {vr(O0+4*i,4)} offset:{1024*i}")
        E(2)
        assert not dq

def attn_epilogue(a, cfg):
    stamp(a, cfg, 8)
    if cfg.get("lp"): a("s_memtime s[88:89]")
    a(f"""
    s_setprio 0
    s_nop 0
    {Pm(O1, 31, 1, SB+24)}
    """)
    if cfg.get("notice", 9) == 3:
        a("s_waitcnt vmcnt(0)"); notice(a, cfg, False); a("s_waitcnt lgkmcnt(0)")
    elif cfg.get("notice", 9) == 4:
        a(f"""
        s_waitcnt vmcnt(1) lgkmcnt(0)
        s_cmp_eq_u32 s16, {4 if cfg.get("nt", ["e", 31, 0])[0] == "e" else 0}
        s_cbranch_scc1 L_epi_w
        s_waitcnt vmcnt(0)
        L_epi_w:
        """)
    else: a("s_waitcnt vmcnt(0) lgkmcnt(0)")
    a(f"""
    s_barrier
    ds_read_b128 {vr(O0+8,4)}, v{VXR} offset:2048
    ds_read_b128 {vr(O0,4)}, v{VXR}
    ds_read_b128 {vr(O0+4,4)}, v{VXR} offset:1024
    """)
    if cfg.get("opt", 1) and cfg.get("notice", 9) == 2: notice(a, cfg, False)
    a("""
    s_nop 6
    s_waitcnt lgkmcnt(2)
    """)
    a(f"""
    v_pk_add_f32 {vr(O1+8,2)}, {vr(O1+8,2)}, {vr(O0+8,2)}
    v_pk_add_f32 {vr(O1+10,2)}, {vr(O1+10,2)}, {vr(O0+10,2)}
    v_mov_b32 v7, v{O1+8}
    v_mov_b32 v9, v{O1+8}
    s_mov_b32 s30, 0x21800000
    s_waitcnt lgkmcnt(1)
    v_permlane32_swap_b32 v7, v9
    v_pk_add_f32 {vr(O1,2)}, {vr(O1,2)}, {vr(O0,2)}
    v_pk_add_f32 {vr(O1+2,2)}, {vr(O1+2,2)}, {vr(O0+2,2)}
    s_mov_b32 s31, 0x5d800000
    s_waitcnt lgkmcnt(0)
    v_pk_add_f32 {vr(O1+4,2)}, {vr(O1+4,2)}, {vr(O0+4,2)}
    v_pk_add_f32 {vr(O1+6,2)}, {vr(O1+6,2)}, {vr(O0+6,2)}
    """)
    a.c("run-time check of the shift-free softmax: row sum in [2^-60, 2^60], finite accumulators; else redo with the true row max")
    a(f"""
    v_cmp_le_f32 s[32:33], s30, v9
    v_cmp_ge_f32 s[34:35], s31, v9
    v_pk_mul_f32 v[10:11], {vr(O1+8,2)}, 0
    """)
    for i in (10, 0, 2, 4, 6): a(f"v_pk_fma_f32 v[10:11], {vr(O1+i,2)}, 0, v[10:11]")
    a(f"""
    s_and_b64 s[32:33], s[32:33], s[34:35]
    v_cmp_o_f32 vcc, v10, v11
    v_rcp_f32 v8, v9
    s_and_b64 s[32:33], s[32:33], vcc
    s_cmp_eq_u64 s[32:33], -1
    s_cbranch_scc0 L_attn_slow
    L_attn_fin:
    """)
    for i in range(4): a(f"v_pk_mul_f32 {vr(O1+2*i,2)}, {vr(O1+2*i,2)}, v[8:9] op_sel_hi:[1,0]")
    for i in range(4): a(f"v_cvt_pk_bf16_f32 v{PK+i}, v{O1+2*i}, v{O1+2*i+1}")
    a(f"buffer_store_dwordx4 {vr(PK,4)}, v{VOM}, {WS}, s36 offen sc1")
    for i in range(4, 6): a(f"v_pk_mul_f32 {vr(O1+2*i,2)}, {vr(O1+2*i,2)}, v[8:9] op_sel_hi:[1,0]")
    for i in range(4, 6): a(f"v_cvt_pk_bf16_f32 v{PK+i}, v{O1+2*i}, v{O1+2*i+1}")
    a(f"""
    s_mov_b32 exec_hi, 0
    buffer_store_dwordx2 {vr(PK+4,2)}, v{VOT}, {WS}, s37 offen sc1
    s_mov_b32 exec_hi, -1
    """)
    stamp(a, cfg, 9)
    if cfg.get("opt", 1) and cfg.get("notice", 9) < 2: notice(a, cfg, cfg.get("notice", 9) == 0)

def notice(a, cfg, bar):
    a.c("early notice: readers check the tiles for the filler words written before and fall back to the acknowledged flags")
    if bar: a("s_barrier")
    a(f"""
    s_cmp_eq_u32 s16, {cfg.get("nw", 4)}
    s_cbranch_scc0 L_nonotice
    s_mov_b64 exec, 1
    buffer_store_dword v{VONE}, v{VZ}, {WS}, s38 offen sc1
    s_mov_b64 exec, -1
    L_nonotice:
    """)

def attn_slow(a):
    a.c("exact path: softmax with the true row maximum for the query tile this wave keeps")
    a("L_attn_slow:")
    a(f"""
    v_and_b32 v2, 31, v1
    v_lshlrev_b32 v14, 3, v2
    v_lshrrev_b32 v3, 5, v1
    v_mul_u32_u24 v3, 320, v3
    v_lshl_add_u32 v15, v2, 4, v3
    v_mov_b32 v10, 0xff800000
    s_mov_b32 s34, 0
    """)
    for i in range(16): a(f"v_mov_b32 v{O1+i}, 0")
    a(f"""
    L_slow_pass:
    s_mov_b32 s35, 0
    L_slow_tile:
    s_lshr_b32 s30, s35, 1
    s_mul_i32 s30, s30, 5120
    s_add_u32 s30, s30, s21
    s_and_b32 s3, s35, 1
    s_mul_i32 s31, s3, 1280
    s_add_u32 s31, s31, s30
    s_lshl_b32 s3, s3, 8
    s_add_u32 s30, s30, s3
    buffer_load_dwordx2 {vr(KT,2)}, v14, {WS}, s30 offen offset:2048 sc1
    buffer_load_dwordx2 {vr(KM,2)}, v{VQ}, {WS}, s30 offen sc1
    buffer_load_dwordx2 {vr(KM+2,2)}, v{VQ}, {WS}, s30 offen offset:1024 sc1
    s_mov_b64 exec, s[24:25]
    buffer_load_dwordx4 {vr(VV,4)}, v15, {WS}, s31 offen offset:2560 sc1
    buffer_load_dwordx4 {vr(VV+4,4)}, v15, {WS}, s31 offen offset:3200 sc1
    s_mov_b64 exec, -1
    s_waitcnt vmcnt(0)
    v_mfma_f32_32x32x4_2b_bf16 {vr(SA,32)}, {vr(KT,2)}, {vr(QT,2)}, 0
    s_nop 15
    s_nop 3
    v_mfma_f32_32x32x16_bf16 {vr(SA+16,16)}, {vr(KM,4)}, {vr(QM1,4)}, {vr(SA+16,16)}
    s_nop 15
    s_cmp_eq_u32 s34, 0
    s_cbranch_scc0 L_slow_pv
    """)
    for i in range(8): a(f"v_max3_f32 v10, v10, v{SA+16+2*i}, v{SA+17+2*i}")
    a("s_branch L_slow_next")
    a("L_slow_pv:")
    for i in range(16): a(f"v_sub_f32 v{SA+16+i}, v{SA+16+i}, v10")
    for i in range(16): a(f"v_exp_f32 v{SA+16+i}, v{SA+16+i}")
    a(f"""
    s_nop 3
    v_smfmac_f32_32x32x32_bf16 {vr(O1,16)}, {vr(VV,4)}, {vr(SA+16,8)}, v{IDX}
    v_smfmac_f32_32x32x32_bf16 {vr(O1,16)}, {vr(VV+4,4)}, {vr(SA+24,8)}, v{IDX}
    s_nop 15
    L_slow_next:
    s_add_u32 s35, s35, 1
    s_cmp_lt_u32 s35, 64
    s_cbranch_scc1 L_slow_tile
    s_cmp_eq_u32 s34, 0
    s_cbranch_scc0 L_slow_done
    v_mov_b32 v11, v10
    s_nop 1
    v_permlane32_swap_b32 v10, v11
    s_nop 1
    v_max_f32 v10, v10, v11
    s_mov_b32 s34, 1
    s_branch L_slow_pass
    L_slow_done:
    v_mov_b32 v7, v{O1+8}
    v_mov_b32 v9, v{O1+8}
    s_nop 1
    v_permlane32_swap_b32 v7, v9
    s_nop 1
    v_rcp_f32 v8, v9
    s_branch L_attn_fin
    """)

TAIL = []
def phase3(a, cfg):
    OF, AC, WF = 16, 56, 76
    VW, VWT, VPB, VSW, VSR, VL, VL8 = 6, 7, 8, 9, 10, 0, 4
    VOS = [13, 14, 15]
    VW2, VWT2 = 3, 5
    OPT = cfg.get("opt", 1)
    def reads(ks):
        hf, p = divmod(ks, 5)
        r = []
        for t in range(5):
            for u in range(2):
                if p < 4: ad, off = (VW2 if hf else VW), (40*p + 8*u)*160 + 32*t
                else: ad, off = (VWT2 if hf else VWT), 80*u*160 + 32*t
                r.append(f"ds_read_b64_tr_b16 {vr(WF+20*(ks%9)+4*t+2*u,2)}, v{ad} offset:{off}")
        return r
    def unpack():
        a(f"""
        s_getreg_b32 s30, hwreg(HW_REG_XCC_ID, 0, 1)
        s_xor_b32 s30, s30, s2
        {"s_xor_b32 s30, s30, 1" if cfg.get("hinv") else ""}
        s_and_b32 s30, s30, 1
        s_mul_i32 s31, s30, 25600
        s_sub_u32 s32, 25600, s31
        v_add_u32 v{VW}, s31, v{P3}
        v_add_u32 v{VWT}, s31, v{P3+1}
        v_add_u32 v{VW2}, s32, v{P3}
        v_add_u32 v{VWT2}, s32, v{P3+1}
        """)
        for i in range(2, 7): a(f"v_mov_b32 v{VW+i}, v{P3+i}")
        for i in range(3): a(f"v_mov_b32 v{VOS[i]}, v{WOA+i}")
        a(f"""
        v_mov_b32 v{VL}, v{VL16}
        v_lshlrev_b32 v{VL8}, 3, v1
        """)
        p3_kh(a, cfg, 26)
        a(f"""
        s_lshr_b32 s27, s2, 5
        s_mul_i32 s27, s27, 160
        s_add_u32 s27, s27, s41
        s_add_u32 s28, s41, {O_OFF}
        s_lshl_b32 s3, s26, 1
        s_add_u32 s3, s3, s30
        s_xor_b32 s29, s3, 1
        s_lshl_b32 s22, s3, 12
        s_add_u32 s22, s22, s28
        s_lshl_b32 s24, s29, 12
        s_add_u32 s24, s24, s28
        s_add_u32 s28, s28, 16384
        s_lshl_b32 s23, s3, 10
        s_add_u32 s23, s23, s28
        s_lshl_b32 s25, s29, 10
        s_add_u32 s25, s25, s28
        """)
    a.c("---- output projection: 64 tokens x 80 columns")
    if not OPT:
        a("""
        s_waitcnt vmcnt(0)
        s_barrier
        s_cmp_eq_u32 s16, 0
        s_cbranch_scc0 L_p3_nofl
        """)
        raise_flag(a, "s38")
        a("L_p3_nofl:")
    NPB, WIN = cfg.get("npb", 6), cfg.get("win", 5)
    LOADS = []
    for ks in range(10):
        hf, p = divmod(ks, 5)
        if p < 4: LOADS.append([f"buffer_load_dwordx4 {vr(OF+4*ks,4)}, v{VL}, {WS}, s{22+2*hf} offen offset:{1024*p} sc1"])
        else: LOADS.append([f"buffer_load_dwordx2 {vr(OF+4*ks+2*u,2)}, v{VL8}, {WS}, s{23+2*hf} offen offset:{512*u} sc1" for u in range(2)])
    assert WIN == 5
    PW = cfg.get("pw", 7)
    UL = []
    if cfg.get("ulate"):
        a0 = a.lines; a.lines = []
        a(f"v_mov_b32 v2, v{P3+7}"); unpack()
        UL = a.lines; a.lines = a0
        k = [i for i, l in enumerate(UL) if "s_and_b32 s30, s30, 1" in l][0]
        for l in UL[1:k+1]: a(l)
        UL = UL[:1] + UL[k+1:]
    else:
        a(f"v_mov_b32 v2, v{P3+7}")
        unpack()
    a.c("all stores are issued: read the first half of the heads (dies that usually finish first); filler words tell what has not arrived")
    def front(pre, il, mid=None):
        for l in UL: a(l)
        rest = [r for ks in range(NPB) for r in reads(ks)]
        for r in rest[:pre]: a(r)
        rest = rest[pre:]
        if mid: mid()
        for g in LOADS[:5]:
            for l in g: a(l)
            for r in rest[:il]: a(r)
            rest = rest[il:]
        for r in rest: a(r)
        a(f"""
        v_mov_b32 v1, 1
        v_mov_b32 v{AC}, {CNT_ADDR}
        s_waitcnt vmcnt(6)
        s_mov_b64 exec, 1
        ds_add_u32 v{AC}, v1
        s_mov_b64 exec, -1
        s_waitcnt lgkmcnt(0)
        """)
        stamp(a, cfg, 10)
        if cfg.get("p3d"): a("s_memtime s[68:69]")
    later = [reads(ks) for ks in range(NPB, 9)]
    if cfg.get("ev", 2) == 5:
        a("s_mov_b32 s28, 0"); a("s_barrier")
    else:
        a(f"""
        s_xor_b32 s3, s30, s2
        s_mov_b32 s28, 0
        s_bitcmp0_b32 s3, 0
        s_barrier
        {"s_branch" if cfg.get("force_two") else "s_cbranch_scc1"} L_p3_two
        """)
    if cfg.get("p3d"): a("s_memtime s[78:79]")
    if cfg.get("yprio"):
        a("s_cmp_lt_u32 s16, 4"); a("s_cbranch_scc1 L_noyp"); a("s_setprio 1"); a("L_noyp:")
    front(cfg.get("pre", 10), cfg.get("il", 10))
    if cfg.get("yprio") == 1: a("s_setprio 0")
    VMX = 1
    KB = cfg.get("kb", 9)
    stubs = []
    def conf7(lab):
        a("s_cmp_eq_u32 s16, 7"); a(f"s_cbranch_scc0 {lab}"); a("s_call_b64 s[32:33], L_confirm"); a(f"{lab}:")
    q = [(x, k) for k in range(NPB, 10) for x in reads(k)]
    SLOTS = [[[] for _ in range(5)] for _ in range(10)]
    pat = cfg.get("pat", [2, 2, 1, 0, 2])
    for j in range(cfg.get("s0", 0 if NPB < 9 else 1), 10):
        for t in range(5):
            SLOTS[j][t] = q[:pat[t]]; q = q[pat[t]:]
    assert not any(k == 9 for t in range(5) for _, k in SLOTS[0][t])
    DUAL = cfg.get("dual", 1)
    def both(t):
        if DUAL:
            a(f"v_pk_add_f32 {vr(AC+4*t,2)}, {vr(AC+4*t,2)}, {vr(OF+4*t,2)}")
            a(f"v_pk_add_f32 {vr(AC+4*t+2,2)}, {vr(AC+4*t+2,2)}, {vr(OF+4*t+2,2)}")
    def chk(ks):
        r = OF + 4 * ks
        return [f"v_max3_u32 v{VMX}, v{r}, v{r+1}, v{r+2}", f"v_max_u32 v{VMX}, v{VMX}, v{r+3}", f"v_cmp_eq_u32 vcc, -1, v{VMX}"]
    def arrive(ks, slide):
        hi = min(ks + 5, 10) if slide else 5
        vm = sum(len(g) for g in LOADS[ks+1:hi])
        lg = ""
        if ks >= NPB:
            done = [k for j in range(ks) for t in range(5) if j < ks - 1 or t <= 2 for _, k in SLOTS[j][t]]
            assert done.count(ks) == 10
            n = sum(k > ks for k in done)
            lg = f" lgkmcnt({min(n, 15)})"
        a(f"s_waitcnt vmcnt({vm})" + lg)
        if slide and ks < 5:
            for l in LOADS[ks + 5]: a(l)
    def mf(ks, tag="", slide=True, head=False, nxt=True):
        if head:
            arrive(ks, slide)
            for x in chk(ks): a(x)
        if cfg.get("p3d") and ks in (0, 3, 7, 9): a("s_memtime s[%d:%d]" % {0: (70, 71), 3: (72, 73), 7: (74, 75), 9: (76, 77)}[ks])
        lab = f"L_ck{ks}{tag}"
        a(f"""
        {"s_branch" if cfg.get("force_redo") else "s_cbranch_vccnz"} {lab}_again
        {lab}_ok:
        """)
        stubs.append((lab, ks, 5 if ks < 5 else 10))
        rd = SLOTS[ks]
        cn = chk(ks + 1) if nxt and ks < 9 else None
        for t in range(5):
            acc = (OF if DUAL and ks >= 5 else AC) + 4*t
            c = "0" if ks == 0 or (DUAL and ks == 5) else vr(acc, 4)
            a(f"v_mfma_f32_16x16x32_bf16 {vr(acc,4)}, {vr(WF+20*(ks%9)+4*t,4)}, {vr(OF+4*ks,4)}, {c}")
            for x, _ in rd[t]: a(x)
            if cn and t == 2: arrive(ks + 1, slide); a(cn[0])
            if cn and t == 3: a(cn[1]); a(cn[2])
    assert NPB >= 4
    def redo():
        a.c("a filler word was read: load the window again; after some tries wait for the acknowledged flags")
        NTRY = cfg.get("ntry", 32)
        for lab, ks, hi in stubs[::-1]:
            a(f"{lab}_again:")
            if cfg.get("stamp"): a("s_waitcnt lgkmcnt(0)"); a("s_mov_b32 s68, -1")
            a(f"""
            s_add_u32 s28, s28, 1
            s_cmp_eq_u32 s28, {NTRY}
            s_cbranch_scc0 {lab}_ld
            s_call_b64 s[30:31], L_confirmed
            {lab}_ld:
            """)
            if cfg.get("rsl", 0): a(f"s_sleep {cfg.get('rsl', 4)}")
            hf, p = divmod(ks, 5)
            grl = cfg.get("grl", 2)
            ids = range(ks, hi) if not grl else sorted(set(range(ks, 5*hf + min(p | 1, 4) + 1)) | {5*hf + 4})
            vm = 0
            if grl == 2:
                assert lab[-1] != "b"
                ids = range(ks, min(ks + 6, 10)); vm = sum(len(LOADS[i]) for i in ids[1:])
            for i in ids:
                for l in LOADS[i]: a(l)
            a(f"""
            s_waitcnt vmcnt({vm})
            s_cmp_ge_u32 s28, {NTRY}
            s_cbranch_scc1 {lab}_ok
            """)
            for x in chk(ks): a(x)
            a(f"""
            {"s_branch" if cfg.get("force_redo") else "s_cbranch_vccnz"} {lab}_again
            s_branch {lab}_ok
            """)
        a.c("once all eight waves have seen their stores acknowledged, say so; then wait until every producer has said so")
        a(f"""
        L_confirmed:
        s_mov_b32 s35, 0
        L_cnt:
        v_mov_b32 v1, {CNT_ADDR}
        ds_read_b32 v1, v1
        s_waitcnt lgkmcnt(0)
        v_readfirstlane_b32 s34, v1
        s_cmp_eq_u32 s34, 8
        """)
        spin_tail(a, "L_cnt", mult=16)
        a(f"""
        s_mov_b64 exec, 1
        buffer_store_dword v1, v{VL}, {WS}, s39 offen sc1
        s_mov_b64 exec, -1
        s_add_u32 s34, s40, {F3_OFF - F2_OFF}
        s_waitcnt vmcnt(0)
        """)
        poll(a, "L_poll3", 2, WS, "s34", dst=1)
        a("s_setpc_b64 s[30:31]")
    def path2():
        pw2 = cfg.get("pw2", 1)
        a.c("dies that usually finish first start reading a little later")
        a("L_p3_two:")
        EV = cfg.get("ev", 2)
        if EV == 1:
            a.c("a die that usually finishes early waits for notices before it starts reading")
            a(f"""
            s_cmp_eq_u32 s16, 1
            s_cbranch_scc0 L_gate_n0
            buffer_load_dword v1, v2, {WS}, s40 offen sc1
            L_gate_n0:
            """)
            def gate():
                a(f"""
                s_cmp_eq_u32 s16, 1
                s_cbranch_scc0 L_gpoll_ok
                s_lshl_b32 s3, s30, 4
                s_lshr_b32 s20, {0 if cfg.get("gall") else 0xffff0000}, s3
                s_mov_b32 s21, s20
                s_mov_b32 s35, 0
                s_branch L_gpoll_chk
                L_gpoll:
                buffer_load_dword v1, v2, {WS}, s40 offen sc1
                L_gpoll_chk:
                s_waitcnt vmcnt(0)
                v_cmp_ne_u32 vcc, 0, v1
                s_nop 0
                s_or_b64 vcc, vcc, s[20:21]
                s_cmp_eq_u64 vcc, -1
                """)
                spin_tail(a, "L_gpoll")
                a("s_barrier")
            front(cfg.get("pre2", 45), 5, gate)
        else:
            front(cfg.get("pre2", 45), 5)
        if EV >= 3:
            for ks in range(5): mf(ks, "b", slide=False, head=ks == 0, nxt=ks < 4)
            if EV == 4: a("s_barrier")
            for g in LOADS[5:]:
                for l in g: a(l)
            arrive(5, True)
            for x in chk(5): a(x)
            a("s_branch L_p3_join")
            return
        if EV:
            a("s_branch L_p3_one")
            return
        a(f"""
        s_cmp_eq_u32 s16, {pw2}
        s_cbranch_scc0 L_p3_two1
        buffer_load_dword v{OF+20}, v2, {WS}, s40 offen sc1
        L_p3_two1:
        """)
        for ks in range(5): mf(ks, "b", slide=False, head=ks == 0, nxt=ks < 4)
        a(f"""
        s_cmp_eq_u32 s16, {pw2}
        s_cbranch_scc0 L_poll2_ok
        v_cmp_ne_u32 vcc, 0, v{OF+20}
        s_nop 0
        s_cmp_eq_u64 vcc, -1
        s_cbranch_scc1 L_poll2_ok
        """)
        poll(a, "L_poll2", 2, WS, "s40", dst=1)
        a("s_barrier")
        stamp(a, cfg, 11)
        for g in LOADS[5:]:
            for l in g: a(l)
            if cfg.get("gap", -1) >= 0: a(f"s_nop {cfg.get('gap', 7)}")
        arrive(5, True)
        for x in chk(5): a(x)
        a("s_branch L_p3_join")
    TAIL.append(redo if cfg.get("ev", 2) == 5 else (lambda: (redo(), path2())) if cfg.get("ev", 2) == 2 else lambda: (path2(), redo()))
    a("L_p3_one:")
    stamp(a, cfg, 11)
    for ks in range(5): mf(ks, head=ks == 0)
    a("L_p3_join:")
    for ks in range(5, KB): mf(ks)
    a("""
    s_waitcnt lgkmcnt(0)
    s_cmp_lt_u32 s16, 4
    s_cbranch_scc0 L_out_fin
    """)
    for ks in range(KB, 10): mf(ks, "w")
    stamp(a, cfg, 12)
    a("s_nop 3")
    for t in range(5):
        both(t)
        a(f"ds_write_b128 v{VPB}, {vr(AC+4*t,4)} offset:{1024*t}")
        if t < 4 and not DUAL: a("s_nop 0")
    a("""
    v_mov_b32 v1, 1
    s_waitcnt lgkmcnt(0)
    s_barrier
    s_cmp_eq_u32 s16, 0
    s_cbranch_scc0 L_fin
    """)
    a.c("every wave has seen its O stores acknowledged: tell readers that fall back")
    a(f"""
    s_mov_b64 exec, 1
    buffer_store_dword v1, v{VL}, {WS}, s39 offen sc1
    s_branch L_fin
    L_out_fin:
    s_barrier
    """)
    PB = WF + 20
    for t in range(5): a(f"ds_read_b128 {vr(PB+4*t,4)}, v{VPB} offset:{1024*t}")
    for ks in range(KB, 10): mf(ks, "f")
    stamp(a, cfg, 12)
    a("s_waitcnt lgkmcnt(0)")
    a("s_nop 2")
    for t in range(5):
        both(t)
        a(f"v_pk_add_f32 {vr(AC+4*t,2)}, {vr(AC+4*t,2)}, {vr(PB+4*t,2)}")
        a(f"v_pk_add_f32 {vr(AC+4*t+2,2)}, {vr(AC+4*t+2,2)}, {vr(PB+4*t+2,2)}")
        a(f"v_cvt_pk_bf16_f32 v{OF+20+2*t}, v{AC+4*t}, v{AC+4*t+1}")
        a(f"v_cvt_pk_bf16_f32 v{OF+21+2*t}, v{AC+4*t+2}, v{AC+4*t+3}")
        a(f"ds_write_b64 v{VSW}, {vr(OF+20+2*t,2)} offset:{32*t}")
    for i in range(3): a(f"ds_read_b128 {vr(PB+4*i,4)}, v{VSR+i}")
    OFL = cfg.get("outfl", "")
    for i in range(3):
        a(f"s_waitcnt lgkmcnt({2-i})")
        if i == 2: a("s_mov_b32 exec_hi, 0")
        a(f"buffer_store_dwordx4 {vr(PB+4*i,4)}, v{VOS[i]}, {OUT}, s27 offen {OFL}")
    a("L_fin:")


DOC = """;
; One persistent launch, 256 workgroups x 8 waves (one per CU), three phases.
;
; 1. QKV projection. 240 workgroups own a 128 token x 128 column tile. Waves 4-7 stream x and wqkv into LDS (LDS-DMA),
;    waves 0-3 multiply (MFMA 16x16x32). The tile is done in two stages of 64 tokens; the weight fragments stay in
;    it is rounded. Results go to d_ws in MFMA fragment order with write-through stores; a flag per producer follows once
;    its stores are acknowledged. The 16 workgroups without a tile clear the flags (and say so in d_debug, which every
;    workgroup checks before it touches a flag) and prefetch into L2.
; 2. Attention. Workgroup = (head, 256 queries), K and V of the head in LDS, wave = 64 queries x 1024 keys.
;    picks the upper half (the bf16 value) of every fp32 P word; a row of ones in V^T yields the row sums.
;    earlier in the launch (flagged and checked before any read); a fragment that still shows such a word is loaded
"""

def gen1(cfg):
    a = Asm()
    a(f".globl {NAME}")
    a(".p2align 12")
    a(f".fill {cfg.get('pad', 3328)//4}, 4, 0xbf800000")
    a(".p2align 8")
    a(f".type {NAME},@function")
    a(f"{NAME}:")
    a("""
    s_cmp_ge_u32 s2, 256
    s_cbranch_scc1 L_end
    """)
    stamp(a, cfg, 0, real=True); stamp(a, cfg, 1)
    a("""
    s_load_dwordx4 s[4:7], s[0:1], 0
    s_load_dwordx8 s[36:43], s[0:1], 16
    v_lshrrev_b32 v2, 6, v0
    v_and_b32 v1, 63, v0
    v_readfirstlane_b32 s16, v2
    """)
    if cfg.get("codepf", 1):
        a.c("wave 0 touches an 8 KB share of the kernel's own code so that instruction fetch hits L2")
        a(f"""
        s_getpc_b64 s[26:27]
        L_pc:
        s_bfe_u32 s3, s2, 0x30003
        s_lshl_b32 s3, s3, 13
        s_cmp_eq_u32 s16, 0
        s_cbranch_scc0 L_nopf
        v_lshl_add_u32 v3, v1, 7, s3
        v_min_u32 v3, L_code_end - L_pc - 4, v3
        global_load_dword v0, v3, s[26:27]
        L_nopf:
        """)
    if cfg.get("mapq", 1):
        a.c("tile: j = id&7, v = id>>3 ; cb(s17) = (v>>2) + (j<4 ? 7 : 0) ; tb(s18) = (j&3)*4 + (v&3) ; j>=4, v>=28: no tile")
        a("""
        s_bfe_u32 s3, s2, 0x20003
        s_and_b32 s18, s2, 3
        s_lshl_b32 s18, s18, 2
        s_add_u32 s18, s18, s3
        s_and_b32 s17, s2, 0xe4
        s_cmp_eq_u32 s17, 0xe4
        s_cbranch_scc1 L_idle
        s_bitcmp1_b32 s2, 2
        s_cselect_b32 s19, 0, 7
        s_lshr_b32 s17, s2, 5
        s_add_u32 s17, s17, s19
        s_cmp_lt_u32 s16, 4
        s_cbranch_scc1 L_qkv_cons
        """)
    else:
        a.c("tile: j = id&7, v = id>>3 ; cb(s17) = (v>>2) + 8*(j>>2) ; tb(s18) = (j&3)*4 + (v&3) ; cb 15: no tile")
        a("""
        s_lshr_b32 s17, s2, 5
        s_and_b32 s3, s2, 4
        s_lshl_b32 s3, s3, 1
        s_add_u32 s17, s17, s3
        s_bfe_u32 s3, s2, 0x20003
        s_and_b32 s18, s2, 3
        s_lshl_b32 s18, s18, 2
        s_add_u32 s18, s18, s3
        s_cmp_eq_u32 s17, 15
        s_cbranch_scc1 L_idle
        s_cmp_lt_u32 s16, 4
        s_cbranch_scc1 L_qkv_cons
        """)
    phase1_loader(a, cfg)
    a("L_idle:")
    if cfg.get("e2e"): a("s_memrealtime s[64:65]")
    a.c("workgroups without a GEMM tile: clear the hand-off flags, raise 'ready' in d_debug, pull second-stage x rows into L2")
    xr = cfg.get("xrot", XROT)
    a(f"""
    s_lshl_b32 s19, s18, 2
    s_lshl_b32 s17, s18, 13
    s_add_u32 s17, s17, {FB_OFF}
    s_lshl_b32 s20, s18, 4
    s_add_u32 s20, s20, s16
    s_mul_i32 s23, s20, {8*1280}
    s_add_u32 s20, s23, {64*1280}
    s_add_u32 s21, s20, 8192
    v_lshlrev_b32 v2, 7, v1
    v_min_u32 v3, {15*128}, v2
    v_mov_b32 v4, 0
    v_and_b32 v10, 15, v1
    v_lshlrev_b32 v10, 2, v10
    v_mov_b32 v11, {GO_ADDR}
    ds_write_b32 v11, v4
    """)
    PFC = cfg.get("pfc", [4])
    if PFC:
        a.c("lines of the k-chunks that end the two miss runs of this die: s24 = chunk offset of the die")
        a(f"""
        s_and_b32 s24, s2, 7
        s_lshl_b32 s24, s24, 2
        s_lshr_b32 s24, {sum(v << (4*i) for i, v in enumerate(xr))}, s24
        s_and_b32 s24, s24, 15
        s_lshl_b32 s25, s3, 2
        s_and_b32 s26, s16, 3
        s_add_u32 s25, s25, s26
        s_mul_i32 s25, s25, {4*3840}
        {"" if cfg.get("mapq", 1) else "s_add_u32 s25, s25, 2048"}
        s_lshr_b32 s26, s16, 2
        s_mul_i32 s26, s26, 5
        s_add_u32 s24, s24, s26
        s_lshl_b32 s22, s18, 3
        s_and_b32 s26, s16, 3
        s_add_u32 s22, s22, s26
        s_mul_i32 s22, s22, {16*1280}
        v_lshrrev_b32 v5, 4, v1
        v_mul_u32_u24 v5, 3840, v5
        v_and_b32 v6, 15, v1
        v_min_u32 v8, 13, v6
        v_lshl_add_u32 v8, v8, 7, v5
        v_min_u32 v9, 15, v1
        v_mul_u32_u24 v9, 1280, v9
        """)
    a("s_waitcnt lgkmcnt(0)")
    common_srds(a)
    srd(a, 8, 4, 2048 * 1280)
    srd(a, 12, 6, 640 * 3840)
    def pf(c):
        a(f"""
        s_add_u32 s26, s24, {c}
        s_sub_u32 s27, s26, 10
        s_cselect_b32 s26, s26, s27
        s_mul_i32 s27, s26, {64*3840}
        s_add_u32 s27, s27, s25
        s_lshl_b32 s26, s26, 7
        s_add_u32 s26, s26, s22
        buffer_load_dword v94, v8, s[12:15], s27 offen
        buffer_load_dword v95, v9, s[8:11], s26 offen
        """)
    a(f"""
    s_cmp_eq_u32 s16, 0
    s_cbranch_scc0 L_idle_pf
    buffer_store_dword v4, v2, {WS}, s17 offen sc1
    L_idle_pf:
    """)
    X1 = cfg.get("x1pf", 0)
    for c in PFC: pf(c)
    n1 = 2 * len(PFC)
    if X1:
        a(f"""
        s_add_u32 s26, s23, 8192
        buffer_load_dword v88, v2, s[8:11], s23 offen
        buffer_load_dword v89, v3, s[8:11], s26 offen
        """)
        n1 += 2
    if not n1: a(f"buffer_load_dword v92, v3, s[8:11], s21 offen")
    a(f"""
    s_cmp_eq_u32 s16, 0
    s_cbranch_scc0 L_idle_pf2
    v_mov_b32 v6, 1
    s_waitcnt vmcnt({n1 or 1})
    s_mov_b64 exec, 1
    buffer_store_dword v6, v4, {DBG}, s19 offen sc1
    s_mov_b64 exec, -1
    L_idle_pf2:
    s_barrier
    buffer_load_dword v90, v2, s[8:11], s20 offen
    """)
    if n1: a(f"buffer_load_dword v92, v3, s[8:11], s21 offen")
    if cfg.get("e2e"):
        srd(a, 96, 42, 1 << 20, add=STAMP_OFF + (2 << 20))
        a("""
        v_mov_b32 v93, s64
        s_mov_b64 exec, 1
        buffer_store_dword v93, v4, s[96:99], s19 offen
        s_mov_b64 exec, -1
        """)
    a("""
    s_cmp_eq_u32 s16, 0
    s_cbranch_scc0 L_rdy_i_ok
    """)
    poll(a, "L_rdy_i", 10, DBG, "0")
    a("""
    s_waitcnt vmcnt(0)
    s_barrier
    s_mov_b32 s63, 0
    s_cmp_lt_u32 s16, 4
    s_cbranch_scc1 L_late_setup
    """)
    attn_setup(a, cfg, early=True)
    if cfg.get("qfirst", 0):
        a.c("look only at the flags of this workgroup's Q producers until those are up: lines read before they are written slow the writers")
        a(f"""
        s_cmp_eq_u32 s16, {cfg.get("epoll", 5)}
        s_cbranch_scc0 L_early
        """)
        poll(a, "L_qfirst", VPOLL+1, WS, "s33")
    a("s_branch L_early")
    a("L_late_setup:")
    attn_setup(a, cfg, early=False)
    a("s_barrier")
    a("s_branch L_late_st")
    page(a, cfg, "qk")
    a("L_qkv_cons:")
    phase1_consumer(a, cfg)
    page(a, cfg, "late")
    a(f"""
    L_late_st:
    {"s_setprio 3" if cfg.get("lprio", 2) else ""}
    v_mov_b32 v11, {GO_ADDR + 81920}
    ds_write_b32 v11, v{VZ}
    s_barrier
    """)
    if cfg.get("a4"):
        a(f"""
        s_waitcnt vmcnt(0)
        s_cmp_eq_u32 s63, 0
        s_cbranch_scc1 L_late_nofl
        s_mov_b64 exec, 1
        buffer_store_dword v{VONE}, v{VZ}, {WS}, s60 offen sc1
        s_mov_b64 exec, -1
        L_late_nofl:
        """)
        for g in kv_dma(2, back=81920): a(g)
        a("s_waitcnt vmcnt(4)")
        for g in kv_dma(3, back=81920): a(g)
        a("s_waitcnt vmcnt(5) lgkmcnt(0)")
        a("s_barrier")
        a("s_waitcnt vmcnt(0)")
        a("s_barrier")
    else:
        for g in kv_dma(2, back=81920): a(g)
        a("s_waitcnt vmcnt(5)")
    if cfg.get("a4"): pass
    elif cfg.get("u3first", 0):
        for g in kv_dma(3, back=81920): a(g)
        a(f"""
        s_cmp_eq_u32 s63, 0
        s_cbranch_scc1 L_late_nofl
        s_mov_b64 exec, 1
        buffer_store_dword v{VONE}, v{VZ}, {WS}, s60 offen sc1
        s_mov_b64 exec, -1
        s_waitcnt vmcnt(1) lgkmcnt(0)
        s_branch L_late_a3
        L_late_nofl:
        s_waitcnt vmcnt(0) lgkmcnt(0)
        L_late_a3:
        s_barrier
        """)
    else:
        a("""
        s_cmp_eq_u32 s63, 0
        s_cbranch_scc1 L_late_nofl
        """)
        if cfg.get("t2d"): stamp(a, cfg, 3)
        if cfg.get("sat2", 1): raise_scalar(a, "s60")
        else: raise_flag(a, "s60")
        a("L_late_nofl:")
        for g in kv_dma(3, back=81920): a(g)
        a("""
        s_waitcnt vmcnt(0) lgkmcnt(0)
        s_barrier
        """)
    if cfg.get("t2d"): stamp(a, cfg, 4)
    wait_stage(a, cfg, "l", 0)
    if cfg.get("t2d"): a("s_mov_b32 s74, s35")
    stamp(a, cfg, 6)
    for g in kv_dma(0): a(g)
    qloads(a)
    a("s_waitcnt vmcnt(5) lgkmcnt(0)")
    stamp(a, cfg, 15)
    if cfg.get("u1in", 1):
        a("s_waitcnt vmcnt(0)")
    else:
        if not cfg.get("bl0"): a("s_barrier")
        for g in kv_dma(1): a(g)
        a("s_waitcnt vmcnt(5)")
    stamp(a, cfg, 7)
    attn_loop(a, cfg, early=False)
    a("s_branch L_epi")
    page(a, cfg, "early")
    a("L_early:")
    direct_init(a, cfg)
    wait_stage(a, cfg, "e", cfg.get("epoll", 5))
    stamp(a, cfg, 6)
    if cfg.get("direct", 0):
        a.c("Q and the first key tile straight into registers: the first scores are ready when the LDS image is")
        a(f"""
        buffer_load_dwordx2 {vr(QT,2)}, v{VQT}, {WS}, s26 offen offset:2048 sc1
        buffer_load_dwordx2 {vr(KT,2)}, v33, {WS}, s14 offen offset:2048 sc1
        buffer_load_dwordx2 {vr(QM0,2)}, v{VQ}, {WS}, s22 offen sc1
        buffer_load_dwordx2 {vr(QM0+2,2)}, v{VQ}, {WS}, s22 offen offset:1024 sc1
        buffer_load_dwordx2 {vr(KM,2)}, v{VQ}, {WS}, s14 offen sc1
        buffer_load_dwordx2 {vr(KM+2,2)}, v{VQ}, {WS}, s14 offen offset:1024 sc1
        buffer_load_dwordx2 {vr(QM1,2)}, v{VQ}, {WS}, s23 offen sc1
        buffer_load_dwordx2 {vr(QM1+2,2)}, v{VQ}, {WS}, s23 offen offset:1024 sc1
        """)
        for g in kv_dma(0): a(g)
        a("s_setprio 3")
        a("s_waitcnt vmcnt(11)")
        a(Tm(0, SA)); a("s_nop 15"); a("s_nop 1"); a("s_waitcnt vmcnt(5)")
        a(Mm(0, SA, 0)); a(Mm(0, SA, 1))
        a(f"s_waitcnt vmcnt({cfg.get('u1w', 3)})")
        for g in kv_dma(1): a(g)
    else:
        for g in kv_dma(0): a(g)
        qloads(a)
        a(f"s_waitcnt vmcnt({cfg.get('u1w', 5)})")
        for g in kv_dma(1): a(g)
    a("s_waitcnt vmcnt(5) lgkmcnt(0)")
    stamp(a, cfg, 5)
    a("s_barrier")
    stamp(a, cfg, 7)
    attn_loop(a, cfg, early=True)
    a.c("the filler words of every tile this workgroup will read are in place")
    a("""
    s_cmp_eq_u32 s16, 4
    s_cbranch_scc0 L_epi
    """)
    a(f"s_waitcnt vmcnt({1 if cfg.get('notice', 9) == 4 else 0})")
    a("""
    v_cmp_ne_u32 vcc, 0, v5
    s_nop 0
    s_cmp_eq_u64 vcc, -1
    s_cbranch_scc0 L_r_wait
    """)
    a("L_epi:")
    attn_epilogue(a, cfg)
    phase3(a, cfg)
    if cfg.get("stamp"): a("s_waitcnt vmcnt(0)")
    stamp(a, cfg, 13); stamp(a, cfg, 14, real=True)
    if cfg.get("stamp"): a("s_waitcnt lgkmcnt(0)"); a("s_mov_b32 s94, s28")
    if "sel" in cfg:
        a(f"""
        s_waitcnt lgkmcnt(0)
        s_cmp_ge_u32 s16, 4
        s_cselect_b32 s90, s{64 + 2*cfg["sel"]}, 0
        s_and_b32 s3, s2, 0xe4
        s_cmp_eq_u32 s3, 0xe4
        s_cselect_b32 s90, 0, s90
        """)
    if "xsel" in cfg:
        a(f"""
        s_waitcnt lgkmcnt(0)
        s_and_b32 s90, s2, 7
        s_cmp_eq_u32 s90, {cfg["xsel"]}
        s_cselect_b32 s90, s64, 0
        """)
    if cfg.get("xcc"):
        a("""
        s_waitcnt lgkmcnt(0)
        s_getreg_b32 s90, hwreg(HW_REG_XCC_ID, 0, 4)
        s_sub_u32 s90, s90, s2
        s_and_b32 s90, s90, 7
        s_mul_i32 s90, s90, 200
        """)
    stamp_flush(a, cfg, 0, 16, 8, wsptr=42)
    a("L_end:")
    a("s_endpgm")
    TAIL.pop()()
    a("L_code_end:")
    a("L_r_wait:")
    poll(a, "L_r_spin", P3+7, WS, "s40")
    a("s_branch L_epi")
    attn_slow(a)
    head = open("standalone__softmax_full_mha__prompt.s.ref").read().split("; Override launch")[0]
    descs = descriptor(NAME, 256)
    if cfg.get("probe"):
        import k_probe
        if cfg.get("lat"):
            head += "; @launch kernel=lat_kernel grid=(1,1,1) block=(64,1,1) lds=0\n"
            descs += k_probe.gen_lat(a, cfg)
        head += f"; @launch kernel={NAME} grid=(256,1,1) block=(512,1,1) lds=163840\n; @launch kernel=probe_kernel grid=(1,1,1) block=(64,1,1) lds=0\n"
        descs += k_probe.gen_probe(a, cfg)
    elif cfg.get("e2e"):
        import k_probe
        head += "; @launch kernel=prev_kernel grid=(1,1,1) block=(64,1,1) lds=0\n"
        a(".p2align 12")
        descs += k_probe.gen_prev(a, cfg)
        head += f"; @launch kernel={NAME} grid=(256,1,1) block=(512,1,1) lds=163840\n; @launch kernel=next_kernel grid=(1,1,1) block=(64,1,1) lds=0\n"
        descs += k_probe.gen_next(a, cfg)
    elif cfg.get("list"):
        head += f"; @launch kernel={NAME} grid=(256,1,1) block=(512,1,1) lds=163840\n"
    else:
        head += "; @launch grid=(256,1,1) block=(512,1,1) lds=163840\n"
    return head + DOC + '.amdgcn_target "amdgcn-amd-amdhsa--gfx950"\n.text\n' + a.text() + '.section .rodata,"a"\n' + descs

def gen(cfg):
    if not cfg.get("layout", 1): return gen1(cfg)
    import subprocess, tempfile, os
    d = tempfile.mkdtemp()
    c = dict(cfg, pages={"qk": 0, "v": 0, "late": 0, "early": cfg.get("eoff", 128)})
    open(d + "/a.s", "w").write(gen1(c))
    subprocess.run(["clang", "-x", "assembler", "-target", "amdgcn-amd-amdhsa", "-mcpu=gfx950", "-c", d + "/a.s", "-o", d + "/a.o"], check=True)
    o = subprocess.run(["llvm-objdump", "-t", d + "/a.o"], capture_output=True, text=True).stdout
    L = {m.group(2): int(m.group(1), 16) for m in re.finditer(r"^([0-9a-f]+) .* (L_\w+)$", o, re.M)}
    c["pages"]["qk"] = (-L["L_end_qk"]) % 4096 // 8 * 8
    c["pages"]["v"] = (-L["L_end_v"] - 64) % 4096 // 8 * 8
    return gen1(c)

if __name__ == "__main__":
    cfg = json.loads(sys.argv[2]) if len(sys.argv) > 2 else {}
    open(sys.argv[1], "w").write(gen(cfg))
```

```python
import sys, json, struct, re
from asmlib import *
NAME = "standalone__softmax_full_mha__prompt_kernel"
HQ = 81920
HKV = 163840
KV_OFF = 32 * HQ
O_OFF = KV_OFF + 32 * HKV
FB_OFF = O_OFF + 128 * 20480
FA_OFF = FB_OFF + 256 * 128
F2_OFF = FA_OFF + 256 * 128
F3_OFF = F2_OFF + 256 * 128
WS_BYTES = F3_OFF + 256 * 128
SLOT = [0, 24576, 49152, 81920, 106496, 131072, 0, 24576, 49152, 139264]
CSCALE = struct.unpack("<I", struct.pack("<f", (20 ** -0.5) * 1.4426950408889634))[0]
WS, WO, OUT, DBG = "s[44:47]", "s[48:51]", "s[52:55]", "s[56:59]"
SPIN_MAX = 1 << 18

def spin_head(a, label):
    a(f"{label}:")
def spin_tail(a, label, mult=1):
    a(f"""
    s_cselect_b32 s35, {SPIN_MAX*mult}, s35
    s_add_u32 s35, s35, 1
    s_cmp_lt_u32 s35, {SPIN_MAX*mult}
    s_cbranch_scc1 {label}
    {label}_ok:
    """)

def poll(a, label, vaddr, rsrc, soff, dst=5):
    a(f"""
    s_mov_b32 s35, 0
    {label}:
    buffer_load_dword v{dst}, v{vaddr}, {rsrc}, {soff} offen sc1
    s_waitcnt vmcnt(0)
    v_cmp_ne_u32 vcc, 0, v{dst}
    s_nop 0
    s_cmp_eq_u64 vcc, -1
    """)
    spin_tail(a, label)

def paced_poll(a, cfg, label, vaddrs, soff):
    pace = cfg.get("pace" + label[-1], -1)
    n = len(vaddrs)
    dst = [5, 3][:n]
    if pace < 0:
        a(f"s_mov_b32 s35, 0\n{label}:")
        if pace < -1: a(f"s_sleep {-pace}")
        for d, v in zip(dst, vaddrs): a(f"buffer_load_dword v{d}, v{v}, {WS}, {soff} offen sc1")
        a(f"{label}_chk:")
        a("s_waitcnt vmcnt(0)")
        if label == "L_poll1e" and cfg.get("touch", 3) == 3:
            a(f"{label}_first:")
            a("s_waitcnt vmcnt(2)")
    else:
        for d in dst: a(f"v_mov_b32 v{d}, 0")
        a(f"s_mov_b32 s35, 0\n{label}:")
        for d, v in zip(dst, vaddrs): a(f"buffer_load_dword v{d}, v{v}, {WS}, {soff} offen sc1")
        if pace: a(f"s_sleep {pace}")
        a(f"s_waitcnt vmcnt({n * cfg.get('pdepth', 4)})")
    if n == 2 and label[-1] == "l": a("v_min_u32 v2, v5, v3"); a("v_cmp_eq_u32 vcc, 4, v2")
    elif n == 2: a("v_and_b32 v2, v5, v3"); a("v_cmp_ne_u32 vcc, 0, v2")
    else: a("v_cmp_ne_u32 vcc, 0, v5")
    a("s_nop 0")
    a("s_cmp_eq_u64 vcc, -1")
    spin_tail(a, label, mult=4)

def raise_scalar(a, soff):
    a(f"""
    s_add_u32 s6, s42, {soff}
    s_addc_u32 s7, s43, 0
    s_mov_b32 s5, 1
    s_atomic_add s5, s[6:7], 0x0 glc
    """)

def raise_flag(a, soff):
    a(f"""
    v_mov_b32 v2, 0
    v_mov_b32 v3, 1
    s_mov_b64 exec, 1
    buffer_store_dword v3, v2, {WS}, {soff} offen sc1
    s_mov_b64 exec, -1
    """)

def page(a, cfg, key):
    off = cfg.get("pages", {}).get(key)
    if off is None: return
    if key == "v" and off:
        a(".p2align 8"); a(f".fill {(off - 256)//4}, 4, 0xbf800000"); return
    a(".p2align 12")
    if off: a(f".fill {off//4}, 4, 0xbf800000")

def common_srds(a):
    srd(a, 44, 42, WS_BYTES)
    srd(a, 48, 36, 640 * 1280)
    srd(a, 52, 38, 2048 * 1280)
    srd(a, 56, 40, 256)

XROT = [0, 1, 3, 4, 3, 4, 1, 2]
IDLE2 = True
CNT_ADDR = 133120 - 16
GO_ADDR = 81920 - 16
def phase1_loader(a, cfg):
    a.c("---------------- loader waves (become the early attention waves)")
    rot = cfg.get("rot", 2)
    NX0 = cfg.get("nx0", 6)
    if rot == 2:
        a("""
        s_add_u32 s100, s3, s17
        s_and_b32 s100, s100, 1
        s_mul_i32 s100, s100, 5
        """)
    elif rot == 3:
        a("""
        s_add_u32 s100, s3, s17
        s_mul_i32 s101, s100, 43
        s_lshr_b32 s101, s101, 7
        s_mul_i32 s101, s101, 3
        s_sub_u32 s100, s100, s101
        s_mul_i32 s100, s100, 7
        s_lshr_b32 s100, s100, 1
        """)
    elif rot == 4:
        a("""
        s_add_u32 s100, s3, s17
        s_and_b32 s100, s100, 3
        s_mul_i32 s100, s100, 5
        s_lshr_b32 s100, s100, 1
        """)
    else:
        a("s_mov_b32 s100, 0")
    xr = cfg.get("xrot", XROT)
    if xr:
        a(f"""
        s_and_b32 s101, s2, 7
        s_lshl_b32 s101, s101, 2
        s_lshr_b32 s101, {sum(v << (4*i) for i, v in enumerate(xr))}, s101
        s_and_b32 s101, s101, 15
        s_add_u32 s100, s100, s101
        s_sub_u32 s101, s100, 10
        s_cselect_b32 s100, s100, s101
        """)
    a(f"""
    s_and_b32 s19, s16, 3
    s_lshl_b32 s96, s19, 4
    s_lshr_b32 s101, s19, 1
    s_lshl_b32 s101, s101, 5
    s_and_b32 s34, s19, 1
    s_lshl_b32 s34, s34, 2
    s_add_u32 s101, s101, s34
    s_cmp_lt_u32 s17, 10
    s_cselect_b32 s96, s96, s101
    s_cselect_b32 s101, 4, 8
    s_mul_i32 s101, s101, 1280
    s_lshl_b32 s34, s18, 7
    s_add_u32 s96, s96, s34
    s_mul_i32 s96, s96, 1280
    v_lshrrev_b32 v2, 5, v1
    v_mul_u32_u24 v2, s101, v2
    v_bfe_u32 v3, v1, 3, 2
    v_mul_u32_u24 v3, 1280, v3
    v_lshrrev_b32 v5, 4, v1
    v_and_b32 v4, 7, v1
    v_xor_b32 v4, v4, v5
    v_lshlrev_b32 v4, 4, v4
    v_add3_u32 v8, v2, v3, v4
    v_xor_b32 v4, 64, v4
    v_add3_u32 v9, v2, v3, v4
    s_lshl_b32 s101, s101, 1
    s_sub_u32 s101, s101, 1024
    v_add_u32 v9, s101, v9
    v_and_b32 v3, 15, v1
    v_lshlrev_b32 v6, 1, v5
    v_xor_b32 v3, v3, v6
    v_mul_u32_u24 v2, 3840, v5
    v_lshl_add_u32 v16, v3, 4, v2
    v_add_u32 v17, {4*3840-1024}, v16
    v_xor_b32 v3, 8, v3
    v_lshl_add_u32 v18, v3, 4, v2
    v_add_u32 v19, {3*(4*3840-1024)}, v18
    v_add_u32 v18, {2*(4*3840-1024)}, v18
    s_mul_i32 s97, s19, {16*3840}
    s_lshl_b32 s3, s17, 8
    s_add_u32 s97, s97, s3
    s_lshl_b32 s98, s19, 11
    s_lshl_b32 s99, s19, 12
    s_mov_b32 s10, {2048*1280}
    s_mov_b32 s11, 0x00020000
    s_mov_b32 s14, {640*3840}
    s_mov_b32 s15, 0x00020000
    """)
    stamp(a, cfg, 8, grp="st")
    a("s_waitcnt lgkmcnt(0)")
    stamp(a, cfg, 9, grp="st")
    a(f"""
    s_mov_b32 s8, s4
    s_mov_b32 s9, s5
    s_mov_b32 s12, s6
    s_mov_b32 s13, s7
    """)
    XF1, XF2, WF_ = cfg.get("xfl", ""), cfg.get("x2fl", ""), cfg.get("wfl", "")
    def adv():
        a("""
        s_add_u32 s100, s100, 1
        s_cmp_eq_u32 s100, 10
        s_cselect_b32 s100, 0, s100
        """)
    def issue_x(lds, XF):
        a(f"""
        s_lshl_b32 s101, s100, 7
        s_add_u32 m0, s98, {lds}
        s_add_u32 s101, s101, s96
        """)
        for j in range(2):
            a(f"buffer_load_dwordx4 v{8+j}, s[8:11], s101 offen offset:{1024*j} {XF} lds")
    def issue(c):
        slot = SLOT[c]
        issue_x(slot, XF1)
        a(f"""
        s_mul_i32 s34, s100, {64*3840}
        s_add_u32 m0, s99, {slot+8192}
        s_add_u32 s34, s34, s97
        """)
        for j in range(4):
            a(f"buffer_load_dwordx4 v{16+j}, s[12:15], s34 offen offset:{1024*j} {WF_} lds")
        adv()
    def issue2(c):
        if c == 0: a(f"s_add_u32 s96, s96, {64*1280}")
        issue_x(81920 + 8192*c, XF2)
        if c < 9: adv()
    NPRE = cfg.get("npre", 3)
    if cfg.get("ldprio"): a(f"s_setprio {cfg['ldprio']}")
    groups = [[("c", c)] for c in range(10)]
    q = list(range(NX0))
    while q: groups.append([("x", i) for i in q[:3]]); q = q[3:]
    while len(groups) > 10 + NPRE:
        g = groups.pop(); groups[-1] = groups[-1] + g
    pend = []
    def put(g):
        for kind, i in g:
            if kind == "c": issue(i); pend.append(((kind, i), 6))
            else: issue2(i); pend.append(((kind, i), 2))
    def wait_for(item):
        k = [p[0] for p in pend].index(item)
        del pend[:k+1]
        a(f"s_waitcnt vmcnt({sum(p[1] for p in pend)})")
    for i in range(NPRE):
        put(groups.pop(0))
        if i == 0: stamp(a, cfg, 10, grp="st")
    common_srds(a)
    a(f"""
    v_and_b32 v10, 15, v1
    v_lshlrev_b32 v10, 2, v10
    s_lshl_b32 s60, s17, 4
    s_add_u32 s60, s60, s18
    s_lshl_b32 s60, s60, 7
    s_add_u32 s60, s60, {FA_OFF}
    """)
    XT = cfg.get("xtouch", 0)
    if XT:
        a("""
        s_bfe_u32 s4, s17, 0x20001
        s_lshl_b32 s4, s4, 2
        s_add_u32 s4, s4, s19
        s_lshl_b32 s3, s18, 5
        s_add_u32 s4, s4, s3
        s_add_u32 s4, s4, 16
        s_mul_i32 s4, s4, 5120
        """)
    t = Asm(); attn_setup(t, cfg, early=True)
    su = [l.strip() for l in t.lines if not l.strip().startswith(";")]
    at = cfg.get("esu", [0, 1, 2, 3, 4])
    per = -(-len(su) // len(at))
    def slice_(c):
        if c in at:
            for l in su[:per]: a(l)
            del su[:per]
    slice_(-1)
    for c in range(10):
        wait_for(("c", c))
        if c == 0: stamp(a, cfg, 2)
        if c in (3, 6): stamp(a, cfg, {3: 11, 6: 12}[c], grp="st")
        a("s_barrier")
        if cfg.get("rdyearly") == c: a(f"buffer_load_dword v5, v10, {DBG}, 0 offen sc1"); pend.append((("r", 0), 1))
        if groups: put(groups.pop(0))
        slice_(c)
    if not cfg.get("rdyearly"): a(f"buffer_load_dword v5, v10, {DBG}, 0 offen sc1"); pend.append((("r", 0), 1))
    stamp(a, cfg, 3)
    if XT:
        assert NX0 == 6
        a("""
        v_min_u32 v2, 15, v1
        v_and_b32 v3, 3, v2
        v_add_u32 v3, s100, v3
        v_subrev_u32 v4, 10, v3
        v_min_u32 v3, v3, v4
        v_lshrrev_b32 v2, 2, v2
        v_mul_u32_u24 v2, 1280, v2
        v_lshl_add_u32 v2, v3, 7, v2
        """)
    wait_for(("x", 2))
    a("s_barrier")
    if XT:
        a.c("behind the stores: pull a share of the last four second-stage x chunks into L2")
        a("buffer_load_dword v22, v2, s[8:11], s4 offen")
    a(f"""
    v_mov_b32 v11, {GO_ADDR}
    v_mov_b32 v7, 0
    ds_write_b32 v11, v7
    s_waitcnt vmcnt({1 if XT else 0})
    v_cmp_ne_u32 vcc, 0, v5
    s_waitcnt lgkmcnt(0)
    s_cmp_eq_u64 vcc, -1
    s_cbranch_scc1 L_rdy_l_ok
    """)
    poll(a, "L_rdy_l", 10, DBG, "0")
    if NX0 > 3 and not cfg.get("mergef", 1): a("s_barrier")
    SA_ = cfg.get("sat", 1)
    NXF = cfg.get("nxf", NX0)
    for q in range(NX0, NXF): issue2(q)
    a("""
    s_barrier
    s_cmp_eq_u32 s16, 4
    s_cbranch_scc0 L_ld_nofl
    """)
    if SA_: raise_scalar(a, "s60")
    else:
        a(f"""
        s_mov_b64 exec, 1
        buffer_store_dword v{VONE}, v{VZ}, {WS}, s60 offen sc1
        s_mov_b64 exec, -1
        """)
    a("L_ld_nofl:")
    if cfg.get("eprio"): a(f"s_setprio {cfg['eprio']}")
    stamp(a, cfg, 4)
    for q in range(NXF, 10): issue2(q)
    NX1 = cfg.get("nx1", 10)
    def xbars(extra):
        if NX1 < 10:
            a(f"s_waitcnt vmcnt({2*(10-NX1) + extra})")
            a("s_barrier")
        a(f"s_waitcnt vmcnt({extra})")
        a("s_barrier")
    if cfg.get("prepoll", 0):
        a(f"""
        s_cmp_eq_u32 s16, {cfg.get("epoll", 5)}
        s_cbranch_scc0 L_ld_nopoll
        s_waitcnt vmcnt({cfg.get("ppw", 5)})
        buffer_load_dword v5, v{VPOLL}, {WS}, s33 offen sc1
        buffer_load_dword v3, v{VPOLL+1}, {WS}, s33 offen sc1
        s_mov_b32 s35, 0
        v_mov_b32 v7, 1
        """)
        xbars(2)
        a("s_branch L_poll1e_chk")
        a("L_ld_nopoll:")
    TP = cfg.get("touch", 3)
    if TP == 3:
        a.c("the polling wave also touches the lines of Q and a quarter of the first K/V units (shared with the head's other workgroups):")
        a.c("a pure L2 prefetch; a line touched too early is dropped again by the producer's write")
        ep = cfg.get("epoll", 5)
        a(f"""
        s_cmp_eq_u32 s16, {ep}
        s_cbranch_scc0 L_ld_nt
        v_min_u32 v2, 39, v1
        v_cmp_lt_u32 vcc, 19, v2
        s_lshr_b32 s3, s2, 5
        s_and_b32 s3, s3, 3
        s_mul_i32 s3, s3, 5120
        s_add_u32 s3, s3, s21
        {"s_sub_u32 s34, s26, 5120" if ep & 2 else "s_mov_b32 s34, s26"}
        v_add_u32 v4, 20, v2
        v_cndmask_b32 v4, v2, v4, vcc
        v_lshlrev_b32 v4, 7, v4
        v_lshlrev_b32 v6, 7, v2
        s_mov_b32 s35, 0
        v_mov_b32 v7, 1
        """)
        direct_init(a, cfg)
        xbars(0)
        a(f"""
        buffer_load_dword v5, v{VPOLL}, {WS}, s33 offen sc1
        buffer_load_dword v3, v{VPOLL+1}, {WS}, s33 offen sc1
        buffer_load_dword v34, v6, {WS}, s3 offen sc1
        buffer_load_dword v35, v4, {WS}, s34 offen sc1
        s_branch L_poll1e_first
        L_ld_nt:
        """)
    elif TP:
        a.c("lines of Q (wave 6) and of the first K/V units (wave 7: a quarter, shared with the head's other workgroups) to touch while the flags are polled")
        a(f"""
        v_min_u32 v2, 39, v1
        s_lshr_b32 s3, s2, 5
        s_and_b32 s3, s3, 3
        s_mul_i32 s3, s3, 5120
        s_add_u32 s3, s3, s21
        s_sub_u32 s34, s26, 5120
        v_cmp_lt_u32 vcc, 19, v2
        s_cmp_eq_u32 s16, 6
        s_cselect_b32 s3, s34, s3
        s_cselect_b32 s34, 20, 0
        v_add_u32 v3, s34, v2
        v_cndmask_b32 v2, v2, v3, vcc
        v_lshlrev_b32 v2, 7, v2
        """)
        if TP == 2:
            a("s_cmp_lt_u32 s16, 6"); a("s_cbranch_scc1 L_ld_nt")
            a(f"s_waitcnt vmcnt({cfg.get('tw', 2)})")
            a(f"buffer_load_dword v6, v2, {WS}, s3 offen sc1")
            xbars(1); a("s_branch L_early"); a("L_ld_nt:")
    xbars(0)
    if TP == 1:
        a(f"""
        s_cmp_lt_u32 s16, 6
        s_cbranch_scc1 L_early
        buffer_load_dword v6, v2, {WS}, s3 offen sc1
        """)
    a("s_branch L_early")

def phase1_consumer(a, cfg):
    a.c("---------------- consumer waves (become the late attention waves)")
    XA, WA, ST, XF, AC, WR = 8, 10, 12, 16, 48, 96
    XB, WB = 4, 6
    W60 = "s_lshl_b32 s60, s17, 2\ns_add_u32 s60, s60, s16\ns_lshl_b32 s60, s60, 4"
    SFLAG = cfg.get("sflag", 4)
    NX0 = cfg.get("nx0", 6)
    XBAR = {3, NX0, cfg.get("nx1", 10)}
    if cfg.get("mergef", 1):
        assert SFLAG <= 5 and NX0 > 3 and cfg.get("nxf", NX0) == NX0
        XBAR.discard(3)
    else: assert (NX0 == 3 or SFLAG >= 5) and SFLAG <= 2 * NX0 - 1
    a(f"""
    v_and_b32 v2, 15, v1
    v_lshrrev_b32 v3, 4, v1
    v_bfe_u32 v4, v1, 1, 3
    v_xor_b32 v4, v4, v3
    v_lshlrev_b32 v4, 4, v4
    v_lshl_add_u32 v{XA}, v2, 7, v4
    v_xor_b32 v{XA+1}, 64, v{XA}
    v_bfe_u32 v4, v1, 2, 2
    v_lshl_add_u32 v5, v3, 3, v4
    v_and_b32 v6, 1, v3
    v_lshl_or_b32 v4, v6, 2, v4
    s_lshl_b32 s3, s16, 1
    v_xor_b32 v4, s3, v4
    v_lshlrev_b32 v4, 5, v4
    v_lshl_add_u32 v4, v5, 8, v4
    v_and_b32 v5, 3, v1
    v_lshl_add_u32 v4, v5, 3, v4
    v_add_u32 v{WA}, 8192, v4
    v_xor_b32 v{WA+1}, 32, v{WA}
    s_lshl_b32 s60, s17, 4
    s_add_u32 s60, s60, s18
    s_lshl_b32 s60, s60, 7
    s_add_u32 s60, s60, {FB_OFF}
    s_mul_i32 s21, s18, 5120
    s_waitcnt lgkmcnt(0)
    """)
    common_srds(a)
    if cfg.get("tlb", 0):
        a.c("first touch of the buffers this CU meets later (address translation only; the values are not used)")
        a(f"""
        s_cmp_eq_u32 s16, 1
        s_cbranch_scc0 L_notlb
        v_min_u32 v14, 5, v1
        v_lshlrev_b32 v14, 21, v14
        v_mov_b32 v15, 128
        s_and_b32 s3, s2, 7
        s_mul_i32 s3, s3, {256*1280}
        buffer_load_dword v0, v14, {WS}, 0 offen sc1
        buffer_load_dword v0, v15, {DBG}, 0 offen sc1
        buffer_load_dword v0, v15, {OUT}, s3 offen sc1
        L_notlb:
        """)
    def xread(stage, ks, tt):
        c, s = divmod(ks, 2)
        if stage == 0: ad, off = (XA, SLOT[c]) if SLOT[c] < 81920 else (XB, SLOT[c] - 81920)
        else: ad, off = (XB, c * 8192) if c < 5 else (XA, (c - 5) * 8192)
        return f"ds_read_b128 {vr(XF+16*(ks&1)+4*tt,4)}, v{ad+s} offset:{off+2048*tt}"
    def wread(ks, ct, u):
        c, s = divmod(ks, 2)
        ad, off = (WA, SLOT[c]) if SLOT[c] < 81920 else (WB, SLOT[c] - 81920)
        if c == 9: off -= 8192
        return f"ds_read_b64_tr_b16 {vr(WR+8*ks+4*ct+2*u,2)}, v{ad+ct} offset:{off+(32*s+4*u)*256}"
    def reads(stage, ks):
        if stage == 0:
            return [wread(ks,0,0), wread(ks,0,1), xread(0,ks,0), wread(ks,1,0), wread(ks,1,1), xread(0,ks,1), xread(0,ks,2), xread(0,ks,3)]
        return [xread(1,ks,tt) for tt in range(4)]
    def mid():
        a("s_barrier")
        for r in reads(1, 0): a(r)
    def gemm(isv, epi):
        t = Asm(); attn_setup(t, cfg, early=False)
        su = [l.strip() for l in t.lines if not l.strip().startswith(";")]
        def filler(ks, n):
            while n and su:
                m = re.match(r"v_\w+ v\[?(\d+)", su[0])
                if m and int(m.group(1)) >= WR + 8 * ks: return
                a(su.pop(0)); n -= 1
        for i in range(2):
            a(f"v_add_u32 v{XB+i}, 81920, v{XA+i}")
            a(f"v_add_u32 v{WB+i}, 81920, v{WA+i}")
        a("s_barrier")
        stamp(a, cfg, 2)
        a(".p2align 3")
        for r in reads(0, 0): a(r)
        for stage in range(2):
            for ks in range(20):
                fl = stage == 1 and ks == SFLAG
                nxt = []
                bar = False
                if ks < 19:
                    nxt = reads(stage, ks + 1)
                    if ks % 2 == 1: bar = stage == 0 or ((ks + 1) // 2) in XBAR
                    X2 = cfg.get("x2at")
                    if X2 and stage == 1:
                        assert SFLAG < X2 <= 2 * NX0 - 1
                        if ks == 2 * NX0 - 1: bar = False
                        if ks == X2: bar = True
                if fl and bar and (ks + 1) // 2 != NX0:
                    a("s_waitcnt lgkmcnt(0)"); a("s_barrier"); a("s_waitcnt vmcnt(0)"); a("s_barrier")
                elif fl and bar:
                    a("s_waitcnt vmcnt(0) lgkmcnt(0)"); a("s_barrier"); a("s_barrier"); a("s_nop 0")
                else:
                    a("s_waitcnt vmcnt(0) lgkmcnt(0)" if fl else "s_waitcnt lgkmcnt(0)")
                    if bar or fl: a("s_barrier")
                    elif stage == 0 or ks < cfg.get("su0", 5): a("s_nop 0")
                if fl: stamp(a, cfg, 4)
                if stage == 0 and ks == 13:
                    for i in range(2): a(f"v_add_u32 v{WB+i}, 8192, v{WB+i}")
                if stage == 1 and ks in (5, 13, 19): stamp(a, cfg, {5: 10, 13: 11, 19: 12}[ks], grp="p1")
                per = 2 if stage == 0 else 1
                for i in range(8):
                    tt, ct = i >> 1, (i & 1) ^ ((i >> 1) & 1)
                    acc = AC + 8 * tt + 4 * ct
                    x, w = vr(XF+16*(ks&1)+4*tt, 4), vr(WR+8*ks+4*ct, 4)
                    A, B = (x, w) if isv else (w, x)
                    c = "0" if ks == 0 else vr(acc, 4)
                    a(f"v_mfma_f32_16x16x32_bf16 {vr(acc,4)}, {A}, {B}, {c}")
                    if stage == 1 and ks >= cfg.get("su0", 5) and su and su[0].startswith("s_"): filler(ks, 1)
                    for r in nxt[per*i:per*i+per]: a(r)
                    if stage == 1 and ks >= cfg.get("su0", 5): filler(ks, 1 if nxt[i:i+1] else 2)
            if stage == 0:
                stamp(a, cfg, 3)
                a(f"v_add_u32 v{XA}, 122880, v{XA}")
                a(f"v_add_u32 v{XA+1}, 122880, v{XA+1}")
                epi(0)
                stamp(a, cfg, 8, grp="p1")
                if cfg.get("ackdiag"): a("s_waitcnt vmcnt(0)")
                if cfg.get("x0at", 99) > 7: mid()
                stamp(a, cfg, 9, grp="p1")
                a(".p2align 3")
            else:
                a("s_nop 1")
                epi(1)
                filler(20, 999)
    a("""
    s_cmp_lt_u32 s17, 10
    s_cbranch_scc0 L_qkv_v
    """)
    a.c("Q/K tiles: G = (cb%5)*32 + 8w + 4ct + g ; head = G/5 ; pos = G%5")
    a(f"""
    s_cmp_lt_u32 s17, 5
    s_cselect_b32 s25, 0, 81920
    s_cselect_b32 s12, {CSCALE}, 1.0
    s_cselect_b32 s23, 0, {KV_OFF}
    s_cselect_b32 s3, 0, 5
    s_add_u32 s24, s25, {HQ-2560}
    s_max_u32 s22, s25, 2560
    s_mov_b32 s13, s12
    s_add_u32 s21, s21, s23
    s_add_u32 s62, s22, s21
    s_sub_u32 s3, s17, s3
    s_lshl_b32 s3, s3, 2
    s_add_u32 s3, s3, s16
    s_lshl_b32 s3, s3, 3
    v_add_u32 v6, s3, v3
    v_lshlrev_b32 v4, 3, v2
    """)
    for ct in range(2):
        a(f"""
        v_add_u32 v7, {4*ct}, v6
        v_mul_u32_u24 v5, 52429, v7
        v_lshrrev_b32 v5, 18, v5
        v_lshl_add_u32 v7, v7, 9, v4
        v_mad_u32_u24 v{ST+ct}, v5, s24, v7
        """)
    late_qk, late_v = [], []
    def epi_qk(stage):
        for i in range(8):
            tt, ct = i >> 1, (i & 1) ^ ((i >> 1) & 1)
            acc = AC + 8 * tt + 4 * ct
            d = 80 + 2 * i
            a(f"v_pk_mul_f32 {vr(acc,2)}, {vr(acc,2)}, s[12:13]")
            a(f"v_pk_mul_f32 {vr(acc+2,2)}, {vr(acc+2,2)}, s[12:13]")
            a(f"v_cvt_pk_bf16_f32 v{d}, v{acc}, v{acc+1}")
            a(f"v_cvt_pk_bf16_f32 v{d+1}, v{acc+2}, v{acc+3}")
            st = f"buffer_store_dwordx2 {vr(d,2)}, v{ST+ct}, {WS}, s{62 if stage else 21} offen offset:{128*tt} sc1"
            if stage == 0: a(st)
            else: late_qk.append(st)
            if stage == 0 and i == cfg.get("x0at", 99): mid()
    def tail(stores, name):
        stamp(a, cfg, 5)
        a("s_barrier")
        a(f"{name}:")
        for st in stores: a(st)
        a("s_mov_b32 s63, 1")
        a("s_branch L_late_st")
    gemm(False, epi_qk)
    tail(late_qk, "L_end_qk")
    page(a, cfg, "v")
    a("L_qkv_v:")
    a.c("V tiles: col = (cb-10)*128 + 32w + 16ct + n ; head = col/20 ; d = col%20")
    a(f"""
    s_sub_u32 s3, s17, 10
    s_lshl_b32 s3, s3, 2
    s_add_u32 s3, s3, s16
    s_lshl_b32 s3, s3, 5
    v_add_u32 v6, s3, v2
    s_add_u32 s21, s21, {KV_OFF+2560}
    s_add_u32 s62, s21, 81920
    v_mul_u32_u24 v4, 320, v3
    s_mov_b32 s24, {HKV - 320}
    """)
    for ct in range(2):
        a(f"""
        v_add_u32 v7, {16*ct}, v6
        v_mul_u32_u24 v5, 13108, v7
        v_lshrrev_b32 v5, 18, v5
        v_lshl_add_u32 v7, v7, 4, v4
        v_mad_u32_u24 v{ST+ct}, v5, s24, v7
        """)
    def epi_v(stage):
        a("s_nop 2")
        for P in range(2):
            for ct in range(2):
                d = 80 + 8 * P + 4 * ct
                for ab in range(2):
                    acc = AC + 8 * (2 * P + ab) + 4 * ct
                    a(f"v_cvt_pk_bf16_f32 v{d+2*ab}, v{acc}, v{acc+1}")
                    a(f"v_cvt_pk_bf16_f32 v{d+2*ab+1}, v{acc+2}, v{acc+3}")
                st = f"buffer_store_dwordx4 {vr(d,4)}, v{ST+ct}, {WS}, s{62 if stage else 21} offen offset:{1280*P} sc1"
                if stage == 0: a(st)
                else: late_v.append(st)
                if stage == 0 and 2 * P + ct == cfg.get("x0at", 99) // 2: mid()
    gemm(True, epi_v)
    tail(late_v, "L_end_v")

SA, SB = 178, 210
O0, O1 = 146, 162
QM0, QM1, QT = 242, 246, 250
KM, KT = 16, 24
VV, SENT, WOA = 96, 112, 116
VL16, VQ, VQT, VPOLL = 121, 122, 123, 124
VOM, VOT, VXW, VXR, VONE, VZ = 126, 127, 128, 129, 130, 131
IDX, VKE, VKO, VT, VV0, VV1 = 132, 133, 134, 135, 136, 137

P3 = 138
PK = 70
def p3_kh(a, cfg, d):
    a(f"s_lshr_b32 s{d}, s16, 2")
    if cfg.get("khswap"):
        a(f"""
        s_bfe_u32 s3, s2, 0x10005
        s_xor_b32 s{d}, s{d}, s3
        """)
def p3_setup(a, cfg):
    p3_kh(a, cfg, 30)
    a(f"""
    s_and_b32 s31, s16, 3
    s_mul_i32 s3, s30, 51200
    v_lshrrev_b32 v2, 5, v1
    v_bfe_u32 v3, v1, 4, 1
    v_bfe_u32 v14, v1, 2, 2
    v_mul_u32_u24 v15, 20, v2
    v_lshl_add_u32 v15, v3, 2, v15
    v_add_u32 v15, v15, v14
    v_mul_u32_u24 v15, 160, v15
    v_and_b32 v2, 3, v1
    v_lshl_add_u32 v2, v2, 3, s3
    v_add_u32 v{P3}, v15, v2
    v_lshrrev_b32 v3, 4, v1
    v_mul_u32_u24 v15, 20, v3
    v_add3_u32 v15, v15, 16, v14
    v_mul_u32_u24 v15, 160, v15
    v_add_u32 v{P3+1}, v15, v2
    s_mul_i32 s3, s31, 5120
    s_add_u32 s3, s3, 143360
    v_add_u32 v{P3+2}, s3, v{VL16}
    s_mul_i32 s3, s31, 3584
    s_add_u32 s3, s3, 102400
    v_and_b32 v2, 15, v1
    v_mul_u32_u24 v2, 176, v2
    v_lshl_add_u32 v2, v3, 3, v2
    v_add_u32 v{P3+3}, s3, v2
    s_and_b32 s40, s2, 7
    s_lshl_b32 s41, s40, 2
    s_bfe_u32 s30, s2, 0x20003
    s_add_u32 s41, s41, s30
    s_lshl_b32 s40, s40, 12
    s_add_u32 s40, s40, {F2_OFF}
    s_lshl_b32 s41, s41, 2
    s_add_u32 s41, s41, s31
    s_mul_i32 s41, s41, 20480
    v_lshrrev_b32 v2, 1, v1
    v_lshlrev_b32 v{P3+7}, 7, v2
    """)
    for i in range(5):
        a(f"""
        v_add_u32 v2, {64*i}, v1
        v_mul_u32_u24 v3, 6554, v2
        v_lshrrev_b32 v3, 16, v3
        v_mul_u32_u24 v14, {1280-160}, v3
        v_lshl_add_u32 v{WOA+i}, v2, 4, v14
        """)
        if i < 3:
            a(f"""
            v_add_u32 v14, v2, v3
            v_lshl_add_u32 v{P3+4+i}, v14, 4, s3
            """)

def attn_setup(a, cfg, early, keep5=False):
    late = 0 if early else 1
    a.c("attention ids: s17=head s18=q pair s19=key half s21=KV base of head")
    a(f"""
    s_and_b32 s17, s2, 7
    s_lshl_b32 s17, s17, 2
    s_lshr_b32 s17, 0x75643120, s17
    s_and_b32 s17, s17, 7
    s_lshl_b32 s17, s17, 2
    s_bfe_u32 s3, s2, 0x20003
    s_add_u32 s17, s17, s3
    s_lshr_b32 s29, s2, 5
    s_lshl_b32 s18, s29, 2
    s_and_b32 s3, s16, 2
    s_add_u32 s18, s18, s3
    s_add_u32 s18, s18, {late}
    s_and_b32 s19, s16, 1
    s_mul_i32 s20, s19, 5120
    v_and_b32 v2, 31, v1
    v_lshrrev_b32 v3, 5, v1
    v_lshlrev_b32 v14, 3, v2
    v_lshl_add_u32 v{VQ}, v3, 9, v14
    v_add_u32 v{VKE}, s20, v{VQ}
    v_add_u32 v{VKO}, 256, v{VKE}
    v_lshlrev_b32 v14, 3, v1
    v_add_u32 v{VT}, s20, v14
    s_lshl_b32 s3, s19, 8
    v_xor_b32 v{VQT}, s3, v14
    v_mul_u32_u24 v15, 320, v3
    v_lshl_add_u32 v15, v2, 4, v15
    s_add_u32 s3, s20, 2560
    v_add_u32 v{VV0}, s3, v15
    v_add_u32 v{VV1}, 40960, v{VV0}
    v_lshlrev_b32 v{VL16}, 4, v1
    v_mov_b32 v{IDX}, 0xdddddddd
    s_mov_b32 s24, 0x000fffff
    s_mov_b32 s25, 0x000fffff
    v_cmp_eq_u32 vcc, 20, v2
    v_mov_b32 v15, 0x3f803f80
    s_mul_i32 s21, s17, {HKV}
    v_cndmask_b32 v{VV}, 0, v15, vcc
    s_add_u32 s21, s21, {KV_OFF}
    """)
    a(f"v_mov_b32 v{VV+1}, v{VV}")
    for i in range(1, 8): a(f"v_mov_b64 {vr(VV+2*i,2)}, {vr(VV,2)}")
    a.c("s22/s23: Q soffsets role0/role1, s26: Q pair base ; s27: first token block of this wave's K/V units ; s28: dma lds dest")
    a(f"""
    s_mul_i32 s26, s18, 2560
    s_mul_i32 s3, s17, {HQ}
    s_add_u32 s26, s26, s3
    s_lshl_b32 s3, s19, 8
    s_add_u32 s22, s26, s3
    s_xor_b32 s3, s3, 256
    s_add_u32 s23, s26, s3
    s_and_b32 s28, s16, 3
    s_mul_i32 s27, s29, {cfg.get("krot", 0)}
    s_add_u32 s27, s27, s28
    s_mul_i32 s28, s28, 5120
    s_add_u32 s28, s28, {late*81920}
    s_add_u32 s61, s21, {late*81920}
    """)
    a.c("O tile of this wave = 2*pair + (1^kh): s36/s37 store offsets, s38 flag 'filler in place', s39 flag 'stores acknowledged'")
    a(f"""
    s_lshl_b32 s30, s18, 1
    s_xor_b32 s31, s19, 1
    s_add_u32 s30, s30, s31
    s_mul_i32 s37, s30, 40960
    s_add_u32 s37, s37, {O_OFF}
    s_lshl_b32 s36, s17, 9
    s_add_u32 s36, s36, s37
    s_lshl_b32 s3, s17, 7
    s_add_u32 s37, s37, s3
    s_add_u32 s37, s37, 16384
    s_lshr_b32 s38, s2, 5
    s_lshl_b32 s38, s38, 12
    s_add_u32 s38, s38, s3
    s_add_u32 s38, s38, {F2_OFF}
    s_add_u32 s39, s38, {F3_OFF - F2_OFF}
    v_bfe_u32 v2, v1, 4, 1
    v_mul_u32_u24 v2, 20480, v2
    v_and_b32 v3, 15, v1
    v_lshl_add_u32 v{VOT}, v3, 3, v2
    v_lshl_add_u32 v2, v3, 4, v2
    v_lshrrev_b32 v3, 5, v1
    v_lshl_add_u32 v{VOM}, v3, 8, v2
    s_mul_i32 s3, s16, 3072
    s_add_u32 s3, s3, 102400
    v_add_u32 v{VXW}, s3, v{VL16}
    s_xor_b32 s3, s16, 1
    s_mul_i32 s3, s3, 3072
    s_add_u32 s3, s3, 102400
    v_add_u32 v{VXR}, s3, v{VL16}
    v_mov_b64 {vr(SENT,2)}, -1
    v_mov_b64 {vr(SENT+2,2)}, -1
    v_mov_b32 v{VONE}, 1
    v_mov_b32 v{VZ}, 0
    """)
    p3_setup(a, cfg)
    sh, sec = (7, 5) if True else None
    a.c("poll addresses of the polling wave: K/V producers of all 16 token blocks, Q producers of both pairs")
    a(f"""
    s_mul_i32 s30, s17, 20
    s_add_u32 s31, s30, 19
    s_lshr_b32 s30, s30, {sh}
    s_lshr_b32 s31, s31, {sh}
    s_sub_u32 s31, s31, s30
    v_and_b32 v2, 1, v1
    v_mul_u32_u24 v2, s31, v2
    v_add_u32 v2, s30, v2
    v_lshrrev_b32 v14, 5, v1
    v_mul_u32_u24 v3, {sec}, v14
    v_add3_u32 v3, v2, v3, {sec}
    v_bfe_u32 v15, v1, 1, 4
    v_lshl_add_u32 v3, v3, 4, v15
    v_lshlrev_b32 v{VPOLL}, 7, v3
    v_bfe_u32 v2, v1, 4, 1
    v_mul_u32_u24 v2, s31, v2
    v_add_u32 v2, s30, v2
    s_lshr_b32 s3, s2, 5
    s_lshl_b32 s3, s3, 1
    v_lshl_add_u32 v2, v2, 4, v14
    v_add_u32 v2, s3, v2
    v_lshlrev_b32 v{VPOLL+1}, 7, v2
    s_mov_b32 s33, {FA_OFF if early else FB_OFF}
    """)
    for i in range(16): a(f"v_mov_b64 {vr(O0+2*i,2)}, 0")

def direct_init(a, cfg):
    if cfg.get("direct", 0):
        assert cfg.get("krot", 0) == 0
        a(f"""
        v_lshlrev_b32 v33, 3, v1
        s_add_u32 s14, s61, s20
        s_lshr_b32 s30, s2, 5
        s_mul_i32 s30, s30, 160
        s_mul_i32 s32, s16, {32*1280}
        s_add_u32 s30, s30, s32
        s_mul_i32 s32, s16, 5120
        """)

def wait_stage(a, cfg, tag, wave):
    a(f"""
    s_mov_b32 s35, 0
    v_mov_b32 v7, 1
    s_cmp_eq_u32 s16, {wave}
    s_cbranch_scc0 L_gw{tag}
    """)
    if cfg.get("pd" + tag): a(f"s_sleep {cfg['pd' + tag]}")
    paced_poll(a, cfg, f"L_poll1{tag}", [VPOLL, VPOLL+1], "s33")
    a(f"""
    ds_write_b32 v11, v7
    s_branch L_gw{tag}_ok
    L_gw{tag}:
    {"s_sleep " + str(cfg.get('gs' + tag, 3 if tag == 'l' else 1)) if cfg.get('gs' + tag, 3 if tag == 'l' else 1) else ""}
    ds_read_b32 v7, v11
    s_waitcnt lgkmcnt(0)
    v_readfirstlane_b32 s34, v7
    s_cmp_lg_u32 s34, 0
    """)
    spin_tail(a, f"L_gw{tag}", mult=16)

def kread(t):
    tl = t & 15
    o = 20 * (tl >> 1)
    return f"ds_read2st64_b64 {vr(KM+4*(t&1),4)}, v{VKO if t & 1 else VKE} offset0:{o} offset1:{o+2}"
def tread(b):
    o = 40 * (b & 3)
    return f"ds_read2st64_b64 {vr(KT+4*(b&1),4)}, v{VT} offset0:{o+4} offset1:{o+24}"
def vread(t, f):
    tl = t & 15
    ad = VV0 if tl < 8 else VV1
    return f"ds_read_b128 {vr(VV+8*(t&1)+4*f,4)}, v{ad} offset:{10240*((tl>>1)&3)+1280*(t&1)+640*f}"
def Tm(t, dst):
    b, T = divmod(t, 4)
    return f"v_mfma_f32_32x32x4_2b_bf16 {vr(dst,32)}, {vr(KT+4*(b&1)+2*(T>>1),2)}, {vr(QT,2)}, 0 cbsz:1 abid:{T&1}"
def Mm(t, dst, r):
    return f"v_mfma_f32_32x32x16_bf16 {vr(dst+16*r,16)}, {vr(KM+4*(t&1),4)}, {vr(QM1 if r else QM0,4)}, {vr(dst+16*r,16)}"
def Pm(o, t, f, s):
    return f"v_smfmac_f32_32x32x32_bf16 {vr(o,16)}, {vr(VV+8*(t&1)+4*f,4)}, {vr(s,8)}, v{IDX}"

def qloads(a):
    a(f"""
    buffer_load_dwordx2 {vr(QT,2)}, v{VQT}, {WS}, s26 offen offset:2048 sc1
    buffer_load_dwordx2 {vr(QM0,2)}, v{VQ}, {WS}, s22 offen sc1
    buffer_load_dwordx2 {vr(QM0+2,2)}, v{VQ}, {WS}, s22 offen offset:1024 sc1
    buffer_load_dwordx2 {vr(QM1,2)}, v{VQ}, {WS}, s23 offen sc1
    buffer_load_dwordx2 {vr(QM1+2,2)}, v{VQ}, {WS}, s23 offen offset:1024 sc1
    """)
def kv_dma(i, back=0):
    g = [f"""
        s_add_u32 s3, s27, {4*i}
        s_and_b32 s3, s3, 15
        s_mul_i32 s3, s3, 5120
        {f"s_sub_u32 s3, s3, {back}" if back else ""}
        s_add_u32 m0, s28, {(i*20480 - back) & 0xffffffff}
        s_add_u32 s29, s61, s3
        buffer_load_dwordx4 v{VL16}, {WS}, s29 offen sc1 lds"""]
    for j in range(1, 4):
        g.append(f"buffer_load_dwordx4 v{VL16}, {WS}, s29 offen offset:{1024*j} sc1 lds")
    g.append(f"""
        s_add_u32 m0, s28, {(i*20480+4096 - back) & 0xffffffff}
        s_add_u32 s29, s29, 4096
        buffer_load_dwordx4 v{VL16}, {WS}, s29 offen sc1 lds""")
    return g
def wo_dma(nper):
    g = []
    for p in range(nper):
        for i in range(5):
            pre = ""
            if i == 0:
                pre = f"""
                s_add_u32 s31, s30, {p*8*32*1280}
                """
            g.append(pre + f"""
                s_add_u32 m0, s32, {p*8*5120 + 1024*i}
                s_nop 0
                buffer_load_dwordx4 v{WOA+i}, {WO}, s31 offen lds
                s_nop 0""")
    return g

def attn_loop(a, cfg, early):
    tag = "e" if early else "l"
    direct = early and cfg.get("direct", 0)
    wo_ids = f"""
    s_lshr_b32 s3, s2, 5
    s_mul_i32 s30, s3, 160
    s_mul_i32 s3, s16, {32*1280}
    s_add_u32 s30, s30, s3
    s_mul_i32 s32, s16, 5120
    """
    if direct:
        a("s_mov_b64 exec, s[24:25]"); a(vread(0, 0)); a(vread(0, 1)); a("s_mov_b64 exec, -1")
        a(kread(1))
        a(f"ds_read_b64 {vr(KT+2,2)}, v{VT} offset:{24*512}")
    else:
        if early or cfg.get("lprio", 2) < 2: a(f"s_setprio {3 if early else 2}")
        a(tread(0)); a(kread(0)); a(kread(1))
        a("s_mov_b64 exec, s[24:25]"); a(vread(0, 0)); a(vread(0, 1)); a("s_mov_b64 exec, -1")
        a.c("wo dma: s30 source, s32 lds dest")
        a(wo_ids)
        a(f"s_waitcnt lgkmcnt({0 if cfg.get('stamp') else 4})")
        if cfg.get("lp", {}).get("pro"): a("s_memtime s[70:71]")
        a(Tm(0, SA)); a("s_nop 15"); a("s_nop 1"); a("s_waitcnt lgkmcnt(3)")
        a(Mm(0, SA, 0)); a(Mm(0, SA, 1)); a("s_nop 10")
    dma = {}
    TB = cfg.get("tb", 14) if early else 14
    be, bl = cfg.get("be", [18, 18, 26]), cfg.get("bl", [18, 18, 26])
    assert (be[0] == be[1]) == (bl[0] == bl[1])
    assert be[0] <= 18 and min(be[1], bl[1]) >= 15 and min(be[2], bl[2]) >= 25
    if early:
        B2, C1, C2 = be
        bars = {2: "vmcnt(0)", 6: None, TB: None, C1: None, C2: None}; bars[B2] = "vmcnt(0)"; assert B2 == C1
        if cfg.get("a4"): bars[cfg["a4"]] = None
        prio = cfg.get("prio_e", {str(TB): 1, "18": 3, "24": 1, "26": 2, "30": 1})
    else:
        B2, C1, C2 = bl
        bars = {C1: None, C2: None}
        bars[B2] = "vmcnt(0)"
        b0 = cfg.get("bl0", 0)
        if b0 or cfg.get("u1in", 1): bars[b0] = None
        sp = cfg.get("spread", 2)
        q = (kv_dma(1) if cfg.get("u1in", 1) else []) + kv_dma(2) + kv_dma(3); t0 = b0 + cfg.get("sp0", 0)
        while q: dma[t0] = q[:sp]; q = q[sp:]; t0 += 1
        assert t0 < B2
        assert B2 >= b0 + 3
        prio = cfg.get("prio_l", {"18": 2, "25": 0, "26": 3, "29": 1, "30": 0, "31": 2})
    prio = {int(k): v for k, v in prio.items()}
    if not early and cfg.get("lprio", 2) == 2: prio[0] = 2
    if not early: bars[cfg.get("c3", 31)] = "vmcnt(0)"
    wo = wo_dma(2 if early else 3)
    for i in range(5): dma[C1 + i] = wo[2*i:2*i+2]
    for i in range(3): dma[C2 + i] = wo[10+2*i:12+2*i]
    if cfg.get("opt", 1):
        ts = cfg.get("tsent", [16, 9])[0 if early else 1]
        assert not dma.get(ts)
        dma[ts] = [f"buffer_store_dwordx4 {vr(SENT,4)}, v{VOM}, {WS}, s36 offen sc1",
            f"""s_mov_b32 exec_hi, 0
            buffer_store_dwordx2 {vr(SENT,2)}, v{VOT}, {WS}, s37 offen sc1
            s_mov_b32 exec_hi, -1"""]
    if early:
        def w4(body, lab): return f"s_cmp_eq_u32 s16, 4\ns_cbranch_scc0 {lab}\n{body}\n{lab}:"
        assert not dma.get(C1 + 5) and not dma.get(28)
        dma[C1 + 5] = [w4(f"""s_mov_b64 exec, 1
            buffer_store_dword v{VONE}, v{VZ}, {WS}, s38 offen sc1
            s_mov_b64 exec, -1""", "L_r_set")]
        assert not dma.get(27) and C2 <= 27
        dma[27] = [f"v_mov_b32 v11, {CNT_ADDR}\nds_write_b32 v11, v{VZ}"]
        dma[28] = [w4(f"buffer_load_dword v5, v{P3+7}, {WS}, s40 offen sc1", "L_r_get")]
    nt = cfg.get("nt", ["e", 31, 0])
    if cfg.get("notice", 9) == 4 and nt[0] == tag:
        tn = Asm(); notice(tn, dict(cfg, nw=4 if early else 0), False)
        assert not dma.get(nt[1]) and nt[1] > C2
        dma[nt[1]] = ["" if i != nt[2] else "\n".join(tn.lines) for i in range(5)]
    a(".p2align 3")
    for t in range(32):
        cur, nxt = (SA, SB) if t % 2 == 0 else (SB, SA)
        e = iter(range(32))
        def E(n):
            for _ in range(n):
                i = next(e); a(f"v_exp_f32 v{cur+i}, v{cur+i}")
        dq = list(dma.get(t, []))
        def D(n):
            for _ in range(n):
                if dq: a(dq.pop(0))
        many = len(dq) > 2
        a.c(f"step {t}")
        E(2)
        if t > 0: a(Pm(O1, t-1, 1, nxt+24))
        vm = bars.get(t)
        if direct and t == 0: a("s_nop 0")
        else: a(f"s_waitcnt {vm + ' ' if vm else ''}lgkmcnt(0)")
        n4 = 1
        lp = cfg.get("lp", {}).get(tag + str(t))
        if lp and lp[0]: a(f"s_memtime s[{64+2*lp[0]}:{65+2*lp[0]}]")
        if t in bars: a("s_barrier"); n4 += 1
        if lp and lp[1]: a(f"s_memtime s[{64+2*lp[1]}:{65+2*lp[1]}]")
        if t in prio: a(f"s_setprio {prio[t]}"); n4 += 1
        if n4 % 2: a("s_nop 0")
        if t == 14:
            for r in (VKE, VKO, VT, VV0): a(f"v_add_u32 v{r}, 81920, v{r}")
        if t == 16: a(f"v_add_u32 v{VV1}, 81920, v{VV1}")
        if TB == 15 and t == 15: a(tread(4)); a(kread(16))
        if t + 2 < 32 and not (TB == 15 and t == 14): a(kread(t+2))
        if many: D(1)
        E(4)
        if TB == 15 and t == 15: a(f"s_waitcnt lgkmcnt({0 if cfg.get('lp') else 1})"); a("s_nop 0")
        if t < 31: a(Tm(t+1, nxt))
        E(8)
        if direct and t == 0: a(f"s_waitcnt lgkmcnt({0 if cfg.get('stamp') else 1})"); a("s_nop 0")
        a(Pm(O0, t, 0, cur))
        one = early and t < cfg.get("vone", 16)
        if one: a("s_mov_b64 exec, s[24:25]"); a(vread(t+1, 0)); a(vread(t+1, 1)); a("s_mov_b64 exec, -1")
        elif t < 31: a("s_mov_b64 exec, s[24:25]"); a(vread(t+1, 0)); a("s_mov_b64 exec, -1")
        if many: D(1)
        E(4)
        a(Pm(O0, t, 1, cur+8))
        if t < 31 and not one: a("s_mov_b64 exec, s[24:25]"); a(vread(t+1, 1)); a("s_mov_b64 exec, -1")
        if many: D(1)
        E(4)
        if t < 31: a(Mm(t+1, nxt, 0))
        D(1)
        E(4)
        a(Pm(O1, t, 0, cur+16))
        if t % 4 == 2 and t // 4 < 7 and not (TB == 15 and t == 14): a(tread(t//4+1))
        D(1)
        E(4)
        if t < 31: a(Mm(t+1, nxt, 1))
        else:
            a.c("hand the role-0 tile to the partner wave (other key half)")
            for i in (2, 0, 1): a(f"ds_write_b128 v{VXW}, {vr(O0+4*i,4)} offset:{1024*i}")
        E(2)
        assert not dq

def attn_epilogue(a, cfg):
    stamp(a, cfg, 8)
    if cfg.get("lp"): a("s_memtime s[88:89]")
    a(f"""
    s_setprio {cfg.get("epr", 3)}
    s_nop 0
    {Pm(O1, 31, 1, SB+24)}
    """)
    if cfg.get("notice", 9) == 3:
        a("s_waitcnt vmcnt(0)"); notice(a, cfg, False); a("s_waitcnt lgkmcnt(0)")
    elif cfg.get("notice", 9) == 4:
        a(f"""
        s_waitcnt vmcnt(1) lgkmcnt(0)
        s_cmp_eq_u32 s16, {4 if cfg.get("nt", ["e", 31, 0])[0] == "e" else 0}
        s_cbranch_scc1 L_epi_w
        s_waitcnt vmcnt(0)
        L_epi_w:
        """)
    else: a("s_waitcnt vmcnt(0) lgkmcnt(0)")
    a(f"""
    s_barrier
    ds_read_b128 {vr(O0+8,4)}, v{VXR} offset:2048
    ds_read_b128 {vr(O0,4)}, v{VXR}
    ds_read_b128 {vr(O0+4,4)}, v{VXR} offset:1024
    """)
    if cfg.get("opt", 1) and cfg.get("notice", 9) == 2: notice(a, cfg, False)
    a("""
    s_nop 6
    s_waitcnt lgkmcnt(2)
    """)
    a(f"""
    v_pk_add_f32 {vr(O1+8,2)}, {vr(O1+8,2)}, {vr(O0+8,2)}
    v_pk_add_f32 {vr(O1+10,2)}, {vr(O1+10,2)}, {vr(O0+10,2)}
    v_mov_b32 v7, v{O1+8}
    v_mov_b32 v9, v{O1+8}
    s_mov_b32 s30, 0x21800000
    s_waitcnt lgkmcnt(1)
    v_permlane32_swap_b32 v7, v9
    v_pk_add_f32 {vr(O1,2)}, {vr(O1,2)}, {vr(O0,2)}
    v_pk_add_f32 {vr(O1+2,2)}, {vr(O1+2,2)}, {vr(O0+2,2)}
    s_mov_b32 s31, 0x5d800000
    s_waitcnt lgkmcnt(0)
    v_pk_add_f32 {vr(O1+4,2)}, {vr(O1+4,2)}, {vr(O0+4,2)}
    v_pk_add_f32 {vr(O1+6,2)}, {vr(O1+6,2)}, {vr(O0+6,2)}
    """)
    a.c("run-time check of the shift-free softmax: row sum in [2^-60, 2^60], finite accumulators; else redo with the true row max")
    a(f"""
    v_cmp_le_f32 s[32:33], s30, v9
    v_cmp_ge_f32 s[34:35], s31, v9
    v_pk_mul_f32 v[10:11], {vr(O1+8,2)}, 0
    """)
    for i in (10, 0, 2, 4, 6): a(f"v_pk_fma_f32 v[10:11], {vr(O1+i,2)}, 0, v[10:11]")
    a(f"""
    s_and_b64 s[32:33], s[32:33], s[34:35]
    v_cmp_o_f32 vcc, v10, v11
    v_rcp_f32 v8, v9
    s_and_b64 s[32:33], s[32:33], vcc
    s_cmp_eq_u64 s[32:33], -1
    s_cbranch_scc0 L_attn_slow
    L_attn_fin:
    """)
    for i in range(4): a(f"v_pk_mul_f32 {vr(O1+2*i,2)}, {vr(O1+2*i,2)}, v[8:9] op_sel_hi:[1,0]")
    for i in range(4): a(f"v_cvt_pk_bf16_f32 v{PK+i}, v{O1+2*i}, v{O1+2*i+1}")
    a(f"buffer_store_dwordx4 {vr(PK,4)}, v{VOM}, {WS}, s36 offen sc1")
    for i in range(4, 6): a(f"v_pk_mul_f32 {vr(O1+2*i,2)}, {vr(O1+2*i,2)}, v[8:9] op_sel_hi:[1,0]")
    for i in range(4, 6): a(f"v_cvt_pk_bf16_f32 v{PK+i}, v{O1+2*i}, v{O1+2*i+1}")
    a(f"""
    s_mov_b32 exec_hi, 0
    buffer_store_dwordx2 {vr(PK+4,2)}, v{VOT}, {WS}, s37 offen sc1
    s_mov_b32 exec_hi, -1
    """)
    stamp(a, cfg, 9)
    if cfg.get("opt", 1) and cfg.get("notice", 9) < 2: notice(a, cfg, cfg.get("notice", 9) == 0)

def notice(a, cfg, bar):
    a.c("early notice: readers check the tiles for the filler words written before and fall back to the acknowledged flags")
    if bar: a("s_barrier")
    a(f"""
    s_cmp_eq_u32 s16, {cfg.get("nw", 4)}
    s_cbranch_scc0 L_nonotice
    s_mov_b64 exec, 1
    buffer_store_dword v{VONE}, v{VZ}, {WS}, s38 offen sc1
    s_mov_b64 exec, -1
    L_nonotice:
    """)

def attn_slow(a):
    a.c("exact path: softmax with the true row maximum for the query tile this wave keeps")
    a("L_attn_slow:")
    a(f"""
    v_and_b32 v2, 31, v1
    v_lshlrev_b32 v14, 3, v2
    v_lshrrev_b32 v3, 5, v1
    v_mul_u32_u24 v3, 320, v3
    v_lshl_add_u32 v15, v2, 4, v3
    v_mov_b32 v10, 0xff800000
    s_mov_b32 s34, 0
    """)
    for i in range(16): a(f"v_mov_b32 v{O1+i}, 0")
    a(f"""
    L_slow_pass:
    s_mov_b32 s35, 0
    L_slow_tile:
    s_lshr_b32 s30, s35, 1
    s_mul_i32 s30, s30, 5120
    s_add_u32 s30, s30, s21
    s_and_b32 s3, s35, 1
    s_mul_i32 s31, s3, 1280
    s_add_u32 s31, s31, s30
    s_lshl_b32 s3, s3, 8
    s_add_u32 s30, s30, s3
    buffer_load_dwordx2 {vr(KT,2)}, v14, {WS}, s30 offen offset:2048 sc1
    buffer_load_dwordx2 {vr(KM,2)}, v{VQ}, {WS}, s30 offen sc1
    buffer_load_dwordx2 {vr(KM+2,2)}, v{VQ}, {WS}, s30 offen offset:1024 sc1
    s_mov_b64 exec, s[24:25]
    buffer_load_dwordx4 {vr(VV,4)}, v15, {WS}, s31 offen offset:2560 sc1
    buffer_load_dwordx4 {vr(VV+4,4)}, v15, {WS}, s31 offen offset:3200 sc1
    s_mov_b64 exec, -1
    s_waitcnt vmcnt(0)
    v_mfma_f32_32x32x4_2b_bf16 {vr(SA,32)}, {vr(KT,2)}, {vr(QT,2)}, 0
    s_nop 15
    s_nop 3
    v_mfma_f32_32x32x16_bf16 {vr(SA+16,16)}, {vr(KM,4)}, {vr(QM1,4)}, {vr(SA+16,16)}
    s_nop 15
    s_cmp_eq_u32 s34, 0
    s_cbranch_scc0 L_slow_pv
    """)
    for i in range(8): a(f"v_max3_f32 v10, v10, v{SA+16+2*i}, v{SA+17+2*i}")
    a("s_branch L_slow_next")
    a("L_slow_pv:")
    for i in range(16): a(f"v_sub_f32 v{SA+16+i}, v{SA+16+i}, v10")
    for i in range(16): a(f"v_exp_f32 v{SA+16+i}, v{SA+16+i}")
    a(f"""
    s_nop 3
    v_smfmac_f32_32x32x32_bf16 {vr(O1,16)}, {vr(VV,4)}, {vr(SA+16,8)}, v{IDX}
    v_smfmac_f32_32x32x32_bf16 {vr(O1,16)}, {vr(VV+4,4)}, {vr(SA+24,8)}, v{IDX}
    s_nop 15
    L_slow_next:
    s_add_u32 s35, s35, 1
    s_cmp_lt_u32 s35, 64
    s_cbranch_scc1 L_slow_tile
    s_cmp_eq_u32 s34, 0
    s_cbranch_scc0 L_slow_done
    v_mov_b32 v11, v10
    s_nop 1
    v_permlane32_swap_b32 v10, v11
    s_nop 1
    v_max_f32 v10, v10, v11
    s_mov_b32 s34, 1
    s_branch L_slow_pass
    L_slow_done:
    v_mov_b32 v7, v{O1+8}
    v_mov_b32 v9, v{O1+8}
    s_nop 1
    v_permlane32_swap_b32 v7, v9
    s_nop 1
    v_rcp_f32 v8, v9
    s_branch L_attn_fin
    """)

TAIL = []
def phase3(a, cfg):
    OF, AC, WF = 16, 56, 76
    VW, VWT, VPB, VSW, VSR, VL, VL8 = 6, 7, 8, 9, 10, 0, 4
    VOS = [13, 14, 15]
    VW2, VWT2 = 3, 5
    OPT = cfg.get("opt", 1)
    def reads(ks):
        hf, p = divmod(ks, 5)
        r = []
        for t in range(5):
            for u in range(2):
                if p < 4: ad, off = (VW2 if hf else VW), (40*p + 8*u)*160 + 32*t
                else: ad, off = (VWT2 if hf else VWT), 80*u*160 + 32*t
                r.append(f"ds_read_b64_tr_b16 {vr(WF+20*(ks%9)+4*t+2*u,2)}, v{ad} offset:{off}")
        return r
    def unpack():
        a(f"""
        s_getreg_b32 s30, hwreg(HW_REG_XCC_ID, 0, 1)
        s_xor_b32 s30, s30, s2
        {"s_xor_b32 s30, s30, 1" if cfg.get("hinv") else ""}
        s_and_b32 s30, s30, 1
        s_mul_i32 s31, s30, 25600
        s_sub_u32 s32, 25600, s31
        v_add_u32 v{VW}, s31, v{P3}
        v_add_u32 v{VWT}, s31, v{P3+1}
        v_add_u32 v{VW2}, s32, v{P3}
        v_add_u32 v{VWT2}, s32, v{P3+1}
        """)
        for i in range(2, 7): a(f"v_mov_b32 v{VW+i}, v{P3+i}")
        for i in range(3): a(f"v_mov_b32 v{VOS[i]}, v{WOA+i}")
        a(f"""
        v_mov_b32 v{VL}, v{VL16}
        v_lshlrev_b32 v{VL8}, 3, v1
        """)
        p3_kh(a, cfg, 26)
        a(f"""
        s_lshr_b32 s27, s2, 5
        s_mul_i32 s27, s27, 160
        s_add_u32 s27, s27, s41
        s_add_u32 s28, s41, {O_OFF}
        s_lshl_b32 s3, s26, 1
        s_add_u32 s3, s3, s30
        s_xor_b32 s29, s3, 1
        s_lshl_b32 s22, s3, 12
        s_add_u32 s22, s22, s28
        s_lshl_b32 s24, s29, 12
        s_add_u32 s24, s24, s28
        s_add_u32 s28, s28, 16384
        s_lshl_b32 s23, s3, 10
        s_add_u32 s23, s23, s28
        s_lshl_b32 s25, s29, 10
        s_add_u32 s25, s25, s28
        """)
    a.c("---- output projection: 64 tokens x 80 columns")
    if not OPT:
        a("""
        s_waitcnt vmcnt(0)
        s_barrier
        s_cmp_eq_u32 s16, 0
        s_cbranch_scc0 L_p3_nofl
        """)
        raise_flag(a, "s38")
        a("L_p3_nofl:")
    NPB, WIN = cfg.get("npb", 6), cfg.get("win", 5)
    LOADS = []
    for ks in range(10):
        hf, p = divmod(ks, 5)
        if p < 4: LOADS.append([f"buffer_load_dwordx4 {vr(OF+4*ks,4)}, v{VL}, {WS}, s{22+2*hf} offen offset:{1024*p} sc1"])
        else: LOADS.append([f"buffer_load_dwordx2 {vr(OF+4*ks+2*u,2)}, v{VL8}, {WS}, s{23+2*hf} offen offset:{512*u} sc1" for u in range(2)])
    assert WIN == 5
    PW = cfg.get("pw", 7)
    UL = []
    if cfg.get("ulate"):
        a0 = a.lines; a.lines = []
        a(f"v_mov_b32 v2, v{P3+7}"); unpack()
        UL = a.lines; a.lines = a0
        k = [i for i, l in enumerate(UL) if "s_and_b32 s30, s30, 1" in l][0]
        for l in UL[1:k+1]: a(l)
        UL = UL[:1] + UL[k+1:]
    else:
        if cfg.get("dfirst", 1):
            a("""
            s_cmp_lt_u32 s16, 4
            s_cbranch_scc1 L_p3_nod
            s_setprio 0
            s_barrier
            L_p3_nod:
            """)
        a(f"v_mov_b32 v2, v{P3+7}")
        unpack()
    a.c("all stores are issued: read the first half of the heads (dies that usually finish first); filler words tell what has not arrived")
    def front(pre, il, mid=None):
        for l in UL: a(l)
        rest = [r for ks in range(NPB) for r in reads(ks)]
        for r in rest[:pre]: a(r)
        rest = rest[pre:]
        if mid: mid()
        for g in LOADS[:5]:
            for l in g: a(l)
            for r in rest[:il]: a(r)
            rest = rest[il:]
        for r in rest: a(r)
        if mid is None: a("L_p3_cnt:")
        a(f"""
        v_mov_b32 v1, 1
        v_mov_b32 v{AC}, {CNT_ADDR}
        s_waitcnt vmcnt(6)
        s_mov_b64 exec, 1
        ds_add_u32 v{AC}, v1
        s_mov_b64 exec, -1
        s_waitcnt lgkmcnt(0)
        """)
        stamp(a, cfg, 10)
        if cfg.get("p3d"): a("s_memtime s[68:69]")
    later = [reads(ks) for ks in range(NPB, 9)]
    a(f"""
    s_xor_b32 s29, s30, s2
    s_mov_b32 s28, 0
    s_setprio 0
    s_cmp_lt_u32 s16, 4
    s_cbranch_scc0 L_p3_early
    s_bitcmp0_b32 s29, 0
    s_barrier
    s_cbranch_scc1 L_p3_two
    """)
    if cfg.get("p3d"): a("s_memtime s[78:79]")
    if cfg.get("yprio"):
        a("s_cmp_lt_u32 s16, 4"); a("s_cbranch_scc1 L_noyp"); a("s_setprio 1"); a("L_noyp:")
    front(cfg.get("pre", 10), cfg.get("il", 10))
    if cfg.get("yprio") == 1: a("s_setprio 0")
    VMX = 1
    KB = cfg.get("kb", 9)
    stubs = []
    def conf7(lab):
        a("s_cmp_eq_u32 s16, 7"); a(f"s_cbranch_scc0 {lab}"); a("s_call_b64 s[32:33], L_confirm"); a(f"{lab}:")
    q = [(x, k) for k in range(NPB, 10) for x in reads(k)]
    SLOTS = [[[] for _ in range(5)] for _ in range(10)]
    pat = cfg.get("pat", [2, 2, 1, 0, 2])
    for j in range(cfg.get("s0", 0 if NPB < 9 else 1), 10):
        for t in range(5):
            SLOTS[j][t] = q[:pat[t]]; q = q[pat[t]:]
    assert not any(k == 9 for t in range(5) for _, k in SLOTS[0][t])
    DUAL = cfg.get("dual", 1)
    def both(t):
        if DUAL:
            a(f"v_pk_add_f32 {vr(AC+4*t,2)}, {vr(AC+4*t,2)}, {vr(OF+4*t,2)}")
            a(f"v_pk_add_f32 {vr(AC+4*t+2,2)}, {vr(AC+4*t+2,2)}, {vr(OF+4*t+2,2)}")
    def chk(ks):
        r = OF + 4 * ks
        return [f"v_max3_u32 v{VMX}, v{r}, v{r+1}, v{r+2}", f"v_max_u32 v{VMX}, v{VMX}, v{r+3}", f"v_cmp_eq_u32 vcc, -1, v{VMX}"]
    def arrive(ks, slide):
        hi = min(ks + 5, 10) if slide else 5
        vm = sum(len(g) for g in LOADS[ks+1:hi])
        lg = ""
        if ks >= NPB:
            done = [k for j in range(ks) for t in range(5) if j < ks - 1 or t <= 2 for _, k in SLOTS[j][t]]
            assert done.count(ks) == 10
            n = sum(k > ks for k in done)
            lg = f" lgkmcnt({min(n, 15)})"
        a(f"s_waitcnt vmcnt({vm})" + lg)
        if slide and ks < 5:
            for l in LOADS[ks + 5]: a(l)
    def mf(ks, tag="", slide=True, head=False, nxt=True):
        if head:
            arrive(ks, slide)
            for x in chk(ks): a(x)
        if cfg.get("p3d") and ks in (0, 3, 7, 9): a("s_memtime s[%d:%d]" % {0: (70, 71), 3: (72, 73), 7: (74, 75), 9: (76, 77)}[ks])
        lab = f"L_ck{ks}{tag}"
        a(f"""
        {"s_branch" if cfg.get("force_redo") else "s_cbranch_vccnz"} {lab}_again
        {lab}_ok:
        """)
        stubs.append((lab, ks, 5 if ks < 5 else 10))
        rd = SLOTS[ks]
        cn = chk(ks + 1) if nxt and ks < 9 else None
        for t in range(5):
            acc = (OF if DUAL and ks >= 5 else AC) + 4*t
            c = "0" if ks == 0 or (DUAL and ks == 5) else vr(acc, 4)
            a(f"v_mfma_f32_16x16x32_bf16 {vr(acc,4)}, {vr(WF+20*(ks%9)+4*t,4)}, {vr(OF+4*ks,4)}, {c}")
            for x, _ in rd[t]: a(x)
            if cn and t == 2: arrive(ks + 1, slide); a(cn[0])
            if cn and t == 3: a(cn[1]); a(cn[2])
    assert NPB >= 4
    def redo():
        a.c("a filler word was read: load the window again; after some tries wait for the acknowledged flags")
        NTRY = cfg.get("ntry", 32)
        for lab, ks, hi in stubs[::-1]:
            a(f"{lab}_again:")
            if cfg.get("stamp"): a("s_waitcnt lgkmcnt(0)"); a("s_mov_b32 s68, -1")
            a(f"""
            s_add_u32 s28, s28, 1
            s_cmp_eq_u32 s28, {NTRY}
            s_cbranch_scc0 {lab}_ld
            s_call_b64 s[30:31], L_confirmed
            {lab}_ld:
            """)
            if cfg.get("rsl", 0): a(f"s_sleep {cfg.get('rsl', 4)}")
            hf, p = divmod(ks, 5)
            grl = cfg.get("grl", 2)
            ids = range(ks, hi) if not grl else sorted(set(range(ks, 5*hf + min(p | 1, 4) + 1)) | {5*hf + 4})
            vm = 0
            if grl == 2:
                assert lab[-1] != "b"
                ids = range(ks, min(ks + 6, 10)); vm = sum(len(LOADS[i]) for i in ids[1:])
            for i in ids:
                for l in LOADS[i]: a(l)
            a(f"""
            s_waitcnt vmcnt({vm})
            s_cmp_ge_u32 s28, {NTRY}
            s_cbranch_scc1 {lab}_ok
            """)
            for x in chk(ks): a(x)
            a(f"""
            {"s_branch" if cfg.get("force_redo") else "s_cbranch_vccnz"} {lab}_again
            s_branch {lab}_ok
            """)
        a.c("once all eight waves have seen their stores acknowledged, say so; then wait until every producer has said so")
        a(f"""
        L_confirmed:
        s_mov_b32 s35, 0
        L_cnt:
        v_mov_b32 v1, {CNT_ADDR}
        ds_read_b32 v1, v1
        s_waitcnt lgkmcnt(0)
        v_readfirstlane_b32 s34, v1
        s_cmp_eq_u32 s34, 8
        """)
        spin_tail(a, "L_cnt", mult=16)
        a(f"""
        s_mov_b64 exec, 1
        buffer_store_dword v1, v{VL}, {WS}, s39 offen sc1
        s_mov_b64 exec, -1
        s_add_u32 s34, s40, {F3_OFF - F2_OFF}
        s_waitcnt vmcnt(0)
        """)
        poll(a, "L_poll3", 2, WS, "s34", dst=1)
        a("s_setpc_b64 s[30:31]")
    def path2():
        pw2 = cfg.get("pw2", 1)
        a.c("dies that usually finish first start reading a little later")
        a("L_p3_two:")
        EV = cfg.get("ev", 2)
        if EV == 1:
            a.c("a die that usually finishes early waits for notices before it starts reading")
            a(f"""
            s_cmp_eq_u32 s16, 1
            s_cbranch_scc0 L_gate_n0
            buffer_load_dword v1, v2, {WS}, s40 offen sc1
            L_gate_n0:
            """)
            def gate():
                a(f"""
                s_cmp_eq_u32 s16, 1
                s_cbranch_scc0 L_gpoll_ok
                s_lshl_b32 s3, s30, 4
                s_lshr_b32 s20, {0 if cfg.get("gall") else 0xffff0000}, s3
                s_mov_b32 s21, s20
                s_mov_b32 s35, 0
                s_branch L_gpoll_chk
                L_gpoll:
                buffer_load_dword v1, v2, {WS}, s40 offen sc1
                L_gpoll_chk:
                s_waitcnt vmcnt(0)
                v_cmp_ne_u32 vcc, 0, v1
                s_nop 0
                s_or_b64 vcc, vcc, s[20:21]
                s_cmp_eq_u64 vcc, -1
                """)
                spin_tail(a, "L_gpoll")
                a("s_barrier")
            front(cfg.get("pre2", 45), 5, gate)
        else:
            front(cfg.get("pre2", 45), 5, lambda: a("s_barrier"))
        a("s_branch L_p3_one")
        a.c("early waves: weight fragments while the late waves finish")
        a("L_p3_early:")
        if cfg.get("ypr"): a(f"s_setprio {cfg['ypr']}")
        keep = cfg.get("keep", 10)
        rs_ = [r for ks in range(NPB) for r in reads(ks)]
        bd = cfg.get("bd", 0)
        for r in rs_[:bd]: a(r)
        if not cfg.get("dfirst", 1): a("s_setprio 0"); a("s_barrier")
        for r in rs_[bd:len(rs_)-keep]: a(r)
        rs_ = rs_[len(rs_)-keep:]
        a("""
        s_bitcmp0_b32 s29, 0
        s_barrier
        s_cbranch_scc0 L_p3_e1
        s_barrier
        L_p3_e1:
        """)
        for g in LOADS[:5]:
            for l in g: a(l)
            for r in rs_[:keep//5]: a(r)
            rs_ = rs_[keep//5:]
        for r in rs_: a(r)
        a("s_branch L_p3_cnt")
        return
        if EV >= 3:
            for ks in range(5): mf(ks, "b", slide=False, head=ks == 0, nxt=ks < 4)
            if EV == 4: a("s_barrier")
            for g in LOADS[5:]:
                for l in g: a(l)
            arrive(5, True)
            for x in chk(5): a(x)
            a("s_branch L_p3_join")
            return
        if EV:
            a("s_branch L_p3_one")
            return
        a(f"""
        s_cmp_eq_u32 s16, {pw2}
        s_cbranch_scc0 L_p3_two1
        buffer_load_dword v{OF+20}, v2, {WS}, s40 offen sc1
        L_p3_two1:
        """)
        for ks in range(5): mf(ks, "b", slide=False, head=ks == 0, nxt=ks < 4)
        a(f"""
        s_cmp_eq_u32 s16, {pw2}
        s_cbranch_scc0 L_poll2_ok
        v_cmp_ne_u32 vcc, 0, v{OF+20}
        s_nop 0
        s_cmp_eq_u64 vcc, -1
        s_cbranch_scc1 L_poll2_ok
        """)
        poll(a, "L_poll2", 2, WS, "s40", dst=1)
        a("s_barrier")
        stamp(a, cfg, 11)
        for g in LOADS[5:]:
            for l in g: a(l)
            if cfg.get("gap", -1) >= 0: a(f"s_nop {cfg.get('gap', 7)}")
        arrive(5, True)
        for x in chk(5): a(x)
        a("s_branch L_p3_join")
    TAIL.append(redo if cfg.get("ev", 2) == 5 else (lambda: (redo(), path2())) if cfg.get("ev", 2) == 2 else lambda: (path2(), redo()))
    a("L_p3_one:")
    stamp(a, cfg, 11)
    for ks in range(5): mf(ks, head=ks == 0)
    a("L_p3_join:")
    for ks in range(5, KB): mf(ks)
    a("""
    s_waitcnt lgkmcnt(0)
    s_cmp_lt_u32 s16, 4
    s_cbranch_scc0 L_out_fin
    """)
    for ks in range(KB, 10): mf(ks, "w")
    stamp(a, cfg, 12)
    a("s_nop 3")
    for t in range(5):
        both(t)
        a(f"ds_write_b128 v{VPB}, {vr(AC+4*t,4)} offset:{1024*t}")
        if t < 4 and not DUAL: a("s_nop 0")
    a("""
    v_mov_b32 v1, 1
    s_waitcnt lgkmcnt(0)
    s_barrier
    s_cmp_eq_u32 s16, 0
    s_cbranch_scc0 L_fin
    """)
    a.c("every wave has seen its O stores acknowledged: tell readers that fall back")
    a(f"""
    s_mov_b64 exec, 1
    buffer_store_dword v1, v{VL}, {WS}, s39 offen sc1
    s_branch L_fin
    L_out_fin:
    s_barrier
    """)
    PB = WF + 20
    for t in range(5): a(f"ds_read_b128 {vr(PB+4*t,4)}, v{VPB} offset:{1024*t}")
    for ks in range(KB, 10): mf(ks, "f")
    stamp(a, cfg, 12)
    a("s_waitcnt lgkmcnt(0)")
    a("s_nop 2")
    for t in range(5):
        both(t)
        a(f"v_pk_add_f32 {vr(AC+4*t,2)}, {vr(AC+4*t,2)}, {vr(PB+4*t,2)}")
        a(f"v_pk_add_f32 {vr(AC+4*t+2,2)}, {vr(AC+4*t+2,2)}, {vr(PB+4*t+2,2)}")
        a(f"v_cvt_pk_bf16_f32 v{OF+20+2*t}, v{AC+4*t}, v{AC+4*t+1}")
        a(f"v_cvt_pk_bf16_f32 v{OF+21+2*t}, v{AC+4*t+2}, v{AC+4*t+3}")
        a(f"ds_write_b64 v{VSW}, {vr(OF+20+2*t,2)} offset:{32*t}")
    for i in range(3): a(f"ds_read_b128 {vr(PB+4*i,4)}, v{VSR+i}")
    OFL = cfg.get("outfl", "")
    for i in range(3):
        a(f"s_waitcnt lgkmcnt({2-i})")
        if i == 2: a("s_mov_b32 exec_hi, 0")
        a(f"buffer_store_dwordx4 {vr(PB+4*i,4)}, v{VOS[i]}, {OUT}, s27 offen {OFL}")
    a("L_fin:")


DOC = """;
; One persistent launch, 256 workgroups x 8 waves (one per CU), three phases.
;
; 1. QKV projection. 240 workgroups own a 128 token x 128 column tile. Waves 4-7 stream x and wqkv into LDS (LDS-DMA),
;    waves 0-3 multiply (MFMA 16x16x32). The tile is done in two stages of 64 tokens; the weight fragments stay in
;    it is rounded. Results go to d_ws in MFMA fragment order with write-through stores; a flag per producer follows once
;    its stores are acknowledged. The 16 workgroups without a tile clear the flags (and say so in d_debug, which every
;    workgroup checks before it touches a flag) and prefetch into L2.
; 2. Attention. Workgroup = (head, 256 queries), K and V of the head in LDS, wave = 64 queries x 1024 keys.
;    picks the upper half (the bf16 value) of every fp32 P word; a row of ones in V^T yields the row sums.
;    earlier in the launch (flagged and checked before any read); a fragment that still shows such a word is loaded
"""

def gen1(cfg):
    a = Asm()
    a(f".globl {NAME}")
    a(".p2align 12")
    a(f".fill {cfg.get('pad', 3328)//4}, 4, 0xbf800000")
    a(".p2align 8")
    a(f".type {NAME},@function")
    a(f"{NAME}:")
    a("""
    s_cmp_ge_u32 s2, 256
    s_cbranch_scc1 L_end
    """)
    stamp(a, cfg, 0, real=True); stamp(a, cfg, 1)
    a("""
    s_load_dwordx4 s[4:7], s[0:1], 0
    s_load_dwordx8 s[36:43], s[0:1], 16
    v_lshrrev_b32 v2, 6, v0
    v_and_b32 v1, 63, v0
    v_readfirstlane_b32 s16, v2
    """)
    if cfg.get("codepf", 1):
        a.c("wave 0 touches an 8 KB share of the kernel's own code so that instruction fetch hits L2")
        a(f"""
        s_getpc_b64 s[26:27]
        L_pc:
        s_bfe_u32 s3, s2, 0x30003
        s_lshl_b32 s3, s3, 13
        s_cmp_eq_u32 s16, 0
        s_cbranch_scc0 L_nopf
        v_lshl_add_u32 v3, v1, 7, s3
        v_min_u32 v3, L_code_end - L_pc - 4, v3
        global_load_dword v0, v3, s[26:27]
        L_nopf:
        """)
    if cfg.get("mapq", 1):
        a.c("tile: j = id&7, v = id>>3 ; cb(s17) = (v>>2) + (j<4 ? 7 : 0) ; tb(s18) = (j&3)*4 + (v&3) ; j>=4, v>=28: no tile")
        a("""
        s_bfe_u32 s3, s2, 0x20003
        s_and_b32 s18, s2, 3
        s_lshl_b32 s18, s18, 2
        s_add_u32 s18, s18, s3
        s_and_b32 s17, s2, 0xe4
        s_cmp_eq_u32 s17, 0xe4
        s_cbranch_scc1 L_idle
        s_bitcmp1_b32 s2, 2
        s_cselect_b32 s19, 0, 7
        s_lshr_b32 s17, s2, 5
        s_add_u32 s17, s17, s19
        s_cmp_lt_u32 s16, 4
        s_cbranch_scc1 L_qkv_cons
        """)
    else:
        a.c("tile: j = id&7, v = id>>3 ; cb(s17) = (v>>2) + 8*(j>>2) ; tb(s18) = (j&3)*4 + (v&3) ; cb 15: no tile")
        a("""
        s_lshr_b32 s17, s2, 5
        s_and_b32 s3, s2, 4
        s_lshl_b32 s3, s3, 1
        s_add_u32 s17, s17, s3
        s_bfe_u32 s3, s2, 0x20003
        s_and_b32 s18, s2, 3
        s_lshl_b32 s18, s18, 2
        s_add_u32 s18, s18, s3
        s_cmp_eq_u32 s17, 15
        s_cbranch_scc1 L_idle
        s_cmp_lt_u32 s16, 4
        s_cbranch_scc1 L_qkv_cons
        """)
    phase1_loader(a, cfg)
    a("L_idle:")
    if cfg.get("e2e"): a("s_memrealtime s[64:65]")
    a.c("workgroups without a GEMM tile: clear the hand-off flags, raise 'ready' in d_debug, pull second-stage x rows into L2")
    xr = cfg.get("xrot", XROT)
    a(f"""
    s_lshl_b32 s19, s18, 2
    s_lshl_b32 s17, s18, 13
    s_add_u32 s17, s17, {FB_OFF}
    s_lshl_b32 s20, s18, 4
    s_add_u32 s20, s20, s16
    s_mul_i32 s23, s20, {8*1280}
    s_add_u32 s20, s23, {64*1280}
    s_add_u32 s21, s20, 8192
    v_lshlrev_b32 v2, 7, v1
    v_min_u32 v3, {15*128}, v2
    v_mov_b32 v4, 0
    v_and_b32 v10, 15, v1
    v_lshlrev_b32 v10, 2, v10
    v_mov_b32 v11, {GO_ADDR}
    ds_write_b32 v11, v4
    """)
    PFC = cfg.get("pfc", [4])
    if PFC:
        a.c("lines of the k-chunks that end the two miss runs of this die: s24 = chunk offset of the die")
        a(f"""
        s_and_b32 s24, s2, 7
        s_lshl_b32 s24, s24, 2
        s_lshr_b32 s24, {sum(v << (4*i) for i, v in enumerate(xr))}, s24
        s_and_b32 s24, s24, 15
        s_lshl_b32 s25, s3, 2
        s_and_b32 s26, s16, 3
        s_add_u32 s25, s25, s26
        s_mul_i32 s25, s25, {4*3840}
        {"" if cfg.get("mapq", 1) else "s_add_u32 s25, s25, 2048"}
        s_lshr_b32 s26, s16, 2
        s_mul_i32 s26, s26, 5
        s_add_u32 s24, s24, s26
        s_lshl_b32 s22, s18, 3
        s_and_b32 s26, s16, 3
        s_add_u32 s22, s22, s26
        s_mul_i32 s22, s22, {16*1280}
        v_lshrrev_b32 v5, 4, v1
        v_mul_u32_u24 v5, 3840, v5
        v_and_b32 v6, 15, v1
        v_min_u32 v8, 13, v6
        v_lshl_add_u32 v8, v8, 7, v5
        v_min_u32 v9, 15, v1
        v_mul_u32_u24 v9, 1280, v9
        """)
    a("s_waitcnt lgkmcnt(0)")
    common_srds(a)
    srd(a, 8, 4, 2048 * 1280)
    srd(a, 12, 6, 640 * 3840)
    def pf(c):
        a(f"""
        s_add_u32 s26, s24, {c}
        s_sub_u32 s27, s26, 10
        s_cselect_b32 s26, s26, s27
        s_mul_i32 s27, s26, {64*3840}
        s_add_u32 s27, s27, s25
        s_lshl_b32 s26, s26, 7
        s_add_u32 s26, s26, s22
        buffer_load_dword v94, v8, s[12:15], s27 offen
        buffer_load_dword v95, v9, s[8:11], s26 offen
        """)
    a(f"""
    s_cmp_eq_u32 s16, 0
    s_cbranch_scc0 L_idle_pf
    buffer_store_dword v4, v2, {WS}, s17 offen sc1
    L_idle_pf:
    """)
    X1 = cfg.get("x1pf", 0)
    for c in PFC: pf(c)
    n1 = 2 * len(PFC)
    if X1:
        a(f"""
        s_add_u32 s26, s23, 8192
        buffer_load_dword v88, v2, s[8:11], s23 offen
        buffer_load_dword v89, v3, s[8:11], s26 offen
        """)
        n1 += 2
    if not n1: a(f"buffer_load_dword v92, v3, s[8:11], s21 offen")
    a(f"""
    s_cmp_eq_u32 s16, 0
    s_cbranch_scc0 L_idle_pf2
    v_mov_b32 v6, 1
    s_waitcnt vmcnt({n1 or 1})
    s_mov_b64 exec, 1
    buffer_store_dword v6, v4, {DBG}, s19 offen sc1
    s_mov_b64 exec, -1
    L_idle_pf2:
    s_barrier
    buffer_load_dword v90, v2, s[8:11], s20 offen
    """)
    if n1: a(f"buffer_load_dword v92, v3, s[8:11], s21 offen")
    if cfg.get("e2e"):
        srd(a, 96, 42, 1 << 20, add=STAMP_OFF + (2 << 20))
        a("""
        v_mov_b32 v93, s64
        s_mov_b64 exec, 1
        buffer_store_dword v93, v4, s[96:99], s19 offen
        s_mov_b64 exec, -1
        """)
    a("""
    s_cmp_eq_u32 s16, 0
    s_cbranch_scc0 L_rdy_i_ok
    """)
    poll(a, "L_rdy_i", 10, DBG, "0")
    a("""
    s_waitcnt vmcnt(0)
    s_barrier
    s_mov_b32 s63, 0
    s_cmp_lt_u32 s16, 4
    s_cbranch_scc1 L_late_setup
    """)
    attn_setup(a, cfg, early=True)
    if cfg.get("qfirst", 0):
        a.c("look only at the flags of this workgroup's Q producers until those are up: lines read before they are written slow the writers")
        a(f"""
        s_cmp_eq_u32 s16, {cfg.get("epoll", 5)}
        s_cbranch_scc0 L_early
        """)
        poll(a, "L_qfirst", VPOLL+1, WS, "s33")
    a("s_branch L_early")
    a("L_late_setup:")
    attn_setup(a, cfg, early=False)
    a("s_barrier")
    a("s_branch L_late_st")
    page(a, cfg, "qk")
    a("L_qkv_cons:")
    phase1_consumer(a, cfg)
    page(a, cfg, "late")
    a(f"""
    L_late_st:
    {"s_setprio 3" if cfg.get("lprio", 2) else ""}
    v_mov_b32 v11, {GO_ADDR + 81920}
    ds_write_b32 v11, v{VZ}
    s_barrier
    """)
    if cfg.get("a4"):
        a(f"""
        s_waitcnt vmcnt(0)
        s_cmp_eq_u32 s63, 0
        s_cbranch_scc1 L_late_nofl
        s_mov_b64 exec, 1
        buffer_store_dword v{VONE}, v{VZ}, {WS}, s60 offen sc1
        s_mov_b64 exec, -1
        L_late_nofl:
        """)
        for g in kv_dma(2, back=81920): a(g)
        a("s_waitcnt vmcnt(4)")
        for g in kv_dma(3, back=81920): a(g)
        a("s_waitcnt vmcnt(5) lgkmcnt(0)")
        a("s_barrier")
        a("s_waitcnt vmcnt(0)")
        a("s_barrier")
    else:
        for g in kv_dma(2, back=81920): a(g)
        a("s_waitcnt vmcnt(5)")
    if cfg.get("a4"): pass
    elif cfg.get("u3first", 0):
        for g in kv_dma(3, back=81920): a(g)
        a(f"""
        s_cmp_eq_u32 s63, 0
        s_cbranch_scc1 L_late_nofl
        s_mov_b64 exec, 1
        buffer_store_dword v{VONE}, v{VZ}, {WS}, s60 offen sc1
        s_mov_b64 exec, -1
        s_waitcnt vmcnt(1) lgkmcnt(0)
        s_branch L_late_a3
        L_late_nofl:
        s_waitcnt vmcnt(0) lgkmcnt(0)
        L_late_a3:
        s_barrier
        """)
    else:
        a("""
        s_cmp_eq_u32 s63, 0
        s_cbranch_scc1 L_late_nofl
        """)
        if cfg.get("t2d"): stamp(a, cfg, 3)
        if cfg.get("sat2", 1): raise_scalar(a, "s60")
        else: raise_flag(a, "s60")
        a("L_late_nofl:")
        for g in kv_dma(3, back=81920): a(g)
        a("""
        s_waitcnt vmcnt(0) lgkmcnt(0)
        s_barrier
        """)
    if cfg.get("t2d"): stamp(a, cfg, 4)
    wait_stage(a, cfg, "l", 0)
    if cfg.get("t2d"): a("s_mov_b32 s74, s35")
    stamp(a, cfg, 6)
    for g in kv_dma(0): a(g)
    qloads(a)
    a("s_waitcnt vmcnt(5) lgkmcnt(0)")
    stamp(a, cfg, 15)
    if cfg.get("u1in", 1):
        a("s_waitcnt vmcnt(0)")
    else:
        if not cfg.get("bl0"): a("s_barrier")
        for g in kv_dma(1): a(g)
        a("s_waitcnt vmcnt(5)")
    stamp(a, cfg, 7)
    attn_loop(a, cfg, early=False)
    a("s_branch L_epi")
    page(a, cfg, "early")
    a("L_early:")
    direct_init(a, cfg)
    wait_stage(a, cfg, "e", cfg.get("epoll", 5))
    stamp(a, cfg, 6)
    if cfg.get("direct", 0):
        a.c("Q and the first key tile straight into registers: the first scores are ready when the LDS image is")
        a(f"""
        buffer_load_dwordx2 {vr(QT,2)}, v{VQT}, {WS}, s26 offen offset:2048 sc1
        buffer_load_dwordx2 {vr(KT,2)}, v33, {WS}, s14 offen offset:2048 sc1
        buffer_load_dwordx2 {vr(QM0,2)}, v{VQ}, {WS}, s22 offen sc1
        buffer_load_dwordx2 {vr(QM0+2,2)}, v{VQ}, {WS}, s22 offen offset:1024 sc1
        buffer_load_dwordx2 {vr(KM,2)}, v{VQ}, {WS}, s14 offen sc1
        buffer_load_dwordx2 {vr(KM+2,2)}, v{VQ}, {WS}, s14 offen offset:1024 sc1
        buffer_load_dwordx2 {vr(QM1,2)}, v{VQ}, {WS}, s23 offen sc1
        buffer_load_dwordx2 {vr(QM1+2,2)}, v{VQ}, {WS}, s23 offen offset:1024 sc1
        """)
        for g in kv_dma(0): a(g)
        a("s_setprio 3")
        a("s_waitcnt vmcnt(11)")
        a(Tm(0, SA)); a("s_nop 15"); a("s_nop 1"); a("s_waitcnt vmcnt(5)")
        a(Mm(0, SA, 0)); a(Mm(0, SA, 1))
        a(f"s_waitcnt vmcnt({cfg.get('u1w', 3)})")
        for g in kv_dma(1): a(g)
    else:
        for g in kv_dma(0): a(g)
        qloads(a)
        a(f"s_waitcnt vmcnt({cfg.get('u1w', 5)})")
        for g in kv_dma(1): a(g)
    a("s_waitcnt vmcnt(5) lgkmcnt(0)")
    stamp(a, cfg, 5)
    a("s_barrier")
    stamp(a, cfg, 7)
    attn_loop(a, cfg, early=True)
    a.c("the filler words of every tile this workgroup will read are in place")
    a("""
    s_cmp_eq_u32 s16, 4
    s_cbranch_scc0 L_epi
    """)
    a(f"s_waitcnt vmcnt({1 if cfg.get('notice', 9) == 4 else 0})")
    a("""
    v_cmp_ne_u32 vcc, 0, v5
    s_nop 0
    s_cmp_eq_u64 vcc, -1
    s_cbranch_scc0 L_r_wait
    """)
    a("L_epi:")
    attn_epilogue(a, cfg)
    phase3(a, cfg)
    if cfg.get("stamp"): a("s_waitcnt vmcnt(0)")
    stamp(a, cfg, 13); stamp(a, cfg, 14, real=True)
    if cfg.get("stamp"): a("s_waitcnt lgkmcnt(0)"); a("s_mov_b32 s94, s28")
    if "sel" in cfg:
        a(f"""
        s_waitcnt lgkmcnt(0)
        s_cmp_ge_u32 s16, 4
        s_cselect_b32 s90, s{64 + 2*cfg["sel"]}, 0
        s_and_b32 s3, s2, 0xe4
        s_cmp_eq_u32 s3, 0xe4
        s_cselect_b32 s90, 0, s90
        """)
    if "xsel" in cfg:
        a(f"""
        s_waitcnt lgkmcnt(0)
        s_and_b32 s90, s2, 7
        s_cmp_eq_u32 s90, {cfg["xsel"]}
        s_cselect_b32 s90, s64, 0
        """)
    if cfg.get("xcc"):
        a("""
        s_waitcnt lgkmcnt(0)
        s_getreg_b32 s90, hwreg(HW_REG_XCC_ID, 0, 4)
        s_sub_u32 s90, s90, s2
        s_and_b32 s90, s90, 7
        s_mul_i32 s90, s90, 200
        """)
    stamp_flush(a, cfg, 0, 16, 8, wsptr=42)
    a("L_end:")
    a("s_endpgm")
    TAIL.pop()()
    a("L_code_end:")
    a("L_r_wait:")
    poll(a, "L_r_spin", P3+7, WS, "s40")
    a("s_branch L_epi")
    attn_slow(a)
    head = open("standalone__softmax_full_mha__prompt.s.ref").read().split("; Override launch")[0]
    descs = descriptor(NAME, 256)
    if cfg.get("probe"):
        import k_probe
        if cfg.get("lat"):
            head += "; @launch kernel=lat_kernel grid=(1,1,1) block=(64,1,1) lds=0\n"
            descs += k_probe.gen_lat(a, cfg)
        head += f"; @launch kernel={NAME} grid=(256,1,1) block=(512,1,1) lds=163840\n; @launch kernel=probe_kernel grid=(1,1,1) block=(64,1,1) lds=0\n"
        descs += k_probe.gen_probe(a, cfg)
    elif cfg.get("e2e"):
        import k_probe
        head += "; @launch kernel=prev_kernel grid=(1,1,1) block=(64,1,1) lds=0\n"
        a(".p2align 12")
        descs += k_probe.gen_prev(a, cfg)
        head += f"; @launch kernel={NAME} grid=(256,1,1) block=(512,1,1) lds=163840\n; @launch kernel=next_kernel grid=(1,1,1) block=(64,1,1) lds=0\n"
        descs += k_probe.gen_next(a, cfg)
    elif cfg.get("list"):
        head += f"; @launch kernel={NAME} grid=(256,1,1) block=(512,1,1) lds=163840\n"
    else:
        head += "; @launch grid=(256,1,1) block=(512,1,1) lds=163840\n"
    return head + DOC + '.amdgcn_target "amdgcn-amd-amdhsa--gfx950"\n.text\n' + a.text() + '.section .rodata,"a"\n' + descs

def gen(cfg):
    if not cfg.get("layout", 1): return gen1(cfg)
    import subprocess, tempfile, os
    d = tempfile.mkdtemp()
    c = dict(cfg, pages={"qk": 0, "v": 0, "late": 0, "early": cfg.get("eoff", 128)})
    open(d + "/a.s", "w").write(gen1(c))
    subprocess.run(["clang", "-x", "assembler", "-target", "amdgcn-amd-amdhsa", "-mcpu=gfx950", "-c", d + "/a.s", "-o", d + "/a.o"], check=True)
    o = subprocess.run(["llvm-objdump", "-t", d + "/a.o"], capture_output=True, text=True).stdout
    L = {m.group(2): int(m.group(1), 16) for m in re.finditer(r"^([0-9a-f]+) .* (L_\w+)$", o, re.M)}
    c["pages"]["qk"] = (-L["L_end_qk"]) % 4096 // 8 * 8
    c["pages"]["v"] = (-L["L_end_v"] - 64) % 4096 // 8 * 8
    return gen1(c)

if __name__ == "__main__":
    cfg = json.loads(sys.argv[2]) if len(sys.argv) > 2 else {}
    open(sys.argv[1], "w").write(gen(cfg))
```
